```python
import torch

def _softmax(x, axis=-1):
    return torch.softmax(x, dim=axis)
def _gelu(x):
    return torch.nn.functional.gelu(x, approximate="tanh")
def _silu(x):
    return torch.nn.functional.silu(x)
def _sigmoid(x):
    return torch.sigmoid(x)
def _layernorm(x, axis=-1, eps=1e-5):
    m = x.mean(dim=axis, keepdim=True)
    v = x.var(dim=axis, keepdim=True, unbiased=False)
    return (x - m) / torch.sqrt(v + eps)
def _scatter_add(tgt, idx, src, axis=0):
    return tgt.clone().index_add_(axis, idx, src)
def _segment_sum(src, seg, n):
    out = torch.zeros((n,) + src.shape[1:], dtype=src.dtype)
    return out.index_add_(0, seg, src)
def _pad(x, pw):
    flat = tuple(v for pair in reversed(pw) for v in pair)
    return torch.nn.functional.pad(x, flat)

kernel_name = 'standalone__swiglu_ffn__sampling'

def setup_inputs():

    _w = (lambda a: (lambda t: t.to(torch.bfloat16) if t.is_floating_point() else t)(torch.as_tensor(a)))
    B, S, D, F = 8, 16, 1024, 3584
    return {
        "x": _w((lambda *s: torch.randn(*s, dtype=torch.bfloat16) * 0.05)(B, S, D)),
        "w_gate": _w((lambda *s: torch.randn(*s, dtype=torch.bfloat16) * 0.05)(D, F)),
        "w_up": _w((lambda *s: torch.randn(*s, dtype=torch.bfloat16) * 0.05)(D, F)),
        "w_down": _w((lambda *s: torch.randn(*s, dtype=torch.bfloat16) * 0.05)(F, D)),
    }

def reference(x, w_gate, w_up, w_down):
    g = _silu(x @ w_gate)
    u = x @ w_up
    return (g * u) @ w_down
```

```python
class Asm:
    def __init__(self):
        self.lines = []
    def __call__(self, s=""):
        for ln in s.split("\n"):
            ln = ln.strip()
            if not ln:
                continue
            if ln.endswith(":") or ln.startswith("."):
                self.lines.append(ln)
            else:
                self.lines.append("    " + ln)
    def c(self, s):
        self.lines.append("    ; " + s)
    def text(self):
        return "\n".join(self.lines) + "\n"

def vr(a, n):
    return f"v[{a}:{a+n-1}]" if n > 1 else f"v{a}"
def ar(a, n):
    return f"a[{a}:{a+n-1}]" if n > 1 else f"a{a}"
def sr(a, n):
    return f"s[{a}:{a+n-1}]" if n > 1 else f"s{a}"

HEADER = """; Kernarg layout for this problem (56 bytes, ptrs only, base s[0:1]):
"""

def kdesc(name, nvgpr, accum, nsgpr=96):
    return f""".section .rodata,"a"
.p2align 6
.amdhsa_kernel {name}
  .amdhsa_next_free_vgpr {nvgpr}
  .amdhsa_next_free_sgpr {nsgpr}
  .amdhsa_accum_offset {accum}
  .amdhsa_group_segment_fixed_size 0
  .amdhsa_kernarg_size 56
  .amdhsa_user_sgpr_count 2
  .amdhsa_user_sgpr_kernarg_segment_ptr 1
  .amdhsa_system_sgpr_workgroup_id_x 1
.end_amdhsa_kernel
"""

def kstart(a, name):
    a(f""".text
.globl {name}
.p2align 8
.type {name},@function
{name}:""")

def srd(a, d, base, nbytes):
    a(f"s_mov_b32 s{d}, s{base}")
    a(f"s_and_b32 s{d+1}, s{base+1}, 0xffff")
    a(f"s_mov_b32 s{d+2}, {nbytes}")
    a(f"s_mov_b32 s{d+3}, 0x20000")
```

```python
import sys
from asmlib import *

X_B, W_B, OUT_B, WS_B = 128*1024*2, 1024*3584*2, 128*1024*2, 268435456
H_OFF = 0
P_OFF = 1 << 20
ST_OFF = 8 << 20
STAMP = int(sys.argv[2]) if len(sys.argv) > 2 else 0
R = 10

S_X, S_WG, S_WU, S_WD, S_OUT, S_DBG, S_WS = 4, 6, 8, 10, 12, 14, 16
R_X, R_G, R_U, R_D, R_WS, R_OUT = 20, 24, 28, 32, 36, 40

def prolog(a, lim, end):
    a(f"s_cmp_ge_u32 s2, {lim}")
    a(f"s_cbranch_scc1 {end}")
    a("s_load_dwordx8 s[4:11], s[0:1], 0")
    a("s_load_dwordx4 s[12:15], s[0:1], 32")
    a("s_load_dwordx2 s[16:17], s[0:1], 48")

def stamp(a, idx):
    if STAMP:
        a(f"s_memrealtime s[{64+2*idx}:{65+2*idx}]")

def stamp_flush(a, n, kidx):
    if not STAMP:
        return
    a("s_waitcnt lgkmcnt(0)")
    a("s_getreg_b32 s62, hwreg(HW_REG_XCC_ID)")
    for i in range(n):
        a(f"v_mov_b32 v{100+i}, s{64+2*i}")
    for i in range(n, 7):
        a(f"v_mov_b32 v{100+i}, 0")
    a("v_mov_b32 v107, s62")
    a(f"s_lshl_b32 s63, s2, 5")
    a(f"s_add_u32 s63, s63, {ST_OFF + kidx*256*32}")
    a("v_mov_b32 v108, s63")
    a("v_cmp_eq_u32 vcc, 0, v0")
    a("s_and_saveexec_b64 s[60:61], vcc")
    a(f"s_cbranch_execz L_st_{kidx}")
    a(f"buffer_store_dwordx4 v[100:103], v108, s[{R_WS}:{R_WS+3}], 0 offen")
    a(f"buffer_store_dwordx4 v[104:107], v108, s[{R_WS}:{R_WS+3}], 0 offen offset:16")
    a(f"L_st_{kidx}:")
    a("s_mov_b64 exec, s[60:61]")

def phase1(a):
    name = "p1_kernel"
    kstart(a, name)
    stamp(a, 0)
    prolog(a, 256, "L_p1_end")
    a("""
    s_and_b32 s48, s2, 7          ; j
    s_lshr_b32 s49, s2, 3         ; q
    s_cmp_ge_u32 s49, 28
    s_cbranch_scc1 L_p1_end
    s_and_b32 s50, s49, 1         ; mh
    s_lshr_b32 s51, s49, 1        ; ft
    s_mul_i32 s52, s48, 14
    s_add_u32 s52, s52, s51       ; s_tile
    v_lshrrev_b32 v1, 6, v0       ; wave
    v_and_b32 v2, 63, v0          ; lane
    v_readfirstlane_b32 s53, v1   ; w
    v_lshrrev_b32 v3, 2, v2       ; l/4
    v_and_b32 v4, 3, v2           ; l%4
    v_lshl_add_u32 v3, v1, 4, v3  ; 16w + l/4
    v_mul_u32_u24 v3, 7168, v3
    s_lshl_b32 s54, s52, 6
    v_add_u32 v3, s54, v3
    v_lshl_add_u32 v10, v4, 4, v3 ; vG
    v_xor_b32 v4, 2, v4
    v_lshl_add_u32 v11, v4, 4, v3 ; vU
    v_lshrrev_b32 v3, 3, v2       ; r = l/8
    v_and_b32 v4, 7, v2           ; p
    v_lshrrev_b32 v5, 1, v3       ; r>>1
    v_xor_b32 v4, v4, v5          ; p ^ (r>>1)
    v_lshl_add_u32 v3, v1, 4, v3  ; 16w + r
    s_lshl_b32 s54, s50, 6
    v_add_u32 v3, s54, v3         ; + 64 mh
    v_lshlrev_b32 v3, 11, v3
    v_lshl_add_u32 v12, v4, 4, v3 ; vX0
    v_xor_b32 v4, 4, v4
    v_lshl_add_u32 v13, v4, 4, v3
    v_add_u32 v13, 0x4000, v13
    s_lshl_b32 s55, s53, 10       ; w*1024
    s_lshl_b32 s56, s53, 11       ; w*2048
    s_waitcnt lgkmcnt(0)
    """)
    srd(a, R_G, S_WG, W_B)
    srd(a, R_U, S_WU, W_B)
    srd(a, R_X, S_X, X_B)
    def issue(c):
        slot = c % R
        a(f"s_add_u32 m0, s55, {slot*16384}")
        a(f"s_mov_b32 s57, {c*64*7168}")
        a(f"buffer_load_dwordx4 v10, s[{R_G}:{R_G+3}], s57 offen lds")
        a(f"s_add_u32 m0, s55, {slot*16384+4096}")
        a(f"s_mov_b32 s58, {c*128}")
        a(f"buffer_load_dwordx4 v11, s[{R_U}:{R_U+3}], s57 offen lds")
        a(f"s_add_u32 m0, s56, {slot*16384+8192}")
        a("s_nop 0")
        a(f"buffer_load_dwordx4 v12, s[{R_X}:{R_X+3}], s58 offen lds")
        a(f"s_add_u32 m0, s56, {slot*16384+8192+1024}")
        a("s_nop 0")
        a(f"buffer_load_dwordx4 v13, s[{R_X}:{R_X+3}], s58 offen lds")
    for c in range(R):
        issue(c)
    srd(a, R_WS, S_WS, WS_B)
    stamp(a, 1)
    a("""
    v_lshrrev_b32 v3, 4, v2       ; G = l/16
    v_and_b32 v4, 1, v3           ; isU
    v_lshrrev_b32 v5, 5, v2       ; hf
    v_bfe_u32 v6, v2, 2, 2        ; r
    v_lshl_add_u32 v6, v5, 3, v6  ; 8hf + r
    v_lshlrev_b32 v6, 6, v6       ; *64
    v_lshl_add_u32 v6, v4, 12, v6 ; + isU*4096
    v_and_b32 v7, 1, v1           ; fi
    v_xor_b32 v7, v7, v4
    v_lshl_add_u32 v6, v7, 5, v6
    v_and_b32 v7, 3, v2
    v_lshl_add_u32 v16, v7, 3, v6
    v_add_u32 v17, 0x10000, v16
    v_add_u32 v18, 0x20000, v16
    v_lshrrev_b32 v6, 1, v1       ; mi
    v_and_b32 v7, 31, v2
    v_lshl_add_u32 v6, v6, 5, v7  ; m = 32 mi + l%32
    v_bfe_u32 v7, v6, 1, 3        ; sw
    v_xor_b32 v7, v7, v5
    v_lshlrev_b32 v6, 7, v6
    v_add_u32 v6, 0x2000, v6
    """)
    for s in range(4):
        a(f"v_xor_b32 v8, {2*s}, v7")
        a(f"v_lshl_add_u32 v{20+s}, v8, 4, v6")
        a(f"v_add_u32 v{24+s}, 0x10000, v{20+s}")
        a(f"v_add_u32 v{28+s}, 0x20000, v{20+s}")
    a(f"""
    v_lshrrev_b32 v6, 1, v1       ; mi
    v_bfe_u32 v7, v2, 4, 1
    v_lshl_add_u32 v6, v6, 1, v7  ; 2mi + ((l%32)>>4)
    s_lshl_b32 s54, s50, 2
    s_lshl_b32 s59, s52, 3
    s_add_u32 s54, s54, s59
    v_add_u32 v6, s54, v6
    v_lshlrev_b32 v6, 10, v6
    v_and_b32 v7, 1, v1
    v_lshl_add_u32 v7, v7, 1, v5
    v_lshl_add_u32 v6, v7, 8, v6
    v_and_b32 v7, 15, v2
    v_lshl_add_u32 v14, v7, 4, v6 ; h addr
    """)
    ACC = 32
    FA = 48
    FB = 64
    issued = R
    for c in range(16):
        a(f"s_waitcnt vmcnt({4*(issued-1-c)})")
        a("s_barrier")
        if c == 0: stamp(a, 2)
        if c == 15: stamp(a, 3)
        slot = c % R
        rng, so = slot // 4, (slot % 4) * 16384
        for s in range(4):
            a(f"ds_read_b64_tr_b16 v[{FA+4*s}:{FA+4*s+1}], v{16+rng} offset:{so + 1024*s}")
            a(f"ds_read_b64_tr_b16 v[{FA+4*s+2}:{FA+4*s+3}], v{16+rng} offset:{so + 1024*s + 256}")
            a(f"ds_read_b128 v[{FB+4*s}:{FB+4*s+3}], v{20+4*rng+s} offset:{so}")
        if c >= 1 and c - 1 + R < 16:
            issue(c - 1 + R)
            issued += 1
        for s in range(4):
            a(f"s_waitcnt lgkmcnt({3*(3-s)})")
            cin = "0" if (c == 0 and s == 0) else vr(ACC, 16)
            a(f"v_mfma_f32_32x32x16_bf16 {vr(ACC,16)}, {vr(FA+4*s,4)}, {vr(FB+4*s,4)}, {cin}")
    a("s_nop 7")
    a("s_nop 4")
    for r in range(8):
        a(f"v_mul_f32 v{48+r}, 0xbfb8aa3b, v{ACC+r}")
    for r in range(8):
        a(f"v_exp_f32 v{48+r}, v{48+r}")
    for r in range(8):
        a(f"v_add_f32 v{48+r}, 1.0, v{48+r}")
    for r in range(8):
        a(f"v_rcp_f32 v{48+r}, v{48+r}")
    for r in range(8):
        a(f"v_mul_f32 v{56+r}, v{ACC+r}, v{ACC+8+r}")
    for r in range(8):
        a(f"v_mul_f32 v{48+r}, v{48+r}, v{56+r}")
    for d in range(4):
        a(f"v_cvt_pk_bf16_f32 v{64+d}, v{48+2*d}, v{49+2*d}")
    a(f"buffer_store_dwordx4 v[64:67], v14, s[{R_WS}:{R_WS+3}], 0 offen")
    stamp(a, 4)
    if STAMP:
        a("s_waitcnt vmcnt(0)")
        stamp(a, 5)
        stamp_flush(a, 6, 0)
    a("L_p1_end:")
    a("s_endpgm")
    return kdesc(name, 112, 112)

def phase2(a):
    name = "p2_kernel"
    kstart(a, name)
    stamp(a, 0)
    prolog(a, 256, "L_p2_end")
    a("""
    s_and_b32 s48, s2, 7          ; j
    s_lshr_b32 s49, s2, 3         ; q
    s_and_b32 s50, s49, 1         ; mh
    s_lshr_b32 s51, s49, 1        ; nt
    v_lshrrev_b32 v1, 6, v0       ; wave
    v_and_b32 v2, 63, v0          ; lane
    v_readfirstlane_b32 s53, v1   ; w
    v_lshrrev_b32 v3, 3, v2       ; r
    v_and_b32 v4, 7, v2           ; p
    v_and_b32 v5, 6, v3           ; ((r>>1)&3)<<1
    v_xor_b32 v4, v4, v5
    v_lshl_add_u32 v3, v1, 3, v3  ; 8w + r
    s_mul_i32 s54, s48, 448
    v_add_u32 v3, s54, v3
    v_lshlrev_b32 v3, 11, v3
    s_lshl_b32 s54, s51, 7
    v_add_u32 v3, s54, v3
    v_lshl_add_u32 v10, v4, 4, v3 ; vD
    s_mul_i32 s54, s48, 112
    s_lshl_b32 s59, s50, 2
    s_add_u32 s54, s54, s59
    v_add_u32 v3, s54, v1         ; 14j*8 + 4mh + w
    v_lshlrev_b32 v3, 10, v3
    v_lshl_add_u32 v11, v2, 4, v3 ; vH
    s_lshl_b32 s55, s53, 10
    s_waitcnt lgkmcnt(0)
    """)
    srd(a, R_D, S_WD, W_B)
    srd(a, R_WS, S_WS, WS_B)
    HB = 64
    for s in range(14):
        a(f"s_add_u32 m0, s55, {s*4096}")
        a(f"s_mov_b32 s57, {s*65536}")
        a(f"buffer_load_dwordx4 v10, s[{R_D}:{R_D+3}], s57 offen lds")
    for s in range(14):
        a(f"s_mov_b32 s57, {H_OFF + s*8192}")
        a(f"buffer_load_dwordx4 {vr(HB+4*s,4)}, v11, s[{R_WS}:{R_WS+3}], s57 offen")
    stamp(a, 1)
    a("""
    v_lshrrev_b32 v3, 4, v2       ; kg
    v_bfe_u32 v4, v2, 2, 2        ; r
    v_and_b32 v5, 1, v3           ; kg&1
    v_lshrrev_b32 v6, 1, v3       ; kg>>1
    v_lshlrev_b32 v6, 4, v6
    v_lshl_add_u32 v6, v5, 2, v6
    v_add_u32 v6, v6, v4          ; rho
    v_lshlrev_b32 v6, 7, v6
    v_and_b32 v7, 3, v2
    v_lshl_add_u32 v6, v7, 3, v6
    v_lshrrev_b32 v4, 1, v4
    v_lshl_add_u32 v4, v5, 1, v4  ; 2(kg&1) + (r>>1)
    """)
    for t in range(4):
        a(f"v_xor_b32 v7, {t}, v4")
        a(f"v_lshl_add_u32 v{16+t}, v7, 5, v6")
    a(f"""
    v_bfe_u32 v4, v2, 3, 1
    v_lshl_add_u32 v4, v1, 1, v4  ; owner
    s_lshl_b32 s54, s49, 3
    v_add_u32 v4, s54, v4
    v_lshlrev_b32 v4, 3, v4
    v_add_u32 v4, s48, v4
    v_lshlrev_b32 v4, 11, v4
    v_lshl_add_u32 v4, v3, 7, v4
    v_and_b32 v5, 7, v2
    v_lshl_add_u32 v4, v5, 4, v4
    v_add_u32 v14, {P_OFF}, v4
    """)
    a("s_waitcnt vmcnt(14)")
    a("s_barrier")
    stamp(a, 2)
    for s in range(14):
        for t in range(4):
            base = (s*4+t)*4
            a(f"ds_read_b64_tr_b16 a[{base}:{base+1}], v{16+t} offset:{s*4096}")
            a(f"ds_read_b64_tr_b16 a[{base+2}:{base+3}], v{16+t} offset:{s*4096+1024}")
        if s >= 1:
            a("s_waitcnt lgkmcnt(8)")
    a("s_waitcnt lgkmcnt(0)")
    ACC = 32
    for s in range(14):
        a(f"s_waitcnt vmcnt({13-s})")
        for t in range(4):
            base = (s*4+t)*4
            cin = "0" if s == 0 else vr(ACC+4*t, 4)
            a(f"v_mfma_f32_16x16x32_bf16 {vr(ACC+4*t,4)}, a[{base}:{base+3}], {vr(HB+4*s,4)}, {cin}")
    a("s_nop 4")
    for t in range(4):
        if t == 3: a("s_nop 4")
        a(f"buffer_store_dwordx4 {vr(ACC+4*t,4)}, v14, s[{R_WS}:{R_WS+3}], 0 offen offset:{t*512}")
    stamp(a, 3)
    if STAMP:
        a("s_waitcnt vmcnt(0)")
        stamp(a, 4)
        stamp_flush(a, 5, 1)
    a("L_p2_end:")
    a("s_endpgm")
    return kdesc(name, 128+224, 128)

def phase3(a):
    name = "p3_kernel"
    kstart(a, name)
    stamp(a, 0)
    prolog(a, 256, "L_p3_end")
    a(f"""
    s_and_b32 s48, s2, 7          ; owner
    s_lshr_b32 s49, s2, 3         ; grp
    s_and_b32 s50, s49, 1         ; mh
    s_lshr_b32 s51, s49, 1        ; nt
    v_lshrrev_b32 v1, 6, v0       ; wave = t
    v_and_b32 v2, 63, v0
    v_lshrrev_b32 v3, 5, v2       ; half
    v_and_b32 v4, 31, v2
    v_lshl_add_u32 v4, v1, 5, v4  ; gidx
    v_lshlrev_b32 v4, 4, v4
    v_lshl_add_u32 v4, v3, 13, v4
    s_lshl_b32 s54, s49, 3
    s_add_u32 s54, s54, s48
    s_lshl_b32 s54, s54, 14
    s_add_u32 s54, s54, {P_OFF}
    v_add_u32 v10, s54, v4
    v_and_b32 v4, 7, v2           ; r
    s_lshl_b32 s54, s50, 6
    s_lshl_b32 s59, s48, 3
    s_add_u32 s54, s54, s59
    v_add_u32 v4, s54, v4         ; m
    v_lshlrev_b32 v4, 11, v4
    v_bfe_u32 v5, v2, 3, 2        ; kq
    v_lshl_add_u32 v4, v5, 3, v4
    v_lshl_add_u32 v4, v3, 2, v4
    v_lshl_add_u32 v4, v1, 5, v4
    s_lshl_b32 s54, s51, 7
    v_add_u32 v11, s54, v4
    s_movk_i32 s57, 0x1000
    s_waitcnt lgkmcnt(0)
    """)
    srd(a, R_WS, S_WS, WS_B)
    srd(a, R_OUT, S_OUT, OUT_B)
    a(f"buffer_load_dwordx4 v[16:19], v10, s[{R_WS}:{R_WS+3}], 0 offen")
    a(f"buffer_load_dwordx4 v[20:23], v10, s[{R_WS}:{R_WS+3}], 0 offen offset:2048")
    a(f"buffer_load_dwordx4 v[24:27], v10, s[{R_WS}:{R_WS+3}], s57 offen")
    a(f"buffer_load_dwordx4 v[28:31], v10, s[{R_WS}:{R_WS+3}], s57 offen offset:2048")
    a("s_waitcnt vmcnt(2)")
    for i in range(4): a(f"v_add_f32 v{16+i}, v{16+i}, v{20+i}")
    a("s_waitcnt vmcnt(0)")
    for i in range(4): a(f"v_add_f32 v{24+i}, v{24+i}, v{28+i}")
    for i in range(4): a(f"v_add_f32 v{16+i}, v{16+i}, v{24+i}")
    a("s_nop 1")
    a("v_permlane32_swap_b32 v16, v18")
    a("v_permlane32_swap_b32 v17, v19")
    a("s_nop 1")
    a("v_add_f32 v16, v16, v18")
    a("v_add_f32 v17, v17, v19")
    a("v_cvt_pk_bf16_f32 v16, v16, v17")
    a(f"buffer_store_dword v16, v11, s[{R_OUT}:{R_OUT+3}], 0 offen")
    stamp(a, 1)
    if STAMP:
        a("s_waitcnt vmcnt(0)")
        stamp(a, 2)
        stamp_flush(a, 3, 2)
    a("L_p3_end:")
    a("s_endpgm")
    return kdesc(name, 112, 112)

a = Asm()
hdr = HEADER + f"""; @launch kernel=p1_kernel grid=(256,1,1) block=(256,1,1) lds={R*16384}
; @launch kernel=p2_kernel grid=(256,1,1) block=(256,1,1) lds=57344
; @launch kernel=p3_kernel grid=(256,1,1) block=(256,1,1) lds=0
.amdgcn_target "amdgcn-amd-amdhsa--gfx950"
"""
d = phase1(a) + phase2(a) + phase3(a)
open(sys.argv[1], "w").write(hdr + a.text() + d)
```

```python
from asmlib import *
X_B, W_B, OUT_B, WS_B = 128*1024*2, 1024*3584*2, 128*1024*2, 268435456
ST_OFF = 8 << 20
S_X, S_WG, S_WU, S_WD, S_OUT, S_DBG, S_WS = 4, 6, 8, 10, 12, 14, 16
R_X, R_G, R_U, R_D, R_WS, R_OUT = 20, 24, 28, 32, 36, 40
KN = "standalone__swiglu_ffn__sampling_kernel"
def prolog(a, lim, end):
    a(f"s_cmp_ge_u32 s2, {lim}")
    a(f"s_cbranch_scc1 {end}")
    a("s_load_dwordx8 s[4:11], s[0:1], 0")
    a("s_load_dwordx4 s[12:15], s[0:1], 32")
    a("s_load_dwordx2 s[16:17], s[0:1], 48")
def stamp(a, idx, clk=False):
    a(f"{'s_memtime' if clk else 's_memrealtime'} s[{64+2*idx}:{65+2*idx}]")
def stamp_flush(a, n, kidx=0, vb=100):
    a("s_waitcnt lgkmcnt(0)")
    a("s_getreg_b32 s62, hwreg(HW_REG_XCC_ID)")
    for i in range(n):
        a(f"v_mov_b32 v{vb+i}, s{64+2*i}")
    for i in range(n, 7):
        a(f"v_mov_b32 v{vb+i}, 0")
    a(f"v_mov_b32 v{vb+7}, s62")
    a(f"s_lshl_b32 s63, s2, 5")
    a(f"s_add_u32 s63, s63, {ST_OFF + kidx*256*32}")
    a(f"v_mov_b32 v{vb+8}, s63")
    a("v_cmp_eq_u32 vcc, 0, v0")
    a("s_and_saveexec_b64 s[60:61], vcc")
    a(f"s_cbranch_execz L_st_{kidx}")
    a(f"buffer_store_dwordx4 v[{vb}:{vb+3}], v{vb+8}, s[{R_WS}:{R_WS+3}], 0 offen")
    a(f"buffer_store_dwordx4 v[{vb+4}:{vb+7}], v{vb+8}, s[{R_WS}:{R_WS+3}], 0 offen offset:16")
    a(f"L_st_{kidx}:")
    a("s_mov_b64 exec, s[60:61]")
def finish(a, fn, block=256, lds=0, grid=256, nv=128, acc=128):
    hdr = HEADER + f"; @launch grid=({grid},1,1) block=({block},1,1) lds={lds}\n.amdgcn_target \"amdgcn-amd-amdhsa--gfx950\"\n"
    open(fn, "w").write(hdr + a.text() + kdesc(KN, nv, acc))
```

```python
from mb_common import *
import sys, re
def enc(k, si, op, nvalid0, nvalidk, D0=4000):
    name = "enc_kernel"
    a = Asm(); kstart(a, name)
    prolog(a, 1, "L_end_enc")
    a("s_waitcnt lgkmcnt(0)")
    srd(a, R_WS, S_WS, WS_B)
    a(f"""
    v_lshlrev_b32 v1, 5, v0
    v_add_u32 v2, {ST_OFF + k*256*32 + si*4}, v1
    v_add_u32 v1, {ST_OFF}, v1
    buffer_load_dword v3, v1, s[{R_WS}:{R_WS+3}], 0 offen
    buffer_load_dword v4, v2, s[{R_WS}:{R_WS+3}], 0 offen
    v_mov_b32 v5, 0
    v_mov_b32 v6, -1
    v_mov_b32 v7, {0 if op == 'max' else -1}
    ds_write_b32 v5, v6
    ds_write_b32 v5, v7 offset:4
    s_waitcnt vmcnt(0) lgkmcnt(0)
    s_barrier
    v_cmp_gt_u32 vcc, {nvalid0}, v0
    s_nop 1
    v_cndmask_b32 v3, -1, v3, vcc
    v_cmp_gt_u32 vcc, {nvalidk}, v0
    s_nop 1
    v_cndmask_b32 v4, v7, v4, vcc
    ds_min_u32 v5, v3
    ds_{op}_u32 v5, v4 offset:4
    s_waitcnt lgkmcnt(0)
    s_barrier
    ds_read_b64 v[8:9], v5
    s_waitcnt lgkmcnt(0)
    v_readfirstlane_b32 s50, v8
    v_readfirstlane_b32 s51, v9
    s_nop 3
    s_sub_u32 s51, s51, s50
    s_min_u32 s51, s51, 5000
    s_add_u32 s51, s51, {D0}
    L_spin:
    s_memrealtime s[52:53]
    s_waitcnt lgkmcnt(0)
    s_sub_u32 s54, s52, s50
    s_cmp_gt_u32 s54, 20000
    s_cbranch_scc1 L_end_enc
    s_cmp_lt_u32 s54, s51
    s_cbranch_scc1 L_spin
    L_end_enc:
    s_endpgm
    """)
    return a.text(), kdesc(name, 128, 128), f"; @launch kernel={name} grid=(1,1,1) block=(256,1,1) lds=64\n"
def mk(src, fn, **kw):
    s = open(src).read()
    code, desc, l = enc(**kw)
    lines = s.split("\n")
    idx = max(i for i, x in enumerate(lines) if x.startswith("; @launch"))
    for i, x in enumerate(lines):
        if x.startswith("; @launch grid"):
            lines[i] = x.replace("; @launch grid", f"; @launch kernel={KN} grid")
    lines.insert(idx+1, l.strip())
    s = "\n".join(lines)
    s = s.replace('.section .rodata,"a"', code + '.section .rodata,"a"', 1) + desc
    open(fn, 'w').write(s)
if __name__ == "__main__":
    src = sys.argv[1]; nv0 = int(sys.argv[2])
    out = []
    for spec in sys.argv[3:]:
        k, si, op, nv = spec.split(":")
        fn = src[:-2] + f"_enc_{k}_{si}_{op}.s"
        mk(src, fn, k=int(k), si=int(si), op=op, nvalid0=nv0, nvalidk=int(nv))
        out.append("work/" + fn)
    print(str(out).replace("'", '"'))
```

```python
import sys
from asmlib import *

KN = "standalone__swiglu_ffn__sampling_kernel"
X_B, W_B, OUT_B, WS_B = 128*1024*2, 1024*3584*2, 128*1024*2, 268435456
HA_OFF = 0
HB_OFF = 1 << 20
P_OFF = 2 << 20
FA_OFF = 6 << 20
FB_OFF = FA_OFF + 4096
EP_OFF = FA_OFF + 8192
ST_OFF = 8 << 20
S_X, S_WG, S_WU, S_WD, S_OUT, S_DBG, S_WS = 4, 6, 8, 10, 12, 14, 16
R_X, R_G, R_U, R_D, R_WS, R_OUT = 20, 24, 28, 32, 36, 40
WD_LDS = 98304
SPIN = 1 << 18

class O:
    stamp = 0
    local = 0
    codepf = 3
    sl1 = 2
    sl2 = 2
    wd_at = 13
def opts(argv):
    for x in argv:
        k, v = x.split("=")
        setattr(O, k, int(v))

def stamp(a, idx):
    if O.stamp:
        a(f"s_memrealtime s[{64+2*idx}:{65+2*idx}]")

def rs(r): return f"s[{r}:{r+3}]"

def gen():
    a = Asm()
    kstart(a, KN)
    stamp(a, 0)
    a("""
    s_load_dwordx8 s[4:11], s[0:1], 0
    s_load_dwordx4 s[12:15], s[0:1], 32
    s_load_dwordx2 s[16:17], s[0:1], 48
    s_cmp_ge_u32 s2, 256
    s_cbranch_scc1 L_end
    s_and_b32 s48, s2, 7
    s_lshr_b32 s49, s2, 3           ; q
    v_lshrrev_b32 v1, 6, v0         ; wave
    v_and_b32 v2, 63, v0            ; lane
    s_cmp_lt_u32 s49, 14
    v_readfirstlane_b32 s53, v1
    s_cbranch_scc1 L_p1
    """)
    a(f"""
    s_sub_u32 s52, s49, 14          ; p
    s_mul_i32 s54, s52, 25
    v_add_u32 v3, s54, v2
    v_mul_u32_u24 v5, 9363, v3
    v_lshrrev_b32 v5, 16, v5        ; row
    v_mul_u32_u24 v6, 7, v5
    v_sub_u32 v6, v3, v6            ; col
    v_mul_u32_u24 v5, 7168, v5
    v_lshl_add_u32 v5, v6, 7, v5
    s_mul_i32 s54, s48, 896
    v_add_u32 v5, s54, v5
    v_cmp_gt_u32 vcc, 25, v2
    s_movk_i32 s54, 448
    v_cmp_gt_u32 s[44:45], s54, v3
    v_bfrev_b32 v7, 2
    s_lshl_b32 s54, s52, 3
    s_and_b64 vcc, vcc, s[44:45]
    v_add_u32 v3, s54, v2
    v_lshlrev_b32 v6, 11, v3
    v_cndmask_b32 v10, v7, v5, vcc
    v_cmp_gt_u32 vcc, 8, v2
    s_cmp_lg_u32 s53, 0
    s_mov_b32 s22, {X_B}
    v_cndmask_b32 v11, v7, v6, vcc
    s_mov_b32 s23, 0x20000
    s_mov_b32 s26, {W_B}
    s_mov_b32 s27, 0x20000
    s_mov_b32 s30, {W_B}
    s_mov_b32 s31, 0x20000
    s_waitcnt lgkmcnt(0)
    s_cbranch_scc1 L_pf_other
    s_mov_b64 s[24:25], s[6:7]
    s_mov_b64 s[28:29], s[8:9]
    s_mov_b64 s[20:21], s[4:5]
    """)
    stamp(a, 1)
    for c in range(16):
        if c == 0:
            so_w, so_x = "0", "0"
        else:
            a(f"s_mov_b32 s57, {c*64*7168}")
            a(f"s_movk_i32 s58, {c*128}")
            so_w, so_x = "s57", "s58"
        a(f"buffer_load_dword v20, v10, {rs(R_G)}, {so_w} offen")
        a(f"buffer_load_dword v21, v10, {rs(R_U)}, {so_w} offen")
        a(f"buffer_load_dword v22, v11, {rs(R_X)}, {so_x} offen")
        if c == O.codepf:
            a(f"""
            s_getpc_b64 s[44:45]
            L_pc:
            s_sub_u32 s44, s44, L_pc-{KN}
            s_subb_u32 s45, s45, 0
            s_mul_i32 s54, s52, 6
            v_min_u32 v3, 5, v2
            v_add_u32 v3, s54, v3
            v_min_u32 v3, (L_code_end-{KN}-4)/128, v3
            v_lshlrev_b32 v3, 7, v3
            global_load_dword v23, v3, s[44:45]
            """)
    a("s_branch L_pf_join")
    a("L_pf_other:")
    stamp(a, 1)
    a(f"""
    s_cmp_eq_u32 s2, 255
    s_cselect_b32 s54, s53, 0
    s_cmp_eq_u32 s54, 1
    s_cbranch_scc0 L_pf_join
    s_add_u32 s44, s16, {EP_OFF}
    s_addc_u32 s45, s17, 0
    s_load_dword s54, s[44:45], 0
    v_mov_b32 v3, 0
    s_waitcnt lgkmcnt(0)
    s_add_u32 s54, s54, 1
    s_bitset1_b32 s54, 31
    v_mov_b32 v4, s54
    global_store_dword v3, v4, s[14:15] sc1
    global_store_dword v3, v4, s[44:45] sc1
    """)
    a("L_pf_join:")
    a("""
    s_mov_b32 s50, 1                ; mh2
    s_cmp_ge_u32 s52, 3
    s_addc_u32 s51, s52, 0
    s_cmp_ge_u32 s52, 10
    s_addc_u32 s51, s51, 0          ; nt
    s_mov_b32 s46, 0                ; rot
    s_cmp_ge_u32 s52, 14
    s_cbranch_scc0 L_pf_role
    s_and_b32 s50, s52, 1
    s_mul_i32 s46, s50, 7
    s_cmp_ge_u32 s52, 16
    s_cselect_b32 s51, 11, 3
    L_pf_role:
    """)
    p2_setup(a)
    a("s_barrier")
    a("v_mov_b32 v5, 0")
    wd_issue(a, range(5))
    a("global_load_dword v9, v5, s[14:15] sc1")
    wd_issue(a, range(5, 14))
    a("s_waitcnt vmcnt(9)")
    nonce_wait(a, "pf")
    a("s_branch L_p2")

    a("L_p1:")
    a(f"""
    s_and_b32 s47, s49, 1           ; mh1
    s_lshr_b32 s52, s49, 1          ; col
    s_mul_i32 s54, s48, 7
    s_add_u32 s52, s52, s54
    s_lshl_b32 s54, s52, 7
    v_lshrrev_b32 v3, 3, v2         ; r
    v_and_b32 v4, 7, v2             ; p
    v_lshl_add_u32 v5, v1, 4, v3    ; 16w + r
    v_mul_u32_u24 v6, 7168, v5
    v_add_u32 v6, s54, v6
    v_and_b32 v7, 2, v3
    v_xor_b32 v7, v7, v4
    v_lshl_add_u32 v10, v7, 4, v6   ; vG
    v_xor_b32 v11, 64, v10          ; vU
    v_lshrrev_b32 v7, 1, v3
    v_xor_b32 v7, v7, v4
    s_lshl_b32 s54, s47, 6
    v_add_u32 v5, s54, v5
    v_lshlrev_b32 v5, 11, v5
    v_lshl_add_u32 v12, v7, 4, v5   ; vX0
    v_xor_b32 v13, 64, v12
    v_add_u32 v13, 0x4000, v13      ; vX1
    s_lshl_b32 s56, s53, 11
    s_mov_b32 s22, {X_B}
    s_mov_b32 s23, 0x20000
    s_mov_b32 s26, {W_B}
    s_mov_b32 s27, 0x20000
    s_mov_b32 s30, {W_B}
    s_mov_b32 s31, 0x20000
    s_waitcnt lgkmcnt(0)
    s_mov_b64 s[24:25], s[6:7]
    s_mov_b64 s[28:29], s[8:9]
    s_mov_b64 s[20:21], s[4:5]
    """)
    stamp(a, 1)
    def dma_list(c):
        sl = (c % 4) * 24576
        out = []
        for k, (v, r, so) in enumerate([(12, R_X, c*128), (13, R_X, c*128), (10, R_G, c*458752), (10, R_G, c*458752+57344), (11, R_U, c*458752), (11, R_U, c*458752+57344)]):
            out.append(f"s_add_u32 m0, s56, {sl + (k//2)*8192 + (k%2)*1024}\ns_mov_b32 s57, {so}\nbuffer_load_dwordx4 v{v}, {rs(r)}, s57 offen lds")
        return out
    for c in range(3):
        for d in dma_list(c): a(d)
    a(f"""
    v_lshrrev_b32 v3, 4, v2         ; G
    v_and_b32 v4, 1, v3             ; isU
    v_lshrrev_b32 v5, 5, v2         ; hf
    v_bfe_u32 v6, v2, 2, 2          ; r
    v_lshrrev_b32 v7, 1, v6
    v_lshl_add_u32 v7, v4, 1, v7    ; 2 isU + (r>>1)
    v_xor_b32 v7, v7, v1
    v_lshl_add_u32 v6, v5, 3, v6    ; 8hf + r
    v_lshlrev_b32 v6, 7, v6
    v_lshl_add_u32 v6, v7, 5, v6
    v_lshl_add_u32 v6, v4, 13, v6
    v_and_b32 v7, 3, v2
    v_lshl_add_u32 v6, v7, 3, v6
    v_add_u32 v16, 0x2000, v6
    v_add_u32 v17, 49152, v16       ; slots 2/3
    v_and_b32 v6, 31, v2            ; m
    v_bfe_u32 v7, v6, 1, 3
    v_xor_b32 v7, v7, v5
    v_lshlrev_b32 v6, 7, v6
    """)
    for s in range(4):
        a(f"v_xor_b32 v8, {2*s}, v7")
        a(f"v_lshl_add_u32 v{20+s}, v8, 4, v6")
        a(f"v_add_u32 v{24+s}, 49152, v{20+s}")
    a(f"""
    v_lshrrev_b32 v6, 1, v1
    s_lshl_b32 s54, s52, 1
    v_add_u32 v6, s54, v6
    v_lshlrev_b32 v6, 3, v6
    v_bfe_u32 v7, v2, 4, 1
    s_lshl_b32 s54, s47, 2
    v_add3_u32 v6, v6, v7, s54      ; *8 + m16
    v_lshlrev_b32 v6, 10, v6
    v_and_b32 v7, 1, v1
    v_lshl_add_u32 v7, v7, 1, v5    ; kg
    v_lshl_add_u32 v6, v7, 8, v6
    v_and_b32 v7, 15, v2
    v_lshl_add_u32 v14, v7, 4, v6
    s_lshl_b32 s54, s48, 1
    s_add_u32 s54, s54, s47
    s_lshl_b32 s54, s54, 7          ; (j*2+mh)*128
    s_lshr_b32 s57, s49, 1
    s_lshl_b32 s57, s57, 4
    s_add_u32 s54, s54, s57
    s_add_u32 s54, s54, {FA_OFF}
    v_lshl_add_u32 v15, v1, 2, s54
    s_mov_b32 s50, 0                ; mh2
    s_cmp_ge_u32 s49, 3
    s_addc_u32 s51, s49, 0
    s_cmp_ge_u32 s49, 10
    s_addc_u32 s51, s51, 0          ; nt
    s_mov_b32 s46, 0
    v_mov_b32 v5, 0
    """)
    p2_setup(a)
    ACC = [32, 48]
    FR = 64
    def reads(c, s):
        slot = c % 4
        rng, so = slot // 2, (slot % 2) * 24576
        b = FR + 12*s
        return [f"ds_read_b64_tr_b16 v[{b}:{b+1}], v{16+rng} offset:{so + 2048*s}",
                f"ds_read_b64_tr_b16 v[{b+2}:{b+3}], v{16+rng} offset:{so + 2048*s + 512}",
                f"ds_read_b128 v[{b+4}:{b+7}], v{20+4*rng+s} offset:{so}",
                f"ds_read_b128 v[{b+8}:{b+11}], v{20+4*rng+s} offset:{so + 4096}"]
    def mfma(c, s, mi):
        b = FR + 12*s
        cin = "0" if (c == 0 and s == 0) else vr(ACC[mi], 16)
        return f"v_mfma_f32_32x32x16_bf16 {vr(ACC[mi],16)}, {vr(b,4)}, {vr(b+4+4*mi,4)}, {cin}"
    a("s_waitcnt vmcnt(12)")
    a("s_barrier")
    stamp(a, 2)
    for s in range(3):
        for r in reads(0, s): a(r)
    wd_done = 0
    out_after = 12
    for c in range(16):
        if c + 3 < 16:
            dm = dma_list(c + 3)
        else:
            dm = []
        wdn = 0
        if c >= O.wd_at and wd_done < 14:
            n = 14 - wd_done if (c == 15 or O.wd_at == 15) else min(14 - wd_done, 6 - len(dm) if len(dm) < 6 else 0)
            if c == 15: n = 14 - wd_done
            dm = dm + wd_list(range(wd_done, wd_done + n))
            wd_done += n; wdn = n
        per = [dm[i::6] for i in range(6)]
        k = 0
        for s in range(3):
            a(f"s_waitcnt lgkmcnt({[8,8,4][s]})")
            for mi in range(2):
                a(mfma(c, s, mi))
                for d in per[k]: a(d)
                k += 1
            if s == 0:
                for r in reads(c, 3): a(r)
        if c == 9:
            a("global_load_dword v9, v5, s[14:15] sc1")
        if c < 15:
            younger = 6 * (min(c + 3, 15) - (c + 1)) + wd_done + (1 if 9 <= c <= 11 else 0)
            a(f"s_waitcnt vmcnt({younger}) lgkmcnt(0)")
            a("s_barrier")
            if c + 1 == 15: stamp(a, 3)
            for s in range(3):
                for r in reads(c + 1, s): a(r)
        else:
            a("s_waitcnt lgkmcnt(0)")
        a(mfma(c, 3, 0))
        a(mfma(c, 3, 1))
    nonce_wait(a, "p1")
    a("s_nop 1")
    a("s_mov_b32 s44, 0xbfb8aa3b")
    a("s_mov_b32 s45, 0xbfb8aa3b")
    T = 64
    for mi in range(2):
        A = ACC[mi]; t = T + 24*mi
        for r in range(0, 8, 2):
            a(f"v_pk_mul_f32 v[{t+r}:{t+r+1}], v[{A+r}:{A+r+1}], s[44:45]")
        for r in range(8):
            a(f"v_exp_f32 v{t+r}, v{t+r}")
        for r in range(0, 8, 2):
            a(f"v_pk_mul_f32 v[{t+8+r}:{t+9+r}], v[{A+r}:{A+r+1}], v[{A+8+r}:{A+9+r}]")
        for r in range(0, 8, 2):
            a(f"v_pk_add_f32 v[{t+r}:{t+r+1}], v[{t+r}:{t+r+1}], 1.0 op_sel_hi:[1,0]")
        for r in range(8):
            a(f"v_rcp_f32 v{t+r}, v{t+r}")
        a("s_nop 0")
        for r in range(0, 8, 2):
            a(f"v_pk_mul_f32 v[{t+r}:{t+r+1}], v[{t+r}:{t+r+1}], v[{t+8+r}:{t+9+r}]")
        for d in range(4):
            a(f"v_cvt_pk_bf16_f32 v{120+4*mi+d}, v{t+2*d}, v{t+2*d+1}")
        a(f"s_mov_b32 s57, {HB_OFF}")
        a(f"buffer_store_dwordx4 v[{120+4*mi}:{123+4*mi}], v14, {rs(R_WS)}, s57 offen offset:{2048*mi} sc1")
    stamp(a, 4)
    a(f"""
    v_mov_b32 v3, s59
    s_movk_i32 s57, {FB_OFF - FA_OFF}
    s_waitcnt vmcnt(0)
    buffer_store_dword v3, v15, {rs(R_WS)}, s57 offen sc1
    """)
    a("L_p2:")
    def areads(s):
        out = []
        for t in range(4):
            base = (s*4 + t) * 4
            out.append(f"ds_read_b64_tr_b16 a[{base}:{base+1}], v{28+t} offset:{s*4096}")
            out.append(f"ds_read_b64_tr_b16 a[{base+2}:{base+3}], v{28+t} offset:{s*4096+1024}")
        return out
    a("s_waitcnt vmcnt(7)")
    a("s_barrier")
    for s in range(7):
        if s >= 1: a("s_waitcnt lgkmcnt(6)")
        for r in areads(s): a(r)
    a(f"""
    v_mov_b32 v3, s59
    v_and_b32 v9, 0x7ff, v3         ; tag
    s_mov_b32 s80, 0
    s_waitcnt vmcnt(0)
    s_cmp_lg_u32 s53, 0
    s_cbranch_scc1 L_go
    L_poll1:
    buffer_load_dword v4, v18, {rs(R_WS)}, 0 offen sc1
    s_add_u32 s80, s80, 1
    s_cmp_ge_u32 s80, {SPIN}
    s_cbranch_scc1 L_go
    s_waitcnt vmcnt(0)
    v_cmp_ne_u32 vcc, v3, v4
    s_cbranch_vccz L_go
    s_sleep {O.sl1}
    s_branch L_poll1
    L_go:
    s_barrier
    """)
    stamp(a, 5)
    HB = 64
    for s in range(14):
        a(f"s_add_u32 s57, s{82 if s < 7 else 83}, {s*8192}")
        a(f"buffer_load_dwordx4 {vr(HB+4*s,4)}, v19, {rs(R_WS)}, s57 offen sc1")
    AC = 32
    for s in range(14):
        lg = ""
        if 1 <= s <= 6: lg = " lgkmcnt(6)"
        if s == 0: lg = " lgkmcnt(0)"
        if s == 12: lg = " lgkmcnt(8)"
        if s == 13: lg = " lgkmcnt(0)"
        a(f"s_waitcnt vmcnt({13-s}){lg}")
        rd = areads(7 + s) if s < 7 else []
        for t in range(4):
            base = (s*4 + t) * 4
            cin = "0" if s == 0 else vr(AC+4*t, 4)
            a(f"v_mfma_f32_16x16x32_bf16 {vr(AC+4*t,4)}, a[{base}:{base+3}], {vr(HB+4*s,4)}, {cin}")
            for r in rd[2*t:2*t+2]: a(r)
    a("s_mov_b32 s44, 0xfffff800")
    a("s_mov_b32 s80, 0")
    a("s_movk_i32 s57, 0x1000")
    a("s_nop 1")
    for t in range(4):
        if t == 3: a("s_nop 0")
        for i in range(4):
            a(f"v_and_or_b32 v{48+4*t+i}, v{AC+4*t+i}, s44, v9")
        a(f"buffer_store_dwordx4 {vr(48+4*t,4)}, v8, {rs(R_WS)}, 0 offen offset:{t*512} sc1")
    stamp(a, 6)
    a("L_poll2:")
    a(f"buffer_load_dwordx4 v[64:67], v6, {rs(R_WS)}, 0 offen sc1")
    a(f"buffer_load_dwordx4 v[68:71], v6, {rs(R_WS)}, 0 offen offset:2048 sc1")
    a(f"buffer_load_dwordx4 v[72:75], v6, {rs(R_WS)}, s57 offen sc1")
    a(f"buffer_load_dwordx4 v[76:79], v6, {rs(R_WS)}, s57 offen offset:2048 sc1")
    a(f"""
    s_add_u32 s80, s80, 1
    s_cmp_ge_u32 s80, {SPIN}
    s_cbranch_scc1 L_fin
    """)
    for g in range(4):
        a(f"s_waitcnt vmcnt({3-g})")
        for i in range(4):
            a(f"v_xor_b32 v{64+4*g+i}, v{64+4*g+i}, v9")
        if g == 0:
            a("v_or3_b32 v4, v64, v65, v66")
            a("v_mov_b32 v5, v67")
        else:
            a(f"v_or3_b32 v4, v4, v{64+4*g}, v{65+4*g}")
            a(f"v_or3_b32 v5, v5, v{66+4*g}, v{67+4*g}")
    a(f"""
    v_or_b32 v4, v4, v5
    v_and_b32 v4, 0x7ff, v4
    v_cmp_ne_u32 vcc, 0, v4
    s_cbranch_vccz L_fin
    s_sleep {O.sl2}
    s_branch L_poll2
    L_fin:
    v_pk_add_f32 v[64:65], v[64:65], v[68:69]
    v_pk_add_f32 v[66:67], v[66:67], v[70:71]
    v_pk_add_f32 v[72:73], v[72:73], v[76:77]
    v_pk_add_f32 v[74:75], v[74:75], v[78:79]
    v_pk_add_f32 v[64:65], v[64:65], v[72:73]
    v_pk_add_f32 v[66:67], v[66:67], v[74:75]
    s_nop 1
    v_permlane32_swap_b32 v64, v66
    v_permlane32_swap_b32 v65, v67
    s_nop 0
    v_pk_add_f32 v[64:65], v[64:65], v[66:67]
    v_cvt_pk_bf16_f32 v64, v64, v65
    """)
    a(f"buffer_store_dword v64, v7, {rs(R_OUT)}, 0 offen")
    if O.stamp:
        a("s_memrealtime s[78:79]")
        a("s_waitcnt lgkmcnt(0)")
        for i in range(7):
            a(f"v_mov_b32 v{100+i}, s{64+2*i}")
        a("v_mov_b32 v107, s78")
        a(f"s_lshl_b32 s63, s2, 5")
        a(f"s_add_u32 s63, s63, {ST_OFF}")
        a("v_mov_b32 v108, s63")
        a("v_cmp_eq_u32 vcc, 0, v0")
        a("s_and_saveexec_b64 s[60:61], vcc")
        a(f"s_cbranch_execz L_end")
        a(f"buffer_store_dwordx4 v[100:103], v108, {rs(R_WS)}, 0 offen")
        a(f"buffer_store_dwordx4 v[104:107], v108, {rs(R_WS)}, 0 offen offset:16")
    a("L_end:")
    a("s_endpgm")
    a("L_code_end:")
    return a

def p2_setup(a):
    a(f"""
    s_mov_b64 s[32:33], s[10:11]
    s_mov_b32 s34, {W_B}
    s_mov_b32 s35, 0x20000
    s_mov_b64 s[36:37], s[16:17]
    s_mov_b32 s38, {WS_B}
    s_mov_b32 s39, 0x20000
    s_mov_b64 s[40:41], s[12:13]
    s_mov_b32 s42, {OUT_B}
    s_mov_b32 s43, 0x20000
    s_lshl_b32 s55, s53, 10
    s_lshl_b32 s84, s46, 16
    s_sub_u32 s85, 0, s84
    s_lshl_b32 s82, s46, 13
    s_sub_u32 s83, {HB_OFF}, s82
    s_add_u32 s82, s82, {HB_OFF}
    v_lshrrev_b32 v3, 3, v2         ; r
    v_and_b32 v4, 7, v2             ; p
    v_and_b32 v6, 6, v3
    v_xor_b32 v4, v4, v6
    v_lshl_add_u32 v3, v1, 3, v3    ; 8w + r
    s_mul_i32 s54, s48, 448
    v_add_u32 v3, s54, v3
    v_lshlrev_b32 v3, 11, v3
    s_lshl_b32 s54, s51, 7
    v_add_u32 v3, s54, v3
    v_lshl_add_u32 v128, v4, 4, v3
    s_mul_i32 s54, s48, 112
    s_lshl_b32 s57, s50, 2
    s_add_u32 s54, s54, s57
    v_add_u32 v3, s54, v1
    v_lshlrev_b32 v3, 10, v3
    v_lshl_add_u32 v19, v2, 4, v3
    s_lshl_b32 s54, s48, 1
    s_add_u32 s54, s54, s50
    s_lshl_b32 s54, s54, 7
    s_add_u32 s54, s54, {FB_OFF}
    v_min_u32 v3, 27, v2
    v_lshl_add_u32 v18, v3, 2, s54
    v_lshrrev_b32 v3, 4, v2         ; kg
    v_bfe_u32 v4, v2, 2, 2          ; r
    v_and_b32 v7, 1, v3
    v_lshrrev_b32 v6, 1, v3
    v_lshlrev_b32 v6, 4, v6
    v_lshl_add_u32 v6, v7, 2, v6
    v_add_u32 v6, v6, v4
    v_lshlrev_b32 v6, 7, v6
    v_and_b32 v8, 3, v2
    v_lshl_add_u32 v6, v8, 3, v6
    v_add_u32 v6, {WD_LDS}, v6
    v_lshrrev_b32 v4, 1, v4
    v_lshl_add_u32 v4, v7, 1, v4
    """)
    for t in range(4):
        a(f"v_xor_b32 v7, {t}, v4")
        a(f"v_lshl_add_u32 v{28+t}, v7, 5, v6")
    a(f"""
    v_bfe_u32 v4, v2, 3, 1
    v_lshl_add_u32 v4, v1, 1, v4    ; owner
    s_lshl_b32 s54, s49, 3
    v_add_u32 v4, s54, v4
    v_lshlrev_b32 v4, 3, v4
    v_add_u32 v4, s48, v4
    v_lshlrev_b32 v4, 11, v4
    v_lshl_add_u32 v4, v3, 7, v4
    v_and_b32 v3, 7, v2
    v_lshl_add_u32 v4, v3, 4, v4
    v_add_u32 v8, {P_OFF}, v4
    v_lshrrev_b32 v4, 5, v2         ; half
    v_and_b32 v6, 31, v2
    v_lshl_add_u32 v6, v1, 5, v6
    v_lshlrev_b32 v6, 4, v6
    v_lshl_add_u32 v6, v4, 13, v6
    s_lshl_b32 s54, s49, 3
    s_add_u32 s54, s54, s48
    s_lshl_b32 s54, s54, 14
    s_add_u32 s54, s54, {P_OFF}
    v_add_u32 v6, s54, v6
    s_lshl_b32 s54, s50, 6
    s_lshl_b32 s57, s48, 3
    s_add_u32 s54, s54, s57
    v_add_u32 v3, s54, v3           ; m
    v_lshlrev_b32 v3, 11, v3
    v_bfe_u32 v7, v2, 3, 2
    v_lshl_add_u32 v3, v7, 3, v3
    v_lshl_add_u32 v3, v4, 2, v3
    v_lshl_add_u32 v3, v1, 5, v3
    s_lshl_b32 s54, s51, 7
    v_add_u32 v7, s54, v3
    """)

def wd_list(steps):
    return [f"s_add_u32 m0, s55, {WD_LDS + s*4096}\ns_add_u32 s57, s{84 if s < 7 else 85}, {s*65536}\nbuffer_load_dwordx4 v128, {rs(R_D)}, s57 offen lds" for s in steps]
def wd_issue(a, steps):
    for d in wd_list(steps): a(d)

def nonce_wait(a, tag):
    a(f"""
    v_readfirstlane_b32 s59, v9
    s_mov_b32 s80, 0
    s_nop 2
    L_nonce_{tag}:
    s_cmp_lg_u32 s59, 0
    s_cbranch_scc1 L_nonce_ok_{tag}
    s_sleep 8
    global_load_dword v9, v5, s[14:15] sc1
    s_add_u32 s80, s80, 1
    s_waitcnt vmcnt(0)
    v_readfirstlane_b32 s59, v9
    s_cmp_lt_u32 s80, {SPIN}
    s_nop 2
    s_cbranch_scc1 L_nonce_{tag}
    L_nonce_ok_{tag}:
    """)

if __name__ == "__main__":
    opts(sys.argv[2:])
    a = gen()
    hdr = HEADER + f"; @launch grid=(256,1,1) block=(256,1,1) lds=155648\n.amdgcn_target \"amdgcn-amd-amdhsa--gfx950\"\n"
    open(sys.argv[1], "w").write(hdr + a.text() + kdesc(KN, 132 + 224, 132))
```

```python
import sys
from asmlib import *

KN = "standalone__swiglu_ffn__sampling_kernel"
X_B, W_B, OUT_B, WS_B = 128*1024*2, 1024*3584*2, 128*1024*2, 268435456
HA_OFF = 0
HB_OFF = 1 << 20
P_OFF = 2 << 20
FA_OFF = 6 << 20
FB_OFF = FA_OFF + 4096
EP_OFF = FA_OFF + 8192
ST_OFF = 8 << 20
R_X, R_G, R_U, R_D, R_WS, R_OUT = 20, 24, 28, 32, 36, 40
WD_LDS = 98304
SY_LDS = WD_LDS + 57344
LDS = SY_LDS + 64
SPIN = 1 << 18
NV, NA = 96, 160

class O:
    stamp = 0
    sw = 4
    codepf = 3
    ackfirst = 1
    kfast = 64
    sl1 = 1
    sl2 = 2
    wd13 = 0
    wd14 = 5
    hfirst = 10
    first = 3
PTS = {}
def opts(argv):
    for x in argv:
        k, v = x.split("=")
        if k == "pts":
            PTS.clear(); PTS["start"] = 0
            for i, nm in enumerate(v.split(",")): PTS[nm] = i + 1
            O.stamp = 1
        else:
            assert hasattr(O, k), k
            setattr(O, k, int(v))
def stamp(a, name):
    if O.stamp and name in PTS:
        idx = PTS[name]
        a(f"s_memrealtime s[{64+2*idx}:{65+2*idx}]")
_fl = [0]
def stamp_flush(a):
    if not O.stamp: return
    _fl[0] += 1
    L = f"L_sf{_fl[0]}"
    a(f"""
    s_memrealtime s[78:79]
    s_cmp_lg_u32 s53, {O.sw}
    s_cbranch_scc1 {L}
    s_mov_b64 s[36:37], s[16:17]
    s_mov_b32 s38, {WS_B}
    s_mov_b32 s39, 0x20000
    s_waitcnt lgkmcnt(0)
    """)
    for i in range(8):
        a(f"v_mov_b32 v{80+i}, s{64+2*i}")
    a(f"""
    s_lshl_b32 s63, s2, 5
    s_add_u32 s63, s63, {ST_OFF}
    v_mov_b32 v88, s63
    s_mov_b64 exec, 1
    buffer_store_dwordx4 v[80:83], v88, {rs(R_WS)}, 0 offen
    buffer_store_dwordx4 v[84:87], v88, {rs(R_WS)}, 0 offen offset:16
    {L}:
    """)
def rs(r): return f"s[{r}:{r+3}]"

def srd_tail(a, which):
    for r, n in which:
        a(f"s_mov_b32 s{r+2}, {n}")
        a(f"s_mov_b32 s{r+3}, 0x20000")

def gen():
    a = Asm()
    kstart(a, KN)
    stamp(a, "start")
    a("""
    s_load_dwordx8 s[4:11], s[0:1], 0
    s_load_dwordx4 s[12:15], s[0:1], 32
    s_load_dwordx2 s[16:17], s[0:1], 48
    v_lshrrev_b32 v1, 6, v0         ; wave
    s_cmp_ge_u32 s2, 256
    s_cbranch_scc1 L_end
    v_readfirstlane_b32 s53, v1
    s_and_b32 s48, s2, 7
    s_lshr_b32 s49, s2, 3           ; q
    v_and_b32 v2, 63, v0            ; lane
    s_cmp_lt_u32 s49, 14
    s_cbranch_scc1 L_p1
    s_sub_u32 s52, s49, 14          ; p
    s_cmp_lg_u32 s53, 0
    s_cbranch_scc1 L_pf_other
    """)
    a(f"""
    s_mul_i32 s54, s52, 25
    v_add_u32 v3, s54, v2
    v_mul_u32_u24 v5, 9363, v3
    v_lshrrev_b32 v5, 16, v5        ; row
    v_mul_u32_u24 v6, 7, v5
    v_sub_u32 v6, v3, v6            ; col
    v_mul_u32_u24 v5, 7168, v5
    v_lshl_add_u32 v5, v6, 7, v5
    s_mul_i32 s54, s48, 896
    v_add_u32 v5, s54, v5
    v_cmp_gt_u32 vcc, 25, v2
    s_movk_i32 s54, 448
    v_cmp_gt_u32 s[44:45], s54, v3
    v_bfrev_b32 v7, 2
    s_lshl_b32 s54, s52, 3
    s_and_b64 vcc, vcc, s[44:45]
    v_add_u32 v3, s54, v2
    v_lshlrev_b32 v6, 11, v3
    v_cndmask_b32 v10, v7, v5, vcc
    v_cmp_gt_u32 vcc, 8, v2
    s_mov_b32 s22, {X_B}
    s_mov_b32 s23, 0x20000
    v_cndmask_b32 v11, v7, v6, vcc
    s_mov_b32 s26, {W_B}
    s_mov_b32 s27, 0x20000
    s_mov_b32 s30, {W_B}
    s_mov_b32 s31, 0x20000
    s_waitcnt lgkmcnt(0)
    s_mov_b64 s[24:25], s[6:7]
    s_mov_b64 s[28:29], s[8:9]
    s_mov_b64 s[20:21], s[4:5]
    """)
    stamp(a, "karg")
    for c in range(16):
        if c == 0:
            so_w, so_x = "0", "0"
        else:
            a(f"s_mov_b32 s57, {c*64*7168}")
            a(f"s_movk_i32 s58, {c*128}")
            so_w, so_x = "s57", "s58"
        a(f"buffer_load_dword v20, v10, {rs(R_G)}, {so_w} offen")
        a(f"buffer_load_dword v21, v10, {rs(R_U)}, {so_w} offen")
        a(f"buffer_load_dword v22, v11, {rs(R_X)}, {so_x} offen")
        if c == O.codepf:
            a(f"""
            s_getpc_b64 s[44:45]
            L_pc:
            s_sub_u32 s44, s44, L_pc-{KN}
            s_subb_u32 s45, s45, 0
            s_mul_i32 s54, s52, 6
            v_min_u32 v3, 5, v2
            v_add_u32 v3, s54, v3
            v_min_u32 v3, (L_code_end-{KN}-4)/128, v3
            v_lshlrev_b32 v3, 7, v3
            global_load_dword v23, v3, s[44:45]
            """)
    a("s_barrier")
    stamp(a, "pfi")
    a("s_waitcnt vmcnt(0)")
    stamp_flush(a)
    a("s_endpgm")
    a(f"""
    L_pf_other:
    s_cmp_ge_u32 s53, 4
    s_cbranch_scc1 L_back_pf
    s_cmp_eq_u32 s2, 255
    s_cselect_b32 s54, s53, 0
    s_cmp_eq_u32 s54, 1
    s_cbranch_scc0 L_pf_idle
    s_waitcnt lgkmcnt(0)
    s_add_u32 s44, s16, {EP_OFF}
    s_addc_u32 s45, s17, 0
    s_load_dword s54, s[44:45], 0
    v_mov_b32 v3, 0
    s_waitcnt lgkmcnt(0)
    s_add_u32 s54, s54, 1
    s_bitset1_b32 s54, 31
    v_mov_b32 v4, s54
    s_mov_b64 exec, 1
    global_store_dword v3, v4, s[14:15] sc1
    global_store_dword v3, v4, s[44:45] sc1
    L_pf_idle:
    s_barrier
    s_endpgm
    L_back_pf:
    s_mov_b32 s50, 1                ; mh2
    s_cmp_ge_u32 s52, 3
    s_addc_u32 s51, s52, 0
    s_cmp_ge_u32 s52, 10
    s_addc_u32 s51, s51, 0          ; nt
    s_mov_b32 s46, 0                ; rot
    s_cmp_ge_u32 s52, 14
    s_cbranch_scc0 L_pf_role
    s_and_b32 s50, s52, 1
    s_mul_i32 s46, s50, 7
    s_cmp_ge_u32 s52, 16
    s_cselect_b32 s51, 11, 3
    L_pf_role:
    v_and_b32 v1, 3, v1
    s_waitcnt lgkmcnt(0)
    """)
    p2_setup(a)
    a("s_waitcnt lgkmcnt(0)")
    a("s_barrier")
    for d in wd_list(range(14)): a(d)
    a("s_branch L_p2")

    a(f"""
    L_p1:
    s_and_b32 s47, s49, 1           ; mh1
    s_lshr_b32 s52, s49, 1          ; col
    s_mul_i32 s54, s48, 7
    s_add_u32 s52, s52, s54
    s_cmp_lt_u32 s53, 4
    s_cbranch_scc1 L_front
    v_and_b32 v1, 3, v1
    s_lshl_b32 s54, s52, 7
    v_lshrrev_b32 v3, 3, v2         ; r
    v_and_b32 v4, 7, v2             ; p
    v_lshl_add_u32 v5, v1, 4, v3    ; 16w + r
    v_mul_u32_u24 v6, 7168, v5
    v_add_u32 v6, s54, v6
    v_and_b32 v7, 2, v3
    v_xor_b32 v7, v7, v4
    v_lshl_add_u32 v10, v7, 4, v6   ; vG
    v_xor_b32 v11, 64, v10          ; vU
    v_lshrrev_b32 v7, 1, v3
    v_xor_b32 v7, v7, v4
    s_lshl_b32 s54, s47, 6
    v_add_u32 v5, s54, v5
    v_lshlrev_b32 v5, 11, v5
    v_lshl_add_u32 v12, v7, 4, v5   ; vX0
    v_xor_b32 v13, 64, v12
    v_add_u32 v13, 0x4000, v13      ; vX1
    s_and_b32 s56, s53, 3
    s_lshl_b32 s56, s56, 11
    """)
    srd_tail(a, [(R_X, X_B), (R_G, W_B), (R_U, W_B)])
    a("""
    s_waitcnt lgkmcnt(0)
    s_mov_b64 s[24:25], s[6:7]
    s_mov_b64 s[28:29], s[8:9]
    s_mov_b64 s[20:21], s[4:5]
    """)
    stamp(a, "karg")
    def dma(c):
        sl = (c % 4) * 24576
        for k, (v, r, so) in enumerate([(12, R_X, c*128), (13, R_X, c*128), (10, R_G, c*458752), (10, R_G, c*458752+57344), (11, R_U, c*458752), (11, R_U, c*458752+57344)]):
            a(f"s_add_u32 m0, s56, {sl + (k//2)*8192 + (k%2)*1024}\ns_mov_b32 s57, {so}\nbuffer_load_dwordx4 v{v}, {rs(r)}, s57 offen lds")
    dma(0); dma(1)
    a("""
    s_mov_b32 s50, 0                ; mh2
    s_cmp_ge_u32 s49, 3
    s_addc_u32 s51, s49, 0
    s_cmp_ge_u32 s49, 10
    s_addc_u32 s51, s51, 0          ; nt
    s_mov_b32 s46, 0
    """)
    p2_setup(a)
    issued = 2
    while issued < O.first:
        dma(issued); issued += 1
    wd = 0
    wdl = wd_list(range(14))
    def nvm(l): return sum(x.count("_load_dword") for x in l)
    wdops = 0
    for c in range(16):
        a(f"s_waitcnt vmcnt({6*(issued-1-c) + wdops})" + (" lgkmcnt(0)" if c == 0 else ""))
        a("s_barrier")
        stamp(a, f"c{c}")
        if issued < 16 and issued <= c + 3:
            dma(issued); issued += 1
        else:
            n = {13: O.wd13, 14: O.wd14, 15: 14}.get(c, 0)
            n = min(n, 14 - wd)
            for d in wdl[wd:wd+n]: a(d)
            wdops += nvm(wdl[wd:wd+n]); wd += n
    a("L_p2:")
    stamp(a, "p2in")
    def areads(s, slot):
        out = []
        for t in range(4):
            base = (slot*4 + t) * 4
            out.append(f"ds_read_b64_tr_b16 a[{base}:{base+1}], v{20+t} offset:{s*4096}")
            out.append(f"ds_read_b64_tr_b16 a[{base+2}:{base+3}], v{20+t} offset:{s*4096+1024}")
        return out
    def lsync(k):
        a(f"""
        ds_write_b32 v14, v15 offset:{16*k}
        L_sy{k}:
        ds_read_b128 v[40:43], v16 offset:{16*k}
        s_waitcnt lgkmcnt(0)
        v_and_b32 v40, v40, v41
        v_and_b32 v42, v42, v43
        v_and_b32 v40, v40, v42
        v_cmp_eq_u32 vcc, 0, v40
        s_cbranch_vccnz L_sy{k}
        """)
    a("s_waitcnt vmcnt(7)")
    lsync(0)
    stamp(a, "wd1")
    for s in range(7):
        if s >= 1: a("s_waitcnt lgkmcnt(6)")
        for r in areads(s, s): a(r)
    a("s_waitcnt vmcnt(0)")
    nonce_wait(a, "b", 9, 5)
    lsync(1)
    stamp(a, "wd2")
    for s in range(7, 10):
        if s >= 8: a("s_waitcnt lgkmcnt(6)")
        for r in areads(s, s): a(r)
    a(f"""
    s_xor_b32 s54, s59, s86
    v_mov_b32 v5, s59
    v_mov_b32 v3, s54
    v_and_b32 v9, 0x7ff, v5         ; tag
    s_mov_b32 s80, 0
    L_poll1:
    buffer_load_dword v4, v18, {rs(R_WS)}, 0 offen sc1
    s_add_u32 s80, s80, 1
    s_cmp_ge_u32 s80, {O.kfast}
    s_cbranch_scc1 L_slow
    s_waitcnt vmcnt(0)
    v_cmp_ne_u32 vcc, v3, v4
    s_cbranch_vccz L_go
    s_sleep {O.sl1}
    s_branch L_poll1
    L_go:
    """)
    stamp(a, "go")
    HB, AC = 40, 24
    def hload(s):
        a(f"s_add_u32 s57, s{82 if s < 7 else 83}, {s*8192}")
        a(f"buffer_load_dwordx4 {vr(HB+4*s,4)}, v19, {rs(R_WS)}, s57 offen sc1")
    hl = O.hfirst
    for s in range(hl): hload(s)
    for s in range(14):
        lg = {0: 0, 1: 6, 2: 6, 3: 6, 10: 15, 11: 15, 12: 8, 13: 0}.get(s)
        w = f"s_waitcnt vmcnt({hl-1-s})"
        if lg is not None and lg < 15: w += f" lgkmcnt({lg})"
        a(w)
        stamp(a, f"m{s}")
        rd = areads(10 + s, s) if s < 4 else []
        slot = s % 10
        for t in range(4):
            base = (slot*4 + t) * 4
            cin = "0" if s == 0 else vr(AC+4*t, 4)
            a(f"v_mfma_f32_16x16x32_bf16 {vr(AC+4*t,4)}, a[{base}:{base+3}], {vr(HB+4*s,4)}, {cin}")
            for r in rd[2*t:2*t+2]: a(r)
            if t == 0 and hl < 14:
                hload(hl); hl += 1
        if s == 4: a("s_waitcnt lgkmcnt(14)")
    stamp(a, "mend")
    a("s_mov_b32 s44, 0xfffff800")
    a("s_mov_b32 s80, 0")
    a("s_movk_i32 s57, 0x1000")
    a("s_nop 1")
    for t in range(4):
        for i in range(4):
            a(f"v_and_or_b32 v{40+4*t+i}, v{AC+4*t+i}, s44, v9")
        a(f"buffer_store_dwordx4 {vr(40+4*t,4)}, v8, {rs(R_WS)}, 0 offen offset:{t*512} sc1")
    stamp(a, "pst")
    if O.ackfirst: a("s_waitcnt vmcnt(0)")
    stamp(a, "ack")
    a("L_poll2:")
    a(f"buffer_load_dwordx4 v[64:67], v6, {rs(R_WS)}, 0 offen sc1")
    a(f"buffer_load_dwordx4 v[68:71], v6, {rs(R_WS)}, 0 offen offset:2048 sc1")
    a(f"buffer_load_dwordx4 v[72:75], v6, {rs(R_WS)}, s57 offen sc1")
    a(f"buffer_load_dwordx4 v[76:79], v6, {rs(R_WS)}, s57 offen offset:2048 sc1")
    a(f"""
    s_add_u32 s80, s80, 1
    s_cmp_ge_u32 s80, {SPIN}
    s_cbranch_scc1 L_fin
    """)
    for g in range(4):
        a(f"s_waitcnt vmcnt({3-g})")
        for i in range(4):
            a(f"v_xor_b32 v{64+4*g+i}, v{64+4*g+i}, v9")
        if g == 0:
            a("v_or3_b32 v4, v64, v65, v66")
            a("v_mov_b32 v5, v67")
        else:
            a(f"v_or3_b32 v4, v4, v{64+4*g}, v{65+4*g}")
            a(f"v_or3_b32 v5, v5, v{66+4*g}, v{67+4*g}")
    a(f"""
    v_or_b32 v4, v4, v5
    v_and_b32 v4, 0x7ff, v4
    v_cmp_ne_u32 vcc, 0, v4
    s_cbranch_vccz L_fin
    s_sleep {O.sl2}
    s_branch L_poll2
    L_fin:
    v_pk_add_f32 v[64:65], v[64:65], v[68:69]
    v_pk_add_f32 v[66:67], v[66:67], v[70:71]
    v_pk_add_f32 v[72:73], v[72:73], v[76:77]
    v_pk_add_f32 v[74:75], v[74:75], v[78:79]
    v_pk_add_f32 v[64:65], v[64:65], v[72:73]
    v_pk_add_f32 v[66:67], v[66:67], v[74:75]
    s_nop 1
    v_permlane32_swap_b32 v64, v66
    v_permlane32_swap_b32 v65, v67
    s_nop 0
    v_pk_add_f32 v[64:65], v[64:65], v[66:67]
    v_cvt_pk_bf16_f32 v64, v64, v65
    buffer_store_dword v64, v7, {rs(R_OUT)}, 0 offen
    """)
    if "npoll" in PTS:
        i = PTS["npoll"]
        a(f"s_waitcnt lgkmcnt(0)\ns_mul_i32 s{64+2*i}, s80, 100\ns_add_u32 s{64+2*i}, s{64+2*i}, s64")
    stamp_flush(a)
    a("L_end:")
    a("s_endpgm")
    a(f"""
    L_slow:
    s_movk_i32 s57, 0x1000
    s_mov_b32 s80, 0
    L_slow_poll:
    buffer_load_dword v4, v18, {rs(R_WS)}, 0 offen sc1
    buffer_load_dword v10, v18, {rs(R_WS)}, s57 offen sc1
    s_add_u32 s80, s80, 1
    s_waitcnt vmcnt(0)
    v_cmp_ne_u32 vcc, v3, v4
    s_cbranch_vccz L_go
    v_cmp_ne_u32 vcc, v5, v10
    s_cbranch_vccz L_slow_b
    s_sleep 8
    s_cmp_lt_u32 s80, {SPIN}
    s_cbranch_scc1 L_slow_poll
    L_slow_b:
    s_add_u32 s82, s82, {HB_OFF}
    s_add_u32 s83, s83, {HB_OFF}
    s_branch L_go
    """)
    a(f"""
    L_front:
    v_lshrrev_b32 v3, 4, v2         ; G
    v_and_b32 v4, 1, v3             ; isU
    v_lshrrev_b32 v5, 5, v2         ; hf
    v_bfe_u32 v6, v2, 2, 2          ; r
    v_lshrrev_b32 v7, 1, v6
    v_lshl_add_u32 v7, v4, 1, v7    ; 2 isU + (r>>1)
    v_xor_b32 v7, v7, v1
    v_lshl_add_u32 v6, v5, 3, v6    ; 8hf + r
    v_lshlrev_b32 v6, 7, v6
    v_lshl_add_u32 v6, v7, 5, v6
    v_lshl_add_u32 v6, v4, 13, v6
    v_and_b32 v7, 3, v2
    v_lshl_add_u32 v6, v7, 3, v6
    v_add_u32 v16, 0x2000, v6
    v_add_u32 v17, 49152, v16       ; slots 2/3
    v_and_b32 v6, 31, v2            ; m
    v_bfe_u32 v7, v6, 1, 3
    v_xor_b32 v7, v7, v5
    v_lshlrev_b32 v6, 7, v6
    """)
    for s in range(4):
        a(f"v_xor_b32 v8, {2*s}, v7")
        a(f"v_lshl_add_u32 v{20+s}, v8, 4, v6")
        a(f"v_add_u32 v{24+s}, 49152, v{20+s}")
    a(f"""
    v_lshrrev_b32 v6, 1, v1
    s_lshl_b32 s54, s52, 1
    v_add_u32 v6, s54, v6
    v_lshlrev_b32 v6, 3, v6
    v_bfe_u32 v7, v2, 4, 1
    s_lshl_b32 s54, s47, 2
    v_add3_u32 v6, v6, v7, s54      ; *8 + m16
    v_lshlrev_b32 v6, 10, v6
    v_and_b32 v7, 1, v1
    v_lshl_add_u32 v7, v7, 1, v5    ; kg
    v_lshl_add_u32 v6, v7, 8, v6
    v_and_b32 v7, 15, v2
    v_lshl_add_u32 v14, v7, 4, v6
    s_lshl_b32 s54, s48, 1
    s_add_u32 s54, s54, s47
    s_lshl_b32 s54, s54, 7          ; (j*2+mh)*128
    s_lshr_b32 s57, s49, 1
    s_lshl_b32 s57, s57, 4
    s_add_u32 s54, s54, s57
    s_add_u32 s54, s54, {FA_OFF}
    v_lshl_add_u32 v15, v1, 2, s54
    v_mov_b32 v13, 0
    s_getreg_b32 s86, hwreg(HW_REG_XCC_ID, 0, 4)
    s_lshl_b32 s86, s86, 24
    s_mov_b32 s38, {WS_B}
    s_mov_b32 s39, 0x20000
    s_mov_b32 s44, 0xbfb8aa3b
    s_mov_b32 s45, 0xbfb8aa3b
    s_waitcnt lgkmcnt(0)
    s_mov_b64 s[36:37], s[16:17]
    """)
    ACC = [32, 48]
    def reads(c, s):
        slot = c % 4
        rng, so = slot // 2, (slot % 2) * 24576
        b = 12*s
        return [f"ds_read_b64_tr_b16 a[{b}:{b+1}], v{16+rng} offset:{so + 2048*s}",
                f"ds_read_b64_tr_b16 a[{b+2}:{b+3}], v{16+rng} offset:{so + 2048*s + 512}",
                f"ds_read_b128 a[{b+4}:{b+7}], v{20+4*rng+s} offset:{so}",
                f"ds_read_b128 a[{b+8}:{b+11}], v{20+4*rng+s} offset:{so + 4096}"]
    def mfma(c, s, mi):
        b = 12*s
        cin = "0" if (c == 0 and s == 0) else vr(ACC[mi], 16)
        return f"v_mfma_f32_32x32x16_bf16 {vr(ACC[mi],16)}, {ar(b,4)}, {ar(b+4+4*mi,4)}, {cin}"
    a("s_barrier")
    stamp(a, "c0")
    for s in range(3):
        for r in reads(0, s): a(r)
    for c in range(15):
        for s in range(3):
            a(f"s_waitcnt lgkmcnt({[8,8,4][s]})")
            a(mfma(c, s, 0))
            if s == 0:
                for r in reads(c, 3)[:2]: a(r)
            a(mfma(c, s, 1))
            if s == 0:
                for r in reads(c, 3)[2:]: a(r)
        if c == 8:
            a("global_load_dword v12, v13, s[14:15] sc1")
        if c == 13:
            a("s_waitcnt vmcnt(0)")
            nonce_wait(a, "f", 12, 13)
        a("s_waitcnt lgkmcnt(0)")
        a("s_barrier")
        stamp(a, f"c{c+1}")
        rr = [r for s in range(3) for r in reads(c + 1, s)]
        for r in rr[:4]: a(r)
        a(mfma(c, 3, 0))
        for r in rr[4:8]: a(r)
        a(mfma(c, 3, 1))
        for r in rr[8:]: a(r)
    c = 15
    a("s_waitcnt lgkmcnt(8)")
    a(mfma(c, 0, 0))
    for r in reads(c, 3): a(r)
    a("s_waitcnt lgkmcnt(8)")
    a(mfma(c, 1, 0))
    a("s_waitcnt lgkmcnt(4)")
    a(mfma(c, 2, 0))
    a("s_waitcnt lgkmcnt(0)")
    a(mfma(c, 3, 0))
    a(mfma(c, 0, 1))
    a(f"""
    s_xor_b32 s54, s59, s86
    v_mov_b32 v3, s54
    v_mov_b32 v12, s59
    s_nop 7
    """)
    def epi(mi):
        A = ACC[mi]; t = 64 + 16*mi
        o = []
        for r in range(0, 8, 2):
            o.append(f"v_pk_mul_f32 v[{t+r}:{t+r+1}], v[{A+r}:{A+r+1}], s[44:45]")
        for r in range(8):
            o.append(f"v_exp_f32 v{t+r}, v{t+r}")
        for r in range(0, 8, 2):
            o.append(f"v_pk_mul_f32 v[{t+8+r}:{t+9+r}], v[{A+r}:{A+r+1}], v[{A+8+r}:{A+9+r}]")
        for r in range(0, 8, 2):
            o.append(f"v_pk_add_f32 v[{t+r}:{t+r+1}], v[{t+r}:{t+r+1}], 1.0 op_sel_hi:[1,0]")
        for r in range(8):
            o.append(f"v_rcp_f32 v{t+r}, v{t+r}")
        o.append("s_nop 0")
        for r in range(0, 8, 2):
            o.append(f"v_pk_mul_f32 v[{t+r}:{t+r+1}], v[{t+r}:{t+r+1}], v[{t+8+r}:{t+9+r}]")
        for d in range(4):
            o.append(f"v_cvt_pk_bf16_f32 v{4+4*mi+d}, v{t+2*d}, v{t+2*d+1}")
        o.append(f"buffer_store_dwordx4 v[{4+4*mi}:{7+4*mi}], v14, {rs(R_WS)}, 0 offen offset:{2048*mi}")
        return o
    e0 = epi(0)
    for i, x in enumerate(e0):
        if i == 0: a(mfma(c, 1, 1))
        if i == 5: a(mfma(c, 2, 1))
        if i == 8: a(mfma(c, 3, 1))
        a(x)
    for x in epi(1): a(x)
    stamp(a, "hst")
    a(f"""
    s_mov_b32 s57, {HB_OFF}
    s_movk_i32 s58, 0x1000
    s_waitcnt vmcnt(0)
    buffer_store_dword v3, v15, {rs(R_WS)}, 0 offen
    """)
    stamp(a, "flg")
    a(f"""
    buffer_store_dwordx4 v[4:7], v14, {rs(R_WS)}, s57 offen sc1
    buffer_store_dwordx4 v[8:11], v14, {rs(R_WS)}, s57 offen offset:2048 sc1
    s_waitcnt vmcnt(0)
    buffer_store_dword v12, v15, {rs(R_WS)}, s58 offen sc1
    """)
    stamp_flush(a)
    a("s_endpgm")
    a("L_code_end:")
    return a

def p2_setup(a):
    a(f"""
    s_mov_b64 s[32:33], s[10:11]
    s_mov_b32 s34, {W_B}
    s_mov_b32 s35, 0x20000
    s_mov_b64 s[36:37], s[16:17]
    s_mov_b32 s38, {WS_B}
    s_mov_b32 s39, 0x20000
    s_mov_b64 s[40:41], s[12:13]
    s_mov_b32 s42, {OUT_B}
    s_mov_b32 s43, 0x20000
    s_getreg_b32 s86, hwreg(HW_REG_XCC_ID, 0, 4)
    s_lshl_b32 s86, s86, 24
    s_and_b32 s55, s53, 3
    s_lshl_b32 s55, s55, 10
    s_lshl_b32 s84, s46, 16
    s_sub_u32 s85, 0, s84
    s_lshl_b32 s82, s46, 13
    s_sub_u32 s83, 0, s82
    v_mov_b32 v16, {SY_LDS}
    v_lshl_add_u32 v14, v1, 2, v16
    v_mov_b32 v5, 0
    v_mov_b32 v15, -1
    ds_write_b32 v14, v5
    ds_write_b32 v14, v5 offset:16
    v_lshrrev_b32 v3, 3, v2         ; r
    v_and_b32 v4, 7, v2             ; p
    v_and_b32 v6, 6, v3
    v_xor_b32 v4, v4, v6
    v_lshl_add_u32 v3, v1, 3, v3    ; 8w + r
    s_mul_i32 s54, s48, 448
    v_add_u32 v3, s54, v3
    v_lshlrev_b32 v3, 11, v3
    s_lshl_b32 s54, s51, 7
    v_add_u32 v3, s54, v3
    v_lshl_add_u32 v17, v4, 4, v3
    s_mul_i32 s54, s48, 112
    s_lshl_b32 s57, s50, 2
    s_add_u32 s54, s54, s57
    v_add_u32 v3, s54, v1
    v_lshlrev_b32 v3, 10, v3
    v_lshl_add_u32 v19, v2, 4, v3
    s_lshl_b32 s54, s48, 1
    s_add_u32 s54, s54, s50
    s_lshl_b32 s54, s54, 7
    s_add_u32 s54, s54, {FA_OFF}
    v_min_u32 v3, 27, v2
    v_lshl_add_u32 v18, v3, 2, s54
    v_lshrrev_b32 v3, 4, v2         ; kg
    v_bfe_u32 v4, v2, 2, 2          ; r
    v_and_b32 v7, 1, v3
    v_lshrrev_b32 v6, 1, v3
    v_lshlrev_b32 v6, 4, v6
    v_lshl_add_u32 v6, v7, 2, v6
    v_add_u32 v6, v6, v4
    v_lshlrev_b32 v6, 7, v6
    v_and_b32 v8, 3, v2
    v_lshl_add_u32 v6, v8, 3, v6
    v_add_u32 v6, {WD_LDS}, v6
    v_lshrrev_b32 v4, 1, v4
    v_lshl_add_u32 v4, v7, 1, v4
    """)
    for t in range(4):
        a(f"v_xor_b32 v7, {t}, v4")
        a(f"v_lshl_add_u32 v{20+t}, v7, 5, v6")
    a(f"""
    v_bfe_u32 v4, v2, 3, 1
    v_lshl_add_u32 v4, v1, 1, v4    ; owner
    s_lshl_b32 s54, s49, 3
    v_add_u32 v4, s54, v4
    v_lshlrev_b32 v4, 3, v4
    v_add_u32 v4, s48, v4
    v_lshlrev_b32 v4, 11, v4
    v_lshl_add_u32 v4, v3, 7, v4
    v_and_b32 v3, 7, v2
    v_lshl_add_u32 v4, v3, 4, v4
    v_add_u32 v8, {P_OFF}, v4
    v_lshrrev_b32 v4, 5, v2         ; half
    v_and_b32 v6, 31, v2
    v_lshl_add_u32 v6, v1, 5, v6
    v_lshlrev_b32 v6, 4, v6
    v_lshl_add_u32 v6, v4, 13, v6
    s_lshl_b32 s54, s49, 3
    s_add_u32 s54, s54, s48
    s_lshl_b32 s54, s54, 14
    s_add_u32 s54, s54, {P_OFF}
    v_add_u32 v6, s54, v6
    s_lshl_b32 s54, s50, 6
    s_lshl_b32 s57, s48, 3
    s_add_u32 s54, s54, s57
    v_add_u32 v3, s54, v3           ; m
    v_lshlrev_b32 v3, 11, v3
    v_bfe_u32 v7, v2, 3, 2
    v_lshl_add_u32 v3, v7, 3, v3
    v_lshl_add_u32 v3, v4, 2, v3
    v_lshl_add_u32 v3, v1, 5, v3
    s_lshl_b32 s54, s51, 7
    v_add_u32 v7, s54, v3
    """)

def wd_list(steps):
    out = []
    for s in steps:
        d = f"s_add_u32 m0, s55, {WD_LDS + s*4096}\ns_add_u32 s57, s{84 if s < 7 else 85}, {s*65536}\nbuffer_load_dwordx4 v17, {rs(R_D)}, s57 offen lds"
        if s == 6: d += "\nglobal_load_dword v9, v5, s[14:15] sc1"
        out.append(d)
    return out

def nonce_wait(a, tag, vn, vz):
    a(f"""
    v_readfirstlane_b32 s59, v{vn}
    s_mov_b32 s80, 0
    s_nop 2
    L_nonce_{tag}:
    s_cmp_lg_u32 s59, 0
    s_cbranch_scc1 L_nonce_ok_{tag}
    s_sleep 8
    global_load_dword v{vn}, v{vz}, s[14:15] sc1
    s_add_u32 s80, s80, 1
    s_waitcnt vmcnt(0)
    v_readfirstlane_b32 s59, v{vn}
    s_cmp_lt_u32 s80, {SPIN}
    s_nop 2
    s_cbranch_scc1 L_nonce_{tag}
    L_nonce_ok_{tag}:
    """)

if __name__ == "__main__":
    opts(sys.argv[2:])
    a = gen()
    hdr = HEADER + f"; @launch grid=(256,1,1) block=(512,1,1) lds={LDS}\n.amdgcn_target \"amdgcn-amd-amdhsa--gfx950\"\n"
    open(sys.argv[1], "w").write(hdr + a.text() + kdesc(KN, NV + NA, NV))
```

```python
import sys
from asmlib import *

KN = "standalone__swiglu_ffn__sampling_kernel"
X_B, W_B, OUT_B, WS_B = 128*1024*2, 1024*3584*2, 128*1024*2, 268435456
HA_OFF = 0
HB_OFF = 1 << 20
P_OFF = (2 << 20)
FA_OFF = (4 << 20)
FB_OFF = FA_OFF + 4096
EP_OFF = FA_OFF + 8192
RG_OFF = FA_OFF + 12288
PZ_OFF = FA_OFF + 16384
ST_OFF = 8 << 20
R_X, R_G, R_U, R_D, R_WS, R_OUT = 20, 24, 28, 32, 36, 40
WD_LDS = 98304
SY_LDS = WD_LDS + 57344
LDS = SY_LDS + 64
SPIN = 1 << 18
NV, NA = 96, 160

class O:
    stamp = 0
    sync = 1
    sw = 4
    codepf = 3
    ackfirst = 1
    kfast = 64
    sl1 = 1
    sl2 = 2
    wd13 = 0
    wd14 = 5
    hfirst = 10
    first = 3
    hlead = 5
    fine = 2
    touchq = 0
    tstep = 1
    hpf = 8
    pzc = 12
    pzl = 1
    wd0 = 0
    hself = 0
    r2 = 4
    r3 = 10
    swapgu = 1
    p1rot = 0
    su_at = -1
PTS = {}
def opts(argv):
    for x in argv:
        k, v = x.split("=")
        if k == "pts":
            PTS.clear(); PTS["start"] = 0
            for i, nm in enumerate(v.split(",")): PTS[nm] = i + 1
            O.stamp = 1
        else:
            assert hasattr(O, k), k
            setattr(O, k, int(v))
def stamp(a, name):
    if O.stamp and name in PTS:
        idx = PTS[name]
        a(f"s_memrealtime s[{64+2*idx}:{65+2*idx}]")
_fl = [0]
def stamp_flush(a):
    if not O.stamp: return
    _fl[0] += 1
    L = f"L_sf{_fl[0]}"
    a(f"""
    s_memrealtime s[78:79]
    s_cmp_lg_u32 s53, {O.sw}
    s_cbranch_scc1 {L}
    s_mov_b64 s[36:37], s[16:17]
    s_mov_b32 s38, {WS_B}
    s_mov_b32 s39, 0x20000
    s_waitcnt lgkmcnt(0)
    """)
    for i in range(8):
        a(f"v_mov_b32 v{80+i}, s{64+2*i}")
    a(f"""
    s_lshl_b32 s63, s2, 5
    s_add_u32 s63, s63, {ST_OFF}
    v_mov_b32 v88, s63
    s_mov_b64 exec, 1
    buffer_store_dwordx4 v[80:83], v88, {rs(R_WS)}, 0 offen
    buffer_store_dwordx4 v[84:87], v88, {rs(R_WS)}, 0 offen offset:16
    {L}:
    """)
def rs(r): return f"s[{r}:{r+3}]"

def srd_tail(a, which):
    for r, n in which:
        a(f"s_mov_b32 s{r+2}, {n}")
        a(f"s_mov_b32 s{r+3}, 0x20000")

def gen():
    a = Asm()
    kstart(a, KN)
    if O.stamp and O.sync:
        a("""
        s_memrealtime s[44:45]
        s_waitcnt lgkmcnt(0)
        s_add_u32 s46, s44, 612
        s_and_b32 s46, s46, 0xfffffe00
        L_sync:
        s_memrealtime s[44:45]
        s_waitcnt lgkmcnt(0)
        s_sub_u32 s47, s44, s46
        s_cmp_lt_i32 s47, 0
        s_cbranch_scc1 L_sync
        """)
    stamp(a, "start")
    a("""
    s_load_dwordx8 s[4:11], s[0:1], 0
    s_load_dwordx4 s[12:15], s[0:1], 32
    s_load_dwordx2 s[16:17], s[0:1], 48
    v_lshrrev_b32 v1, 6, v0         ; wave
    s_cmp_ge_u32 s2, 256
    s_cbranch_scc1 L_end
    v_readfirstlane_b32 s53, v1
    s_and_b32 s48, s2, 7
    s_lshr_b32 s49, s2, 3           ; q
    v_and_b32 v2, 63, v0            ; lane
    s_cmp_lt_u32 s49, 14
    s_cbranch_scc1 L_p1
    s_sub_u32 s52, s49, 14          ; p
    s_cmp_lg_u32 s53, 0
    s_cbranch_scc1 L_pf_other
    """)
    a(f"""
    s_mul_i32 s54, s52, 25
    v_add_u32 v3, s54, v2
    v_mul_u32_u24 v5, 9363, v3
    v_lshrrev_b32 v5, 16, v5        ; row
    v_mul_u32_u24 v6, 7, v5
    v_sub_u32 v6, v3, v6            ; col
    v_mul_u32_u24 v5, 7168, v5
    v_lshl_add_u32 v5, v6, 7, v5
    s_mul_i32 s54, s48, 896
    v_add_u32 v5, s54, v5
    v_cmp_gt_u32 vcc, 25, v2
    s_movk_i32 s54, 448
    v_cmp_gt_u32 s[44:45], s54, v3
    v_bfrev_b32 v7, 2
    s_lshl_b32 s54, s52, 3
    s_and_b64 vcc, vcc, s[44:45]
    v_add_u32 v3, s54, v2
    v_lshlrev_b32 v6, 11, v3
    v_cndmask_b32 v10, v7, v5, vcc
    v_cmp_gt_u32 vcc, 8, v2
    s_mov_b32 s22, {X_B}
    s_mov_b32 s23, 0x20000
    v_cndmask_b32 v11, v7, v6, vcc
    s_mov_b32 s26, {W_B}
    s_mov_b32 s27, 0x20000
    s_mov_b32 s30, {W_B}
    s_mov_b32 s31, 0x20000
    s_bitcmp{1 if O.swapgu else 0}_b32 s52, {0 if O.swapgu else 31}
    s_waitcnt lgkmcnt(0)
    s_cselect_b64 s[24:25], s[6:7], s[8:9]
    s_cselect_b64 s[28:29], s[8:9], s[6:7]
    s_mov_b64 s[20:21], s[4:5]
    """)
    stamp(a, "karg")
    npf = 0; nmark = 0
    for c in range(16):
        if c == 1:
            if O.touchq:
                a("""
                s_cmp_lt_u32 s52, 14
                s_cselect_b64 s[44:45], s[16:17], s[12:13]
                s_cmp_lt_u32 s52, 12
                s_cselect_b64 s[44:45], s[10:11], s[44:45]
                s_cmp_lt_u32 s52, 8
                s_cselect_b64 s[44:45], s[8:9], s[44:45]
                s_cmp_lt_u32 s52, 4
                s_cselect_b64 s[44:45], s[6:7], s[44:45]
                s_and_b32 s54, s52, 3
                s_lshl_b32 s54, s54, 21
                s_cmp_lt_u32 s52, 14
                s_cselect_b32 s54, s54, 0
                s_load_dword s87, s[44:45], s54
                """)
            reg1(a)
        if c == O.r2:
            a("s_waitcnt lgkmcnt(0)")
            reg2(a); nmark = npf
        if c == O.r3:
            a(f"s_waitcnt vmcnt({min(63, npf - nmark)})")
            reg3(a)
            stamp(a, "non")
        if c == O.pzc:
            poison(a); npf += 8
        npf += 3 + (c == O.hpf) + (c == O.codepf)
        if c == 0:
            so_w, so_x = "0", "0"
        else:
            a(f"s_mov_b32 s57, {c*64*7168}")
            a(f"s_movk_i32 s58, {c*128}")
            so_w, so_x = "s57", "s58"
        a(f"buffer_load_dword v20, v10, {rs(R_G)}, {so_w} offen")
        a(f"buffer_load_dword v21, v10, {rs(R_U)}, {so_w} offen")
        a(f"buffer_load_dword v22, v11, {rs(R_X)}, {so_x} offen")
        stamp(a, f"i{c}")
        if c == O.hpf:
            a(f"""
            s_mul_i32 s54, s52, 50
            v_min_u32 v3, 49, v2
            v_add_u32 v3, s54, v3
            v_min_u32 v3, 895, v3
            s_mul_i32 s54, s48, 114688
            v_lshl_add_u32 v3, v3, 7, s54
            global_load_dword v24, v3, s[16:17]
            """)
        if c == O.codepf:
            a(f"""
            s_getpc_b64 s[44:45]
            L_pc:
            s_sub_u32 s44, s44, L_pc-{KN}
            s_subb_u32 s45, s45, 0
            s_mul_i32 s54, s52, 6
            v_min_u32 v3, 5, v2
            v_add_u32 v3, s54, v3
            v_min_u32 v3, (L_code_end-{KN}-4)/128, v3
            v_lshlrev_b32 v3, 7, v3
            global_load_dword v23, v3, s[44:45]
            """)
    if O.pzc == 16: poison(a)
    a("s_waitcnt lgkmcnt(0)")
    a("s_barrier")
    stamp(a, "pfi")
    for c in range(16):
        if f"l{c}" in PTS:
            a(f"s_waitcnt vmcnt({3*(15-c) + (1 if c < O.codepf else 0) + (1 if c < O.hpf else 0) + (1 if c < O.r2 else 0) + (1 if c < O.r3 else 0)})")
            stamp(a, f"l{c}")
    a("s_branch L_pf_front")
    a(f"""
    L_pf_other:
    s_cmp_ge_u32 s53, 4
    s_cbranch_scc1 L_back_pf
    s_waitcnt lgkmcnt(0)
    s_cmp_eq_u32 s53, 3
    s_cbranch_scc0 L_pf_bar
    s_cmp_eq_u32 s2, 255
    s_cbranch_scc0 L_pf_bar
    s_mov_b32 s57, {EP_OFF}
    s_load_dword s59, s[16:17], s57
    v_mov_b32 v3, 0
    v_mov_b32 v4, s57
    s_waitcnt lgkmcnt(0)
    s_add_u32 s59, s59, 1
    s_bitset1_b32 s59, 31
    v_mov_b32 v5, s59
    s_mov_b64 exec, 1
    global_store_dword v3, v5, s[14:15] sc1
    s_waitcnt vmcnt(0)
    global_store_dword v4, v5, s[16:17] sc1
    s_mov_b64 exec, -1
    s_branch L_pf_bar
    """)
    a(f"""
    L_pf_bar:
    s_waitcnt lgkmcnt(0)
    s_barrier
    L_pf_front:
    """)
    pf_role(a, "f")
    front_setup(a)
    a(f"""
    v_mov_b32 v5, {SY_LDS + 32}
    ds_read_b32 v12, v5
    s_waitcnt lgkmcnt(0)
    v_xor_b32 v3, s86, v12
    s_cmp_lg_u32 s53, 0
    s_cbranch_scc1 L_pf_noflag
    s_lshl_b32 s54, s49, 3
    s_add_u32 s54, s54, s48
    s_lshl_b32 s54, s54, 7
    s_add_u32 s54, s54, {PZ_OFF}
    v_mov_b32 v4, s54
    s_waitcnt vmcnt(0)
    buffer_store_dword v12, v4, {rs(R_WS)}, 0 offen sc1
    L_pf_noflag:
    s_barrier
    s_branch L_hload
    L_back_pf:
    """)
    pf_role(a, "b")
    a(f"""
    v_and_b32 v1, 3, v1
    s_waitcnt lgkmcnt(0)
    """)
    a("""
    """)
    p2_setup(a)
    a("s_waitcnt lgkmcnt(0)")
    a("s_barrier")
    for d in wd_list(range(14)): a(d)
    a("s_branch L_p2")

    a(f"""
    L_p1:
    s_and_b32 s47, s49, 1           ; mh1
    s_lshr_b32 s52, s49, 1          ; col
    s_mul_i32 s54, s48, 7
    s_add_u32 s52, s52, s54
    s_cmp_lt_u32 s53, 4
    s_cbranch_scc1 L_front
    v_and_b32 v1, 3, v1
    s_lshl_b32 s54, s52, 7
    v_lshrrev_b32 v3, 3, v2         ; r
    v_and_b32 v4, 7, v2             ; p
    v_lshl_add_u32 v5, v1, 4, v3    ; 16w + r
    v_mul_u32_u24 v6, 7168, v5
    v_add_u32 v6, s54, v6
    v_and_b32 v7, 2, v3
    v_xor_b32 v7, v7, v4
    v_lshl_add_u32 v10, v7, 4, v6   ; vG
    v_xor_b32 v11, 64, v10          ; vU
    v_lshrrev_b32 v7, 1, v3
    v_xor_b32 v7, v7, v4
    s_lshl_b32 s54, s47, 6
    v_add_u32 v5, s54, v5
    v_lshlrev_b32 v5, 11, v5
    v_lshl_add_u32 v12, v7, 4, v5   ; vX0
    v_xor_b32 v13, 64, v12
    v_add_u32 v13, 0x4000, v13      ; vX1
    s_and_b32 s56, s53, 3
    s_lshl_b32 s55, s56, 10
    s_lshl_b32 s56, s56, 11
    """)
    if O.wd0:
        p1_role(a)
        wd_addr(a)
        srd_tail(a, [(R_D, W_B)])
    srd_tail(a, [(R_X, X_B), (R_G, W_B), (R_U, W_B)])
    a("""
    s_waitcnt lgkmcnt(0)
    s_mov_b64 s[32:33], s[10:11]
    s_mov_b64 s[24:25], s[6:7]
    s_mov_b64 s[28:29], s[8:9]
    s_mov_b64 s[20:21], s[4:5]
    """)
    stamp(a, "karg")
    if O.wd0:
        for d in wd_list(range(O.wd0), early=True): a(d)
    def dma(c):
        sl = (c % 4) * 24576
        for k, (v, r, so) in enumerate([(12, R_X, c*128), (13, R_X, c*128), (10, R_G, c*458752), (10, R_G, c*458752+57344), (11, R_U, c*458752), (11, R_U, c*458752+57344)]):
            a(f"s_add_u32 m0, s56, {sl + (k//2)*8192 + (k%2)*1024}\ns_mov_b32 s57, {so}\nbuffer_load_dwordx4 v{v}, {rs(r)}, s57 offen lds")
    dma(0)
    stamp(a, "d0")
    dma(1)
    stamp(a, "d1")
    def back_setup():
        p1_role(a)
        p2_setup(a)
        stamp(a, "su")
    if O.su_at < 0: back_setup()
    issued = 2
    while issued < O.first:
        dma(issued); issued += 1
    wd = O.wd0
    wdl = wd_list(range(14))
    def nvm(l): return sum(x.count("_load_dword") for x in l)
    wdops = 0
    for c in range(16):
        a(f"s_waitcnt vmcnt({6*(issued-1-c) + wdops})" + (" lgkmcnt(0)" if c == O.su_at + 1 else ""))
        a("s_barrier")
        stamp(a, f"c{c}")
        if issued < 16 and issued <= c + 3:
            dma(issued); issued += 1
        else:
            n = {13: O.wd13, 14: O.wd14, 15: 14}.get(c, 0)
            n = min(n, 14 - wd)
            for d in wdl[wd:wd+n]: a(d)
            wdops += nvm(wdl[wd:wd+n]); wd += n
        if c == O.su_at: back_setup()
    a("L_p2:")
    stamp(a, "p2in")
    def areg(slot, t, n, o=0):
        base = (slot*4 + t) * 4 + o
        return ar(base, n) if slot < 10 else vr(64 + base - 160, n)
    def areads(s, slot):
        out = []
        for t in range(4):
            out.append(f"ds_read_b64_tr_b16 {areg(slot, t, 2)}, v{20+t} offset:{s*4096}")
            out.append(f"ds_read_b64_tr_b16 {areg(slot, t, 2, 2)}, v{20+t} offset:{s*4096+1024}")
        return out
    def lsync(k):
        a(f"""
        ds_write_b32 v14, v15 offset:{16*k}
        L_sy{k}:
        ds_read_b128 v[40:43], v16 offset:{16*k}
        s_waitcnt lgkmcnt(0)
        v_and_b32 v40, v40, v41
        v_and_b32 v42, v42, v43
        v_and_b32 v40, v40, v42
        v_cmp_eq_u32 vcc, 0, v40
        s_cbranch_vccnz L_sy{k}
        """)
    if O.pzl == 0: a(f"buffer_load_dword v9, v18, {rs(R_WS)}, 0 offen sc1")
    a(f"s_waitcnt vmcnt({10 if O.pzl == 0 else 9})")
    lsync(0)
    stamp(a, "wd1")
    for s in range(5):
        if s >= 1: a("s_waitcnt lgkmcnt(6)")
        for r in areads(s, s): a(r)
    a(f"s_waitcnt vmcnt({5 if O.pzl == 0 else 4}) lgkmcnt(6)")
    a("ds_read_b32 v5, v16 offset:32")
    lsync(1)
    stamp(a, "wd2")
    if O.pzl == 1: a(f"buffer_load_dword v9, v18, {rs(R_WS)}, 0 offen sc1")
    for s in range(5, 10):
        if s >= 6: a("s_waitcnt lgkmcnt(6)")
        for r in areads(s, s): a(r)
    a(f"""
    s_cmp_lt_u32 s49, 14
    s_cbranch_scc1 L_nob2
    s_barrier
    L_nob2:
    s_waitcnt lgkmcnt(8)
    """)
    AC = 24
    groups = {0: [[2*g, 2*g+1] for g in range(7)],
              1: [[0,1],[2,3],[4,5],[6,7],[8,9],[10,11],[12],[13]],
              2: [[0],[1,2],[3,4],[5,6],[7,8],[9,10],[11,12],[13]],
              3: [[0],[1],[2,3],[4,5],[6,7],[8,9],[10,11],[12],[13]],
              4: [[s_] for s_ in range(14)]}[O.fine]
    def breg(s): return 40 + 4*(s % 4)
    fly = areads(10, 10) + areads(11, 11) + areads(12, 0) + areads(13, 1)
    nfly = [0]
    out = [0]
    def mf(s):
        for t in range(4):
            cin = "0" if s == 0 else vr(AC+4*t, 4)
            a(f"v_mfma_f32_16x16x32_bf16 {vr(AC+4*t,4)}, {areg(s % 12, t, 4)}, {vr(breg(s),4)}, {cin}")
            if s >= 1 and nfly[0] < 32:
                a(fly[nfly[0]]); nfly[0] += 1
    prev = []
    for gi, g in enumerate(groups):
        if 1 in prev: a("s_waitcnt vmcnt(1)")
        a("s_barrier")
        stamp(a, f"b{gi}")
        if gi == len(groups) - 1: stamp(a, "bl")
        for s_ in g:
            a(f"ds_read_b128 {vr(breg(s_),4)}, v19 offset:{s_*4096}")
        if prev:
            a(f"s_waitcnt lgkmcnt({len(g) + out[0]})")
            n0 = nfly[0]
            for s_ in prev: mf(s_)
            out[0] = nfly[0] - n0
            assert max(prev) < 10 or max(prev) - 9 <= n0 // 8
        prev = g
    a("s_waitcnt lgkmcnt(0)")
    for s_ in prev: mf(s_)
    assert nfly[0] == 32
    stamp(a, "mend")
    a(f"""
    s_waitcnt vmcnt(0)
    v_cmp_ne_u32 vcc, v5, v9
    s_mov_b32 s80, 0
    s_mov_b32 s44, 0xffff0000
    s_cbranch_vccnz L_pz_wait
    L_pz_ok:
    s_nop 0
    """)
    for g in range(2):
        for i in range(4):
            a(f"v_cvt_pk_bf16_f32 v{40+4*g+i}, v{AC+8*g+2*i}, v{AC+8*g+2*i+1}")
        for i in range(4):
            a(f"v_min_u32 v{40+4*g+i}, -2, v{40+4*g+i}")
        a(f"buffer_store_dwordx4 {vr(40+4*g,4)}, v8, {rs(R_WS)}, 0 offen offset:{g*512} sc1")
    stamp(a, "pst")
    if O.ackfirst: a("s_waitcnt vmcnt(0)")
    stamp(a, "ack")
    a(f"""
    L_poll2:
    buffer_load_dwordx4 v[64:67], v6, {rs(R_WS)}, 0 offen sc1
    buffer_load_dwordx4 v[68:71], v6, {rs(R_WS)}, 0 offen offset:1024 sc1
    s_add_u32 s80, s80, 1
    s_cmp_ge_u32 s80, {SPIN}
    s_waitcnt vmcnt(1)
    v_max3_u32 v4, v64, v65, v66
    v_lshlrev_b32 v72, 16, v64
    v_and_b32 v73, s44, v64
    v_lshlrev_b32 v74, 16, v65
    v_and_b32 v75, s44, v65
    v_lshlrev_b32 v76, 16, v66
    v_and_b32 v77, s44, v66
    v_lshlrev_b32 v78, 16, v67
    v_and_b32 v79, s44, v67
    s_waitcnt vmcnt(0)
    v_max3_u32 v4, v4, v67, v68
    v_max3_u32 v5, v69, v70, v71
    v_max_u32 v4, v4, v5
    v_cmp_eq_u32 vcc, -1, v4
    s_cbranch_scc1 L_fin
    s_cbranch_vccz L_fin
    s_sleep {O.sl2}
    s_branch L_poll2
    L_fin:
    v_lshlrev_b32 v80, 16, v68
    v_and_b32 v81, s44, v68
    v_lshlrev_b32 v82, 16, v69
    v_and_b32 v83, s44, v69
    v_lshlrev_b32 v84, 16, v70
    v_and_b32 v85, s44, v70
    v_lshlrev_b32 v86, 16, v71
    v_and_b32 v87, s44, v71
    v_pk_add_f32 v[72:73], v[72:73], v[80:81]
    v_pk_add_f32 v[76:77], v[76:77], v[84:85]
    v_pk_add_f32 v[74:75], v[74:75], v[82:83]
    v_pk_add_f32 v[78:79], v[78:79], v[86:87]
    s_nop 0
    v_permlane32_swap_b32 v72, v76
    v_permlane32_swap_b32 v73, v77
    v_permlane32_swap_b32 v74, v78
    v_permlane32_swap_b32 v75, v79
    v_pk_add_f32 v[72:73], v[72:73], v[76:77]
    v_pk_add_f32 v[74:75], v[74:75], v[78:79]
    s_nop 1
    v_permlane16_swap_b32 v72, v74
    v_permlane16_swap_b32 v73, v75
    s_nop 0
    v_pk_add_f32 v[72:73], v[72:73], v[74:75]
    v_cvt_pk_bf16_f32 v64, v72, v73
    buffer_store_dword v64, v7, {rs(R_OUT)}, 0 offen
    """)
    if "npoll" in PTS:
        i = PTS["npoll"]
        a(f"s_waitcnt lgkmcnt(0)\ns_mul_i32 s{64+2*i}, s80, 100\ns_add_u32 s{64+2*i}, s{64+2*i}, s64")
    stamp_flush(a)
    a("L_end:")
    a("s_endpgm")
    a(f"""
    L_pz_wait:
    s_sleep 4
    buffer_load_dword v9, v18, {rs(R_WS)}, 0 offen sc1
    s_add_u32 s80, s80, 1
    s_cmp_ge_u32 s80, {SPIN}
    s_waitcnt vmcnt(0)
    v_cmp_ne_u32 vcc, v5, v9
    s_cbranch_scc1 L_pz_out
    s_cbranch_vccnz L_pz_wait
    L_pz_out:
    s_mov_b32 s80, {1000 if O.stamp else 0}
    s_branch L_pz_ok
    """)
    a("L_front:")
    a(f"""
    v_lshrrev_b32 v3, 4, v2         ; G
    v_and_b32 v4, 1, v3             ; isU
    v_lshrrev_b32 v5, 5, v2         ; hf
    v_bfe_u32 v6, v2, 2, 2          ; r
    v_lshrrev_b32 v7, 1, v6
    v_lshl_add_u32 v7, v4, 1, v7    ; 2 isU + (r>>1)
    v_xor_b32 v7, v7, v1
    v_lshl_add_u32 v6, v5, 3, v6    ; 8hf + r
    v_lshlrev_b32 v6, 7, v6
    v_lshl_add_u32 v6, v7, 5, v6
    v_lshl_add_u32 v6, v4, 13, v6
    v_and_b32 v7, 3, v2
    v_lshl_add_u32 v6, v7, 3, v6
    v_add_u32 v16, 0x2000, v6
    v_add_u32 v17, 49152, v16       ; slots 2/3
    v_and_b32 v6, 31, v2            ; m
    v_bfe_u32 v7, v6, 1, 3
    v_xor_b32 v7, v7, v5
    v_lshlrev_b32 v6, 7, v6
    """)
    for s in range(4):
        a(f"v_xor_b32 v8, {2*s}, v7")
        a(f"v_lshl_add_u32 v{20+s}, v8, 4, v6")
        a(f"v_add_u32 v{24+s}, 49152, v{20+s}")
    a(f"""
    v_lshrrev_b32 v6, 1, v1
    s_lshl_b32 s54, s52, 1
    v_add_u32 v6, s54, v6
    v_lshlrev_b32 v6, 3, v6
    v_bfe_u32 v7, v2, 4, 1
    s_lshl_b32 s54, s47, 2
    v_add3_u32 v6, v6, v7, s54      ; *8 + m16
    v_lshlrev_b32 v6, 10, v6
    v_and_b32 v7, 1, v1
    v_lshl_add_u32 v7, v7, 1, v5    ; kg
    v_lshl_add_u32 v6, v7, 8, v6
    v_and_b32 v7, 15, v2
    v_lshl_add_u32 v14, v7, 4, v6
    s_lshl_b32 s54, s48, 1
    s_add_u32 s54, s54, s47
    s_lshl_b32 s54, s54, 7          ; (j*2+mh)*128
    s_lshr_b32 s57, s49, 1
    s_lshl_b32 s57, s57, 4
    s_add_u32 s54, s54, s57
    s_add_u32 s54, s54, {FA_OFF}
    v_lshl_add_u32 v15, v1, 2, s54
    """)
    p1_role(a)
    front_setup(a)
    a("s_mov_b32 s88, 0")
    a("s_cmp_lg_u32 s53, 0")
    a("s_cbranch_scc1 L_noreg1")
    if O.hself:
        a("""
        s_lshl_b32 s54, s52, 4
        s_lshl_b32 s57, s47, 2
        s_add_u32 s54, s54, s57
        s_lshl_b32 s54, s54, 10
        v_lshrrev_b32 v6, 5, v2
        v_and_b32 v7, 31, v2
        v_lshlrev_b32 v7, 7, v7
        v_lshl_add_u32 v6, v6, 13, v7
        v_add_u32 v6, s54, v6
        global_load_dword v31, v6, s[16:17]
        """)
    reg1(a)
    a(f"""
    L_noreg1:
    s_mov_b32 s44, 0xbfb8aa3b
    s_mov_b32 s45, 0xbfb8aa3b
    v_mov_b32 v5, {SY_LDS + 32}
    """)
    ACC = [32, 48]
    def reads(c, s):
        slot = c % 4
        rng, so = slot // 2, (slot % 2) * 24576
        b = 12*s
        return [f"ds_read_b64_tr_b16 a[{b}:{b+1}], v{16+rng} offset:{so + 2048*s}",
                f"ds_read_b64_tr_b16 a[{b+2}:{b+3}], v{16+rng} offset:{so + 2048*s + 512}",
                f"ds_read_b128 a[{b+4}:{b+7}], v{20+4*rng+s} offset:{so}",
                f"ds_read_b128 a[{b+8}:{b+11}], v{20+4*rng+s} offset:{so + 4096}"]
    def mfma(c, s, mi):
        b = 12*s
        cin = "0" if (c == 0 and s == 0) else vr(ACC[mi], 16)
        return f"v_mfma_f32_32x32x16_bf16 {vr(ACC[mi],16)}, {ar(b,4)}, {ar(b+4+4*mi,4)}, {cin}"
    a("s_barrier")
    stamp(a, "c0")
    for s in range(3):
        for r in reads(0, s): a(r)
    for c in range(15):
        for s in range(3):
            a(f"s_waitcnt lgkmcnt({[8,8,4][s]})")
            a(mfma(c, s, 0))
            if s == 0:
                for r in reads(c, 3)[:2]: a(r)
            a(mfma(c, s, 1))
            if s == 0:
                for r in reads(c, 3)[2:]: a(r)
        if c in (1, 3):
            a("s_cmp_lg_u32 s53, 0")
            a(f"s_cbranch_scc1 L_noreg_c{c}")
            if c == 1: reg2(a)
            else:
                a("s_waitcnt vmcnt(0)")
                reg3(a)
            a(f"L_noreg_c{c}:")
        if c == 5:
            a("ds_read_b32 v12, v5")
        if c == 6:
            a("v_xor_b32 v3, s86, v12")
        if c == 13:
            a(f"buffer_load_dword v30, v29, {rs(R_WS)}, 0 offen sc1")
        a("s_waitcnt lgkmcnt(0)")
        a("s_barrier")
        stamp(a, f"c{c+1}")
        rr = [r for s in range(3) for r in reads(c + 1, s)]
        for r in rr[:4]: a(r)
        a(mfma(c, 3, 0))
        for r in rr[4:8]: a(r)
        a(mfma(c, 3, 1))
        for r in rr[8:]: a(r)
    c = 15
    a("s_waitcnt lgkmcnt(8)")
    a(mfma(c, 0, 0))
    for r in reads(c, 3): a(r)
    a("s_waitcnt lgkmcnt(8)")
    a(mfma(c, 1, 0))
    a("s_waitcnt lgkmcnt(4)")
    a(mfma(c, 2, 0))
    a("s_waitcnt lgkmcnt(0)")
    a(mfma(c, 3, 0))
    a(mfma(c, 0, 1))
    a(f"""
    s_waitcnt vmcnt(0)
    v_cmp_ne_u32 s[46:47], v3, v30
    s_nop 7
    s_nop 0
    """)
    def epi(mi):
        A = ACC[mi]; t = 64 + 16*mi
        o = []
        for r in range(0, 8, 2):
            o.append(f"v_pk_mul_f32 v[{t+r}:{t+r+1}], v[{A+r}:{A+r+1}], s[44:45]")
        for r in range(8):
            o.append(f"v_exp_f32 v{t+r}, v{t+r}")
        for r in range(0, 8, 2):
            o.append(f"v_pk_mul_f32 v[{t+8+r}:{t+9+r}], v[{A+r}:{A+r+1}], v[{A+8+r}:{A+9+r}]")
        for r in range(0, 8, 2):
            o.append(f"v_pk_add_f32 v[{t+r}:{t+r+1}], v[{t+r}:{t+r+1}], 1.0 op_sel_hi:[1,0]")
        for r in range(8):
            o.append(f"v_rcp_f32 v{t+r}, v{t+r}")
        o.append("s_nop 0")
        for r in range(0, 8, 2):
            o.append(f"v_pk_mul_f32 v[{t+r}:{t+r+1}], v[{t+r}:{t+r+1}], v[{t+8+r}:{t+9+r}]")
        for d in range(4):
            o.append(f"v_cvt_pk_bf16_f32 v{4+4*mi+d}, v{t+2*d}, v{t+2*d+1}")
        o.append(f"buffer_store_dwordx4 v[{4+4*mi}:{7+4*mi}], v14, {rs(R_WS)}, 0 offen offset:{2048*mi}")
        return o
    e0 = epi(0)
    for i, x in enumerate(e0):
        if i == 0: a(mfma(c, 1, 1))
        if i == 5: a(mfma(c, 2, 1))
        if i == 8: a(mfma(c, 3, 1))
        a(x)
    for x in epi(1): a(x)
    stamp(a, "hst")
    a(f"""
    s_cmp_lg_u64 s[46:47], 0
    s_waitcnt vmcnt(0)
    buffer_store_dword v3, v15, {rs(R_WS)}, 0 offen
    s_cbranch_scc1 L_sendb
    """)
    stamp(a, "flg")
    a(f"""
    L_hload:
    s_mov_b32 s80, 0
    L_poll1:
    buffer_load_dword v4, v18, {rs(R_WS)}, 0 offen sc1
    s_add_u32 s80, s80, 1
    s_cmp_ge_u32 s80, {O.kfast}
    s_cbranch_scc1 L_slow
    s_waitcnt vmcnt(0)
    v_cmp_ne_u32 vcc, v3, v4
    s_cbranch_vccz L_go
    s_sleep {O.sl1}
    s_branch L_poll1
    L_go:
    """)
    stamp(a, "go")
    def hload(s):
        a(f"s_add_u32 m0, s55, {s*4096}")
        a(f"s_add_u32 s57, s{82 if s < 7 else 83}, {s*8192}")
        a(f"buffer_load_dwordx4 v19, {rs(R_WS)}, s57 offen sc1 lds")
    hl = 0
    while hl < O.hlead:
        hload(hl); hl += 1
    for gi, g in enumerate(groups):
        a(f"s_waitcnt vmcnt({hl - 1 - g[-1]})")
        a("s_barrier")
        for _ in range(len(groups[min(gi + 1, len(groups) - 1)])):
            if hl < 14:
                hload(hl); hl += 1
    stamp_flush(a)
    a("s_endpgm")
    a(f"""
    L_sendb:
    s_mov_b32 s57, {HB_OFF}
    s_movk_i32 s58, 0x1000
    buffer_store_dwordx4 v[4:7], v14, {rs(R_WS)}, s57 offen sc1
    buffer_store_dwordx4 v[8:11], v14, {rs(R_WS)}, s57 offen offset:2048 sc1
    s_waitcnt vmcnt(0)
    buffer_store_dword v12, v15, {rs(R_WS)}, s58 offen sc1
    s_branch L_hload
    L_slow:
    s_movk_i32 s57, 0x1000
    s_mov_b32 s80, 0
    L_slow_poll:
    buffer_load_dword v4, v18, {rs(R_WS)}, 0 offen sc1
    buffer_load_dword v10, v18, {rs(R_WS)}, s57 offen sc1
    s_add_u32 s80, s80, 1
    s_waitcnt vmcnt(0)
    v_cmp_ne_u32 vcc, v3, v4
    s_cbranch_vccz L_go
    v_cmp_ne_u32 vcc, v12, v10
    s_cbranch_vccz L_slow_b
    s_sleep 8
    s_cmp_lt_u32 s80, {SPIN}
    s_cbranch_scc1 L_slow_poll
    L_slow_b:
    s_add_u32 s82, s82, {HB_OFF}
    s_add_u32 s83, s83, {HB_OFF}
    s_branch L_go
    """)
    a("L_code_end:")
    return a

def p2_setup(a):
    a(f"""
    s_mov_b64 s[32:33], s[10:11]
    s_mov_b32 s34, {W_B}
    s_mov_b32 s35, 0x20000
    s_mov_b64 s[36:37], s[16:17]
    s_mov_b32 s38, {WS_B}
    s_mov_b32 s39, 0x20000
    s_mov_b64 s[40:41], s[12:13]
    s_mov_b32 s42, {OUT_B}
    s_mov_b32 s43, 0x20000
    s_and_b32 s55, s53, 3
    s_lshl_b32 s55, s55, 10
    s_lshl_b32 s84, s46, 16
    s_sub_u32 s85, 0, s84
    v_mov_b32 v16, {SY_LDS}
    v_lshl_add_u32 v14, v1, 2, v16
    v_mov_b32 v5, 0
    v_mov_b32 v15, -1
    ds_write_b32 v14, v5
    ds_write_b32 v14, v5 offset:16
    """)
    wd_addr(a)
    a(f"""
    v_lshlrev_b32 v3, 10, v1
    v_lshl_add_u32 v19, v2, 4, v3
    v_lshrrev_b32 v3, 4, v2         ; kg
    v_bfe_u32 v4, v2, 2, 2          ; r
    v_and_b32 v7, 1, v3
    v_lshrrev_b32 v6, 1, v3
    v_lshlrev_b32 v6, 4, v6
    v_lshl_add_u32 v6, v7, 2, v6
    v_add_u32 v6, v6, v4
    v_lshlrev_b32 v6, 7, v6
    v_and_b32 v8, 3, v2
    v_lshl_add_u32 v6, v8, 3, v6
    v_add_u32 v6, {WD_LDS}, v6
    v_lshrrev_b32 v4, 1, v4
    v_lshl_add_u32 v4, v7, 1, v4
    """)
    for t in range(4):
        a(f"v_xor_b32 v7, {t}, v4")
        a(f"v_lshl_add_u32 v{20+t}, v7, 5, v6")
    a(f"""
    v_bfe_u32 v4, v2, 3, 1          ; half
    v_lshl_add_u32 v6, v1, 1, v4    ; owner
    s_lshl_b32 s54, s49, 3
    v_add_u32 v6, s54, v6
    v_lshlrev_b32 v6, 3, v6
    v_add_u32 v6, s48, v6
    v_lshlrev_b32 v6, 10, v6
    v_lshl_add_u32 v6, v3, 7, v6
    v_and_b32 v7, 7, v2             ; r
    v_lshl_add_u32 v6, v7, 4, v6
    v_add_u32 v8, {P_OFF}, v6
    s_cmp_lt_u32 s49, 14
    s_cselect_b32 s57, 14*8, 0
    s_add_u32 s57, s57, s54
    s_lshl_b32 s57, s57, 7
    s_add_u32 s57, s57, {PZ_OFF}
    v_lshl_add_u32 v18, v7, 7, s57
    s_add_u32 s54, s54, s48
    s_lshl_b32 s54, s54, 13
    s_add_u32 s54, s54, {P_OFF}
    v_and_b32 v6, 15, v2
    v_lshl_add_u32 v6, v1, 4, v6
    v_lshlrev_b32 v6, 4, v6
    v_lshl_add_u32 v6, v3, 11, v6
    v_add_u32 v6, s54, v6
    s_lshl_b32 s54, s50, 6
    s_lshl_b32 s57, s48, 3
    s_add_u32 s54, s54, s57
    v_add_u32 v7, s54, v7           ; m
    v_lshlrev_b32 v7, 11, v7
    v_lshl_add_u32 v7, v4, 3, v7
    v_and_b32 v4, 1, v1
    v_lshl_add_u32 v7, v4, 4, v7
    v_lshrrev_b32 v4, 1, v1
    v_lshl_add_u32 v7, v4, 6, v7    ; g
    v_and_b32 v4, 1, v3
    v_lshl_add_u32 v7, v4, 2, v7
    v_lshrrev_b32 v4, 1, v3
    v_lshl_add_u32 v7, v4, 5, v7
    s_lshl_b32 s54, s51, 7
    v_add_u32 v7, s54, v7
    """)

def reg1(a):
    a(f"""
    s_mov_b32 s88, {EP_OFF}
    s_load_dword s59, s[16:17], s88
    s_load_dword s87, s[14:15], 0
    s_lshl_b32 s88, s48, 7
    s_add_u32 s88, s88, {RG_OFF}
    s_load_dword s87, s[16:17], s88
    s_add_u32 s89, s88, 64
    s_load_dword s87, s[16:17], s89
    """)
def reg2(a):
    a(f"""
    v_mov_b32 v30, 0
    s_lshl_b32 s89, s49, 2
    s_add_u32 s88, s88, s89
    global_load_dword v12, v30, s[14:15] sc1
    s_add_u32 s59, s59, 1
    s_bitset1_b32 s59, 31
    """)
def reg3(a):
    a(f"""
    v_cmp_eq_u32 vcc, 0, v12
    s_getreg_b32 s86, hwreg(HW_REG_XCC_ID, 0, 4)
    s_lshl_b32 s86, s86, 24
    v_mov_b32 v30, s59
    v_cndmask_b32 v12, v12, v30, vcc
    v_mov_b32 v31, s88
    v_mov_b32 v28, {SY_LDS + 32}
    v_xor_b32 v30, s86, v12
    ds_write_b32 v28, v12
    global_store_dword v31, v30, s[16:17]
    """)
def poison(a):
    a(f"""
    s_lshl_b32 s54, s49, 3
    s_add_u32 s54, s54, s48
    s_lshl_b32 s54, s54, 13
    s_add_u32 s54, s54, {P_OFF}
    v_lshl_add_u32 v3, v2, 4, s54
    v_add_u32 v8, 0x1000, v3
    s_cmp_lt_u32 s52, 14
    s_cselect_b32 s54, {14*8*8192}, 0
    v_subrev_u32 v9, s54, v3
    v_subrev_u32 v14, s54, v8
    v_mov_b32 v4, -1
    v_mov_b32 v5, -1
    v_mov_b32 v6, -1
    v_mov_b32 v7, -1
    """)
    for k in range(8):
        a(f"global_store_dwordx4 v{3 if k < 4 else 8}, v[4:7], s[16:17] offset:{(k % 4)*1024} sc1")
    a("s_cbranch_scc0 L_pz_one")
    for k in range(8):
        a(f"global_store_dwordx4 v{9 if k < 4 else 14}, v[4:7], s[16:17] offset:{(k % 4)*1024} sc1")
    a("L_pz_one:")
def pf_role(a, tag):
    a(f"""
    s_mov_b32 s50, 1                ; mh2
    s_cmp_ge_u32 s52, 3
    s_addc_u32 s51, s52, 0
    s_cmp_ge_u32 s52, 10
    s_addc_u32 s51, s51, 0          ; nt
    s_mov_b32 s46, 0                ; rot
    s_cmp_ge_u32 s52, 14
    s_cbranch_scc0 L_pf_role_{tag}
    s_and_b32 s50, s52, 1
    s_mul_i32 s46, s50, 7
    s_cmp_ge_u32 s52, 16
    s_cselect_b32 s51, 11, 3
    L_pf_role_{tag}:
    """)
def p1_role(a):
    a(f"""
    s_mov_b32 s50, 0                ; mh2
    s_cmp_ge_u32 s49, 3
    s_addc_u32 s51, s49, 0
    s_cmp_ge_u32 s49, 10
    s_addc_u32 s51, s51, 0          ; nt
    s_mov_b32 s46, {O.p1rot}
    """)
def front_setup(a):
    a(f"""
    s_getreg_b32 s86, hwreg(HW_REG_XCC_ID, 0, 4)
    s_lshl_b32 s86, s86, 24
    s_lshl_b32 s55, s53, 10
    s_lshl_b32 s82, s46, 13
    s_sub_u32 s83, 0, s82
    s_mul_i32 s54, s48, 112
    s_lshl_b32 s57, s50, 2
    s_add_u32 s54, s54, s57
    v_add_u32 v6, s54, v1
    v_lshlrev_b32 v6, 10, v6
    v_lshl_add_u32 v19, v2, 4, v6
    s_lshl_b32 s54, s48, 1
    s_add_u32 s54, s54, s50
    s_lshl_b32 s54, s54, 7
    s_add_u32 s54, s54, {FA_OFF}
    v_min_u32 v6, 27, v2
    v_lshl_add_u32 v18, v6, 2, s54
    s_lshl_b32 s54, s48, 7
    s_add_u32 s54, s54, {RG_OFF}
    v_and_b32 v6, 31, v2
    v_lshl_add_u32 v29, v6, 2, s54
    s_mov_b32 s38, {WS_B}
    s_mov_b32 s39, 0x20000
    s_waitcnt lgkmcnt(0)
    s_mov_b64 s[36:37], s[16:17]
    """)

def wd_addr(a):
    a(f"""
    v_lshrrev_b32 v3, 3, v2         ; r
    v_and_b32 v4, 7, v2             ; p
    v_and_b32 v6, 6, v3
    v_xor_b32 v4, v4, v6
    v_lshl_add_u32 v3, v1, 3, v3    ; 8w + r
    s_mul_i32 s54, s48, 448
    v_add_u32 v3, s54, v3
    v_lshlrev_b32 v3, 11, v3
    s_lshl_b32 s54, s51, 7
    v_add_u32 v3, s54, v3
    v_lshl_add_u32 v17, v4, 4, v3
    """)
def wd_list(steps, early=False):
    out = []
    for s in steps:
        if early:
            out.append(f"s_add_u32 m0, s55, {WD_LDS + s*4096}\ns_mov_b32 s57, {((s + O.p1rot) % 14)*65536}\nbuffer_load_dwordx4 v17, {rs(R_D)}, s57 offen lds")
            continue
        d = f"s_add_u32 m0, s55, {WD_LDS + s*4096}\ns_add_u32 s57, s{84 if s < 7 else 85}, {s*65536}\nbuffer_load_dwordx4 v17, {rs(R_D)}, s57 offen lds"
        out.append(d)
    return out

if __name__ == "__main__":
    opts(sys.argv[2:])
    a = gen()
    hdr = HEADER + f"; @launch grid=(256,1,1) block=(512,1,1) lds={LDS}\n.amdgcn_target \"amdgcn-amd-amdhsa--gfx950\"\n"
    open(sys.argv[1], "w").write(hdr + a.text() + kdesc(KN, NV + NA, NV))
```

```python
import sys
from asmlib import *

KN = "standalone__swiglu_ffn__sampling_kernel"
X_B, W_B, OUT_B, WS_B = 128*1024*2, 1024*3584*2, 128*1024*2, 268435456
FA_OFF = 0
FB_OFF = FA_OFF + 4096
EP_OFF = FA_OFF + 8192
RG_OFF = FA_OFF + 12288
PZ_OFF = FA_OFF + 16384
HA_OFF = 65536
P_OFF = 1 << 20
HB_OFF = (3 << 20) + HA_OFF
PAD_OFF = 3 << 20
ST_OFF = 8 << 20
R_X, R_G, R_U, R_D, R_WS, R_OUT = 20, 24, 28, 32, 36, 40
WD_LDS = 98304
SY_LDS = WD_LDS + 57344
LDS = SY_LDS + 64
SPIN = 1 << 18
NV, NA = 96, 160

class O:
    stamp = 0
    sync = 1
    sw = 4
    codepf = 0
    ackfirst = 1
    kfast = 64
    sl1 = 1
    sl2 = 2
    wd13 = 0
    wd14 = 5
    hfirst = 10
    first = 3
    hlead = 5
    fine = 3
    touchq = 0
    tstep = 1
    hpf = 8
    pzc = 12
    pzl = 1
    bf = 1
    thd = 2
    thn = 0
    xfirst = 1
    vt = 0
    vtc = 1
    vt1 = 7
    p1r3 = 5
    inl = 0
    upd = 1
    nohpf = 0
    hfl = 0
    skip0 = 0
    nopz = 0
    two = 1
    hold = 6
    wdk = 3
    wdlate = -1
    nowd = 0
    fin = 0
    nofront = 0
    sent = 0
    sl3 = 0
    reord = 1
    touchout = 1
    outfl = 0
    endwait = 1
    wd0 = 0
    hself = 0
    r2 = 6
    r3 = 11
    swapgu = 1
    p1rot = 0
    su_at = -1
PTS = {}
def opts(argv):
    for x in argv:
        k, v = x.split("=")
        if k == "pts":
            PTS.clear(); PTS["start"] = 0
            for i, nm in enumerate(v.split(",")): PTS[nm] = i + 1
            O.stamp = 1
        else:
            assert hasattr(O, k), k
            setattr(O, k, int(v))
def stamp(a, name):
    if O.stamp and name in PTS:
        idx = PTS[name]
        a(f"s_memrealtime s[{64+2*idx}:{65+2*idx}]")
_fl = [0]
def stamp_flush(a):
    if not O.stamp: return
    _fl[0] += 1
    L = f"L_sf{_fl[0]}"
    a(f"""
    s_memrealtime s[78:79]
    s_cmp_lg_u32 s53, {O.sw}
    s_cbranch_scc1 {L}
    s_mov_b64 s[36:37], s[16:17]
    s_mov_b32 s38, {WS_B}
    s_mov_b32 s39, 0x20000
    s_waitcnt lgkmcnt(0)
    """)
    for i in range(8):
        a(f"v_mov_b32 v{80+i}, s{64+2*i}")
    a(f"""
    s_lshl_b32 s63, s2, 5
    s_add_u32 s63, s63, {ST_OFF}
    v_mov_b32 v88, s63
    s_mov_b64 exec, 1
    buffer_store_dwordx4 v[80:83], v88, {rs(R_WS)}, 0 offen
    buffer_store_dwordx4 v[84:87], v88, {rs(R_WS)}, 0 offen offset:16
    {L}:
    """)
def rs(r): return f"s[{r}:{r+3}]"

def srd_tail(a, which):
    for r, n in which:
        a(f"s_mov_b32 s{r+2}, {n}")
        a(f"s_mov_b32 s{r+3}, 0x20000")

def gen():
    a = Asm()
    kstart(a, KN)
    if O.stamp and O.sync:
        a("""
        s_memrealtime s[44:45]
        s_waitcnt lgkmcnt(0)
        s_add_u32 s46, s44, 612
        s_and_b32 s46, s46, 0xfffffe00
        L_sync:
        s_memrealtime s[44:45]
        s_waitcnt lgkmcnt(0)
        s_sub_u32 s47, s44, s46
        s_cmp_lt_i32 s47, 0
        s_cbranch_scc1 L_sync
        """)
    stamp(a, "start")
    a("""
    s_load_dwordx8 s[4:11], s[0:1], 0
    s_load_dwordx4 s[12:15], s[0:1], 32
    s_load_dwordx2 s[16:17], s[0:1], 48
    v_lshrrev_b32 v1, 6, v0         ; wave
    s_cmp_ge_u32 s2, 256
    s_cbranch_scc1 L_end
    v_readfirstlane_b32 s53, v1
    s_and_b32 s48, s2, 7
    s_lshr_b32 s49, s2, 3           ; q
    v_and_b32 v2, 63, v0            ; lane
    s_cmp_lt_u32 s49, 14
    s_cbranch_scc1 L_p1
    s_sub_u32 s52, s49, 14          ; p
    s_cmp_lg_u32 s53, 0
    s_cbranch_scc1 L_pf_other
    """)
    a(f"""
    s_mul_i32 s54, s52, 25
    v_add_u32 v3, s54, v2
    v_mul_u32_u24 v5, 9363, v3
    v_lshrrev_b32 v5, 16, v5        ; row
    v_mul_u32_u24 v6, 7, v5
    v_sub_u32 v6, v3, v6            ; col
    v_mul_u32_u24 v5, 7168, v5
    v_lshl_add_u32 v5, v6, 7, v5
    s_mul_i32 s54, s48, 896
    v_add_u32 v5, s54, v5
    v_cmp_gt_u32 vcc, 25, v2
    s_movk_i32 s54, 448
    v_cmp_gt_u32 s[44:45], s54, v3
    v_bfrev_b32 v7, 2
    s_lshl_b32 s54, s52, 3
    s_and_b64 vcc, vcc, s[44:45]
    v_add_u32 v3, s54, v2
    v_lshlrev_b32 v6, 11, v3
    v_cndmask_b32 v10, v7, v5, vcc
    v_cmp_gt_u32 vcc, 8, v2
    s_mov_b32 s22, {X_B}
    s_mov_b32 s23, 0x20000
    v_cndmask_b32 v11, v7, v6, vcc
    s_mov_b32 s26, {W_B}
    s_mov_b32 s27, 0x20000
    s_mov_b32 s30, {W_B}
    s_mov_b32 s31, 0x20000
    s_bitcmp{1 if O.swapgu else 0}_b32 s52, {0 if O.swapgu else 31}
    s_waitcnt lgkmcnt(0)
    s_cselect_b64 s[24:25], s[6:7], s[8:9]
    s_cselect_b64 s[28:29], s[8:9], s[6:7]
    s_mov_b64 s[20:21], s[4:5]
    """)
    stamp(a, "karg")
    npf = 0; nmark = 0
    for c in range(16):
        if c == O.vtc and O.vt:
            a(f"""
            v_add_u32 v3, 1, v2
            v_lshlrev_b32 v3, 21, v3
            v_cmp_gt_u32 vcc, 3, v2
            s_mul_i32 s54, s48, 917504
            v_min_u32 v4, 1, v2
            v_cndmask_b32 v3, v7, v3, vcc
            v_mul_u32_u24 v4, 917376, v4
            buffer_load_dword v25, v3, {rs(R_G)}, 0 offen
            buffer_load_dword v25, v3, {rs(R_U)}, 0 offen
            """)
            npf += 2
            if O.vt >= 2:
                a(f"""
                v_add_u32 v4, s54, v4
                v_mov_b32 v5, {PAD_OFF}
                v_mov_b32 v6, 0
                global_load_dword v25, v4, s[10:11]
                global_load_dword v25, v5, s[16:17]
                global_load_dword v25, v6, s[12:13]
                """)
                npf += 3
        if c == 1:
            if O.touchq:
                a("""
                s_cmp_lt_u32 s52, 14
                s_cselect_b64 s[44:45], s[16:17], s[12:13]
                s_cmp_lt_u32 s52, 12
                s_cselect_b64 s[44:45], s[10:11], s[44:45]
                s_cmp_lt_u32 s52, 8
                s_cselect_b64 s[44:45], s[8:9], s[44:45]
                s_cmp_lt_u32 s52, 4
                s_cselect_b64 s[44:45], s[6:7], s[44:45]
                s_and_b32 s54, s52, 3
                s_lshl_b32 s54, s54, 21
                s_cmp_lt_u32 s52, 14
                s_cselect_b32 s54, s54, 0
                s_load_dword s87, s[44:45], s54
                """)
            reg1(a)
        if c == O.r2:
            a("s_getreg_b32 s86, hwreg(HW_REG_XCC_ID, 0, 4)")
            a("s_lshl_b32 s86, s86, 24")
            stamp(a, "r2a")
            a("s_waitcnt lgkmcnt(0)")
            stamp(a, "r2b")
            reg2(a); nmark = npf
        if c == O.r3:
            a(f"s_waitcnt vmcnt({min(63, npf - nmark)})")
            reg3(a)
            stamp(a, "non")
        if c == O.pzc:
            poison(a); npf += 8
        npf += 3 + (c == O.hpf) + (c == O.codepf)
        if O.thd <= c < O.thn: a(f"s_waitcnt vmcnt({3*(O.thd-1)})")
        if c == 0:
            so_w, so_x = "0", "0"
        else:
            a(f"s_mov_b32 s57, {c*64*7168}")
            a(f"s_movk_i32 s58, {c*128}")
            so_w, so_x = "s57", "s58"
        if O.xfirst: a(f"buffer_load_dword v22, v11, {rs(R_X)}, {so_x} offen")
        if not (c == 0 and O.skip0 & 1): a(f"buffer_load_dword v20, v10, {rs(R_G)}, {so_w} offen")
        if not (c == 0 and O.skip0 & 2): a(f"buffer_load_dword v21, v10, {rs(R_U)}, {so_w} offen")
        if not (c == 0 and O.skip0 & 4) and not O.xfirst: a(f"buffer_load_dword v22, v11, {rs(R_X)}, {so_x} offen")
        stamp(a, f"i{c}")
        if O.inl and c >= 3:
            a("s_waitcnt vmcnt(9)")
            stamp(a, f"L{c-3}")
        if c == O.hpf: hpf(a)
        if c == O.codepf:
            a(f"""
            s_getpc_b64 s[44:45]
            L_pc:
            s_sub_u32 s44, s44, L_pc-{KN}
            s_subb_u32 s45, s45, 0
            s_mul_i32 s54, s52, 6
            v_min_u32 v3, 5, v2
            v_add_u32 v3, s54, v3
            v_min_u32 v3, (L_code_end-{KN}-4)/128, v3
            v_lshlrev_b32 v3, 7, v3
            global_load_dword v23, v3, s[44:45]
            """)
    if O.two:
        stamp(a, "hia")
        if O.hold >= 0: a(f"s_waitcnt vmcnt({O.hold})")
        stamp(a, "hib")
        a("global_store_dword v31, v30, s[16:17]")
        if not O.nopz: poison(a)
        if not O.nohpf: hpf(a)
        a(f"""
        s_lshl_b32 s54, s49, 3
        s_add_u32 s54, s54, s48
        s_lshl_b32 s54, s54, 7
        s_add_u32 s54, s54, {PZ_OFF}
        v_mov_b32 v3, s54
        s_waitcnt lgkmcnt(0)
        s_barrier
        s_waitcnt vmcnt({0 if O.nohpf else 1})
        global_store_dword v3, v12, s[16:17] sc1
        """)
    elif O.pzc == 16: poison(a)
    if O.wdlate >= 0: a(f"s_waitcnt vmcnt({O.wdlate})")
    a("s_waitcnt lgkmcnt(0)")
    a("s_barrier")
    stamp(a, "pfi")
    for c in range(16):
        if f"l{c}" in PTS:
            a(f"s_waitcnt vmcnt({3*(15-c) + (1 if c < O.codepf else 0) + (1 if c < O.hpf else 0) + (1 if c < O.r2 else 0) + (1 if c < O.r3 else 0)})")
            stamp(a, f"l{c}")
    a("s_branch L_pf_front")
    a(f"""
    L_pf_other:
    s_cmp_ge_u32 s53, 4
    s_cbranch_scc1 L_back_pf
    s_waitcnt lgkmcnt(0)
    s_cmp_eq_u32 s53, {3 if O.upd == 0 else 99}
    s_cbranch_scc0 L_pf_bar
    s_cmp_eq_u32 s2, 255
    s_cbranch_scc0 L_pf_bar
    s_mov_b32 s57, {EP_OFF}
    s_load_dword s59, s[16:17], s57
    v_mov_b32 v3, 0
    v_mov_b32 v4, s57
    s_waitcnt lgkmcnt(0)
    s_add_u32 s59, s59, 1
    s_bitset1_b32 s59, 31
    v_mov_b32 v5, s59
    s_mov_b64 exec, 1
    global_store_dword v3, v5, s[14:15] sc1
    s_waitcnt vmcnt(0)
    global_store_dword v4, v5, s[16:17] sc1
    s_mov_b64 exec, -1
    s_branch L_pf_bar
    """)
    a(f"""
    L_pf_bar:
    s_waitcnt lgkmcnt(0)
    {"s_barrier" if O.two else ""}
    s_barrier
    L_pf_front:
    """)
    pf_role(a, "f")
    front_setup(a)
    a(f"""
    v_mov_b32 v5, {SY_LDS + 32}
    ds_read_b32 v12, v5
    s_waitcnt lgkmcnt(0)
    v_xor_b32 v3, s86, v12
    s_cmp_lg_u32 s53, {99 if O.two else 0}
    s_cbranch_scc1 L_pf_noflag
    s_lshl_b32 s54, s49, 3
    s_add_u32 s54, s54, s48
    s_lshl_b32 s54, s54, 7
    s_add_u32 s54, s54, {PZ_OFF}
    v_mov_b32 v4, s54
    s_waitcnt vmcnt(0)
    buffer_store_dword v12, v4, {rs(R_WS)}, 0 offen sc1
    L_pf_noflag:
    s_mov_b32 s90, 0
    v_bfrev_b32 v14, 2
    v_bfrev_b32 v15, 2
    s_barrier
    s_branch L_hload
    L_back_pf:
    """)
    pf_role(a, "b")
    a(f"""
    v_and_b32 v1, 3, v1
    s_waitcnt lgkmcnt(0)
    """)
    a("""
    """)
    p2_setup(a)
    a("s_waitcnt lgkmcnt(0)")
    a("s_barrier")
    if O.nowd: a("s_endpgm")
    for i_, d in enumerate(wd_list(range(14))):
        if O.two and i_ == O.wdk: a("s_barrier")
        a(d)
    a("s_branch L_p2")

    a(f"""
    L_p1:
    s_and_b32 s47, s49, 1           ; mh1
    s_lshr_b32 s52, s49, 1          ; col
    s_mul_i32 s54, s48, 7
    s_add_u32 s52, s52, s54
    s_cmp_lt_u32 s53, 4
    s_cbranch_scc1 L_front
    v_and_b32 v1, 3, v1
    s_lshl_b32 s54, s52, 7
    v_lshrrev_b32 v3, 3, v2         ; r
    v_and_b32 v4, 7, v2             ; p
    v_lshl_add_u32 v5, v1, 4, v3    ; 16w + r
    v_mul_u32_u24 v6, 7168, v5
    v_add_u32 v6, s54, v6
    v_and_b32 v7, 2, v3
    v_xor_b32 v7, v7, v4
    v_lshl_add_u32 v10, v7, 4, v6   ; vG
    v_xor_b32 v11, 64, v10          ; vU
    v_lshrrev_b32 v7, 1, v3
    v_xor_b32 v7, v7, v4
    s_lshl_b32 s54, s47, 6
    v_add_u32 v5, s54, v5
    v_lshlrev_b32 v5, 11, v5
    v_lshl_add_u32 v12, v7, 4, v5   ; vX0
    v_xor_b32 v13, 64, v12
    v_add_u32 v13, 0x4000, v13      ; vX1
    s_and_b32 s56, s53, 3
    s_lshl_b32 s55, s56, 10
    s_lshl_b32 s56, s56, 11
    """)
    if O.wd0:
        p1_role(a)
        wd_addr(a)
        srd_tail(a, [(R_D, W_B)])
    srd_tail(a, [(R_X, X_B), (R_G, W_B), (R_U, W_B)])
    a("""
    s_waitcnt lgkmcnt(0)
    s_mov_b64 s[32:33], s[10:11]
    s_mov_b64 s[24:25], s[6:7]
    s_mov_b64 s[28:29], s[8:9]
    s_mov_b64 s[20:21], s[4:5]
    """)
    stamp(a, "karg")
    if O.wd0:
        for d in wd_list(range(O.wd0), early=True): a(d)
    def dma(c):
        sl = (c % 4) * 24576
        for k, (v, r, so) in enumerate([(12, R_X, c*128), (13, R_X, c*128), (10, R_G, c*458752), (10, R_G, c*458752+57344), (11, R_U, c*458752), (11, R_U, c*458752+57344)]):
            a(f"s_add_u32 m0, s56, {sl + (k//2)*8192 + (k%2)*1024}\ns_mov_b32 s57, {so}\nbuffer_load_dwordx4 v{v}, {rs(r)}, s57 offen lds")
    dma(0)
    stamp(a, "d0")
    dma(1)
    stamp(a, "d1")
    def back_setup():
        p1_role(a)
        p2_setup(a)
        stamp(a, "su")
    if O.su_at < 0: back_setup()
    issued = 2
    while issued < O.first:
        dma(issued); issued += 1
    wd = O.wd0
    wdl = wd_list(range(14))
    def nvm(l): return sum(x.count("_load_dword") for x in l)
    wdops = 0
    for c in range(16):
        a(f"s_waitcnt vmcnt({6*(issued-1-c) + wdops})" + (" lgkmcnt(0)" if c == O.su_at + 1 else ""))
        a("s_barrier")
        stamp(a, f"c{c}")
        if issued < 16 and issued <= c + 3:
            dma(issued); issued += 1
        else:
            n = {13: O.wd13, 14: O.wd14, 15: (5 - wd if O.bf else 14)}.get(c, 0)
            n = min(n, 14 - wd)
            if O.fin: n = 0
            for d in wdl[wd:wd+n]: a(d)
            wdops += nvm(wdl[wd:wd+n]); wd += n
        if c == O.su_at: back_setup()
    if O.fin:
        stamp_flush(a); a("s_endpgm")
    if O.bf:
        assert wd == 5
        a("s_waitcnt vmcnt(0)")
    a("L_p2:")
    stamp(a, "p2in")
    def areg(slot, t, n, o=0):
        base = (slot*4 + t) * 4 + o
        return ar(base, n) if slot < 10 else vr(64 + base - 160, n)
    def areads(s, slot):
        out = []
        for t in range(4):
            out.append(f"ds_read_b64_tr_b16 {areg(slot, t, 2)}, v{20+t} offset:{s*4096}")
            out.append(f"ds_read_b64_tr_b16 {areg(slot, t, 2, 2)}, v{20+t} offset:{s*4096+1024}")
        return out
    def lsync(k):
        a(f"""
        ds_write_b32 v14, v15 offset:{16*k}
        L_sy{k}:
        ds_read_b128 v[40:43], v16 offset:{16*k}
        s_waitcnt lgkmcnt(0)
        v_and_b32 v40, v40, v41
        v_and_b32 v42, v42, v43
        v_and_b32 v40, v40, v42
        v_cmp_eq_u32 vcc, 0, v40
        s_cbranch_vccnz L_sy{k}
        """)
    if O.pzl == 0: a(f"buffer_load_dword v9, v18, {rs(R_WS)}, 0 offen sc1")
    a(f"s_waitcnt vmcnt({10 if O.pzl == 0 else 9})")
    lsync(0)
    stamp(a, "wd1")
    for s in range(5):
        if s >= 1: a("s_waitcnt lgkmcnt(6)")
        for r in areads(s, s): a(r)
    if O.bf:
        a("s_cmp_ge_u32 s49, 14")
        a("s_cbranch_scc1 L_nobf")
        a("s_barrier")
        for d in wdl[5:]: a(d)
        a("L_nobf:")
    a(f"s_waitcnt vmcnt({5 if O.pzl == 0 else 4}) lgkmcnt(6)")
    a("ds_read_b32 v5, v16 offset:32")
    lsync(1)
    stamp(a, "wd2")
    if O.pzl == 1: a(f"buffer_load_dword v9, v18, {rs(R_WS)}, 0 offen sc1")
    for s in range(5, 10):
        if s >= 6: a("s_waitcnt lgkmcnt(6)")
        for r in areads(s, s): a(r)
    a(f"""
    s_cmp_lt_u32 s49, 14
    s_cbranch_scc1 L_nob2
    s_barrier
    L_nob2:
    s_waitcnt lgkmcnt(8)
    """)
    AC = 24
    groups = {0: [[2*g, 2*g+1] for g in range(7)],
              1: [[0,1],[2,3],[4,5],[6,7],[8,9],[10,11],[12],[13]],
              2: [[0],[1,2],[3,4],[5,6],[7,8],[9,10],[11,12],[13]],
              3: [[0],[1],[2,3],[4,5],[6,7],[8,9],[10,11],[12],[13]],
              4: [[s_] for s_ in range(14)]}[O.fine]
    def breg(s): return 40 + 4*(s % 4)
    fly = areads(10, 10) + areads(11, 11) + areads(12, 0) + areads(13, 1)
    nfly = [0]
    out = [0]
    pend = []
    def mf(s):
        for t in range(4):
            cin = "0" if s == 0 else vr(AC+4*t, 4)
            a(f"v_mfma_f32_16x16x32_bf16 {vr(AC+4*t,4)}, {areg(s % 12, t, 4)}, {vr(breg(s),4)}, {cin}")
            if pend: a(pend.pop(0))
            elif s >= 1 and nfly[0] < 32:
                a(fly[nfly[0]]); nfly[0] += 1
    prev = []
    for gi, g in enumerate(groups):
        w = ""
        if 1 in prev: w += " vmcnt(1)"
        if O.reord and prev: w += f" lgkmcnt({out[0]})"
        if w: a("s_waitcnt" + w)
        a("s_barrier")
        stamp(a, f"b{gi}")
        if gi == len(groups) - 1: stamp(a, "bl")
        rd = [f"ds_read_b128 {vr(breg(s_),4)}, v19 offset:{s_*4096}" for s_ in g]
        if O.reord and prev: pend += rd
        else:
            for x in rd: a(x)
        if prev:
            if not O.reord: a(f"s_waitcnt lgkmcnt({len(g) + out[0]})")
            n0 = nfly[0]
            for s_ in prev: mf(s_)
            assert not pend
            out[0] = nfly[0] - n0
            assert max(prev) < 10 or max(prev) - 9 <= n0 // 8
        prev = g
    a("s_waitcnt lgkmcnt(0)")
    for s_ in prev: mf(s_)
    assert nfly[0] == 32
    stamp(a, "mend")
    a(f"""
    s_waitcnt vmcnt(0)
    v_cmp_ne_u32 vcc, v5, v9
    s_mov_b32 s80, 0
    s_mov_b32 s44, 0xffff0000
    s_cbranch_vccnz L_pz_wait
    L_pz_ok:
    v_mov_b32 v19, v60
    """)
    for g in range(2):
        for i in range(4):
            a(f"v_cvt_pk_bf16_f32 v{40+4*g+i}, v{AC+8*g+2*i}, v{AC+8*g+2*i+1}")
        for i in range(4):
            a(f"v_min_u32 v{40+4*g+i}, -2, v{40+4*g+i}")
        a(f"buffer_store_dwordx4 {vr(40+4*g,4)}, v8, {rs(R_WS)}, 0 offen offset:{g*512} sc1")
    stamp(a, "pst")
    if O.ackfirst: a("s_waitcnt vmcnt(0)")
    stamp(a, "ack")
    if O.sent:
        a(f"""
        L_sent:
        buffer_load_dword v4, v19, {rs(R_WS)}, 0 offen sc1
        s_add_u32 s80, s80, 1
        s_cmp_ge_u32 s80, {SPIN}
        s_waitcnt vmcnt(0)
        v_cmp_eq_u32 vcc, -1, v4
        s_cbranch_scc1 L_poll2
        s_cbranch_vccz L_poll2
        s_sleep {O.sl3}
        s_branch L_sent
        """)
    a(f"""
    L_poll2:
    buffer_load_dwordx4 v[64:67], v6, {rs(R_WS)}, 0 offen sc1
    buffer_load_dwordx4 v[68:71], v6, {rs(R_WS)}, 0 offen offset:1024 sc1
    s_add_u32 s80, s80, 1
    s_cmp_ge_u32 s80, {SPIN}
    s_waitcnt vmcnt(1)
    v_max3_u32 v4, v64, v65, v66
    v_lshlrev_b32 v72, 16, v64
    v_and_b32 v73, s44, v64
    v_lshlrev_b32 v74, 16, v65
    v_and_b32 v75, s44, v65
    v_lshlrev_b32 v76, 16, v66
    v_and_b32 v77, s44, v66
    v_lshlrev_b32 v78, 16, v67
    v_and_b32 v79, s44, v67
    s_waitcnt vmcnt(0)
    v_max3_u32 v4, v4, v67, v68
    v_max3_u32 v5, v69, v70, v71
    v_max_u32 v4, v4, v5
    v_cmp_eq_u32 vcc, -1, v4
    s_cbranch_scc1 L_fin
    s_cbranch_vccz L_fin
    s_sleep {O.sl2}
    s_branch L_poll2
    L_fin:
    v_lshlrev_b32 v80, 16, v68
    v_and_b32 v81, s44, v68
    v_lshlrev_b32 v82, 16, v69
    v_and_b32 v83, s44, v69
    v_lshlrev_b32 v84, 16, v70
    v_and_b32 v85, s44, v70
    v_lshlrev_b32 v86, 16, v71
    v_and_b32 v87, s44, v71
    v_pk_add_f32 v[72:73], v[72:73], v[80:81]
    v_pk_add_f32 v[76:77], v[76:77], v[84:85]
    v_pk_add_f32 v[74:75], v[74:75], v[82:83]
    v_pk_add_f32 v[78:79], v[78:79], v[86:87]
    s_nop 0
    v_permlane32_swap_b32 v72, v76
    v_permlane32_swap_b32 v73, v77
    v_permlane32_swap_b32 v74, v78
    v_permlane32_swap_b32 v75, v79
    v_pk_add_f32 v[72:73], v[72:73], v[76:77]
    v_pk_add_f32 v[74:75], v[74:75], v[78:79]
    s_nop 1
    v_permlane16_swap_b32 v72, v74
    v_permlane16_swap_b32 v73, v75
    s_nop 0
    v_pk_add_f32 v[72:73], v[72:73], v[74:75]
    v_cvt_pk_bf16_f32 v64, v72, v73
    buffer_store_dword v64, v7, {rs(R_OUT)}, 0 offen {["", "sc1", "nt", "sc0 sc1"][O.outfl]}
    {"s_waitcnt vmcnt(0)" if (O.stamp and O.endwait) else ""}
    """)
    if "npoll" in PTS:
        i = PTS["npoll"]
        a(f"s_waitcnt lgkmcnt(0)\ns_mul_i32 s{64+2*i}, s80, 100\ns_add_u32 s{64+2*i}, s{64+2*i}, s64")
    stamp_flush(a)
    a("L_end:")
    a("s_endpgm")
    a(f"""
    L_pz_wait:
    s_sleep 4
    buffer_load_dword v9, v18, {rs(R_WS)}, 0 offen sc1
    s_add_u32 s80, s80, 1
    s_cmp_ge_u32 s80, {SPIN}
    s_waitcnt vmcnt(0)
    v_cmp_ne_u32 vcc, v5, v9
    s_cbranch_scc1 L_pz_out
    s_cbranch_vccnz L_pz_wait
    L_pz_out:
    s_mov_b32 s80, {1000 if O.stamp else 0}
    s_branch L_pz_ok
    """)
    a("L_front:")
    if O.nofront: a("s_endpgm")
    a(f"""
    v_lshrrev_b32 v3, 4, v2         ; G
    v_and_b32 v4, 1, v3             ; isU
    v_lshrrev_b32 v5, 5, v2         ; hf
    v_bfe_u32 v6, v2, 2, 2          ; r
    v_lshrrev_b32 v7, 1, v6
    v_lshl_add_u32 v7, v4, 1, v7    ; 2 isU + (r>>1)
    v_xor_b32 v7, v7, v1
    v_lshl_add_u32 v6, v5, 3, v6    ; 8hf + r
    v_lshlrev_b32 v6, 7, v6
    v_lshl_add_u32 v6, v7, 5, v6
    v_lshl_add_u32 v6, v4, 13, v6
    v_and_b32 v7, 3, v2
    v_lshl_add_u32 v6, v7, 3, v6
    v_add_u32 v16, 0x2000, v6
    v_add_u32 v17, 49152, v16       ; slots 2/3
    v_and_b32 v6, 31, v2            ; m
    v_bfe_u32 v7, v6, 1, 3
    v_xor_b32 v7, v7, v5
    v_lshlrev_b32 v6, 7, v6
    """)
    for s in range(4):
        a(f"v_xor_b32 v8, {2*s}, v7")
        a(f"v_lshl_add_u32 v{20+s}, v8, 4, v6")
        a(f"v_add_u32 v{24+s}, 49152, v{20+s}")
    a(f"""
    v_lshrrev_b32 v6, 1, v1
    s_lshl_b32 s54, s52, 1
    v_add_u32 v6, s54, v6
    v_lshlrev_b32 v6, 3, v6
    v_bfe_u32 v7, v2, 4, 1
    s_lshl_b32 s54, s47, 2
    v_add3_u32 v6, v6, v7, s54      ; *8 + m16
    v_lshlrev_b32 v6, 10, v6
    v_and_b32 v7, 1, v1
    v_lshl_add_u32 v7, v7, 1, v5    ; kg
    v_lshl_add_u32 v6, v7, 8, v6
    v_and_b32 v7, 15, v2
    v_lshl_add_u32 v14, v7, 4, v6
    v_add_u32 v14, {HA_OFF}, v14
    s_lshl_b32 s54, s48, 1
    s_add_u32 s54, s54, s47
    s_lshl_b32 s54, s54, 7          ; (j*2+mh)*128
    s_lshr_b32 s57, s49, 1
    s_lshl_b32 s57, s57, 4
    s_add_u32 s54, s54, s57
    s_add_u32 s54, s54, {FA_OFF}
    v_lshl_add_u32 v15, v1, 2, s54
    """)
    p1_role(a)
    front_setup(a)
    a("s_mov_b32 s88, 0")
    a("s_cmp_lg_u32 s53, 0")
    a("s_cbranch_scc1 L_noreg1")
    if O.hself:
        a("""
        s_lshl_b32 s54, s52, 4
        s_lshl_b32 s57, s47, 2
        s_add_u32 s54, s54, s57
        s_lshl_b32 s54, s54, 10
        v_lshrrev_b32 v6, 5, v2
        v_and_b32 v7, 31, v2
        v_lshlrev_b32 v7, 7, v7
        v_lshl_add_u32 v6, v6, 13, v7
        v_add_u32 v6, s54, v6
        global_load_dword v31, v6, s[16:17]
        """)
    reg1(a)
    a(f"""
    L_noreg1:
    s_mov_b32 s44, 0xbfb8aa3b
    s_mov_b32 s45, 0xbfb8aa3b
    v_mov_b32 v5, {SY_LDS + 32}
    """)
    ACC = [32, 48]
    def reads(c, s):
        slot = c % 4
        rng, so = slot // 2, (slot % 2) * 24576
        b = 12*s
        return [f"ds_read_b64_tr_b16 a[{b}:{b+1}], v{16+rng} offset:{so + 2048*s}",
                f"ds_read_b64_tr_b16 a[{b+2}:{b+3}], v{16+rng} offset:{so + 2048*s + 512}",
                f"ds_read_b128 a[{b+4}:{b+7}], v{20+4*rng+s} offset:{so}",
                f"ds_read_b128 a[{b+8}:{b+11}], v{20+4*rng+s} offset:{so + 4096}"]
    def mfma(c, s, mi):
        b = 12*s
        cin = "0" if (c == 0 and s == 0) else vr(ACC[mi], 16)
        return f"v_mfma_f32_32x32x16_bf16 {vr(ACC[mi],16)}, {ar(b,4)}, {ar(b+4+4*mi,4)}, {cin}"
    a("s_barrier")
    stamp(a, "c0")
    for s in range(3):
        for r in reads(0, s): a(r)
    for c in range(15):
        for s in range(3):
            a(f"s_waitcnt lgkmcnt({[8,8,4][s]})")
            a(mfma(c, s, 0))
            if s == 0:
                for r in reads(c, 3)[:2]: a(r)
            a(mfma(c, s, 1))
            if s == 0:
                for r in reads(c, 3)[2:]: a(r)
        if c == O.vt1 and O.vt >= 3:
            a(f"""
            s_cmp_lg_u32 s53, 1
            s_cbranch_scc1 L_novt
            v_mov_b32 v6, {PAD_OFF}
            v_mov_b32 v7, 0
            global_load_dword v31, v6, s[16:17]
            global_load_dword v31, v7, s[12:13]
            L_novt:
            """)
        if c in (1, O.p1r3):
            a("s_cmp_lg_u32 s53, 0")
            a(f"s_cbranch_scc1 L_noreg_c{c}")
            if c == 1: reg2(a)
            else:
                a("s_waitcnt vmcnt(0)")
                reg3(a)
            a(f"L_noreg_c{c}:")
        if c == O.p1r3 + 2:
            a("ds_read_b32 v12, v5")
        if c == O.p1r3 + 3:
            a("v_xor_b32 v3, s86, v12")

        a("s_waitcnt lgkmcnt(0)")
        a("s_barrier")
        stamp(a, f"c{c+1}")
        rr = [r for s in range(3) for r in reads(c + 1, s)]
        for r in rr[:4]: a(r)
        a(mfma(c, 3, 0))
        for r in rr[4:8]: a(r)
        a(mfma(c, 3, 1))
        for r in rr[8:]: a(r)
    c = 15
    a("s_waitcnt lgkmcnt(8)")
    a(mfma(c, 0, 0))
    for r in reads(c, 3): a(r)
    a("s_waitcnt lgkmcnt(8)")
    a(mfma(c, 1, 0))
    a("s_waitcnt lgkmcnt(4)")
    a(mfma(c, 2, 0))
    a("s_waitcnt lgkmcnt(0)")
    a(mfma(c, 3, 0))
    a(mfma(c, 0, 1))
    a(f"""
    s_mov_b32 s90, 1
    s_nop 7
    s_nop 1
    """)
    def epi(mi):
        A = ACC[mi]; t = 64 + 16*mi
        o = []
        for r in range(0, 8, 2):
            o.append(f"v_pk_mul_f32 v[{t+r}:{t+r+1}], v[{A+r}:{A+r+1}], s[44:45]")
        for r in range(8):
            o.append(f"v_exp_f32 v{t+r}, v{t+r}")
        for r in range(0, 8, 2):
            o.append(f"v_pk_mul_f32 v[{t+8+r}:{t+9+r}], v[{A+r}:{A+r+1}], v[{A+8+r}:{A+9+r}]")
        for r in range(0, 8, 2):
            o.append(f"v_pk_add_f32 v[{t+r}:{t+r+1}], v[{t+r}:{t+r+1}], 1.0 op_sel_hi:[1,0]")
        for r in range(8):
            o.append(f"v_rcp_f32 v{t+r}, v{t+r}")
        o.append("s_nop 0")
        for r in range(0, 8, 2):
            o.append(f"v_pk_mul_f32 v[{t+r}:{t+r+1}], v[{t+r}:{t+r+1}], v[{t+8+r}:{t+9+r}]")
        for d in range(4):
            o.append(f"v_cvt_pk_bf16_f32 v{4+4*mi+d}, v{t+2*d}, v{t+2*d+1}")
        o.append(f"buffer_store_dwordx4 v[{4+4*mi}:{7+4*mi}], v14, {rs(R_WS)}, 0 offen offset:{2048*mi} {['', 'nt', 'sc0', 'sc0 nt'][O.hfl]}")
        return o
    e0 = epi(0)
    for i, x in enumerate(e0):
        if i == 0: a(mfma(c, 1, 1))
        if i == 5: a(mfma(c, 2, 1))
        if i == 8: a(mfma(c, 3, 1))
        a(x)
    for x in epi(1): a(x)
    stamp(a, "hst")
    a(f"""
    s_waitcnt vmcnt(0)
    buffer_store_dword v3, v15, {rs(R_WS)}, 0 offen
    {"s_barrier" if O.bf else ""}
    """)
    stamp(a, "flg")
    a(f"""
    L_hload:
    s_mov_b32 s80, 0
    L_poll1:
    buffer_load_dword v20, v18, {rs(R_WS)}, 0 offen sc1
    s_add_u32 s80, s80, 1
    s_cmp_ge_u32 s80, {O.kfast}
    s_cbranch_scc1 L_slow
    s_waitcnt vmcnt(0)
    v_cmp_ne_u32 vcc, v3, v20
    s_cbranch_vccz L_go
    s_sleep {O.sl1}
    s_branch L_poll1
    L_go:
    """)
    stamp(a, "go")
    def hload(s):
        a(f"s_add_u32 m0, s55, {s*4096}")
        a(f"s_add_u32 s57, s{82 if s < 7 else 83}, {s*8192}")
        a(f"buffer_load_dwordx4 v19, {rs(R_WS)}, s57 offen sc1 lds")
    hl = 0
    while hl < O.hlead:
        hload(hl); hl += 1
    for gi, g in enumerate(groups):
        a(f"s_waitcnt vmcnt({hl - 1 - g[-1]})")
        a("s_barrier")
        for _ in range(len(groups[min(gi + 1, len(groups) - 1)])):
            if hl < 14:
                hload(hl); hl += 1
    stamp_flush(a)
    a(f"""
    s_cmp_eq_u32 s90, 0
    s_cbranch_scc1 L_nob
    s_mov_b64 exec, -1
    buffer_load_dword v20, v29, {rs(R_WS)}, 0 offen sc1
    s_waitcnt vmcnt(0)
    v_cmp_ne_u32 vcc, v3, v20
    s_cbranch_vccz L_nob
    """)
    sendb(a)
    a("L_nob:")
    if O.upd == 1:
        a(f"""
        s_lshl_b32 s54, s2, 3
        s_add_u32 s54, s54, s53
        s_cmp_eq_u32 s54, {255*8 + 3}
        s_cbranch_scc0 L_front_end
        v_mov_b32 v3, 0
        v_mov_b32 v4, {EP_OFF}
        s_mov_b64 exec, 1
        global_store_dword v3, v12, s[14:15] sc1
        s_waitcnt vmcnt(0)
        global_store_dword v4, v12, s[16:17] sc1
        L_front_end:
        """)
    a("s_endpgm")
    a("""
    L_slow:
    s_cmp_eq_u32 s90, 0
    s_cbranch_scc1 L_slow_sent
    """)
    sendb(a)
    a(f"""
    s_mov_b32 s90, 0
    L_slow_sent:
    s_movk_i32 s57, 0x1000
    s_mov_b32 s80, 0
    L_slow_poll:
    buffer_load_dword v20, v18, {rs(R_WS)}, 0 offen sc1
    buffer_load_dword v21, v18, {rs(R_WS)}, s57 offen sc1
    s_add_u32 s80, s80, 1
    s_waitcnt vmcnt(0)
    v_cmp_ne_u32 vcc, v3, v20
    s_cbranch_vccz L_go
    v_cmp_ne_u32 vcc, v12, v21
    s_cbranch_vccz L_slow_b
    s_sleep 8
    s_cmp_lt_u32 s80, {SPIN}
    s_cbranch_scc1 L_slow_poll
    L_slow_b:
    s_add_u32 s82, s82, {HB_OFF - HA_OFF}
    s_add_u32 s83, s83, {HB_OFF - HA_OFF}
    s_branch L_go
    """)
    a("L_code_end:")
    return a

def p2_setup(a):
    a(f"""
    s_mov_b64 s[32:33], s[10:11]
    s_mov_b32 s34, {W_B}
    s_mov_b32 s35, 0x20000
    s_mov_b64 s[36:37], s[16:17]
    s_mov_b32 s38, {WS_B}
    s_mov_b32 s39, 0x20000
    s_mov_b64 s[40:41], s[12:13]
    s_mov_b32 s42, {OUT_B}
    s_mov_b32 s43, 0x20000
    s_and_b32 s55, s53, 3
    s_lshl_b32 s55, s55, 10
    s_lshl_b32 s84, s46, 16
    s_sub_u32 s85, 0, s84
    v_mov_b32 v16, {SY_LDS}
    v_lshl_add_u32 v14, v1, 2, v16
    v_mov_b32 v5, 0
    v_mov_b32 v15, -1
    ds_write_b32 v14, v5
    ds_write_b32 v14, v5 offset:16
    """)
    wd_addr(a)
    a(f"""
    v_lshlrev_b32 v3, 10, v1
    v_lshl_add_u32 v19, v2, 4, v3
    v_lshrrev_b32 v3, 4, v2         ; kg
    v_bfe_u32 v4, v2, 2, 2          ; r
    v_and_b32 v7, 1, v3
    v_lshrrev_b32 v6, 1, v3
    v_lshlrev_b32 v6, 4, v6
    v_lshl_add_u32 v6, v7, 2, v6
    v_add_u32 v6, v6, v4
    v_lshlrev_b32 v6, 7, v6
    v_and_b32 v8, 3, v2
    v_lshl_add_u32 v6, v8, 3, v6
    v_add_u32 v6, {WD_LDS}, v6
    v_lshrrev_b32 v4, 1, v4
    v_lshl_add_u32 v4, v7, 1, v4
    """)
    for t in range(4):
        a(f"v_xor_b32 v7, {t}, v4")
        a(f"v_lshl_add_u32 v{20+t}, v7, 5, v6")
    a(f"""
    v_bfe_u32 v4, v2, 3, 1          ; half
    v_lshl_add_u32 v6, v1, 1, v4    ; owner
    s_lshl_b32 s54, s49, 3
    v_add_u32 v6, s54, v6
    v_lshlrev_b32 v6, 3, v6
    v_add_u32 v6, s48, v6
    v_lshlrev_b32 v6, 10, v6
    v_lshl_add_u32 v6, v3, 7, v6
    v_and_b32 v7, 7, v2             ; r
    v_lshl_add_u32 v6, v7, 4, v6
    v_add_u32 v8, {P_OFF}, v6
    s_cmp_lt_u32 s49, 14
    s_cselect_b32 s57, 14*8, 0
    s_add_u32 s57, s57, s54
    s_lshl_b32 s57, s57, 7
    s_add_u32 s57, s57, {PZ_OFF}
    v_lshl_add_u32 v18, v7, 7, s57
    s_add_u32 s54, s54, s48
    s_lshl_b32 s54, s54, 13
    s_add_u32 s54, s54, {P_OFF}
    v_lshl_add_u32 v9, v7, 10, s54
    v_add_u32 v60, 896, v9
    v_and_b32 v6, 15, v2
    v_lshl_add_u32 v6, v1, 4, v6
    v_lshlrev_b32 v6, 4, v6
    v_lshl_add_u32 v6, v3, 11, v6
    v_add_u32 v6, s54, v6
    s_lshl_b32 s54, s50, 6
    s_lshl_b32 s57, s48, 3
    s_add_u32 s54, s54, s57
    v_add_u32 v7, s54, v7           ; m
    v_lshlrev_b32 v7, 11, v7
    v_lshl_add_u32 v7, v4, 3, v7
    v_and_b32 v4, 1, v1
    v_lshl_add_u32 v7, v4, 4, v7
    v_lshrrev_b32 v4, 1, v1
    v_lshl_add_u32 v7, v4, 6, v7    ; g
    v_and_b32 v4, 1, v3
    v_lshl_add_u32 v7, v4, 2, v7
    v_lshrrev_b32 v4, 1, v3
    v_lshl_add_u32 v7, v4, 5, v7
    s_lshl_b32 s54, s51, 7
    v_add_u32 v7, s54, v7
    """)

def reg1(a):
    a(f"""
    s_mov_b32 s88, {EP_OFF}
    s_load_dword s59, s[16:17], s88
    s_load_dword s87, s[14:15], 0
    {"s_load_dword s87, s[12:13], 0" if O.touchout else ""}
    s_lshl_b32 s88, s48, 7
    s_add_u32 s88, s88, {RG_OFF}
    s_load_dword s87, s[16:17], s88
    s_add_u32 s89, s88, 64
    s_load_dword s87, s[16:17], s89
    """)
def reg2(a):
    a(f"""
    v_mov_b32 v30, 0
    s_lshl_b32 s89, s49, 2
    s_add_u32 s88, s88, s89
    global_load_dword v12, v30, s[14:15] sc1
    s_add_u32 s59, s59, 1
    s_bitset1_b32 s59, 31
    """)
def reg3(a):
    a(f"""
    v_cmp_eq_u32 vcc, 0, v12
    v_mov_b32 v30, s59
    v_mov_b32 v28, {SY_LDS + 32}
    v_cndmask_b32 v12, v12, v30, vcc
    v_mov_b32 v31, s88
    v_xor_b32 v30, s86, v12
    ds_write_b32 v28, v12
    """)
def sendb(a):
    a(f"""
    s_mov_b32 s57, {HB_OFF - HA_OFF}
    s_movk_i32 s58, 0x1000
    buffer_store_dwordx4 v[4:7], v14, {rs(R_WS)}, s57 offen sc1
    buffer_store_dwordx4 v[8:11], v14, {rs(R_WS)}, s57 offen offset:2048 sc1
    s_waitcnt vmcnt(0)
    buffer_store_dword v12, v15, {rs(R_WS)}, s58 offen sc1
    """)
def hpf(a):
    a(f"""
    s_mul_i32 s54, s52, 50
    v_min_u32 v3, 49, v2
    v_add_u32 v3, s54, v3
    v_min_u32 v3, 895, v3
    s_mul_i32 s54, s48, 114688
    s_add_u32 s54, s54, {HA_OFF}
    v_lshl_add_u32 v3, v3, 7, s54
    global_load_dword v24, v3, s[16:17]
    """)
def poison(a):
    a(f"""
    s_lshl_b32 s54, s49, 3
    s_add_u32 s54, s54, s48
    s_lshl_b32 s54, s54, 13
    s_add_u32 s54, s54, {P_OFF}
    v_lshl_add_u32 v3, v2, 4, s54
    v_add_u32 v8, 0x1000, v3
    s_cmp_lt_u32 s52, 14
    s_cselect_b32 s54, {14*8*8192}, 0
    v_subrev_u32 v9, s54, v3
    v_subrev_u32 v14, s54, v8
    v_mov_b32 v4, -1
    v_mov_b32 v5, -1
    v_mov_b32 v6, -1
    v_mov_b32 v7, -1
    """)
    for k in range(8):
        a(f"global_store_dwordx4 v{3 if k < 4 else 8}, v[4:7], s[16:17] offset:{(k % 4)*1024} sc1")
    a("s_cbranch_scc0 L_pz_one")
    for k in range(8):
        a(f"global_store_dwordx4 v{9 if k < 4 else 14}, v[4:7], s[16:17] offset:{(k % 4)*1024} sc1")
    a("L_pz_one:")
def pf_role(a, tag):
    a(f"""
    s_mov_b32 s50, 1                ; mh2
    s_cmp_ge_u32 s52, 3
    s_addc_u32 s51, s52, 0
    s_cmp_ge_u32 s52, 10
    s_addc_u32 s51, s51, 0          ; nt
    s_mov_b32 s46, 0                ; rot
    s_cmp_ge_u32 s52, 14
    s_cbranch_scc0 L_pf_role_{tag}
    s_and_b32 s50, s52, 1
    s_mul_i32 s46, s50, 7
    s_cmp_ge_u32 s52, 16
    s_cselect_b32 s51, 11, 3
    L_pf_role_{tag}:
    """)
def p1_role(a):
    a(f"""
    s_mov_b32 s50, 0                ; mh2
    s_cmp_ge_u32 s49, 3
    s_addc_u32 s51, s49, 0
    s_cmp_ge_u32 s49, 10
    s_addc_u32 s51, s51, 0          ; nt
    s_mov_b32 s46, {O.p1rot}
    """)
def front_setup(a):
    a(f"""
    s_getreg_b32 s86, hwreg(HW_REG_XCC_ID, 0, 4)
    s_lshl_b32 s86, s86, 24
    s_lshl_b32 s55, s53, 10
    s_lshl_b32 s82, s46, 13
    s_sub_u32 s83, 0, s82
    s_mul_i32 s54, s48, 112
    s_lshl_b32 s57, s50, 2
    s_add_u32 s54, s54, s57
    v_add_u32 v6, s54, v1
    v_lshlrev_b32 v6, 10, v6
    v_lshl_add_u32 v19, v2, 4, v6
    v_add_u32 v19, {HA_OFF}, v19
    s_lshl_b32 s54, s48, 1
    s_add_u32 s54, s54, s50
    s_lshl_b32 s54, s54, 7
    s_add_u32 s54, s54, {FA_OFF}
    v_min_u32 v6, 27, v2
    v_lshl_add_u32 v18, v6, 2, s54
    s_lshl_b32 s54, s48, 7
    s_add_u32 s54, s54, {RG_OFF}
    v_and_b32 v6, 31, v2
    v_lshl_add_u32 v29, v6, 2, s54
    v_and_b32 v7, 1, v6
    v_lshlrev_b32 v7, 7, v7
    v_lshrrev_b32 v8, 1, v6
    v_lshl_add_u32 v7, v8, 4, v7
    v_cmp_gt_u32 vcc, 14, v6
    s_lshl_b32 s54, s48, 8
    s_add_u32 s54, s54, {FA_OFF}
    v_add_u32 v7, s54, v7
    v_cndmask_b32 v29, v29, v7, vcc
    s_mov_b32 s38, {WS_B}
    s_mov_b32 s39, 0x20000
    s_waitcnt lgkmcnt(0)
    s_mov_b64 s[36:37], s[16:17]
    """)

def wd_addr(a):
    a(f"""
    v_lshrrev_b32 v3, 3, v2         ; r
    v_and_b32 v4, 7, v2             ; p
    v_and_b32 v6, 6, v3
    v_xor_b32 v4, v4, v6
    v_lshl_add_u32 v3, v1, 3, v3    ; 8w + r
    s_mul_i32 s54, s48, 448
    v_add_u32 v3, s54, v3
    v_lshlrev_b32 v3, 11, v3
    s_lshl_b32 s54, s51, 7
    v_add_u32 v3, s54, v3
    v_lshl_add_u32 v17, v4, 4, v3
    """)
def wd_list(steps, early=False):
    out = []
    for s in steps:
        if early:
            out.append(f"s_add_u32 m0, s55, {WD_LDS + s*4096}\ns_mov_b32 s57, {((s + O.p1rot) % 14)*65536}\nbuffer_load_dwordx4 v17, {rs(R_D)}, s57 offen lds")
            continue
        d = f"s_add_u32 m0, s55, {WD_LDS + s*4096}\ns_add_u32 s57, s{84 if s < 7 else 85}, {s*65536}\nbuffer_load_dwordx4 v17, {rs(R_D)}, s57 offen lds"
        out.append(d)
    return out

if __name__ == "__main__":
    opts(sys.argv[2:])
    if O.two: O.pzc = O.hpf = 99
    a = gen()
    hdr = HEADER + f"; @launch grid=(256,1,1) block=(512,1,1) lds={LDS}\n.amdgcn_target \"amdgcn-amd-amdhsa--gfx950\"\n"
    open(sys.argv[1], "w").write(hdr + a.text() + kdesc(KN, NV + NA, NV))
```

```python
from mb_common import *
import sys
def base(a, nw):
    kstart(a, KN)
    stamp(a, 0)
    prolog(a, 256, "L_end")
    a(f"""
    s_and_b32 s48, s2, 7
    s_lshr_b32 s49, s2, 3
    v_lshrrev_b32 v1, 6, v0
    v_and_b32 v2, 63, v0
    v_readfirstlane_b32 s53, v1
    s_lshl_b32 s51, s48, 5
    s_add_u32 s50, s49, s51     ; u
    s_nop 2
    s_lshl_b32 s55, s53, 10
    s_waitcnt lgkmcnt(0)
    """)
    srd(a, R_WS, S_WS, WS_B)
def ld(a, i, off, flags="nt", nw=4, vaddr=10):
    a(f"s_add_u32 m0, s55, {(i*nw*1024) % 131072}")
    a(f"s_mov_b32 s57, {off}")
    a(f"buffer_load_dwordx4 v{vaddr}, s[{R_WS}:{R_WS+3}], s57 offen {flags} lds")

def ooo(fn, flags="nt"):
    a = Asm(); base(a, 4)
    a(f"""
    s_lshl_b32 s54, s48, 17
    s_add_u32 s54, s54, {16<<20}
    v_lshlrev_b32 v10, 4, v0
    v_add_u32 v10, s54, v10
    s_lshl_b32 s54, s50, 16
    s_add_u32 s54, s54, {64<<20}
    v_lshlrev_b32 v11, 4, v0
    v_add_u32 v11, s54, v11
    """)
    for i in range(32): ld(a, i, i*4096, flags)
    a("s_waitcnt vmcnt(0)")
    a("s_barrier")
    stamp(a, 1)
    a("s_cmp_lt_u32 s53, 2")
    a("s_cbranch_scc0 L_hit")
    for i in range(12): ld(a, i, i*4096, flags, vaddr=11)
    a("s_waitcnt vmcnt(0)")
    stamp(a, 2)
    a("s_branch L_join")
    a("L_hit:")
    for i in range(32): ld(a, i, i*4096, flags)
    a("s_waitcnt vmcnt(0)")
    stamp(a, 2)
    a("L_join:")
    a("s_waitcnt lgkmcnt(0)")
    a("v_mov_b32 v20, s68")
    a("v_lshlrev_b32 v21, 2, v1")
    a("v_add_u32 v21, 0x20000, v21")
    a("ds_write_b32 v21, v20")
    a("s_waitcnt lgkmcnt(0)")
    a("s_barrier")
    a("v_mov_b32 v21, 0x20008")
    a("ds_read_b32 v20, v21")
    a("s_waitcnt lgkmcnt(0)")
    a("v_readfirstlane_b32 s70, v20")
    a("s_nop 4")
    stamp_flush(a, 4)
    a("L_end:")
    a("s_endpgm")
    finish(a, fn, block=256, lds=163840)

def twopass(fn, n, f1, f2, nw=4):
    a = Asm(); base(a, nw)
    a(f"""
    s_mul_i32 s54, s50, {n*nw*1024}
    s_add_u32 s54, s54, {16<<20}
    v_lshlrev_b32 v10, 4, v0
    v_add_u32 v10, s54, v10
    """)
    stamp(a, 1)
    for p, f in enumerate([f1, f2, f2]):
        for i in range(n): ld(a, i, i*nw*1024, f, nw)
        a("s_waitcnt vmcnt(0)")
        a("s_barrier")
        stamp(a, 2+p)
    stamp_flush(a, 5)
    a("L_end:")
    a("s_endpgm")
    finish(a, fn, block=64*nw, lds=163840)

def smem(fn, nw, n, st, width=1):
    a = Asm(); base(a, nw)
    tot = nw*n*st
    a(f"""
    s_mul_i32 s54, s50, {tot}
    s_add_u32 s54, s54, {16<<20}
    v_lshlrev_b32 v10, 4, v0
    v_add_u32 v10, s54, v10
    s_mul_i32 s56, s53, {n*st}
    s_add_u32 s54, s54, s56
    s_add_u32 s44, s16, s54
    s_addc_u32 s45, s17, 0
    """)
    stamp(a, 1)
    a("s_waitcnt lgkmcnt(0)")
    for i in range(n):
        a(f"s_load_dword s{80+(i%16)}, s[44:45], {i*st}")
    a("s_waitcnt lgkmcnt(0)")
    a("s_barrier")
    stamp(a, 2)
    nv = tot // (nw*1024)
    for p in range(2):
        for i in range(nv): ld(a, i, i*nw*1024, "nt", nw)
        a("s_waitcnt vmcnt(0)")
        a("s_barrier")
        stamp(a, 3+p)
    stamp_flush(a, 5)
    a("L_end:")
    a("s_endpgm")
    finish(a, fn, block=64*nw, lds=163840)
ooo("mb_ooo.s")
twopass("mb_tp_nt_nt.s", 16, "nt", "nt")
twopass("mb_tp_nt_pl.s", 16, "nt", "")
twopass("mb_tp_nt_sc1.s", 16, "nt", "sc1")
twopass("mb_tp32_nt_nt.s", 24, "nt", "nt")
twopass("mb_tp8w_nt_nt.s", 8, "nt", "nt", 8)
smem("mb_sm_16_32_128.s", 16, 32, 128)
smem("mb_sm_4_128_128.s", 4, 128, 128)
smem("mb_sm_16_64_64.s", 16, 64, 64)
smem("mb_sm_16_8_128.s", 16, 8, 128)
```

```python
from mb2 import *
def win(fn, off, op="dword", flags="", n=16, S=1024, nw=1, two=False):
    a = Asm(); base(a, nw)
    a(f"""
    s_cmp_ge_u32 s49, 8
    s_cbranch_scc1 L_end
    s_lshl_b32 s58, s49, 7
    s_lshl_b32 s59, s48, 3
    s_add_u32 s59, s59, s49
    s_mul_i32 s59, s59, {n*64*nw*S}
    s_add_u32 s54, s58, s59
    s_add_u32 s54, s54, {(16<<20) + off}
    s_mov_b32 s60, {S}
    v_mul_lo_u32 v3, v0, s60
    v_add_u32 v10, s54, v3
    """)
    stamp(a, 1)
    w = {"dword":1, "dwordx2":2, "dwordx4":4, "ubyte":1}[op]
    for i in range(n):
        a(f"s_mov_b32 s57, {i*64*nw*S}")
        a(f"buffer_load_{op} {vr(20+4*(i%8), w)}, v10, s[36:39], s57 offen {flags}")
    a("s_waitcnt vmcnt(0)")
    a("s_barrier")
    stamp(a, 2)
    a("s_waitcnt lgkmcnt(0)\ns_sub_u32 s70, s68, s66\ns_mov_b32 s64, 1000\ns_add_u32 s70, s70, 1000")
    stamp_flush(a, 4)
    a("L_end:\ns_endpgm")
    finish(a, fn, block=64*nw, lds=163840)
win("mb_p0.s", 0)
win("mb_p64.s", 64)
win("mb_p124.s", 124)
win("mb_px4.s", 0, "dwordx4")
win("mb_pub.s", 0, "ubyte")
win("mb_psc1.s", 0, flags="sc1")
win("mb_psc0.s", 0, flags="sc0")
win("mb_p4w.s", 0, n=4, nw=4)
win("mb_p256.s", 0, S=256)
win("mb_p128.s", 0, S=128)
```

```python
from mb2 import *
def smem(fn, nw, n, op, off, nact=32, cls=3, S=7168):
    a = Asm(); base(a, nw)
    tot = nw*n
    a(f"""
    s_cmp_ge_u32 s49, {nact}
    s_cbranch_scc1 L_end
    s_mul_i32 s54, s50, {((tot*S + 4095)//4096)*4096}
    s_add_u32 s54, s54, {(16<<20) + cls*128}
    v_lshrrev_b32 v3, 3, v0
    s_mov_b32 s60, {S}
    v_mul_lo_u32 v3, v3, s60
    v_and_b32 v4, 7, v0
    v_lshl_add_u32 v10, v4, 4, v3
    v_add_u32 v10, s54, v10
    s_mul_i32 s56, s53, {n*S}
    s_add_u32 s54, s54, s56
    s_add_u32 s44, s16, s54
    s_addc_u32 s45, s17, 0
    """)
    stamp(a, 1)
    a("s_waitcnt lgkmcnt(0)")
    for i in range(n):
        if op == "x2": a(f"s_load_dwordx2 s[80:81], s[44:45], {i*S + off}")
        elif op == "two":
            a(f"s_load_dword s80, s[44:45], {i*S}"); a(f"s_load_dword s80, s[44:45], {i*S + 64}")
        else: a(f"s_load_dword s80, s[44:45], {i*S + off}")
    a("s_waitcnt lgkmcnt(0)")
    a("s_barrier")
    stamp(a, 2)
    nv = tot // (nw*8)
    for p in range(2):
        for i in range(nv): ld(a, i, i*nw*8*S, "", nw)
        a("s_waitcnt vmcnt(0)")
        a("s_barrier")
        stamp(a, 3+p)
    stamp_flush(a, 5)
    a("L_end:\ns_endpgm")
    finish(a, fn, block=64*nw, lds=163840)
smem("mb_s_x2.s", 8, 16, "x2", 60, nact=18)
smem("mb_s_two.s", 8, 16, "two", 0, nact=18)
smem("mb_s_one.s", 8, 16, "one", 0, nact=18)
smem("mb_s_x2_c0.s", 8, 16, "x2", 60, nact=18, cls=0)
smem("mb_s_x2_4w.s", 4, 32, "x2", 60, nact=18)
smem("mb_s_x2_32.s", 8, 32, "x2", 60, nact=18, S=3072)
smem("mb_s_x2_1cu.s", 8, 16, "x2", 60, nact=1)
```

```python
import sys
from asmlib import *

KN = "standalone__swiglu_ffn__sampling_kernel"
X_B, W_B, OUT_B, WS_B = 128*1024*2, 1024*3584*2, 128*1024*2, 268435456
FA_OFF = 0
FB_OFF = FA_OFF + 4096
EP_OFF = FA_OFF + 8192
RG_OFF = FA_OFF + 12288
PZ_OFF = FA_OFF + 16384
HA_OFF = 65536
P_OFF = 1 << 20
HB_OFF = (3 << 20) + HA_OFF
PAD_OFF = 3 << 20
ST_OFF = 8 << 20
R_X, R_G, R_U, R_D, R_WS, R_OUT = 20, 24, 28, 32, 36, 40
WD_LDS = 98304
SY_LDS = WD_LDS + 57344
LDS = SY_LDS + 64
SPIN = 1 << 18
NV, NA = 96, 160

class O:
    stamp = 0
    sync = 1
    sw = 4
    codepf = 0
    ackfirst = 1
    kfast = 64
    sl1 = 1
    sl2 = 0
    wd13 = 0
    wd14 = 5
    hfirst = 10
    first = 3
    hlead = 5
    fine = 3
    touchq = 1
    tstep = 1
    hpf = 8
    pzc = 12
    pzl = 2
    NP = 8
    N1 = 8
    cap = 5
    pz3 = 0
    pzpos = 8
    h64 = 1
    slk = 1
    echk = 1
    ord = 0
    nb1 = 10
    xg = 4
    xlead = 2
    x4 = 0
    x4pf = 0
    x4rot = 1
    m3first = 0
    sm3 = 0
    smlead = 6
    smfrom = 5
    cp17 = 1
    spec = 1
    bf = 0
    thd = 2
    thn = 0
    xfirst = 1
    vt = 0
    vtc = 1
    vt1 = 7
    p1r3 = 5
    inl = 0
    upd = 1
    nohpf = 0
    hfl = 0
    skip0 = 0
    nopz = 0
    two = 1
    hold = 2
    wdk = 3
    wdlate = -1
    nowd = 0
    fin = 0
    nofront = 0
    sent = 0
    sl3 = 0
    reord = 1
    touchout = 0
    outfl = 0
    endwait = 1
    wd0 = 0
    hself = 0
    r2 = 6
    r3 = 11
    swapgu = 1
    p1rot = 0
    su_at = -1
PTS = {}
def opts(argv):
    for x in argv:
        k, v = x.split("=")
        if k == "pts":
            PTS.clear(); PTS["start"] = 0
            for i, nm in enumerate(v.split(",")): PTS[nm] = i + 1
            O.stamp = 1
        else:
            assert hasattr(O, k), k
            setattr(O, k, int(v))
def stamp(a, name):
    if O.stamp and name in PTS:
        idx = PTS[name]
        a(f"s_memrealtime s[{64+2*idx}:{65+2*idx}]")
_fl = [0]
def stamp_flush(a):
    if not O.stamp: return
    _fl[0] += 1
    L = f"L_sf{_fl[0]}"
    a(f"""
    s_memrealtime s[78:79]
    s_cmp_lg_u32 s53, {O.sw}
    s_cbranch_scc1 {L}
    s_mov_b64 s[36:37], s[16:17]
    s_mov_b32 s38, {WS_B}
    s_mov_b32 s39, 0x20000
    s_waitcnt lgkmcnt(0)
    """)
    for i in range(8):
        a(f"v_mov_b32 v{80+i}, s{64+2*i}")
    a(f"""
    s_lshl_b32 s63, s2, 5
    s_add_u32 s63, s63, {ST_OFF}
    v_mov_b32 v88, s63
    s_mov_b64 exec, 1
    buffer_store_dwordx4 v[80:83], v88, {rs(R_WS)}, 0 offen
    buffer_store_dwordx4 v[84:87], v88, {rs(R_WS)}, 0 offen offset:16
    {L}:
    """)
def rs(r): return f"s[{r}:{r+3}]"

def srd_tail(a, which):
    for r, n in which:
        a(f"s_mov_b32 s{r+2}, {n}")
        a(f"s_mov_b32 s{r+3}, 0x20000")

def gen():
    a = Asm()
    kstart(a, KN)
    if O.stamp and O.sync:
        a("""
        s_memrealtime s[44:45]
        s_waitcnt lgkmcnt(0)
        s_add_u32 s46, s44, 612
        s_and_b32 s46, s46, 0xfffffe00
        L_sync:
        s_memrealtime s[44:45]
        s_waitcnt lgkmcnt(0)
        s_sub_u32 s47, s44, s46
        s_cmp_lt_i32 s47, 0
        s_cbranch_scc1 L_sync
        """)
    stamp(a, "start")
    a("""
    s_load_dwordx8 s[4:11], s[0:1], 0
    s_load_dwordx4 s[12:15], s[0:1], 32
    s_load_dwordx2 s[16:17], s[0:1], 48
    v_lshrrev_b32 v1, 6, v0         ; wave
    s_cmp_ge_u32 s2, 256
    s_cbranch_scc1 L_end
    v_readfirstlane_b32 s53, v1
    s_and_b32 s48, s2, 7
    s_lshr_b32 s49, s2, 3           ; q
    v_and_b32 v2, 63, v0            ; lane
    s_cmp_lt_u32 s49, 14
    s_cbranch_scc1 L_p1
    s_sub_u32 s52, s49, 14          ; p
    s_cmp_lg_u32 s53, 0
    s_cbranch_scc1 L_pf_other
    """)
    NC = 6 if O.sm3 else 7
    NL = (43 if O.sm3 else 50) if O.spec else 25
    a(f"""
    s_lshr_b32 s54, s52, {1 if O.spec else 0}
    s_mul_i32 s54, s54, {NL}
    v_add_u32 v3, s54, v2
    v_mul_u32_u24 v5, {10923 if O.sm3 else 9363}, v3
    v_lshrrev_b32 v5, 16, v5        ; row
    v_mul_u32_u24 v6, {NC}, v5
    v_sub_u32 v6, v3, v6            ; col
    """)
    if O.sm3:
        slowcol(a)
        a("""
        v_cmp_le_u32 vcc, s54, v6
        s_nop 1
        v_addc_co_u32 v6, vcc, 0, v6, vcc
        """)
    a(f"""
    v_mul_u32_u24 v5, 7168, v5
    v_lshl_add_u32 v5, v6, 7, v5
    s_mul_i32 s54, s48, 896
    v_add_u32 v5, s54, v5
    v_cmp_gt_u32 vcc, {NL}, v2
    s_movk_i32 s54, {64*NC}
    v_cmp_gt_u32 s[44:45], s54, v3
    v_bfrev_b32 v7, 2
    s_lshl_b32 s54, s52, 3
    s_and_b64 vcc, vcc, s[44:45]
    v_lshrrev_b32 v3, {O.xg.bit_length() - 1}, v2
    v_add_u32 v3, s54, v3
    v_lshlrev_b32 v6, 11, v3
    v_and_b32 v3, {O.xg - 1}, v2
    v_lshl_add_u32 v6, v3, 7, v6
    v_cndmask_b32 v10, v7, v5, vcc
    """)
    if O.sm3 and O.smfrom:
        a(f"""
        s_lshr_b32 s54, s52, 1
        s_mul_i32 s54, s54, 50
        v_add_u32 v8, s54, v2
        v_mul_u32_u24 v5, 9363, v8
        v_lshrrev_b32 v5, 16, v5
        v_mul_u32_u24 v9, 7, v5
        v_sub_u32 v9, v8, v9
        v_mul_u32_u24 v5, 7168, v5
        v_lshl_add_u32 v5, v9, 7, v5
        v_cmp_gt_u32 vcc, 50, v2
        s_movk_i32 s54, 448
        v_cmp_gt_u32 s[44:45], s54, v8
        s_mul_i32 s54, s48, 896
        v_add_u32 v5, s54, v5
        s_and_b64 vcc, vcc, s[44:45]
        v_cndmask_b32 v13, v7, v5, vcc
        """)
    a(f"""
    v_cmp_gt_u32 vcc, {8 * O.xg}, v2
    s_mov_b32 s22, {X_B}
    s_mov_b32 s23, 0x20000
    v_cndmask_b32 v11, v7, v6, vcc
    s_mov_b32 s26, {W_B}
    s_mov_b32 s27, 0x20000
    s_mov_b32 s30, {W_B}
    s_mov_b32 s31, 0x20000
    """)
    if O.spec == 2:
        a(f"""
        v_cmp_le_u32 s[46:47], 50, v2    ; x lanes
        v_min_u32 v3, 57, v2
        v_subrev_u32 v3, 50, v3
        s_min_u32 s54, s52, 15
        s_lshl_b32 s54, s54, 3
        v_add_u32 v3, s54, v3
        v_lshlrev_b32 v3, 11, v3
        s_lshr_b32 s54, s52, 1
        s_mul_i32 s54, s54, 50
        v_add_u32 v4, s54, v2
        v_cmp_gt_u32 vcc, 0x1c0, v4
        s_mul_i32 s54, s48, 896
        v_mov_b32 v4, s54
        v_cndmask_b32 v10, v4, v5, vcc
        v_cndmask_b32 v10, v10, v3, s[46:47]
        v_mov_b32 v3, {64*7168}
        v_mov_b32 v4, 128
        v_cndmask_b32 v11, v3, v4, s[46:47]
        """)
    a(f"""
    s_bitcmp{1 if O.swapgu else 0}_b32 s52, {0 if O.swapgu else 31}
    s_waitcnt lgkmcnt(0)
    s_cselect_b64 s[24:25], s[6:7], s[8:9]
    s_cselect_b64 s[28:29], s[8:9], s[6:7]
    s_mov_b64 s[20:21], s[4:5]
    """)
    if O.spec == 2:
        a("""
        v_mov_b32 v16, s24
        v_mov_b32 v17, s25
        v_mov_b32 v18, s4
        v_mov_b32 v19, s5
        v_cndmask_b32 v16, v16, v18, s[46:47]
        v_cndmask_b32 v17, v17, v19, s[46:47]
        v_add_co_u32 v16, vcc, v16, v10
        s_nop 1
        v_addc_co_u32 v17, vcc, 0, v17, vcc
        """)
    stamp(a, "karg")
    npf = 0; nmark = 0
    for c in range(16):
        if c == O.vtc and O.vt:
            a(f"""
            v_add_u32 v3, 1, v2
            v_lshlrev_b32 v3, 21, v3
            v_cmp_gt_u32 vcc, 3, v2
            s_mul_i32 s54, s48, 917504
            v_min_u32 v4, 1, v2
            v_cndmask_b32 v3, v7, v3, vcc
            v_mul_u32_u24 v4, 917376, v4
            buffer_load_dword v25, v3, {rs(R_G)}, 0 offen
            buffer_load_dword v25, v3, {rs(R_U)}, 0 offen
            """)
            npf += 2
            if O.vt >= 2:
                a(f"""
                v_add_u32 v4, s54, v4
                v_mov_b32 v5, {PAD_OFF}
                v_mov_b32 v6, 0
                global_load_dword v25, v4, s[10:11]
                global_load_dword v25, v5, s[16:17]
                global_load_dword v25, v6, s[12:13]
                """)
                npf += 3
        if c == 1:
            if O.touchq:
                a("""
                s_cmp_lt_u32 s52, 14
                s_cselect_b64 s[44:45], s[16:17], s[12:13]
                s_cmp_lt_u32 s52, 12
                s_cselect_b64 s[44:45], s[10:11], s[44:45]
                s_cmp_lt_u32 s52, 8
                s_cselect_b64 s[44:45], s[8:9], s[44:45]
                s_cmp_lt_u32 s52, 4
                s_cselect_b64 s[44:45], s[6:7], s[44:45]
                s_and_b32 s54, s52, 3
                s_lshl_b32 s54, s54, 21
                s_cmp_lt_u32 s52, 14
                s_cselect_b32 s54, s54, 0
                s_load_dword s87, s[44:45], s54
                """)
            reg1(a)
        if c == O.r2:
            a("s_getreg_b32 s86, hwreg(HW_REG_XCC_ID, 0, 4)")
            a("s_lshl_b32 s86, s86, 24")
            stamp(a, "r2a")
            a("s_waitcnt lgkmcnt(0)")
            stamp(a, "r2b")
            reg2(a); nmark = npf
        if c == O.r3:
            a(f"s_waitcnt vmcnt({min(63, npf - nmark)})")
            reg3(a)
            stamp(a, "non")
        if c == O.pzc:
            poison(a); npf += 8
        npf += 3 - O.spec + (c == O.hpf) + (c == O.codepf and not O.cp17)
        if O.thd <= c < O.thn: a(f"s_waitcnt vmcnt({3*(O.thd-1)})")
        if c == 0:
            so_w, so_x = "0", "0"
        elif O.spec < 2:
            a(f"s_mov_b32 s57, {c*64*7168}")
            a(f"s_movk_i32 s58, {c*128}")
            so_w, so_x = "s57", "s58"
        if O.spec == 2:
            a("global_load_dword v20, v[16:17], off")
            if c < 15:
                a("v_add_co_u32 v16, vcc, v16, v11\ns_nop 1\nv_addc_co_u32 v17, vcc, 0, v17, vcc")
        if O.xg > 1:
            npf -= 1
            for g_ in range(16 // O.xg):
                if max(0, g_ * O.xg - O.xlead) == c:
                    a(f"s_movk_i32 s58, {g_ * O.xg * 128}")
                    a(f"buffer_load_dword v22, v11, {rs(R_X)}, s58 offen")
                    npf += 1
        elif c < O.x4 and not O.x4pf: npf -= 1
        elif O.xfirst and O.spec < 2: a(f"buffer_load_dword v22, v11, {rs(R_X)}, {so_x} offen")
        if c == 0 and O.skip0 & 8: a("s_cbranch_scc1 L_skipg")
        if not (c == 0 and O.skip0 & 1) and O.spec < 2: a(f"buffer_load_dword v20, v{13 if (O.sm3 and c < O.smfrom) else 10}, {rs(R_G)}, {so_w} offen")
        if not (c == 0 and O.skip0 & 2) and not O.spec: a(f"buffer_load_dword v21, v10, {rs(R_U)}, {so_w} offen")
        if not (c == 0 and O.skip0 & 4) and not O.xfirst: a(f"buffer_load_dword v22, v11, {rs(R_X)}, {so_x} offen")
        if c == 0 and O.skip0 & 8: a("L_skipg:")
        stamp(a, f"i{c}")
        if O.inl and c >= 3:
            a("s_waitcnt vmcnt(9)")
            stamp(a, f"L{c-3}")
        if c == O.hpf: hpf(a)
        if c == O.codepf and O.cp17:
            a(f"""
            s_cmp_lt_u32 s52, 16
            s_cbranch_scc1 L_nocp
            s_getpc_b64 s[44:45]
            L_pc:
            s_sub_u32 s44, s44, L_pc-{KN}
            s_subb_u32 s45, s45, 0
            s_and_b32 s54, s52, 1
            s_lshl_b32 s54, s54, 6
            v_add_u32 v3, s54, v2
            v_min_u32 v3, (L_code_end-{KN}-4)/128, v3
            v_lshlrev_b32 v3, 7, v3
            global_load_dword v23, v3, s[44:45]
            L_nocp:
            """)
        elif c == O.codepf:
            a(f"""
            s_getpc_b64 s[44:45]
            L_pc:
            s_sub_u32 s44, s44, L_pc-{KN}
            s_subb_u32 s45, s45, 0
            s_mul_i32 s54, s52, 6
            v_min_u32 v3, 5, v2
            v_add_u32 v3, s54, v3
            v_min_u32 v3, (L_code_end-{KN}-4)/128, v3
            v_lshlrev_b32 v3, 7, v3
            global_load_dword v23, v3, s[44:45]
            """)
    if O.two:
        stamp(a, "hia")
        if O.hold >= 0: a(f"s_waitcnt vmcnt({O.hold})")
        stamp(a, "hib")
        a("global_store_dword v31, v30, s[16:17]")
    if O.two and O.ord:
        hpf(a)
        a("s_waitcnt lgkmcnt(0)")
        a("s_barrier")
        a("s_barrier")
        poison(a)
        stamp(a, "pfi")
        a("s_branch L_pf_front")
    elif O.two:
        if not O.nopz: poison(a)
        if not O.nohpf: hpf(a)
        a(f"""
        s_lshl_b32 s54, s49, 3
        s_add_u32 s54, s54, s48
        s_lshl_b32 s54, s54, 7
        s_add_u32 s54, s54, {PZ_OFF}
        v_mov_b32 v3, s54
        s_waitcnt lgkmcnt(0)
        s_barrier
        s_waitcnt vmcnt({0 if O.nohpf else 1})
        global_store_dword v3, v12, s[16:17] sc1
        """)
    elif O.pzc == 16: poison(a)
    if O.wdlate >= 0: a(f"s_waitcnt vmcnt({O.wdlate})")
    a("s_waitcnt lgkmcnt(0)")
    a("s_barrier")
    stamp(a, "pfi")
    for c in range(16):
        if f"l{c}" in PTS:
            a(f"s_waitcnt vmcnt({3*(15-c) + (1 if c < O.codepf else 0) + (1 if c < O.hpf else 0) + (1 if c < O.r2 else 0) + (1 if c < O.r3 else 0)})")
            stamp(a, f"l{c}")
    a("s_branch L_pf_front")
    a(f"""
    L_pf_other:
    s_cmp_ge_u32 s53, 4
    s_cbranch_scc1 L_back_pf
    s_waitcnt lgkmcnt(0)
    s_cmp_eq_u32 s53, {3 if O.upd == 0 else 99}
    s_cbranch_scc0 L_pf_bar
    s_cmp_eq_u32 s2, 255
    s_cbranch_scc0 L_pf_bar
    s_mov_b32 s57, {EP_OFF}
    s_load_dword s59, s[16:17], s57
    v_mov_b32 v3, 0
    v_mov_b32 v4, s57
    s_waitcnt lgkmcnt(0)
    s_add_u32 s59, s59, 1
    s_bitset1_b32 s59, 31
    v_mov_b32 v5, s59
    s_mov_b64 exec, 1
    global_store_dword v3, v5, s[14:15] sc1
    s_waitcnt vmcnt(0)
    global_store_dword v4, v5, s[16:17] sc1
    s_mov_b64 exec, -1
    s_branch L_pf_bar
    """)
    a(f"""
    L_pf_bar:
    s_waitcnt lgkmcnt(0)
    {"s_barrier" if O.two else ""}
    s_barrier
    L_pf_front:
    """)
    pf_role(a, "f")
    front_setup(a)
    a(f"""
    v_mov_b32 v5, {SY_LDS + 32}
    ds_read_b32 v12, v5
    s_waitcnt lgkmcnt(0)
    v_xor_b32 v3, s86, v12
    s_cmp_lg_u32 s53, {99 if O.two else 0}
    s_cbranch_scc1 L_pf_noflag
    s_lshl_b32 s54, s49, 3
    s_add_u32 s54, s54, s48
    s_lshl_b32 s54, s54, 7
    s_add_u32 s54, s54, {PZ_OFF}
    v_mov_b32 v4, s54
    s_waitcnt vmcnt(0)
    buffer_store_dword v12, v4, {rs(R_WS)}, 0 offen sc1
    L_pf_noflag:
    s_mov_b32 s90, 0
    v_bfrev_b32 v14, 2
    v_bfrev_b32 v15, 2
    s_barrier
    """)
    if O.ord:
        a(f"""
        s_cmp_lg_u32 s53, 0
        s_cbranch_scc1 L_hload
        s_lshl_b32 s54, s49, 3
        s_add_u32 s54, s54, s48
        s_lshl_b32 s54, s54, 7
        s_add_u32 s54, s54, {PZ_OFF}
        v_mov_b32 v4, s54
        s_waitcnt vmcnt(0)
        buffer_store_dword v12, v4, {rs(R_WS)}, 0 offen sc1
        """)
        stamp(a, "pzf")
    a(f"""
    s_branch L_hload
    L_back_pf:
    """)
    a("v_and_b32 v1, 3, v1")
    lds_init(a)
    if O.sm3: sm_pre(a)
    a("s_waitcnt lgkmcnt(0)")
    if O.sm3:
        sm_post(a)
        for c in range(O.smfrom, 16): sm(a, c)
    pf_role(a, "b")
    a("""
    """)
    p2_setup(a)
    a("s_barrier")
    if O.nowd: a("s_endpgm")
    for i_, d in enumerate(wd_list(range(14))):
        if O.ord and i_ >= O.nb1: break
        if O.two and i_ == O.wdk and not O.ord: a("s_barrier")
        a(d)
    if O.ord:
        a("s_barrier")
        a(f"s_waitcnt vmcnt({O.nb1 - 5})")
    a("s_branch L_p2")

    a(f"""
    L_p1:
    s_and_b32 s47, s49, 1           ; mh1
    s_lshr_b32 s52, s49, 1          ; col
    s_mul_i32 s54, s48, 7
    s_add_u32 s52, s52, s54
    s_cmp_lt_u32 s53, 4
    s_cbranch_scc1 L_front
    v_and_b32 v1, 3, v1
    s_lshl_b32 s54, s52, 7
    v_lshrrev_b32 v3, 3, v2         ; r
    v_and_b32 v4, 7, v2             ; p
    v_lshl_add_u32 v5, v1, 4, v3    ; 16w + r
    v_mul_u32_u24 v6, 7168, v5
    v_add_u32 v6, s54, v6
    v_and_b32 v7, 2, v3
    v_xor_b32 v7, v7, v4
    v_lshl_add_u32 v10, v7, 4, v6   ; vG
    v_xor_b32 v11, 64, v10          ; vU
    v_lshrrev_b32 v7, 1, v3
    v_xor_b32 v7, v7, v4
    s_lshl_b32 s54, s47, 6
    v_add_u32 v5, s54, v5
    v_lshlrev_b32 v5, 11, v5
    v_lshl_add_u32 v12, v7, 4, v5   ; vX0
    v_xor_b32 v13, 64, v12
    v_add_u32 v13, 0x4000, v13      ; vX1
    s_and_b32 s56, s53, 3
    s_lshl_b32 s55, s56, 10
    s_lshl_b32 s56, s56, 11
    s_lshr_b32 s91, s49, 1
    s_mul_i32 s91, s91, {max(O.x4, 1) * 37 * O.x4rot}
    s_lshr_b32 s91, s91, 8
    """)
    if O.wd0:
        p1_role(a)
        wd_addr(a)
        srd_tail(a, [(R_D, W_B)])
    srd_tail(a, [(R_X, X_B), (R_G, W_B), (R_U, W_B)])
    if O.sm3: sm_pre(a)
    lds_init(a)
    a("""
    s_waitcnt lgkmcnt(0)
    s_mov_b64 s[32:33], s[10:11]
    s_mov_b64 s[24:25], s[6:7]
    s_mov_b64 s[28:29], s[8:9]
    s_mov_b64 s[20:21], s[4:5]
    """)
    stamp(a, "karg")
    if O.wd0:
        for d in wd_list(range(O.wd0), early=True): a(d)
    Q = []
    def dma(c, part="xw"):
        sl = (c % 4) * 24576
        for k, (v, r, so) in enumerate([(12, R_X, c*128), (13, R_X, c*128), (10, R_G, c*458752), (10, R_G, c*458752+57344), (11, R_U, c*458752), (11, R_U, c*458752+57344)]):
            if (k < 2 and "x" not in part) or (k >= 2 and "w" not in part): continue
            a(f"s_add_u32 m0, s56, {sl + (k//2)*8192 + (k%2)*1024}\ns_mov_b32 s57, {so}\nbuffer_load_dwordx4 v{v}, {rs(r)}, s57 offen lds")
            Q.append(c)
    for i in range(O.x4):
        a(f"""
        s_mul_i32 s57, s91, 24576
        s_add_u32 m0, s56, s57
        s_lshl_b32 s57, s91, 7
        buffer_load_dwordx4 v12, {rs(R_X)}, s57 offen lds
        s_add_u32 m0, m0, 0x400
        s_add_u32 s91, s91, 1
        buffer_load_dwordx4 v13, {rs(R_X)}, s57 offen lds
        s_cmp_eq_u32 s91, {O.x4}
        s_cselect_b32 s91, 0, s91
        """)
        Q += [0, 0]
    def part(c): return "w" if c < O.x4 else "xw"
    dma(0, part(0))
    stamp(a, "d0")
    dma(1, part(1))
    stamp(a, "d1")
    def back_setup():
        p1_role(a)
        p2_setup(a)
        stamp(a, "su")
    if O.su_at < 0: back_setup()
    issued = 2
    while issued < O.first:
        dma(issued, part(issued)); issued += 1
    wd = O.wd0
    wdl = wd_list(range(14))
    def nvm(l): return sum(x.count("_load_dword") for x in l)
    wdops = 0
    for c in range(16):
        a(f"s_waitcnt vmcnt({len(Q) - 1 - max(i for i, t in enumerate(Q) if t == c) + wdops})")
        a("s_barrier")
        stamp(a, f"c{c}")
        if O.sm3 and c + O.smfrom + O.smlead < 16: sm(a, c + O.smfrom + O.smlead)
        if issued < 16 and issued <= c + 3:
            dma(issued, part(issued)); issued += 1
            if issued == 16 and O.hself == 2:
                a(f"""
                s_lshl_b32 s54, s52, 4
                s_lshl_b32 s57, s47, 2
                s_add_u32 s54, s54, s57
                s_lshl_b32 s54, s54, 10
                s_add_u32 s54, s54, {HA_OFF}
                v_and_b32 v62, 15, v2
                v_lshl_add_u32 v62, v1, 4, v62
                v_lshrrev_b32 v63, 5, v62
                v_and_b32 v62, 31, v62
                v_lshlrev_b32 v62, 7, v62
                v_lshl_add_u32 v62, v63, 13, v62
                v_add_u32 v62, s54, v62
                global_load_dword v63, v62, s[16:17]
                """)
                Q.append(98)
        else:
            n = {13: O.wd13, 14: O.wd14, 15: (O.N1 - wd if O.bf else 14)}.get(c, 0)
            n = min(n, 14 - wd)
            if O.fin: n = 0
            for d in wdl[wd:wd+n]: a(d)
            wdops += nvm(wdl[wd:wd+n]); wd += n
        if c == O.su_at: back_setup()
    if O.fin:
        stamp_flush(a); a("s_endpgm")
    if O.bf:
        assert wd == O.N1
        a("s_waitcnt vmcnt(0)")
    a("L_p2:")
    stamp(a, "p2in")
    def areg(slot, t, n, o=0):
        base = (slot*4 + t) * 4 + o
        return ar(base, n) if slot < 10 else vr(64 + base - 160, n)
    def areads(s, slot):
        out = []
        for t in range(4):
            out.append(f"ds_read_b64_tr_b16 {areg(slot, t, 2)}, v{20+t} offset:{s*4096}")
            out.append(f"ds_read_b64_tr_b16 {areg(slot, t, 2, 2)}, v{20+t} offset:{s*4096+1024}")
        return out
    def lsync(k):
        a(f"""
        ds_write_b32 v14, v15 offset:{16*k}
        L_sy{k}:
        ds_read_b128 v[40:43], v16 offset:{16*k}
        s_waitcnt lgkmcnt(0)
        v_and_b32 v40, v40, v41
        v_and_b32 v42, v42, v43
        v_and_b32 v40, v40, v42
        v_cmp_eq_u32 vcc, 0, v40
        s_cbranch_vccnz L_sy{k}
        """)
    NP, N1 = O.NP, O.N1
    a(f"s_waitcnt vmcnt({14 - N1})")
    lsync(0)
    stamp(a, "wd1")
    a("ds_read_b32 v5, v16 offset:32")
    for s in range(N1):
        if s >= 1: a("s_waitcnt lgkmcnt(6)")
        for r in areads(s, s): a(r)
    if O.bf:
        a("s_cmp_ge_u32 s49, 14")
        a("s_cbranch_scc1 L_nobf")
        a("s_barrier")
        for d in wdl[N1:]: a(d)
        a("L_nobf:")
    if NP > N1:
        a(f"s_waitcnt vmcnt({14 - NP})")
        lsync(1)
        stamp(a, "wd2")
        for s in range(N1, NP):
            if s > N1: a("s_waitcnt lgkmcnt(6)")
            for r in areads(s, s): a(r)
    a(f"""
    s_cmp_lt_u32 s49, 14
    s_cbranch_scc1 L_nob2
    s_barrier
    L_nob2:
    s_waitcnt lgkmcnt(8)
    """)
    stamp(a, "rdy")
    AC = 24
    groups = {0: [[2*g, 2*g+1] for g in range(7)],
              1: [[0,1],[2,3],[4,5],[6,7],[8,9],[10,11],[12],[13]],
              2: [[0],[1,2],[3,4],[5,6],[7,8],[9,10],[11,12],[13]],
              3: [[0],[1],[2,3],[4,5],[6,7],[8,9],[10,11],[12],[13]],
              4: [[s_] for s_ in range(14)]}[O.fine]
    def breg(s): return 40 + 4*(s % 4)
    NI = len(groups) + 1
    it_of = {s_: gi + 1 for gi, g in enumerate(groups) for s_ in g}
    plan = [[] for _ in range(NI)]
    room = [0] + [O.cap * len(groups[i - 1]) for i in range(1, NI)]
    i = NI - 1
    for s_ in range(13, NP - 1, -1):
        for r in reversed(areads(s_, s_ % 12)):
            i = min(i, it_of[s_] - 1 - O.slk)
            while room[i] == 0: i -= 1
            assert i >= 1 and (s_ < 12 or i > it_of[s_ - 12]), (s_, i)
            plan[i].insert(0, (r, f"A{s_}")); room[i] -= 1
    Q = ["P"] * 8
    landed = NP - 1
    def emit(x):
        a(x[0])
        if x[1]: Q.append(x[1])
    for it in range(NI):
        prev = groups[it - 1] if it else []
        need = [f"B{s_}" for s_ in prev] + [f"A{s_}" for s_ in prev if s_ >= NP]
        if it == 1: need.append("P")
        if it == NI - 1: need.append("Z")
        w = ""
        top = max([int(x[1][1:]) for x in plan[it]], default=-1)
        if top > landed:
            w += f" vmcnt({13 - top})"; landed = top
        if need:
            for t_ in need: assert t_ in Q and (t_[0] != "A" or Q.count(t_) == 8), (it, t_)
            n = len(Q) - 1 - max(len(Q) - 1 - Q[::-1].index(t_) for t_ in need)
            w += f" lgkmcnt({n})"
        else: n = 8
        if w: a("s_waitcnt" + w)
        items = []
        if it < len(groups):
            a("s_barrier")
            stamp(a, f"b{it}")
            if it == len(groups) - 1: stamp(a, "bl")
            items += [(f"ds_read_b128 {vr(breg(s_),4)}, v19 offset:{s_*4096}", f"B{s_}") for s_ in groups[it]]
            if it == len(groups) - 2: items.append(("ds_read_b32 v9, v16 offset:36", "Z"))
        else:
            items += [("v_cmp_ne_u32 vcc, v5, v9", None), ("s_mov_b32 s80, 0\ns_mov_b32 s44, 0xffff0000", None), ("s_cbranch_vccnz L_pz_wait\nL_pz_ok:", None)]
        if n + sum(1 for x in items + plan[it] if x[1]) > 15:
            k = 15 - len(plan[it])
            plan[it][0] = (f"s_waitcnt lgkmcnt({k})\n" + plan[it][0][0], plan[it][0][1])
        items += plan[it]
        if not prev:
            for x in items: emit(x)
        nm = 4 * len(prev); k = 0
        for s_ in prev:
            for t in range(4):
                cin = "0" if s_ == 0 else vr(AC+4*t, 4)
                a(f"v_mfma_f32_16x16x32_bf16 {vr(AC+4*t,4)}, {areg(s_ % 12, t, 4)}, {vr(breg(s_),4)}, {cin}")
                k += 1
                take = -(-len(items) // (nm - k + 1))
                for x in items[:take]: emit(x)
                items = items[take:]
    stamp(a, "mend")
    if O.echk:
        a("s_nop 0")
    else:
        a(f"""
        s_waitcnt vmcnt(0)
        v_cmp_ne_u32 vcc, v5, v9
        s_mov_b32 s80, 0
        s_mov_b32 s44, 0xffff0000
        s_cbranch_vccnz L_pz_wait
        L_pz_ok:
        v_mov_b32 v19, v60
        """)
    for g in range(2):
        for i in range(4):
            if O.echk and g == 0 and i == 2: a("s_nop 1")
            a(f"v_cvt_pk_bf16_f32 v{40+4*g+i}, v{AC+8*g+2*i}, v{AC+8*g+2*i+1}")
        for i in range(4):
            a(f"v_min_u32 v{40+4*g+i}, -2, v{40+4*g+i}")
        a(f"buffer_store_dwordx4 {vr(40+4*g,4)}, v8, {rs(R_WS)}, 0 offen offset:{g*512} sc1")
    stamp(a, "pst")
    if O.ackfirst: a(f"s_waitcnt vmcnt({O.ackfirst - 1})")
    stamp(a, "ack")
    if O.sent:
        a(f"""
        L_sent:
        buffer_load_dword v4, v19, {rs(R_WS)}, 0 offen sc1
        s_add_u32 s80, s80, 1
        s_cmp_ge_u32 s80, {SPIN}
        s_waitcnt vmcnt(0)
        v_cmp_eq_u32 vcc, -1, v4
        s_cbranch_scc1 L_poll2
        s_cbranch_vccz L_poll2
        s_sleep {O.sl3}
        s_branch L_sent
        """)
    a(f"""
    L_poll2:
    buffer_load_dwordx4 v[64:67], v6, {rs(R_WS)}, 0 offen sc1
    buffer_load_dwordx4 v[68:71], v6, {rs(R_WS)}, 0 offen offset:1024 sc1
    s_add_u32 s80, s80, 1
    s_cmp_ge_u32 s80, {SPIN}
    s_waitcnt vmcnt(1)
    v_max3_u32 v4, v64, v65, v66
    v_lshlrev_b32 v72, 16, v64
    v_and_b32 v73, s44, v64
    v_lshlrev_b32 v74, 16, v65
    v_and_b32 v75, s44, v65
    v_lshlrev_b32 v76, 16, v66
    v_and_b32 v77, s44, v66
    v_lshlrev_b32 v78, 16, v67
    v_and_b32 v79, s44, v67
    s_waitcnt vmcnt(0)
    v_max3_u32 v4, v4, v67, v68
    v_max3_u32 v5, v69, v70, v71
    v_max_u32 v4, v4, v5
    v_cmp_eq_u32 vcc, -1, v4
    s_cbranch_scc1 L_fin
    s_cbranch_vccz L_fin
    s_sleep {O.sl2}
    s_branch L_poll2
    L_fin:
    v_lshlrev_b32 v80, 16, v68
    v_and_b32 v81, s44, v68
    v_lshlrev_b32 v82, 16, v69
    v_and_b32 v83, s44, v69
    v_lshlrev_b32 v84, 16, v70
    v_and_b32 v85, s44, v70
    v_lshlrev_b32 v86, 16, v71
    v_and_b32 v87, s44, v71
    v_pk_add_f32 v[72:73], v[72:73], v[80:81]
    v_pk_add_f32 v[76:77], v[76:77], v[84:85]
    v_pk_add_f32 v[74:75], v[74:75], v[82:83]
    v_pk_add_f32 v[78:79], v[78:79], v[86:87]
    s_nop 0
    v_permlane32_swap_b32 v72, v76
    v_permlane32_swap_b32 v73, v77
    v_permlane32_swap_b32 v74, v78
    v_permlane32_swap_b32 v75, v79
    v_pk_add_f32 v[72:73], v[72:73], v[76:77]
    v_pk_add_f32 v[74:75], v[74:75], v[78:79]
    s_nop 1
    v_permlane16_swap_b32 v72, v74
    v_permlane16_swap_b32 v73, v75
    s_nop 0
    v_pk_add_f32 v[72:73], v[72:73], v[74:75]
    v_cvt_pk_bf16_f32 v64, v72, v73
    buffer_store_dword v64, v7, {rs(R_OUT)}, 0 offen {["", "sc1", "nt", "sc0 sc1"][O.outfl]}
    {"s_waitcnt vmcnt(0)" if (O.stamp and O.endwait) else ""}
    """)
    if "npoll" in PTS:
        i = PTS["npoll"]
        a(f"s_waitcnt lgkmcnt(0)\ns_mul_i32 s{64+2*i}, s80, 100\ns_add_u32 s{64+2*i}, s{64+2*i}, s64")
    stamp_flush(a)
    a("L_end:")
    a("s_endpgm")
    a(f"""
    L_pz_wait:
    {"ds_read_b32 v9, v16 offset:36" if O.pz3 else "s_sleep 4"}
    {"" if O.pz3 else f"buffer_load_dword v9, v18, {rs(R_WS)}, 0 offen sc1"}
    s_add_u32 s80, s80, 1
    s_cmp_ge_u32 s80, {SPIN * (64 if O.pz3 else 1)}
    s_waitcnt vmcnt(0) lgkmcnt(0)
    v_cmp_ne_u32 vcc, v5, v9
    s_cbranch_scc1 L_pz_out
    s_cbranch_vccnz L_pz_wait
    L_pz_out:
    s_mov_b32 s80, {1000 if O.stamp else 0}
    s_branch L_pz_ok
    """)
    a("L_front:")
    if O.nofront: a("s_endpgm")
    a(f"""
    v_lshrrev_b32 v3, 4, v2         ; G
    v_and_b32 v4, 1, v3             ; isU
    v_lshrrev_b32 v5, 5, v2         ; hf
    v_bfe_u32 v6, v2, 2, 2          ; r
    v_lshrrev_b32 v7, 1, v6
    v_lshl_add_u32 v7, v4, 1, v7    ; 2 isU + (r>>1)
    v_xor_b32 v7, v7, v1
    v_lshl_add_u32 v6, v5, 3, v6    ; 8hf + r
    v_lshlrev_b32 v6, 7, v6
    v_lshl_add_u32 v6, v7, 5, v6
    v_lshl_add_u32 v6, v4, 13, v6
    v_and_b32 v7, 3, v2
    v_lshl_add_u32 v6, v7, 3, v6
    v_add_u32 v16, 0x2000, v6
    v_add_u32 v17, 49152, v16       ; slots 2/3
    v_and_b32 v6, 31, v2            ; m
    v_bfe_u32 v7, v6, 1, 3
    v_xor_b32 v7, v7, v5
    v_lshlrev_b32 v6, 7, v6
    """)
    for s in range(4):
        a(f"v_xor_b32 v8, {2*s}, v7")
        a(f"v_lshl_add_u32 v{20+s}, v8, 4, v6")
        a(f"v_add_u32 v{24+s}, 49152, v{20+s}")
    a(f"""
    v_lshrrev_b32 v6, 1, v1
    s_lshl_b32 s54, s52, 1
    v_add_u32 v6, s54, v6
    v_lshlrev_b32 v6, 3, v6
    v_bfe_u32 v7, v2, 4, 1
    s_lshl_b32 s54, s47, 2
    v_add3_u32 v6, v6, v7, s54      ; *8 + m16
    v_lshlrev_b32 v6, 10, v6
    v_and_b32 v7, 1, v1
    v_lshl_add_u32 v7, v7, 1, v5    ; kg
    v_lshl_add_u32 v6, v7, 8, v6
    v_and_b32 v7, 15, v2
    v_lshl_add_u32 v14, v7, 4, v6
    v_add_u32 v14, {HA_OFF}, v14
    s_lshl_b32 s54, s48, 1
    s_add_u32 s54, s54, s47
    s_lshl_b32 s54, s54, 7          ; (j*2+mh)*128
    s_lshr_b32 s57, s49, 1
    s_lshl_b32 s57, s57, 4
    s_add_u32 s54, s54, s57
    s_add_u32 s54, s54, {FA_OFF}
    v_lshl_add_u32 v15, v1, 2, s54
    """)
    p1_role(a)
    front_setup(a)
    a("s_mov_b32 s88, 0")
    a("s_cmp_lg_u32 s53, 0")
    a("s_cbranch_scc1 L_noreg1")
    if O.hself == 1:
        a(f"""
        s_lshl_b32 s54, s52, 4
        s_lshl_b32 s57, s47, 2
        s_add_u32 s54, s54, s57
        s_lshl_b32 s54, s54, 10
        s_add_u32 s54, s54, {HA_OFF}
        v_lshrrev_b32 v6, 5, v2
        v_and_b32 v7, 31, v2
        v_lshlrev_b32 v7, 7, v7
        v_lshl_add_u32 v6, v6, 13, v7
        v_add_u32 v6, s54, v6
        global_load_dword v31, v6, s[16:17]
        """)
    reg1(a)
    a(f"""
    L_noreg1:
    s_mov_b32 s44, 0xbfb8aa3b
    s_mov_b32 s45, 0xbfb8aa3b
    v_mov_b32 v5, {SY_LDS + 32}
    """)
    ACC = [32, 48]
    def reads(c, s):
        slot = c % 4
        rng, so = slot // 2, (slot % 2) * 24576
        b = 12*s
        return [f"ds_read_b64_tr_b16 a[{b}:{b+1}], v{16+rng} offset:{so + 2048*s}",
                f"ds_read_b64_tr_b16 a[{b+2}:{b+3}], v{16+rng} offset:{so + 2048*s + 512}",
                f"ds_read_b128 a[{b+4}:{b+7}], v{20+4*rng+s} offset:{so}",
                f"ds_read_b128 a[{b+8}:{b+11}], v{20+4*rng+s} offset:{so + 4096}"]
    def mfma(c, s, mi):
        b = 12*s
        cin = "0" if (c == 0 and s == 0) else vr(ACC[mi], 16)
        return f"v_mfma_f32_32x32x16_bf16 {vr(ACC[mi],16)}, {ar(b,4)}, {ar(b+4+4*mi,4)}, {cin}"
    a("s_barrier")
    stamp(a, "c0")
    for s in range(3):
        for r in reads(0, s): a(r)
    for c in range(15):
        for s in range(3):
            a(f"s_waitcnt lgkmcnt({[8,8,4][s]})")
            a(mfma(c, s, 0))
            if s == 0:
                for r in reads(c, 3)[:2]: a(r)
            a(mfma(c, s, 1))
            if s == 0:
                for r in reads(c, 3)[2:]: a(r)
        if c == O.vt1 and O.vt >= 3:
            a(f"""
            s_cmp_lg_u32 s53, 1
            s_cbranch_scc1 L_novt
            v_mov_b32 v6, {PAD_OFF}
            v_mov_b32 v7, 0
            global_load_dword v31, v6, s[16:17]
            global_load_dword v31, v7, s[12:13]
            L_novt:
            """)
        if c in (1, O.p1r3):
            a("s_cmp_lg_u32 s53, 0")
            a(f"s_cbranch_scc1 L_noreg_c{c}")
            if c == 1: reg2(a)
            else:
                a("s_waitcnt vmcnt(0)")
                reg3(a)
            a(f"L_noreg_c{c}:")
        if c == O.p1r3 + 2:
            a("ds_read_b32 v12, v5")
        if c == O.p1r3 + 3:
            a("v_xor_b32 v3, s86, v12")

        a("s_waitcnt lgkmcnt(0)")
        a("s_barrier")
        stamp(a, f"c{c+1}")
        rr = [r for s in range(3) for r in reads(c + 1, s)]
        if O.m3first:
            a(mfma(c, 3, 0))
            for r in rr[:4]: a(r)
            a(mfma(c, 3, 1))
            for r in rr[4:]: a(r)
            continue
        for r in rr[:4]: a(r)
        a(mfma(c, 3, 0))
        for r in rr[4:8]: a(r)
        a(mfma(c, 3, 1))
        for r in rr[8:]: a(r)
    c = 15
    a("s_waitcnt lgkmcnt(8)")
    a(mfma(c, 0, 0))
    for r in reads(c, 3): a(r)
    a("s_waitcnt lgkmcnt(8)")
    a(mfma(c, 1, 0))
    a("s_waitcnt lgkmcnt(4)")
    a(mfma(c, 2, 0))
    a("s_waitcnt lgkmcnt(0)")
    a(mfma(c, 3, 0))
    a(mfma(c, 0, 1))
    a(f"""
    s_mov_b32 s90, 1
    s_nop 7
    s_nop 1
    """)
    def epi(mi):
        A = ACC[mi]; t = 64 + 16*mi
        o = []
        for r in range(0, 8, 2):
            o.append(f"v_pk_mul_f32 v[{t+r}:{t+r+1}], v[{A+r}:{A+r+1}], s[44:45]")
        for r in range(8):
            o.append(f"v_exp_f32 v{t+r}, v{t+r}")
        for r in range(0, 8, 2):
            o.append(f"v_pk_mul_f32 v[{t+8+r}:{t+9+r}], v[{A+r}:{A+r+1}], v[{A+8+r}:{A+9+r}]")
        for r in range(0, 8, 2):
            o.append(f"v_pk_add_f32 v[{t+r}:{t+r+1}], v[{t+r}:{t+r+1}], 1.0 op_sel_hi:[1,0]")
        for r in range(8):
            o.append(f"v_rcp_f32 v{t+r}, v{t+r}")
        o.append("s_nop 0")
        for r in range(0, 8, 2):
            o.append(f"v_pk_mul_f32 v[{t+r}:{t+r+1}], v[{t+r}:{t+r+1}], v[{t+8+r}:{t+9+r}]")
        for d in range(4):
            o.append(f"v_cvt_pk_bf16_f32 v{4+4*mi+d}, v{t+2*d}, v{t+2*d+1}")
        o.append(f"buffer_store_dwordx4 v[{4+4*mi}:{7+4*mi}], v14, {rs(R_WS)}, 0 offen offset:{2048*mi} {['', 'nt', 'sc0', 'sc0 nt'][O.hfl]}")
        return o
    e0 = epi(0)
    for i, x in enumerate(e0):
        if i == 0: a(mfma(c, 1, 1))
        if i == 5: a(mfma(c, 2, 1))
        if i == 8: a(mfma(c, 3, 1))
        a(x)
    for x in epi(1): a(x)
    stamp(a, "hst")
    a(f"""
    s_waitcnt vmcnt(0)
    buffer_store_dword v3, v15, {rs(R_WS)}, 0 offen
    {"s_barrier" if O.bf else ""}
    """)
    stamp(a, "flg")
    a(f"""
    L_hload:
    s_mov_b32 s80, 0
    """)
    if O.pzl == 2:
        a(f"""
        v_and_b32 v22, 7, v2
        v_lshl_add_u32 v22, v22, 7, s91
        {"s_or_b32 s54, s53, s90" if O.pz3 else "s_mov_b32 s54, s53"}
        s_cmp_lg_u32 s54, 0
        s_cbranch_scc1 L_poll1
        L_pz0:
        buffer_load_dword v21, v22, {rs(R_WS)}, 0 offen sc1
        buffer_load_dword v20, v18, {rs(R_WS)}, 0 offen sc1
        s_add_u32 s80, s80, 1
        s_cmp_ge_u32 s80, {O.kfast}
        s_waitcnt vmcnt(0)
        v_cmp_ne_u32 vcc, v12, v21
        s_cbranch_vccz L_pz0_ok
        s_cbranch_scc1 L_poll1
        {"v_cmp_eq_u32 vcc, v3, v20" if O.pz3 else "v_cmp_ne_u32 vcc, v3, v20"}
        {"s_cbranch_vccnz L_poll1" if O.pz3 else "s_cbranch_vccz L_go"}
        s_sleep 2
        s_branch L_pz0
        L_pz0_ok:
        v_mov_b32 v21, {SY_LDS + 36}
        v_cmp_ne_u32 vcc, v3, v20
        ds_write_b32 v21, v12
        s_waitcnt lgkmcnt(0)
        s_cbranch_vccz L_go
        """)
    a(f"""
    L_poll1:
    buffer_load_dword v20, v18, {rs(R_WS)}, 0 offen sc1
    s_add_u32 s80, s80, 1
    s_cmp_ge_u32 s80, {O.kfast}
    s_cbranch_scc1 L_slow
    s_waitcnt vmcnt(0)
    v_cmp_ne_u32 vcc, v3, v20
    s_cbranch_vccz L_go
    s_sleep {O.sl1}
    s_branch L_poll1
    L_go:
    """)
    stamp(a, "go")
    def hload(s):
        a(f"s_add_u32 m0, s55, {s*4096}")
        a(f"s_add_u32 s57, s{82 if s < 7 else 83}, {s*8192}")
        a(f"buffer_load_dwordx4 v19, {rs(R_WS)}, s57 offen sc1 lds")
    hl = 0
    while hl < O.hlead:
        hload(hl); hl += 1
    state = 0
    for gi, g in enumerate(groups):
        extra = 1 if (state == 1 and g[-1] <= O.pzpos) else 0
        a(f"s_waitcnt vmcnt({hl - 1 - g[-1] + extra})" + (" lgkmcnt(0)" if state == 2 else ""))
        if state == 2:
            state = 3; assert gi <= len(groups) - 2
        a("s_barrier")
        if state == 1 and not extra:
            a(f"""
            v_cmp_ne_u32 vcc, v12, v21
            v_mov_b32 v23, {SY_LDS + 36}
            s_cbranch_vccnz L_pz7
            ds_write_b32 v23, v12
            L_pz7:
            """)
            state = 2
        for _ in range(len(groups[min(gi + 1, len(groups) - 1)])):
            if hl < 14:
                hload(hl); hl += 1
                if hl == O.pzpos + 1 and O.pz3:
                    a(f"buffer_load_dword v21, v22, {rs(R_WS)}, 0 offen sc1"); state = 1
    if O.pz3:
        a(f"""
        s_cmp_lg_u32 s53, 0
        s_cbranch_scc1 L_pz9
        s_mov_b32 s80, 0
        L_pz8:
        s_add_u32 s80, s80, 1
        s_cmp_ge_u32 s80, {SPIN}
        s_waitcnt vmcnt(0)
        v_cmp_ne_u32 vcc, v12, v21
        s_cbranch_scc1 L_pz8_ok
        s_cbranch_vccz L_pz8_ok
        buffer_load_dword v21, v22, {rs(R_WS)}, 0 offen sc1
        s_branch L_pz8
        L_pz8_ok:
        v_mov_b32 v21, {SY_LDS + 36}
        ds_write_b32 v21, v12
        s_waitcnt lgkmcnt(0)
        L_pz9:
        """)
    stamp_flush(a)
    a(f"""
    s_cmp_eq_u32 s90, 0
    s_cbranch_scc1 L_nob
    s_mov_b64 exec, -1
    buffer_load_dword v20, v29, {rs(R_WS)}, 0 offen sc1
    s_waitcnt vmcnt(0)
    v_cmp_ne_u32 vcc, v3, v20
    s_cbranch_vccz L_nob
    """)
    sendb(a)
    a("L_nob:")
    if O.upd == 1:
        a(f"""
        s_lshl_b32 s54, s2, 3
        s_add_u32 s54, s54, s53
        s_cmp_eq_u32 s54, {255*8 + 3}
        s_cbranch_scc0 L_front_end
        v_mov_b32 v3, 0
        v_mov_b32 v4, {EP_OFF}
        s_mov_b64 exec, 1
        global_store_dword v3, v12, s[14:15] sc1
        s_waitcnt vmcnt(0)
        global_store_dword v4, v12, s[16:17] sc1
        L_front_end:
        """)
    a("s_endpgm")
    a("""
    L_slow:
    s_cmp_eq_u32 s90, 0
    s_cbranch_scc1 L_slow_sent
    """)
    sendb(a)
    a(f"""
    s_mov_b32 s90, 0
    L_slow_sent:
    s_movk_i32 s57, 0x1000
    s_mov_b32 s80, 0
    L_slow_poll:
    buffer_load_dword v20, v18, {rs(R_WS)}, 0 offen sc1
    buffer_load_dword v21, v18, {rs(R_WS)}, s57 offen sc1
    s_add_u32 s80, s80, 1
    s_waitcnt vmcnt(0)
    v_cmp_ne_u32 vcc, v3, v20
    s_cbranch_vccz L_go
    v_cmp_ne_u32 vcc, v12, v21
    s_cbranch_vccz L_slow_b
    s_sleep 8
    s_cmp_lt_u32 s80, {SPIN}
    s_cbranch_scc1 L_slow_poll
    L_slow_b:
    s_add_u32 s82, s82, {HB_OFF - HA_OFF}
    s_add_u32 s83, s83, {HB_OFF - HA_OFF}
    s_branch L_go
    """)
    a("L_code_end:")
    return a

def p2_setup(a):
    a(f"""
    s_mov_b64 s[32:33], s[10:11]
    s_mov_b32 s34, {W_B}
    s_mov_b32 s35, 0x20000
    s_mov_b64 s[36:37], s[16:17]
    s_mov_b32 s38, {WS_B}
    s_mov_b32 s39, 0x20000
    s_mov_b64 s[40:41], s[12:13]
    s_mov_b32 s42, {OUT_B}
    s_mov_b32 s43, 0x20000
    s_and_b32 s55, s53, 3
    s_lshl_b32 s55, s55, 10
    s_lshl_b32 s84, s46, 16
    s_sub_u32 s85, 0, s84
    """)
    wd_addr(a)
    a(f"""
    v_lshlrev_b32 v3, 10, v1
    v_lshl_add_u32 v19, v2, 4, v3
    v_lshrrev_b32 v3, 4, v2         ; kg
    v_bfe_u32 v4, v2, 2, 2          ; r
    v_and_b32 v7, 1, v3
    v_lshrrev_b32 v6, 1, v3
    v_lshlrev_b32 v6, 4, v6
    v_lshl_add_u32 v6, v7, 2, v6
    v_add_u32 v6, v6, v4
    v_lshlrev_b32 v6, 7, v6
    v_and_b32 v8, 3, v2
    v_lshl_add_u32 v6, v8, 3, v6
    v_add_u32 v6, {WD_LDS}, v6
    v_lshrrev_b32 v4, 1, v4
    v_lshl_add_u32 v4, v7, 1, v4
    """)
    for t in range(4):
        a(f"v_xor_b32 v7, {t}, v4")
        a(f"v_lshl_add_u32 v{20+t}, v7, 5, v6")
    a(f"""
    v_bfe_u32 v4, v2, 3, 1          ; half
    v_lshl_add_u32 v6, v1, 1, v4    ; owner
    s_lshl_b32 s54, s49, 3
    v_add_u32 v6, s54, v6
    v_lshlrev_b32 v6, 3, v6
    v_add_u32 v6, s48, v6
    v_lshlrev_b32 v6, 10, v6
    v_lshl_add_u32 v6, v3, 7, v6
    v_and_b32 v7, 7, v2             ; r
    v_lshl_add_u32 v6, v7, 4, v6
    v_add_u32 v8, {P_OFF}, v6
    s_cmp_lt_u32 s49, 14
    s_cselect_b32 s57, 14*8, 0
    s_add_u32 s57, s57, s54
    s_lshl_b32 s57, s57, 7
    s_add_u32 s57, s57, {PZ_OFF}
    v_lshl_add_u32 v18, v7, 7, s57
    s_add_u32 s54, s54, s48
    s_lshl_b32 s54, s54, 13
    s_add_u32 s54, s54, {P_OFF}
    v_lshl_add_u32 v9, v7, 10, s54
    v_add_u32 v60, 896, v9
    v_and_b32 v6, 15, v2
    v_lshl_add_u32 v6, v1, 4, v6
    v_lshlrev_b32 v6, 4, v6
    v_lshl_add_u32 v6, v3, 11, v6
    v_add_u32 v6, s54, v6
    s_lshl_b32 s54, s50, 6
    s_lshl_b32 s57, s48, 3
    s_add_u32 s54, s54, s57
    v_add_u32 v7, s54, v7           ; m
    v_lshlrev_b32 v7, 11, v7
    v_lshl_add_u32 v7, v4, 3, v7
    v_and_b32 v4, 1, v1
    v_lshl_add_u32 v7, v4, 4, v7
    v_lshrrev_b32 v4, 1, v1
    v_lshl_add_u32 v7, v4, 6, v7    ; g
    v_and_b32 v4, 1, v3
    v_lshl_add_u32 v7, v4, 2, v7
    v_lshrrev_b32 v4, 1, v3
    v_lshl_add_u32 v7, v4, 5, v7
    s_lshl_b32 s54, s51, 7
    v_add_u32 v7, s54, v7
    """)

def reg1(a):
    a(f"""
    s_mov_b32 s88, {EP_OFF}
    s_load_dword s59, s[16:17], s88
    s_load_dword s87, s[14:15], 0
    {"s_load_dword s87, s[12:13], 0" if O.touchout else ""}
    s_lshl_b32 s88, s48, 7
    s_add_u32 s88, s88, {RG_OFF}
    s_load_dword s87, s[16:17], s88
    s_add_u32 s89, s88, 64
    s_load_dword s87, s[16:17], s89
    """)
def reg2(a):
    a(f"""
    v_mov_b32 v30, 0
    s_lshl_b32 s89, s49, 2
    s_add_u32 s88, s88, s89
    global_load_dword v12, v30, s[14:15] sc1
    s_add_u32 s59, s59, 1
    s_bitset1_b32 s59, 31
    """)
def reg3(a):
    a(f"""
    v_cmp_eq_u32 vcc, 0, v12
    v_mov_b32 v30, s59
    v_mov_b32 v28, {SY_LDS + 32}
    v_cndmask_b32 v12, v12, v30, vcc
    v_mov_b32 v31, s88
    v_xor_b32 v30, s86, v12
    ds_write_b32 v28, v12
    """)
def lds_init(a):
    a(f"""
    v_mov_b32 v16, {SY_LDS}
    v_lshl_add_u32 v14, v1, 2, v16
    v_mov_b32 v15, 0
    ds_write_b32 v14, v15
    ds_write_b32 v14, v15 offset:16
    ds_write_b32 v16, v15 offset:36
    v_mov_b32 v15, -1
    """)
def slowcol(a):
    a("""
    s_add_u32 s54, s48, 3
    s_and_b32 s54, s54, 7
    s_cmp_eq_u32 s54, 7
    s_cselect_b32 s54, 3, s54
    """)
def sm_pre(a):
    slowcol(a)
    a("""
    s_mul_i32 s57, s48, 7
    s_add_u32 s54, s54, s57
    s_lshl_b32 s54, s54, 7
    s_lshr_b32 s57, s49, 1
    s_lshl_b32 s57, s57, 2
    s_and_b32 s58, s53, 3
    s_add_u32 s57, s57, s58
    s_mul_i32 s57, s57, 7168
    s_add_u32 s54, s54, s57
    s_add_u32 s91, s54, 60
    """)
def sm_post(a):
    a("""
    s_bitcmp1_b32 s49, 0
    s_cselect_b64 s[92:93], s[8:9], s[6:7]
    s_add_u32 s92, s92, s91
    s_addc_u32 s93, s93, 0
    """)
def sm(a, c):
    a(f"s_mov_b32 s58, {c*458752}")
    a("s_load_dwordx2 s[94:95], s[92:93], s58")
def sendb(a):
    a(f"""
    s_mov_b32 s57, {HB_OFF - HA_OFF}
    s_movk_i32 s58, 0x1000
    buffer_store_dwordx4 v[4:7], v14, {rs(R_WS)}, s57 offen sc1
    buffer_store_dwordx4 v[8:11], v14, {rs(R_WS)}, s57 offen offset:2048 sc1
    s_waitcnt vmcnt(0)
    buffer_store_dword v12, v15, {rs(R_WS)}, s58 offen sc1
    """)
def hpf(a):
    a(f"""
    s_mul_i32 s54, s52, {64 if O.h64 else 50}
    v_min_u32 v3, {63 if O.h64 else 49}, v2
    v_add_u32 v3, s54, v3
    v_min_u32 v3, 895, v3
    s_mul_i32 s54, s48, 114688
    s_add_u32 s54, s54, {HA_OFF}
    v_lshl_add_u32 v3, v3, 7, s54
    global_load_dword v24, v3, s[16:17]
    """)
def poison(a):
    a(f"""
    s_lshl_b32 s54, s49, 3
    s_add_u32 s54, s54, s48
    s_lshl_b32 s54, s54, 13
    s_add_u32 s54, s54, {P_OFF}
    v_lshl_add_u32 v3, v2, 4, s54
    v_add_u32 v8, 0x1000, v3
    s_cmp_lt_u32 s52, 14
    s_cselect_b32 s54, {14*8*8192}, 0
    v_subrev_u32 v9, s54, v3
    v_subrev_u32 v14, s54, v8
    v_mov_b32 v4, -1
    v_mov_b32 v5, -1
    v_mov_b32 v6, -1
    v_mov_b32 v7, -1
    """)
    for k in range(8):
        a(f"global_store_dwordx4 v{3 if k < 4 else 8}, v[4:7], s[16:17] offset:{(k % 4)*1024} sc1")
    a("s_cbranch_scc0 L_pz_one")
    for k in range(8):
        a(f"global_store_dwordx4 v{9 if k < 4 else 14}, v[4:7], s[16:17] offset:{(k % 4)*1024} sc1")
    a("L_pz_one:")
def pf_role(a, tag):
    a(f"""
    s_mov_b32 s50, 1                ; mh2
    s_cmp_ge_u32 s52, 3
    s_addc_u32 s51, s52, 0
    s_cmp_ge_u32 s52, 10
    s_addc_u32 s51, s51, 0          ; nt
    s_mov_b32 s46, 0                ; rot
    s_cmp_ge_u32 s52, 14
    s_cbranch_scc0 L_pf_role_{tag}
    s_and_b32 s50, s52, 1
    s_mul_i32 s46, s50, 7
    s_cmp_ge_u32 s52, 16
    s_cselect_b32 s51, 11, 3
    L_pf_role_{tag}:
    """)
def p1_role(a):
    a(f"""
    s_mov_b32 s50, 0                ; mh2
    s_cmp_ge_u32 s49, 3
    s_addc_u32 s51, s49, 0
    s_cmp_ge_u32 s49, 10
    s_addc_u32 s51, s51, 0          ; nt
    s_mov_b32 s46, {O.p1rot}
    """)
def front_setup(a):
    a(f"""
    s_getreg_b32 s86, hwreg(HW_REG_XCC_ID, 0, 4)
    s_lshl_b32 s86, s86, 24
    s_lshl_b32 s55, s53, 10
    s_lshl_b32 s82, s46, 13
    s_sub_u32 s83, 0, s82
    s_mul_i32 s54, s48, 112
    s_lshl_b32 s57, s50, 2
    s_add_u32 s54, s54, s57
    v_add_u32 v6, s54, v1
    v_lshlrev_b32 v6, 10, v6
    v_lshl_add_u32 v19, v2, 4, v6
    v_add_u32 v19, {HA_OFF}, v19
    s_lshl_b32 s54, s48, 1
    s_add_u32 s54, s54, s50
    s_lshl_b32 s54, s54, 7
    s_add_u32 s54, s54, {FA_OFF}
    v_min_u32 v6, 27, v2
    v_lshl_add_u32 v18, v6, 2, s54
    s_lshl_b32 s54, s48, 7
    s_add_u32 s54, s54, {RG_OFF}
    v_and_b32 v6, 31, v2
    v_lshl_add_u32 v29, v6, 2, s54
    v_and_b32 v7, 1, v6
    v_lshlrev_b32 v7, 7, v7
    v_lshrrev_b32 v8, 1, v6
    v_lshl_add_u32 v7, v8, 4, v7
    v_cmp_gt_u32 vcc, 14, v6
    s_lshl_b32 s54, s48, 8
    s_add_u32 s54, s54, {FA_OFF}
    v_add_u32 v7, s54, v7
    v_cndmask_b32 v29, v29, v7, vcc
    s_cmp_lt_u32 s49, 14
    s_cselect_b32 s54, 14, 0
    s_add_u32 s54, s54, s49
    s_lshl_b32 s54, s54, 10
    s_add_u32 s91, s54, {PZ_OFF}
    s_mov_b32 s38, {WS_B}
    s_mov_b32 s39, 0x20000
    s_waitcnt lgkmcnt(0)
    s_mov_b64 s[36:37], s[16:17]
    """)

def wd_addr(a):
    a(f"""
    v_lshrrev_b32 v3, 3, v2         ; r
    v_and_b32 v4, 7, v2             ; p
    v_and_b32 v6, 6, v3
    v_xor_b32 v4, v4, v6
    v_lshl_add_u32 v3, v1, 3, v3    ; 8w + r
    s_mul_i32 s54, s48, 448
    v_add_u32 v3, s54, v3
    v_lshlrev_b32 v3, 11, v3
    s_lshl_b32 s54, s51, 7
    v_add_u32 v3, s54, v3
    v_lshl_add_u32 v17, v4, 4, v3
    """)
def wd_list(steps, early=False):
    out = []
    for s in steps:
        if early:
            out.append(f"s_add_u32 m0, s55, {WD_LDS + s*4096}\ns_mov_b32 s57, {((s + O.p1rot) % 14)*65536}\nbuffer_load_dwordx4 v17, {rs(R_D)}, s57 offen lds")
            continue
        d = f"s_add_u32 m0, s55, {WD_LDS + s*4096}\ns_add_u32 s57, s{84 if s < 7 else 85}, {s*65536}\nbuffer_load_dwordx4 v17, {rs(R_D)}, s57 offen lds"
        out.append(d)
    return out

if __name__ == "__main__":
    opts(sys.argv[2:])
    if O.two: O.pzc = O.hpf = 99
    a = gen()
    hdr = HEADER + f"; @launch grid=(256,1,1) block=(512,1,1) lds={LDS}\n.amdgcn_target \"amdgcn-amd-amdhsa--gfx950\"\n"
    open(sys.argv[1], "w").write(hdr + a.text() + kdesc(KN, NV + NA, NV))
```

```python
from mb_common import *
import sys
def enc(si, op, lo, hi, D0=3000, A=4):
    name = "enc_kernel"
    a = Asm(); kstart(a, name)
    prolog(a, 1, "L_end_enc")
    a("s_waitcnt lgkmcnt(0)")
    srd(a, R_WS, S_WS, WS_B)
    n = hi - lo
    a(f"""
    v_lshlrev_b32 v1, 5, v0
    v_add_u32 v2, {ST_OFF + si*4}, v1
    v_add_u32 v1, {ST_OFF}, v1
    buffer_load_dword v3, v1, s[{R_WS}:{R_WS+3}], 0 offen
    buffer_load_dword v4, v2, s[{R_WS}:{R_WS+3}], 0 offen
    v_mov_b32 v5, 0
    v_mov_b32 v6, -1
    v_mov_b32 v7, {-1 if op == 'min' else 0}
    ds_write_b32 v5, v6
    ds_write_b32 v5, v7 offset:4
    s_waitcnt vmcnt(0) lgkmcnt(0)
    s_barrier
    ds_min_u32 v5, v3
    s_waitcnt lgkmcnt(0)
    s_barrier
    ds_read_b32 v8, v5
    s_waitcnt lgkmcnt(0)
    v_sub_u32 v4, v4, v8
    v_cmp_gt_u32 vcc, {hi}, v0
    s_nop 1
    v_cndmask_b32 v4, v7, v4, vcc
    v_cmp_le_u32 vcc, {lo}, v0
    s_nop 1
    v_cndmask_b32 v4, v7, v4, vcc
    ds_{'add' if op == 'avg' else op}_u32 v5, v4 offset:4
    s_waitcnt lgkmcnt(0)
    s_barrier
    ds_read_b64 v[8:9], v5
    s_waitcnt lgkmcnt(0)
    v_readfirstlane_b32 s50, v8
    v_readfirstlane_b32 s51, v9
    s_nop 3
    s_mul_i32 s51, s51, {round(A * 4096 / (n if op == 'avg' else 1))}
    s_lshr_b32 s51, s51, 12
    s_min_u32 s51, s51, 8000
    s_add_u32 s51, s51, {D0}
    L_spin:
    s_memrealtime s[52:53]
    s_waitcnt lgkmcnt(0)
    s_sub_u32 s54, s52, s50
    s_cmp_gt_u32 s54, 20000
    s_cbranch_scc1 L_end_enc
    s_cmp_lt_u32 s54, s51
    s_cbranch_scc1 L_spin
    L_end_enc:
    s_endpgm
    """)
    return a.text(), kdesc(name, 128, 128), f"; @launch kernel={name} grid=(1,1,1) block=(256,1,1) lds=64\n"
def mk(src, fn, **kw):
    s = open(src).read()
    code, desc, l = enc(**kw)
    lines = s.split("\n")
    idx = max(i for i, x in enumerate(lines) if x.startswith("; @launch"))
    for i, x in enumerate(lines):
        if x.startswith("; @launch grid"):
            lines[i] = x.replace("; @launch grid", f"; @launch kernel={KN} grid")
    lines.insert(idx+1, l.strip())
    s = "\n".join(lines)
    s = s.replace('.section .rodata,"a"', code + '.section .rodata,"a"', 1) + desc
    open(fn, 'w').write(s)
if __name__ == "__main__":
    out = []
    for spec in sys.argv[1:]:
        src, si, op, lo, hi = spec.split(":")
        fn = src[:-2] + f"_e{si}{op}{lo}.s"
        mk(src, fn, si=int(si), op=op, lo=int(lo), hi=int(hi))
        out.append("work/" + fn)
    print(str(out).replace("'", '"'))
```

```python
import os, sys
from asmlib import *

KN = "standalone__swiglu_ffn__sampling_kernel"
X_B, W_B, OUT_B, WS_B = 128*1024*2, 1024*3584*2, 128*1024*2, 268435456
FA_OFF = 0
FB_OFF = FA_OFF + 4096
EP_OFF = FA_OFF + 8192
RG_OFF = FA_OFF + 12288
PZ_OFF = FA_OFF + 16384
HA_OFF = 65536
P_OFF = 1 << 20
HB_OFF = (3 << 20) + HA_OFF
ST_OFF = 8 << 20
R_X, R_G, R_U, R_D, R_WS, R_OUT = 20, 24, 28, 32, 36, 40
WD_LDS = 98304
SY_LDS = WD_LDS + 57344
LDS = SY_LDS + 64
SPIN = int(os.environ.get("DIAG_SPIN", 1 << 18))
NV, NA = 96, 160

class O:
    stamp = 0; sync = 1; sw = 4; endwait = 1
    kfast = 64; sl1 = 1; sl2 = 0
    xg = 4; xlead = 2; r2 = 6; r3 = 11; hold = 2; wdk = 3; touch = 1; npf0 = 3
    wd13 = 0; wd14 = 5; hlead = 5; fine = 3
    NP = 8; N1 = 8; cap = 5; slk = 1
    fdef = 14; bdef = 1; n2 = 2; n3 = 6
PTS = {}
def opts(argv):
    for x in argv:
        k, v = x.split("=")
        if k == "pts":
            PTS.clear(); PTS["start"] = 0
            for i, nm in enumerate(v.split(",")): PTS[nm] = i + 1
            O.stamp = 1
        else:
            assert hasattr(O, k), k
            setattr(O, k, int(v))
def rs(r): return f"s[{r}:{r+3}]"
def stamp(a, name):
    if O.stamp and name in PTS:
        idx = PTS[name]
        a(f"s_memrealtime s[{64+2*idx}:{65+2*idx}]")
_fl = [0]
def stamp_flush(a):
    if not O.stamp: return
    _fl[0] += 1
    L = f"L_sf{_fl[0]}"
    a(f"""
    s_memrealtime s[78:79]
    s_cmp_lg_u32 s53, {O.sw}
    s_cbranch_scc1 {L}
    s_waitcnt lgkmcnt(0)
    """)
    for i in range(8):
        a(f"v_mov_b32 v{80+i}, s{64+2*i}")
    a(f"""
    s_lshl_b32 s63, s2, 5
    s_add_u32 s63, s63, {ST_OFF}
    v_mov_b32 v88, s63
    s_mov_b64 exec, 1
    buffer_store_dwordx4 v[80:83], v88, {rs(R_WS)}, 0 offen
    buffer_store_dwordx4 v[84:87], v88, {rs(R_WS)}, 0 offen offset:16
    s_mov_b64 exec, -1
    {L}:
    """)
def lines(txt):
    return [x.strip() for x in txt.split("\n") if x.strip()]

def pf_role(a, tag):
    a(f"""
    s_mov_b32 s50, 1
    s_cmp_ge_u32 s52, 3
    s_addc_u32 s51, s52, 0
    s_cmp_ge_u32 s52, 10
    s_addc_u32 s51, s51, 0
    s_mov_b32 s46, 0
    s_cmp_ge_u32 s52, 14
    s_cbranch_scc0 L_pf_role_{tag}
    s_and_b32 s50, s52, 1
    s_mul_i32 s46, s50, 7
    s_cmp_ge_u32 s52, 16
    s_cselect_b32 s51, 11, 3
    L_pf_role_{tag}:
    """)
P1_ROLE = """
    s_mov_b32 s50, 0
    s_cmp_ge_u32 s49, 3
    s_addc_u32 s51, s49, 0
    s_cmp_ge_u32 s49, 10
    s_addc_u32 s51, s51, 0
    s_mov_b32 s46, 0
"""
FRONT_SETUP = f"""
    s_getreg_b32 s86, hwreg(HW_REG_XCC_ID, 0, 4)
    s_lshl_b32 s86, s86, 24
    s_lshl_b32 s55, s53, 10
    s_lshl_b32 s82, s46, 13
    s_sub_u32 s83, 0, s82
    s_mul_i32 s54, s48, 112
    s_lshl_b32 s57, s50, 2
    s_add_u32 s54, s54, s57
    v_add_u32 v6, s54, v1
    v_lshlrev_b32 v6, 10, v6
    v_lshl_add_u32 v19, v2, 4, v6
    v_add_u32 v19, {HA_OFF}, v19
    s_lshl_b32 s54, s48, 1
    s_add_u32 s54, s54, s50
    s_lshl_b32 s54, s54, 7
    s_add_u32 s54, s54, {FA_OFF}
    v_min_u32 v6, 27, v2
    v_lshl_add_u32 v18, v6, 2, s54
    s_lshl_b32 s54, s48, 7
    s_add_u32 s54, s54, {RG_OFF}
    v_and_b32 v6, 31, v2
    v_lshl_add_u32 v29, v6, 2, s54
    v_and_b32 v7, 1, v6
    v_lshlrev_b32 v7, 7, v7
    v_lshrrev_b32 v8, 1, v6
    v_lshl_add_u32 v7, v8, 4, v7
    v_cmp_gt_u32 vcc, 14, v6
    s_lshl_b32 s54, s48, 8
    s_add_u32 s54, s54, {FA_OFF}
    v_add_u32 v7, s54, v7
    v_cndmask_b32 v29, v29, v7, vcc
    s_cmp_lt_u32 s49, 14
    s_cselect_b32 s54, 14, 0
    s_add_u32 s54, s54, s49
    s_lshl_b32 s54, s54, 10
    s_add_u32 s91, s54, {PZ_OFF}
    s_mov_b32 s38, {WS_B}
    s_mov_b32 s39, 0x20000
    s_mov_b64 s[36:37], s[16:17]
"""
def back_setup():
    p = [f"""
    s_mov_b64 s[32:33], s[10:11]
    s_mov_b32 s34, {W_B}
    s_mov_b32 s35, 0x20000
    s_mov_b64 s[36:37], s[16:17]
    s_mov_b32 s38, {WS_B}
    s_mov_b32 s39, 0x20000
    s_mov_b64 s[40:41], s[12:13]
    s_mov_b32 s42, {OUT_B}
    s_mov_b32 s43, 0x20000
    s_and_b32 s55, s53, 3
    s_lshl_b32 s55, s55, 10
    s_lshl_b32 s84, s46, 16
    s_sub_u32 s85, 0, s84
    """, f"""
    v_lshrrev_b32 v3, 3, v2
    v_and_b32 v4, 7, v2
    v_and_b32 v6, 6, v3
    v_xor_b32 v4, v4, v6
    v_lshl_add_u32 v3, v1, 3, v3
    s_mul_i32 s60, s48, 448
    v_add_u32 v3, s60, v3
    v_lshlrev_b32 v3, 11, v3
    s_lshl_b32 s60, s51, 7
    v_add_u32 v3, s60, v3
    v_lshl_add_u32 v17, v4, 4, v3
    v_lshlrev_b32 v3, 10, v1
    v_lshl_add_u32 v19, v2, 4, v3
    """, f"""
    v_lshrrev_b32 v3, 4, v2
    v_bfe_u32 v4, v2, 2, 2
    v_and_b32 v7, 1, v3
    v_lshrrev_b32 v6, 1, v3
    v_lshlrev_b32 v6, 4, v6
    v_lshl_add_u32 v6, v7, 2, v6
    v_add_u32 v6, v6, v4
    v_lshlrev_b32 v6, 7, v6
    v_and_b32 v8, 3, v2
    v_lshl_add_u32 v6, v8, 3, v6
    v_add_u32 v6, {WD_LDS}, v6
    v_lshrrev_b32 v4, 1, v4
    v_lshl_add_u32 v4, v7, 1, v4
    """, "\n".join(f"v_xor_b32 v7, {t}, v4\nv_lshl_add_u32 v{20+t}, v7, 5, v6" for t in range(4)), f"""
    v_bfe_u32 v4, v2, 3, 1
    v_lshl_add_u32 v6, v1, 1, v4
    s_lshl_b32 s60, s49, 3
    v_add_u32 v6, s60, v6
    v_lshlrev_b32 v6, 3, v6
    v_add_u32 v6, s48, v6
    v_lshlrev_b32 v6, 10, v6
    v_lshl_add_u32 v6, v3, 7, v6
    v_and_b32 v7, 7, v2
    v_lshl_add_u32 v6, v7, 4, v6
    v_add_u32 v8, {P_OFF}, v6
    """, f"""
    s_cmp_lt_u32 s49, 14
    s_cselect_b32 s61, 14*8, 0
    s_add_u32 s61, s61, s60
    s_lshl_b32 s61, s61, 7
    s_add_u32 s61, s61, {PZ_OFF}
    v_lshl_add_u32 v18, v7, 7, s61
    s_add_u32 s60, s60, s48
    s_lshl_b32 s60, s60, 13
    s_add_u32 s60, s60, {P_OFF}
    v_and_b32 v6, 15, v2
    v_lshl_add_u32 v6, v1, 4, v6
    v_lshlrev_b32 v6, 4, v6
    v_lshl_add_u32 v6, v3, 11, v6
    v_add_u32 v6, s60, v6
    """, f"""
    s_lshl_b32 s60, s50, 6
    s_lshl_b32 s61, s48, 3
    s_add_u32 s60, s60, s61
    v_add_u32 v7, s60, v7
    v_lshlrev_b32 v7, 11, v7
    v_lshl_add_u32 v7, v4, 3, v7
    v_and_b32 v4, 1, v1
    v_lshl_add_u32 v7, v4, 4, v7
    v_lshrrev_b32 v4, 1, v1
    v_lshl_add_u32 v7, v4, 6, v7
    v_and_b32 v4, 1, v3
    v_lshl_add_u32 v7, v4, 2, v7
    v_lshrrev_b32 v4, 1, v3
    v_lshl_add_u32 v7, v4, 5, v7
    s_lshl_b32 s60, s51, 7
    v_add_u32 v7, s60, v7
    """]
    return p
LDS_INIT = f"""
    v_mov_b32 v16, {SY_LDS}
    v_lshl_add_u32 v14, v1, 2, v16
    v_mov_b32 v9, 0
    ds_write_b32 v14, v9
    ds_write_b32 v14, v9 offset:16
    ds_write_b32 v16, v9 offset:36
    v_mov_b32 v15, -1
"""
def nonce1(a, line):
    a(f"""
    s_movk_i32 s88, {EP_OFF}
    s_load_dword s59, s[16:17], s88
    s_load_dword s87, s[14:15], 0
    """)
    if line:
        a(f"""
        s_lshl_b32 s88, s48, 7
        s_add_u32 s88, s88, {RG_OFF}
        s_load_dword s87, s[16:17], s88
        s_add_u32 s89, s88, 64
        s_load_dword s87, s[16:17], s89
        """)
def nonce2(a, vn):
    a(f"""
    v_mov_b32 v30, 0
    s_add_u32 s59, s59, 1
    s_bitset1_b32 s59, 31
    global_load_dword v{vn}, v30, s[14:15] sc1
    """)
def nonce3(a, vn):
    a(f"""
    v_cmp_eq_u32 vcc, 0, v{vn}
    v_mov_b32 v30, s59
    v_mov_b32 v28, {SY_LDS + 32}
    v_cndmask_b32 v{vn}, v{vn}, v30, vcc
    ds_write_b32 v28, v{vn}
    """)
def wd_list():
    return [f"s_add_u32 m0, s55, {WD_LDS + s*4096}\ns_add_u32 s57, s{84 if s < 7 else 85}, {s*65536}\nbuffer_load_dwordx4 v17, {rs(R_D)}, s57 offen lds" for s in range(14)]
def sendb(a):
    a(f"""
    s_mov_b32 s57, {HB_OFF - HA_OFF}
    s_movk_i32 s58, {FB_OFF - FA_OFF}
    buffer_store_dwordx4 v[4:7], v14, {rs(R_WS)}, s57 offen sc1
    buffer_store_dwordx4 v[8:11], v14, {rs(R_WS)}, s57 offen offset:2048 sc1
    s_waitcnt vmcnt(0)
    buffer_store_dword v12, v15, {rs(R_WS)}, s58 offen sc1
    """)

def gen():
    a = Asm()
    kstart(a, KN)
    if O.stamp and O.sync:
        a("""
        s_memrealtime s[44:45]
        s_waitcnt lgkmcnt(0)
        s_add_u32 s46, s44, 612
        s_and_b32 s46, s46, 0xfffffe00
        L_sync:
        s_memrealtime s[44:45]
        s_waitcnt lgkmcnt(0)
        s_sub_u32 s47, s44, s46
        s_cmp_lt_i32 s47, 0
        s_cbranch_scc1 L_sync
        """)
    stamp(a, "start")
    a(f"""
    s_load_dwordx8 s[4:11], s[0:1], 0
    s_load_dwordx4 s[12:15], s[0:1], 32
    s_load_dwordx2 s[16:17], s[0:1], 48
    v_lshrrev_b32 v1, 6, v0         ; wave
    s_cmp_ge_u32 s2, 256
    s_cbranch_scc1 L_end
    v_readfirstlane_b32 s53, v1
    s_and_b32 s48, s2, 7            ; j
    s_lshr_b32 s49, s2, 3           ; q
    v_and_b32 v2, 63, v0            ; lane
    s_mov_b32 s22, {X_B}
    s_mov_b32 s23, 0x20000
    s_mov_b32 s26, {W_B}
    s_mov_b32 s27, 0x20000
    s_cmp_lt_u32 s49, 14
    s_cbranch_scc1 L_p1
    s_sub_u32 s52, s49, 14          ; p
    s_cmp_lg_u32 s53, 0
    s_cbranch_scc1 L_pf_other
    """)
    a.c("prefetch wave: per 64-row chunk 50 lines of Wg (odd p) or Wu (even p), and 8 rows of x")
    a(f"""
    s_lshr_b32 s54, s52, 1
    s_mul_i32 s54, s54, 50
    v_add_u32 v3, s54, v2
    v_mul_u32_u24 v5, 9363, v3
    v_lshrrev_b32 v5, 16, v5        ; row = i / 7
    v_mul_u32_u24 v6, 7, v5
    v_sub_u32 v6, v3, v6            ; column = i % 7
    v_mul_u32_u24 v5, 7168, v5
    v_lshl_add_u32 v5, v6, 7, v5
    s_mul_i32 s54, s48, 896
    v_add_u32 v5, s54, v5
    v_cmp_gt_u32 vcc, 50, v2
    s_movk_i32 s54, 448
    v_cmp_gt_u32 s[44:45], s54, v3
    v_bfrev_b32 v7, 2
    s_lshl_b32 s54, s52, 3
    s_and_b64 vcc, vcc, s[44:45]
    v_lshrrev_b32 v3, {O.xg.bit_length() - 1}, v2
    v_add_u32 v3, s54, v3
    v_lshlrev_b32 v6, 11, v3
    v_and_b32 v3, {O.xg - 1}, v2
    v_lshl_add_u32 v6, v3, 7, v6
    v_cndmask_b32 v10, v7, v5, vcc
    v_cmp_gt_u32 vcc, {8 * O.xg}, v2
    s_bitcmp1_b32 s52, 0
    s_nop 0
    v_cndmask_b32 v11, v7, v6, vcc
    s_waitcnt lgkmcnt(0)
    s_cselect_b64 s[24:25], s[6:7], s[8:9]
    s_mov_b64 s[20:21], s[4:5]
    """)
    stamp(a, "karg")
    npf = [0]
    def pf(c):
        for g_ in range(16 // O.xg):
            if max(0, g_ * O.xg - O.xlead) == c:
                so = "0"
                if g_:
                    a(f"s_movk_i32 s58, {g_ * O.xg * 128}"); so = "s58"
                a(f"buffer_load_dword v22, v11, {rs(R_X)}, {so} offen"); npf[0] += 1
        so = "0"
        if c:
            a(f"s_mov_b32 s57, {c*64*7168}"); so = "s57"
        a(f"buffer_load_dword v20, v10, {rs(R_G)}, {so} offen"); npf[0] += 1
    for c in range(O.npf0): pf(c)
    a("s_branch L_pf_go_on")
    a(f"""
    L_p1:
    s_and_b32 s47, s49, 1
    s_lshr_b32 s52, s49, 1
    s_mul_i32 s54, s48, 7
    s_add_u32 s52, s52, s54
    s_cmp_lt_u32 s53, 4
    s_cbranch_scc1 L_front
    v_and_b32 v1, 3, v1
    s_lshl_b32 s54, s52, 7
    v_lshrrev_b32 v3, 3, v2
    v_and_b32 v4, 7, v2
    v_lshl_add_u32 v5, v1, 4, v3
    v_mul_u32_u24 v6, 7168, v5
    v_add_u32 v6, s54, v6
    v_and_b32 v7, 2, v3
    v_xor_b32 v7, v7, v4
    v_lshl_add_u32 v10, v7, 4, v6
    v_xor_b32 v11, 64, v10
    v_lshrrev_b32 v7, 1, v3
    v_xor_b32 v7, v7, v4
    s_lshl_b32 s54, s47, 6
    v_add_u32 v5, s54, v5
    v_lshlrev_b32 v5, 11, v5
    v_lshl_add_u32 v12, v7, 4, v5
    v_xor_b32 v13, 64, v12
    v_add_u32 v13, 0x4000, v13
    s_and_b32 s56, s53, 3
    s_lshl_b32 s56, s56, 11
    s_mov_b32 s30, {W_B}
    s_mov_b32 s31, 0x20000
    """)
    a(LDS_INIT)
    a("""
    s_waitcnt lgkmcnt(0)
    s_mov_b64 s[20:21], s[4:5]
    s_mov_b64 s[24:25], s[6:7]
    s_mov_b64 s[28:29], s[8:9]
    """)
    stamp(a, "karg")
    Q = []
    def dma(c):
        sl = (c % 4) * 24576
        for k, (v, r, so) in enumerate([(12, R_X, c*128), (13, R_X, c*128), (10, R_G, c*458752), (10, R_G, c*458752+57344), (11, R_U, c*458752), (11, R_U, c*458752+57344)]):
            a(f"s_add_u32 m0, s56, {sl + (k//2)*8192 + (k%2)*1024}\ns_mov_b32 s57, {so}\nbuffer_load_dwordx4 v{v}, {rs(r)}, s57 offen lds")
            Q.append(c)
    dma(0)
    stamp(a, "d0")
    a("s_branch L_back_go_on")
    a("L_front:")
    stamp(a, "fin")
    a(f"""
    v_bfe_u32 v4, v2, 4, 1
    v_lshrrev_b32 v5, 5, v2         ; k half
    v_bfe_u32 v6, v2, 2, 2
    v_lshrrev_b32 v7, 1, v6
    v_lshl_add_u32 v7, v4, 1, v7
    v_xor_b32 v7, v7, v1
    v_lshl_add_u32 v6, v5, 3, v6
    v_lshlrev_b32 v6, 7, v6
    v_lshl_add_u32 v6, v7, 5, v6
    v_lshl_add_u32 v6, v4, 13, v6
    v_and_b32 v7, 3, v2
    v_lshl_add_u32 v6, v7, 3, v6
    v_add_u32 v16, 0x2000, v6
    v_and_b32 v6, 31, v2
    v_bfe_u32 v7, v6, 1, 3
    v_xor_b32 v7, v7, v5
    v_lshlrev_b32 v6, 7, v6
    """)
    for s in range(4):
        a(f"v_xor_b32 v8, {2*s}, v7")
        a(f"v_lshl_add_u32 v{20+s}, v8, 4, v6")
    a("s_branch L_front_go_on")

    a("L_pf_go_on:")
    a.c("the two lightest prefetchers bring the kernel's code into this die's L2")
    a(f"""
    s_cmp_lt_u32 s52, 16
    s_cbranch_scc1 L_nocp
    s_getpc_b64 s[44:45]
    L_pc:
    s_sub_u32 s44, s44, L_pc-{KN}
    s_subb_u32 s45, s45, 0
    s_and_b32 s54, s52, 1
    s_lshl_b32 s54, s54, 6
    v_add_u32 v3, s54, v2
    v_min_u32 v3, (L_code_end-{KN}-4)/128, v3
    v_lshlrev_b32 v3, 7, v3
    global_load_dword v23, v3, s[44:45]
    L_nocp:
    """)
    if O.touch:
        a.c("one first touch per workgroup, so that the address translations are there when they are needed")
        a("""
        s_cmp_lt_u32 s52, 14
        s_cselect_b64 s[44:45], s[16:17], s[12:13]
        s_cmp_lt_u32 s52, 12
        s_cselect_b64 s[44:45], s[10:11], s[44:45]
        s_cmp_lt_u32 s52, 8
        s_cselect_b64 s[44:45], s[8:9], s[44:45]
        s_cmp_lt_u32 s52, 4
        s_cselect_b64 s[44:45], s[6:7], s[44:45]
        s_and_b32 s54, s52, 3
        s_lshl_b32 s54, s54, 21
        s_cmp_lt_u32 s52, 14
        s_cselect_b32 s54, s54, 0
        s_load_dword s87, s[44:45], s54
        """)
    nonce1(a, True)
    for c in range(O.npf0, 16):
        if c == O.r2:
            a("""
            s_getreg_b32 s86, hwreg(HW_REG_XCC_ID, 0, 4)
            s_lshl_b32 s86, s86, 24
            s_lshl_b32 s89, s49, 2
            s_add_u32 s88, s88, s89
            v_mov_b32 v31, s88
            s_waitcnt lgkmcnt(0)
            """)
            nonce2(a, 12); mark = npf[0]
        if c == O.r3:
            a(f"s_waitcnt vmcnt({npf[0] - mark})")
            nonce3(a, 12)
            a("v_xor_b32 v30, s86, v12")
            stamp(a, "non")
        pf(c)
    stamp(a, "hia")
    if O.hold >= 0: a(f"s_waitcnt vmcnt({O.hold})")
    stamp(a, "hib")
    a.c("announce this workgroup's die; fill its inbox and that of the paired producer with the not-yet-written pattern;")
    a.c("bring the lines of the h buffer into L2 before they are written")
    a(f"""
    global_store_dword v31, v30, s[16:17]
    s_lshl_b32 s54, s49, 3
    s_add_u32 s54, s54, s48
    s_lshl_b32 s57, s54, 13
    s_add_u32 s57, s57, {P_OFF}
    v_lshl_add_u32 v3, v2, 4, s57
    v_add_u32 v8, 0x1000, v3
    s_lshl_b32 s54, s54, 7
    s_add_u32 s54, s54, {PZ_OFF}
    v_mov_b32 v13, s54
    v_mov_b32 v4, -1
    v_mov_b32 v5, -1
    v_mov_b32 v6, -1
    v_mov_b32 v7, -1
    s_cmp_lt_u32 s52, 14
    """)
    for k in range(8):
        a(f"global_store_dwordx4 v{3 if k < 4 else 8}, v[4:7], s[16:17] offset:{(k % 4)*1024} sc1")
    a(f"""
    s_cbranch_scc0 L_pz_one
    v_subrev_u32 v3, {14*8*8192}, v3
    v_subrev_u32 v8, {14*8*8192}, v8
    """)
    for k in range(8):
        a(f"global_store_dwordx4 v{3 if k < 4 else 8}, v[4:7], s[16:17] offset:{(k % 4)*1024} sc1")
    a(f"""
    L_pz_one:
    s_lshl_b32 s54, s52, 6
    v_add_u32 v3, s54, v2
    v_min_u32 v3, 895, v3
    s_mul_i32 s54, s48, 114688
    s_add_u32 s54, s54, {HA_OFF}
    v_lshl_add_u32 v3, v3, 7, s54
    global_load_dword v24, v3, s[16:17]
    s_waitcnt lgkmcnt(0)
    s_barrier
    s_waitcnt vmcnt(1)
    global_store_dword v13, v12, s[16:17] sc1
    s_barrier
    """)
    stamp(a, "pfi")
    a("s_branch L_pf_front")
    a(f"""
    L_pf_other:
    s_cmp_ge_u32 s53, 4
    s_cbranch_scc1 L_back_pf
    s_waitcnt lgkmcnt(0)
    s_barrier
    s_barrier
    L_pf_front:
    """)
    pf_role(a, "f")
    a(FRONT_SETUP)
    a(f"""
    v_mov_b32 v5, {SY_LDS + 32}
    ds_read_b32 v12, v5
    s_mov_b32 s90, 0
    v_bfrev_b32 v14, 2
    v_bfrev_b32 v15, 2
    s_waitcnt lgkmcnt(0)
    v_xor_b32 v3, s86, v12
    s_barrier
    s_branch L_hload
    L_back_pf:
    v_and_b32 v1, 3, v1
    """)
    a(LDS_INIT)
    pf_role(a, "b")
    a("s_waitcnt lgkmcnt(0)")
    for p in back_setup(): a(p)
    a("s_barrier")
    wdl = wd_list()
    for i, d in enumerate(wdl):
        if i == O.wdk: a("s_barrier")
        a(d)
    a("ds_read_b32 v5, v16 offset:32")
    a("s_branch L_p2")

    a("L_back_go_on:")
    dma(1)
    stamp(a, "d1")
    nonce1(a, False)
    a(P1_ROLE)
    pieces = back_setup()
    if not O.bdef:
        for p in pieces: a(p)
        pieces = []
    dma(2)
    issued, wd = 3, 0
    for c in range(16):
        stamp(a, f"w{c}")
        a(f"s_waitcnt vmcnt({len(Q) - 1 - max(i for i, t in enumerate(Q) if t == c)})" + (" lgkmcnt(0)" if c == O.n3 + 2 else ""))
        stamp(a, f"v{c}")
        a("s_barrier")
        stamp(a, f"c{c}")
        if c == O.n3:
            assert Q.index("n") < max(i for i, t in enumerate(Q) if t == c)
            nonce3(a, 5)
        if issued < 16:
            dma(issued); issued += 1
        else:
            n = min({13: O.wd13, 14: O.wd14, 15: 14}[c], 14 - wd)
            for d in wdl[wd:wd+n]:
                a(d); Q.append("d")
            wd += n
        if c == O.n2:
            a("s_waitcnt lgkmcnt(0)")
            nonce2(a, 5); Q.append("n")
        elif pieces and c >= O.bdef: a(pieces.pop(0))
    assert not pieces
    a("L_p2:")
    stamp(a, "p2in")
    def areg(slot, t, n, o=0):
        base = (slot*4 + t) * 4 + o
        return ar(base, n) if slot < 10 else vr(64 + base - 160, n)
    def areads(s, slot):
        out = []
        for t in range(4):
            out.append(f"ds_read_b64_tr_b16 {areg(slot, t, 2)}, v{20+t} offset:{s*4096}")
            out.append(f"ds_read_b64_tr_b16 {areg(slot, t, 2, 2)}, v{20+t} offset:{s*4096+1024}")
        return out
    def lsync(k):
        a(f"""
        ds_write_b32 v14, v15 offset:{16*k}
        L_sy{k}:
        ds_read_b128 v[40:43], v16 offset:{16*k}
        s_waitcnt lgkmcnt(0)
        v_and_b32 v40, v40, v41
        v_and_b32 v42, v42, v43
        v_and_b32 v40, v40, v42
        v_cmp_eq_u32 vcc, 0, v40
        s_cbranch_vccnz L_sy{k}
        """)
    NP, N1 = O.NP, O.N1
    a(f"s_waitcnt vmcnt({14 - N1})")
    lsync(0)
    stamp(a, "wd1")
    for s in range(N1):
        if s >= 1: a("s_waitcnt lgkmcnt(6)")
        for r in areads(s, s): a(r)
    if NP > N1:
        a(f"s_waitcnt vmcnt({14 - NP})")
        lsync(1)
        stamp(a, "wd2")
        for s in range(N1, NP):
            if s > N1: a("s_waitcnt lgkmcnt(6)")
            for r in areads(s, s): a(r)
    a(f"""
    s_cmp_lt_u32 s49, 14
    s_cbranch_scc1 L_nob2
    s_barrier
    L_nob2:
    s_waitcnt lgkmcnt(8)
    """)
    stamp(a, "rdy")
    AC = 24
    groups = {2: [[0],[1,2],[3,4],[5,6],[7,8],[9,10],[11,12],[13]],
              3: [[0],[1],[2,3],[4,5],[6,7],[8,9],[10,11],[12],[13]]}[O.fine]
    def breg(s): return 40 + 4*(s % 4)
    NI = len(groups) + 1
    it_of = {s_: gi + 1 for gi, g in enumerate(groups) for s_ in g}
    plan = [[] for _ in range(NI)]
    room = [0] + [O.cap * len(groups[i - 1]) for i in range(1, NI)]
    i = NI - 1
    for s_ in range(13, NP - 1, -1):
        for r in reversed(areads(s_, s_ % 12)):
            i = min(i, it_of[s_] - 1 - O.slk)
            while room[i] == 0: i -= 1
            assert i >= 1 and (s_ < 12 or i > it_of[s_ - 12]), (s_, i)
            plan[i].insert(0, (r, f"A{s_}")); room[i] -= 1
    LQ = ["P"] * 8
    landed = NP - 1
    def emit(x):
        a(x[0])
        if x[1]: LQ.append(x[1])
    for it in range(NI):
        prev = groups[it - 1] if it else []
        need = [f"B{s_}" for s_ in prev] + [f"A{s_}" for s_ in prev if s_ >= NP]
        if it == 1: need.append("P")
        if it == NI - 1: need.append("Z")
        w = ""
        top = max([int(x[1][1:]) for x in plan[it]], default=-1)
        if top > landed:
            w += f" vmcnt({13 - top})"; landed = top
        n = 8
        if need:
            for t_ in need: assert t_ in LQ and (t_[0] != "A" or LQ.count(t_) == 8), (it, t_)
            n = len(LQ) - 1 - max(len(LQ) - 1 - LQ[::-1].index(t_) for t_ in need)
            w += f" lgkmcnt({n})"
        if w: a("s_waitcnt" + w)
        items = []
        if it < len(groups):
            a("s_barrier")
            stamp(a, f"b{it}")
            if it == len(groups) - 1: stamp(a, "bl")
            items += [(f"ds_read_b128 {vr(breg(s_),4)}, v19 offset:{s_*4096}", f"B{s_}") for s_ in groups[it]]
            if it == len(groups) - 2: items.append(("ds_read_b32 v9, v16 offset:36", "Z"))
        else:
            items += [("v_cmp_ne_u32 vcc, v5, v9", None), ("s_mov_b32 s80, 0\ns_mov_b32 s44, 0xffff0000", None), ("s_cbranch_vccnz L_pz_wait\nL_pz_ok:", None)]
        if n + sum(1 for x in items + plan[it] if x[1]) > 15:
            plan[it][0] = (f"s_waitcnt lgkmcnt({15 - len(plan[it])})\n" + plan[it][0][0], plan[it][0][1])
        items += plan[it]
        if not prev:
            for x in items: emit(x)
        nm = 4 * len(prev); k = 0
        for s_ in prev:
            for t in range(4):
                cin = "0" if s_ == 0 else vr(AC+4*t, 4)
                a(f"v_mfma_f32_16x16x32_bf16 {vr(AC+4*t,4)}, {areg(s_ % 12, t, 4)}, {vr(breg(s_),4)}, {cin}")
                k += 1
                take = -(-len(items) // (nm - k + 1))
                for x in items[:take]: emit(x)
                items = items[take:]
    stamp(a, "mend")
    a("s_nop 0")
    for g in range(2):
        for i in range(4):
            if g == 0 and i == 2: a("s_nop 1")
            a(f"v_cvt_pk_bf16_f32 v{40+4*g+i}, v{AC+8*g+2*i}, v{AC+8*g+2*i+1}")
        for i in range(4):
            a(f"v_min_u32 v{40+4*g+i}, -2, v{40+4*g+i}")
        a(f"buffer_store_dwordx4 {vr(40+4*g,4)}, v8, {rs(R_WS)}, 0 offen offset:{g*512} sc1")
    stamp(a, "pst")
    a("s_waitcnt vmcnt(0)")
    stamp(a, "ack")
    a(f"""
    L_poll2:
    buffer_load_dwordx4 v[64:67], v6, {rs(R_WS)}, 0 offen sc1
    buffer_load_dwordx4 v[68:71], v6, {rs(R_WS)}, 0 offen offset:1024 sc1
    s_add_u32 s80, s80, 1
    s_cmp_ge_u32 s80, {SPIN}
    s_waitcnt vmcnt(1)
    v_max3_u32 v4, v64, v65, v66
    v_lshlrev_b32 v72, 16, v64
    v_and_b32 v73, s44, v64
    v_lshlrev_b32 v74, 16, v65
    v_and_b32 v75, s44, v65
    v_lshlrev_b32 v76, 16, v66
    v_and_b32 v77, s44, v66
    v_lshlrev_b32 v78, 16, v67
    v_and_b32 v79, s44, v67
    s_waitcnt vmcnt(0)
    v_max3_u32 v4, v4, v67, v68
    v_max3_u32 v5, v69, v70, v71
    v_max_u32 v4, v4, v5
    v_cmp_eq_u32 vcc, -1, v4
    s_cbranch_scc1 L_fin
    {"s_cbranch_vccnz L_poll2" if O.sl2 == 0 else f"s_cbranch_vccz L_fin"}
    {"" if O.sl2 == 0 else f"s_sleep {O.sl2}"}
    {"" if O.sl2 == 0 else "s_branch L_poll2"}
    L_fin:
    v_lshlrev_b32 v80, 16, v68
    v_and_b32 v81, s44, v68
    v_lshlrev_b32 v82, 16, v69
    v_and_b32 v83, s44, v69
    v_lshlrev_b32 v84, 16, v70
    v_and_b32 v85, s44, v70
    v_lshlrev_b32 v86, 16, v71
    v_and_b32 v87, s44, v71
    v_pk_add_f32 v[72:73], v[72:73], v[80:81]
    v_pk_add_f32 v[76:77], v[76:77], v[84:85]
    v_pk_add_f32 v[74:75], v[74:75], v[82:83]
    v_pk_add_f32 v[78:79], v[78:79], v[86:87]
    s_nop 0
    v_permlane32_swap_b32 v72, v76
    v_permlane32_swap_b32 v73, v77
    v_permlane32_swap_b32 v74, v78
    v_permlane32_swap_b32 v75, v79
    v_pk_add_f32 v[72:73], v[72:73], v[76:77]
    v_pk_add_f32 v[74:75], v[74:75], v[78:79]
    s_nop 1
    v_permlane16_swap_b32 v72, v74
    v_permlane16_swap_b32 v73, v75
    s_nop 0
    v_pk_add_f32 v[72:73], v[72:73], v[74:75]
    v_cvt_pk_bf16_f32 v64, v72, v73
    buffer_store_dword v64, v7, {rs(R_OUT)}, 0 offen
    {"s_waitcnt vmcnt(0)" if (O.stamp and O.endwait) else ""}
    """)
    if "npoll" in PTS:
        i = PTS["npoll"]
        a(f"s_waitcnt lgkmcnt(0)\ns_mul_i32 s{64+2*i}, s80, 100\ns_add_u32 s{64+2*i}, s{64+2*i}, s64")
    stamp_flush(a)
    a("L_end:")
    a("s_endpgm")
    a(f"""
    L_pz_wait:
    s_sleep 4
    buffer_load_dword v9, v18, {rs(R_WS)}, 0 offen sc1
    s_add_u32 s80, s80, 1
    s_cmp_ge_u32 s80, {SPIN}
    s_waitcnt vmcnt(0)
    v_cmp_ne_u32 vcc, v5, v9
    s_cbranch_scc1 L_pz_out
    s_cbranch_vccnz L_pz_wait
    L_pz_out:
    s_mov_b32 s80, {1000 if O.stamp else 0}
    s_branch L_pz_ok
    """)
    a("L_front_go_on:")
    later = lines(f"""
    v_add_u32 v17, 49152, v16
    v_add_u32 v24, 49152, v20
    v_add_u32 v25, 49152, v21
    v_add_u32 v26, 49152, v22
    v_add_u32 v27, 49152, v23
    v_lshrrev_b32 v6, 1, v1
    s_lshl_b32 s54, s52, 1
    v_add_u32 v6, s54, v6
    v_lshlrev_b32 v6, 3, v6
    v_bfe_u32 v7, v2, 4, 1
    s_lshl_b32 s54, s47, 2
    v_add3_u32 v6, v6, v7, s54
    v_lshlrev_b32 v6, 10, v6
    v_and_b32 v7, 1, v1
    v_lshl_add_u32 v7, v7, 1, v5
    v_lshl_add_u32 v6, v7, 8, v6
    v_and_b32 v7, 15, v2
    v_lshl_add_u32 v14, v7, 4, v6
    v_add_u32 v14, {HA_OFF}, v14
    s_lshl_b32 s54, s48, 1
    s_add_u32 s54, s54, s47
    s_lshl_b32 s54, s54, 7
    s_lshr_b32 s57, s49, 1
    s_lshl_b32 s57, s57, 4
    s_add_u32 s54, s54, s57
    s_add_u32 s54, s54, {FA_OFF}
    v_lshl_add_u32 v15, v1, 2, s54
    s_mov_b32 s44, 0xbfb8aa3b
    s_mov_b32 s45, 0xbfb8aa3b
    v_mov_b32 v5, {SY_LDS + 32}
    s_mov_b32 s90, 1
    """ + P1_ROLE + FRONT_SETUP)
    if not O.fdef:
        a("s_waitcnt lgkmcnt(0)")
        for x in later: a(x)
        later = []
    ACC = [32, 48]
    def reads(c, s):
        slot = c % 4
        rng, so = slot // 2, (slot % 2) * 24576
        b = 12*s
        return [f"ds_read_b64_tr_b16 a[{b}:{b+1}], v{16+rng} offset:{so + 2048*s}",
                f"ds_read_b64_tr_b16 a[{b+2}:{b+3}], v{16+rng} offset:{so + 2048*s + 512}",
                f"ds_read_b128 a[{b+4}:{b+7}], v{20+4*rng+s} offset:{so}",
                f"ds_read_b128 a[{b+8}:{b+11}], v{20+4*rng+s} offset:{so + 4096}"]
    def mfma(c, s, mi):
        b = 12*s
        cin = "0" if (c == 0 and s == 0) else vr(ACC[mi], 16)
        return f"v_mfma_f32_32x32x16_bf16 {vr(ACC[mi],16)}, {ar(b,4)}, {ar(b+4+4*mi,4)}, {cin}"
    stamp(a, "fr")
    a("s_barrier")
    stamp(a, "c0")
    for s in range(3):
        for r in reads(0, s): a(r)
    for c in range(15):
        now, later = later[:O.fdef], later[O.fdef:]
        for s in range(3):
            a(f"s_waitcnt lgkmcnt({[8,8,4][s]})")
            for mi in range(2):
                a(mfma(c, s, mi))
                if s == 0:
                    for r in reads(c, 3)[2*mi:2*mi+2]: a(r)
                else:
                    k = -(-len(now) // (4 - 2*(s-1) - mi))
                    for x in now[:k]: a(x)
                    now = now[k:]
        if c == O.n3 + 3: a("ds_read_b32 v12, v5")
        if c == O.n3 + 4:
            assert not later
            a("v_xor_b32 v3, s86, v12")
        a("s_waitcnt lgkmcnt(0)")
        a("s_barrier")
        stamp(a, f"c{c+1}")
        rr = [r for s in range(3) for r in reads(c + 1, s)]
        for r in rr[:4]: a(r)
        a(mfma(c, 3, 0))
        for r in rr[4:8]: a(r)
        a(mfma(c, 3, 1))
        for r in rr[8:]: a(r)
    a.c("last chunk: the first 32 rows finish first, their epilogue overlaps the MFMAs of the other 32")
    c = 15
    a("s_waitcnt lgkmcnt(8)")
    a(mfma(c, 0, 0))
    for r in reads(c, 3): a(r)
    a("s_waitcnt lgkmcnt(8)")
    a(mfma(c, 1, 0))
    a("s_waitcnt lgkmcnt(4)")
    a(mfma(c, 2, 0))
    a("s_waitcnt lgkmcnt(0)")
    a(mfma(c, 3, 0))
    a(mfma(c, 0, 1))
    a("s_nop 7\ns_nop 2")
    def epi(mi):
        A = ACC[mi]; t = 64 + 16*mi
        o = []
        for r in range(0, 8, 2):
            o.append(f"v_pk_mul_f32 v[{t+r}:{t+r+1}], v[{A+r}:{A+r+1}], s[44:45]")
        for r in range(8):
            o.append(f"v_exp_f32 v{t+r}, v{t+r}")
        for r in range(0, 8, 2):
            o.append(f"v_pk_mul_f32 v[{t+8+r}:{t+9+r}], v[{A+r}:{A+r+1}], v[{A+8+r}:{A+9+r}]")
        for r in range(0, 8, 2):
            o.append(f"v_pk_add_f32 v[{t+r}:{t+r+1}], v[{t+r}:{t+r+1}], 1.0 op_sel_hi:[1,0]")
        for r in range(8):
            o.append(f"v_rcp_f32 v{t+r}, v{t+r}")
        o.append("s_nop 0")
        for r in range(0, 8, 2):
            o.append(f"v_pk_mul_f32 v[{t+r}:{t+r+1}], v[{t+r}:{t+r+1}], v[{t+8+r}:{t+9+r}]")
        for d in range(4):
            o.append(f"v_cvt_pk_bf16_f32 v{4+4*mi+d}, v{t+2*d}, v{t+2*d+1}")
        o.append(f"buffer_store_dwordx4 v[{4+4*mi}:{7+4*mi}], v14, {rs(R_WS)}, 0 offen offset:{2048*mi}")
        return o
    for i, x in enumerate(epi(0)):
        if i == 0: a(mfma(c, 1, 1))
        if i == 5: a(mfma(c, 2, 1))
        if i == 8: a(mfma(c, 3, 1))
        a(x)
    for x in epi(1): a(x)
    stamp(a, "hst")
    a(f"""
    s_waitcnt vmcnt(0)
    buffer_store_dword v3, v15, {rs(R_WS)}, 0 offen
    """)
    stamp(a, "flg")
    a(f"""
    L_hload:
    s_mov_b32 s80, 0
    s_cmp_lg_u32 s53, 0
    s_cbranch_scc1 L_poll1
    v_and_b32 v22, 7, v2
    v_lshl_add_u32 v22, v22, 7, s91
    L_pz0:
    buffer_load_dword v21, v22, {rs(R_WS)}, 0 offen sc1
    buffer_load_dword v20, v18, {rs(R_WS)}, 0 offen sc1
    s_add_u32 s80, s80, 1
    s_cmp_ge_u32 s80, {O.kfast}
    s_waitcnt vmcnt(0)
    v_cmp_ne_u32 vcc, v12, v21
    s_cbranch_vccz L_pz0_ok
    s_cbranch_scc1 L_poll1
    v_cmp_ne_u32 vcc, v3, v20
    s_cbranch_vccz L_go
    s_sleep 2
    s_branch L_pz0
    L_pz0_ok:
    v_mov_b32 v21, {SY_LDS + 36}
    v_cmp_ne_u32 vcc, v3, v20
    ds_write_b32 v21, v12
    s_waitcnt lgkmcnt(0)
    s_cbranch_vccz L_go
    L_poll1:
    buffer_load_dword v20, v18, {rs(R_WS)}, 0 offen sc1
    s_add_u32 s80, s80, 1
    s_cmp_ge_u32 s80, {O.kfast}
    s_cbranch_scc1 L_slow
    s_waitcnt vmcnt(0)
    v_cmp_ne_u32 vcc, v3, v20
    s_cbranch_vccz L_go
    s_sleep {O.sl1}
    s_branch L_poll1
    L_go:
    """)
    stamp(a, "go")
    def hload(s):
        a(f"s_add_u32 m0, s55, {s*4096}")
        a(f"s_add_u32 s57, s{82 if s < 7 else 83}, {s*8192}")
        a(f"buffer_load_dwordx4 v19, {rs(R_WS)}, s57 offen sc1 lds")
    hl = 0
    while hl < O.hlead:
        hload(hl); hl += 1
    for gi, g in enumerate(groups):
        a(f"s_waitcnt vmcnt({hl - 1 - g[-1]})")
        a("s_barrier")
        for _ in range(len(groups[min(gi + 1, len(groups) - 1)])):
            if hl < 14:
                hload(hl); hl += 1
    stamp_flush(a)
    a.c("a producer publishes the write-through copy of h unless its whole group is seen on this die")
    a(f"""
    s_cmp_eq_u32 s90, 0
    s_cbranch_scc1 L_nob
    buffer_load_dword v20, v29, {rs(R_WS)}, 0 offen sc1
    s_waitcnt vmcnt(0)
    v_cmp_ne_u32 vcc, v3, v20
    s_cbranch_vccz L_nob
    """)
    sendb(a)
    a.c("one wave of the launch moves the epoch on: d_debug first, so that a late reader can tell")
    a(f"""
    L_nob:
    s_lshl_b32 s54, s2, 3
    s_add_u32 s54, s54, s53
    s_cmp_eq_u32 s54, {255*8 + 3}
    s_cbranch_scc0 L_front_end
    v_mov_b32 v3, 0
    v_mov_b32 v4, {EP_OFF}
    s_mov_b64 exec, 1
    global_store_dword v3, v12, s[14:15] sc1
    s_waitcnt vmcnt(0)
    global_store_dword v4, v12, s[16:17] sc1
    L_front_end:
    s_endpgm
    """)
    a.c("the producers are not all on this die (or are very late): fall back to the write-through copies")
    a("""
    L_slow:
    s_cmp_eq_u32 s90, 0
    s_cbranch_scc1 L_slow_sent
    """)
    sendb(a)
    a(f"""
    s_mov_b32 s90, 0
    L_slow_sent:
    s_movk_i32 s57, {FB_OFF - FA_OFF}
    s_mov_b32 s80, 0
    L_slow_poll:
    buffer_load_dword v20, v18, {rs(R_WS)}, 0 offen sc1
    buffer_load_dword v21, v18, {rs(R_WS)}, s57 offen sc1
    s_add_u32 s80, s80, 1
    s_waitcnt vmcnt(0)
    v_cmp_ne_u32 vcc, v3, v20
    s_cbranch_vccz L_go
    v_cmp_ne_u32 vcc, v12, v21
    s_cbranch_vccz L_slow_b
    s_sleep 8
    s_cmp_lt_u32 s80, {SPIN}
    s_cbranch_scc1 L_slow_poll
    L_slow_b:
    s_add_u32 s82, s82, {HB_OFF - HA_OFF}
    s_add_u32 s83, s83, {HB_OFF - HA_OFF}
    s_branch L_go
    """)
    a("L_code_end:")
    return a

if __name__ == "__main__":
    opts(sys.argv[2:])
    a = gen()
    hdr = HEADER + f"; @launch grid=(256,1,1) block=(512,1,1) lds={LDS}\n.amdgcn_target \"amdgcn-amd-amdhsa--gfx950\"\n"
    open(sys.argv[1], "w").write(hdr + a.text() + kdesc(KN, NV + NA, NV))
```

```python
import os, sys
from asmlib import *

KN = "standalone__swiglu_ffn__sampling_kernel"
X_B, W_B, OUT_B, WS_B = 128*1024*2, 1024*3584*2, 128*1024*2, 268435456
FA_OFF = 0
FB_OFF = FA_OFF + 4096
EP_OFF = FA_OFF + 8192
RG_OFF = FA_OFF + 12288
PZ_OFF = FA_OFF + 16384
HA_OFF = 65536
P_OFF = 1 << 20
HB_OFF = (3 << 20) + HA_OFF
ST_OFF = 8 << 20
R_X, R_G, R_U, R_D, R_WS, R_OUT = 20, 24, 28, 32, 36, 40
WD_LDS = 98304
SY_LDS = WD_LDS + 57344
LDS = SY_LDS + 64
SPIN = int(os.environ.get("DIAG_SPIN", 1 << 18))
NV, NA = 96, 160

class O:
    stamp = 0; sync = 1; sw = 4; endwait = 1
    kfast = 64; sl1 = 1; sl2 = 0
    xg = 4; xlead = 2; r2 = 6; r3 = 11; hold = 2; wdk = 3; touch = 1; npf0 = 3
    wd13 = 0; wd14 = 5; hlead = 5; fine = 3
    NP = 8; N1 = 8; cap = 5; slk = 1
    fdef = 0; bdef = 0; cp0 = 1; n2 = 2; n3 = 6
PTS = {}
def opts(argv):
    for x in argv:
        k, v = x.split("=")
        if k == "pts":
            PTS.clear(); PTS["start"] = 0
            for i, nm in enumerate(v.split(",")): PTS[nm] = i + 1
            O.stamp = 1
        else:
            assert hasattr(O, k), k
            setattr(O, k, int(v))
def rs(r): return f"s[{r}:{r+3}]"
def stamp(a, name):
    if O.stamp and name in PTS:
        idx = PTS[name]
        a(f"s_memrealtime s[{64+2*idx}:{65+2*idx}]")
_fl = [0]
def stamp_flush(a):
    if not O.stamp: return
    _fl[0] += 1
    L = f"L_sf{_fl[0]}"
    a(f"""
    s_memrealtime s[78:79]
    s_cmp_lg_u32 s53, {O.sw}
    s_cbranch_scc1 {L}
    s_waitcnt lgkmcnt(0)
    """)
    for i in range(8):
        a(f"v_mov_b32 v{80+i}, s{64+2*i}")
    a(f"""
    s_lshl_b32 s63, s2, 5
    s_add_u32 s63, s63, {ST_OFF}
    v_mov_b32 v88, s63
    s_mov_b64 exec, 1
    buffer_store_dwordx4 v[80:83], v88, {rs(R_WS)}, 0 offen
    buffer_store_dwordx4 v[84:87], v88, {rs(R_WS)}, 0 offen offset:16
    s_mov_b64 exec, -1
    {L}:
    """)
def lines(txt):
    return [x.strip() for x in txt.split("\n") if x.strip()]

def pf_role(a, tag):
    a(f"""
    s_mov_b32 s50, 1
    s_cmp_ge_u32 s52, 3
    s_addc_u32 s51, s52, 0
    s_cmp_ge_u32 s52, 10
    s_addc_u32 s51, s51, 0
    s_mov_b32 s46, 0
    s_cmp_ge_u32 s52, 14
    s_cbranch_scc0 L_pf_role_{tag}
    s_and_b32 s50, s52, 1
    s_mul_i32 s46, s50, 7
    s_cmp_ge_u32 s52, 16
    s_cselect_b32 s51, 11, 3
    L_pf_role_{tag}:
    """)
P1_ROLE = """
    s_mov_b32 s50, 0
    s_cmp_ge_u32 s49, 3
    s_addc_u32 s51, s49, 0
    s_cmp_ge_u32 s49, 10
    s_addc_u32 s51, s51, 0
    s_mov_b32 s46, 0
"""
FRONT_SETUP = f"""
    s_getreg_b32 s86, hwreg(HW_REG_XCC_ID, 0, 4)
    s_lshl_b32 s86, s86, 24
    s_lshl_b32 s55, s53, 10
    s_lshl_b32 s82, s46, 13
    s_sub_u32 s83, 0, s82
    s_mul_i32 s54, s48, 112
    s_lshl_b32 s57, s50, 2
    s_add_u32 s54, s54, s57
    v_add_u32 v6, s54, v1
    v_lshlrev_b32 v6, 10, v6
    v_lshl_add_u32 v19, v2, 4, v6
    v_add_u32 v19, {HA_OFF}, v19
    s_lshl_b32 s54, s48, 1
    s_add_u32 s54, s54, s50
    s_lshl_b32 s54, s54, 7
    s_add_u32 s54, s54, {FA_OFF}
    v_min_u32 v6, 27, v2
    v_lshl_add_u32 v18, v6, 2, s54
    s_lshl_b32 s54, s48, 7
    s_add_u32 s54, s54, {RG_OFF}
    v_and_b32 v6, 31, v2
    v_lshl_add_u32 v29, v6, 2, s54
    v_and_b32 v7, 1, v6
    v_lshlrev_b32 v7, 7, v7
    v_lshrrev_b32 v8, 1, v6
    v_lshl_add_u32 v7, v8, 4, v7
    v_cmp_gt_u32 vcc, 14, v6
    s_lshl_b32 s54, s48, 8
    s_add_u32 s54, s54, {FA_OFF}
    v_add_u32 v7, s54, v7
    v_cndmask_b32 v29, v29, v7, vcc
    s_cmp_lt_u32 s49, 14
    s_cselect_b32 s54, 14, 0
    s_add_u32 s54, s54, s49
    s_lshl_b32 s54, s54, 10
    s_add_u32 s91, s54, {PZ_OFF}
    s_mov_b32 s38, {WS_B}
    s_mov_b32 s39, 0x20000
    s_mov_b64 s[36:37], s[16:17]
"""
def back_setup():
    p = [f"""
    s_mov_b64 s[32:33], s[10:11]
    s_mov_b32 s34, {W_B}
    s_mov_b32 s35, 0x20000
    s_mov_b64 s[36:37], s[16:17]
    s_mov_b32 s38, {WS_B}
    s_mov_b32 s39, 0x20000
    s_mov_b64 s[40:41], s[12:13]
    s_mov_b32 s42, {OUT_B}
    s_mov_b32 s43, 0x20000
    s_and_b32 s55, s53, 3
    s_lshl_b32 s55, s55, 10
    s_lshl_b32 s84, s46, 16
    s_sub_u32 s85, 0, s84
    """, f"""
    v_lshrrev_b32 v3, 3, v2
    v_and_b32 v4, 7, v2
    v_and_b32 v6, 6, v3
    v_xor_b32 v4, v4, v6
    v_lshl_add_u32 v3, v1, 3, v3
    s_mul_i32 s60, s48, 448
    v_add_u32 v3, s60, v3
    v_lshlrev_b32 v3, 11, v3
    s_lshl_b32 s60, s51, 7
    v_add_u32 v3, s60, v3
    v_lshl_add_u32 v17, v4, 4, v3
    v_lshlrev_b32 v3, 10, v1
    v_lshl_add_u32 v19, v2, 4, v3
    """, f"""
    v_lshrrev_b32 v3, 4, v2
    v_bfe_u32 v4, v2, 2, 2
    v_and_b32 v7, 1, v3
    v_lshrrev_b32 v6, 1, v3
    v_lshlrev_b32 v6, 4, v6
    v_lshl_add_u32 v6, v7, 2, v6
    v_add_u32 v6, v6, v4
    v_lshlrev_b32 v6, 7, v6
    v_and_b32 v8, 3, v2
    v_lshl_add_u32 v6, v8, 3, v6
    v_add_u32 v6, {WD_LDS}, v6
    v_lshrrev_b32 v4, 1, v4
    v_lshl_add_u32 v4, v7, 1, v4
    """, "\n".join(f"v_xor_b32 v7, {t}, v4\nv_lshl_add_u32 v{20+t}, v7, 5, v6" for t in range(4)), f"""
    v_bfe_u32 v4, v2, 3, 1
    v_lshl_add_u32 v6, v1, 1, v4
    s_lshl_b32 s60, s49, 3
    v_add_u32 v6, s60, v6
    v_lshlrev_b32 v6, 3, v6
    v_add_u32 v6, s48, v6
    v_lshlrev_b32 v6, 10, v6
    v_lshl_add_u32 v6, v3, 7, v6
    v_and_b32 v7, 7, v2
    v_lshl_add_u32 v6, v7, 4, v6
    v_add_u32 v8, {P_OFF}, v6
    """, f"""
    s_cmp_lt_u32 s49, 14
    s_cselect_b32 s61, 14*8, 0
    s_add_u32 s61, s61, s60
    s_lshl_b32 s61, s61, 7
    s_add_u32 s61, s61, {PZ_OFF}
    v_lshl_add_u32 v18, v7, 7, s61
    s_add_u32 s60, s60, s48
    s_lshl_b32 s60, s60, 13
    s_add_u32 s60, s60, {P_OFF}
    v_and_b32 v6, 15, v2
    v_lshl_add_u32 v6, v1, 4, v6
    v_lshlrev_b32 v6, 4, v6
    v_lshl_add_u32 v6, v3, 11, v6
    v_add_u32 v6, s60, v6
    """, f"""
    s_lshl_b32 s60, s50, 6
    s_lshl_b32 s61, s48, 3
    s_add_u32 s60, s60, s61
    v_add_u32 v7, s60, v7
    v_lshlrev_b32 v7, 11, v7
    v_lshl_add_u32 v7, v4, 3, v7
    v_and_b32 v4, 1, v1
    v_lshl_add_u32 v7, v4, 4, v7
    v_lshrrev_b32 v4, 1, v1
    v_lshl_add_u32 v7, v4, 6, v7
    v_and_b32 v4, 1, v3
    v_lshl_add_u32 v7, v4, 2, v7
    v_lshrrev_b32 v4, 1, v3
    v_lshl_add_u32 v7, v4, 5, v7
    s_lshl_b32 s60, s51, 7
    v_add_u32 v7, s60, v7
    """]
    return p
LDS_INIT = f"""
    v_mov_b32 v16, {SY_LDS}
    v_lshl_add_u32 v14, v1, 2, v16
    v_mov_b32 v9, 0
    ds_write_b32 v14, v9
    ds_write_b32 v14, v9 offset:16
    ds_write_b32 v16, v9 offset:36
    v_mov_b32 v15, -1
"""
def nonce1(a, line):
    a(f"""
    s_movk_i32 s88, {EP_OFF}
    s_load_dword s59, s[16:17], s88
    s_load_dword s87, s[14:15], 0
    """)
    if line:
        a(f"""
        s_lshl_b32 s88, s48, 7
        s_add_u32 s88, s88, {RG_OFF}
        s_load_dword s87, s[16:17], s88
        s_add_u32 s89, s88, 64
        s_load_dword s87, s[16:17], s89
        """)
def nonce2(a, vn):
    a(f"""
    v_mov_b32 v30, 0
    s_add_u32 s59, s59, 1
    s_bitset1_b32 s59, 31
    global_load_dword v{vn}, v30, s[14:15] sc1
    """)
def nonce3(a, vn):
    a(f"""
    v_cmp_eq_u32 vcc, 0, v{vn}
    v_mov_b32 v30, s59
    v_mov_b32 v28, {SY_LDS + 32}
    v_cndmask_b32 v{vn}, v{vn}, v30, vcc
    ds_write_b32 v28, v{vn}
    """)
def wd_list():
    return [f"s_add_u32 m0, s55, {WD_LDS + s*4096}\ns_add_u32 s57, s{84 if s < 7 else 85}, {s*65536}\nbuffer_load_dwordx4 v17, {rs(R_D)}, s57 offen lds" for s in range(14)]
def sendb(a):
    a(f"""
    s_mov_b32 s57, {HB_OFF - HA_OFF}
    s_movk_i32 s58, {FB_OFF - FA_OFF}
    buffer_store_dwordx4 v[4:7], v14, {rs(R_WS)}, s57 offen sc1
    buffer_store_dwordx4 v[8:11], v14, {rs(R_WS)}, s57 offen offset:2048 sc1
    s_waitcnt vmcnt(0)
    buffer_store_dword v12, v15, {rs(R_WS)}, s58 offen sc1
    """)

def gen():
    a = Asm()
    kstart(a, KN)
    if O.stamp and O.sync:
        a("""
        s_memrealtime s[44:45]
        s_waitcnt lgkmcnt(0)
        s_add_u32 s46, s44, 612
        s_and_b32 s46, s46, 0xfffffe00
        L_sync:
        s_memrealtime s[44:45]
        s_waitcnt lgkmcnt(0)
        s_sub_u32 s47, s44, s46
        s_cmp_lt_i32 s47, 0
        s_cbranch_scc1 L_sync
        """)
    stamp(a, "start")
    a(f"""
    s_load_dwordx8 s[4:11], s[0:1], 0
    s_load_dwordx4 s[12:15], s[0:1], 32
    s_load_dwordx2 s[16:17], s[0:1], 48
    v_lshrrev_b32 v1, 6, v0         ; wave
    s_cmp_ge_u32 s2, 256
    s_cbranch_scc1 L_end
    v_readfirstlane_b32 s53, v1
    s_and_b32 s48, s2, 7            ; j
    s_lshr_b32 s49, s2, 3           ; q
    v_and_b32 v2, 63, v0            ; lane
    s_mov_b32 s22, {X_B}
    s_mov_b32 s23, 0x20000
    s_mov_b32 s26, {W_B}
    s_mov_b32 s27, 0x20000
    """)
    if O.cp0:
        a.c("wave 1 of every workgroup brings four lines of the kernel's code into this die's L2")
        a(f"""
        s_cmp_eq_u32 s53, 1
        s_cbranch_scc0 L_nocp
        s_getpc_b64 s[44:45]
        L_pc:
        v_and_b32 v3, 3, v2
        v_lshl_add_u32 v3, s49, 2, v3
        v_min_u32 v3, (L_code_end-L_pc-4)/128, v3
        v_lshlrev_b32 v3, 7, v3
        global_load_dword v31, v3, s[44:45]
        L_nocp:
        """)
    a(f"""
    s_cmp_lt_u32 s49, 14
    s_cbranch_scc1 L_p1
    s_sub_u32 s52, s49, 14          ; p
    s_cmp_lg_u32 s53, 0
    s_cbranch_scc1 L_pf_other
    """)
    a.c("prefetch wave: per 64-row chunk 50 lines of Wg (odd p) or Wu (even p), and 8 rows of x")
    a(f"""
    s_lshr_b32 s54, s52, 1
    s_mul_i32 s54, s54, 50
    v_add_u32 v3, s54, v2
    v_mul_u32_u24 v5, 9363, v3
    v_lshrrev_b32 v5, 16, v5        ; row = i / 7
    v_mul_u32_u24 v6, 7, v5
    v_sub_u32 v6, v3, v6            ; column = i % 7
    v_mul_u32_u24 v5, 7168, v5
    v_lshl_add_u32 v5, v6, 7, v5
    s_mul_i32 s54, s48, 896
    v_add_u32 v5, s54, v5
    v_cmp_gt_u32 vcc, 50, v2
    s_movk_i32 s54, 448
    v_cmp_gt_u32 s[44:45], s54, v3
    v_bfrev_b32 v7, 2
    s_lshl_b32 s54, s52, 3
    s_and_b64 vcc, vcc, s[44:45]
    v_lshrrev_b32 v3, {O.xg.bit_length() - 1}, v2
    v_add_u32 v3, s54, v3
    v_lshlrev_b32 v6, 11, v3
    v_and_b32 v3, {O.xg - 1}, v2
    v_lshl_add_u32 v6, v3, 7, v6
    v_cndmask_b32 v10, v7, v5, vcc
    v_cmp_gt_u32 vcc, {8 * O.xg}, v2
    s_bitcmp1_b32 s52, 0
    s_nop 0
    v_cndmask_b32 v11, v7, v6, vcc
    s_waitcnt lgkmcnt(0)
    s_cselect_b64 s[24:25], s[6:7], s[8:9]
    s_mov_b64 s[20:21], s[4:5]
    """)
    stamp(a, "karg")
    npf = [0]
    def pf(c):
        for g_ in range(16 // O.xg):
            if max(0, g_ * O.xg - O.xlead) == c:
                so = "0"
                if g_:
                    a(f"s_movk_i32 s58, {g_ * O.xg * 128}"); so = "s58"
                a(f"buffer_load_dword v22, v11, {rs(R_X)}, {so} offen"); npf[0] += 1
        so = "0"
        if c:
            a(f"s_mov_b32 s57, {c*64*7168}"); so = "s57"
        a(f"buffer_load_dword v20, v10, {rs(R_G)}, {so} offen"); npf[0] += 1
    for c in range(O.npf0): pf(c)
    a("s_branch L_pf_go_on")
    a(f"""
    L_p1:
    s_and_b32 s47, s49, 1
    s_lshr_b32 s52, s49, 1
    s_mul_i32 s54, s48, 7
    s_add_u32 s52, s52, s54
    s_cmp_lt_u32 s53, 4
    s_cbranch_scc1 L_front
    v_and_b32 v1, 3, v1
    s_lshl_b32 s54, s52, 7
    v_lshrrev_b32 v3, 3, v2
    v_and_b32 v4, 7, v2
    v_lshl_add_u32 v5, v1, 4, v3
    v_mul_u32_u24 v6, 7168, v5
    v_add_u32 v6, s54, v6
    v_and_b32 v7, 2, v3
    v_xor_b32 v7, v7, v4
    v_lshl_add_u32 v10, v7, 4, v6
    v_xor_b32 v11, 64, v10
    v_lshrrev_b32 v7, 1, v3
    v_xor_b32 v7, v7, v4
    s_lshl_b32 s54, s47, 6
    v_add_u32 v5, s54, v5
    v_lshlrev_b32 v5, 11, v5
    v_lshl_add_u32 v12, v7, 4, v5
    v_xor_b32 v13, 64, v12
    v_add_u32 v13, 0x4000, v13
    s_and_b32 s56, s53, 3
    s_lshl_b32 s56, s56, 11
    s_mov_b32 s30, {W_B}
    s_mov_b32 s31, 0x20000
    """)
    a(LDS_INIT)
    a("""
    s_waitcnt lgkmcnt(0)
    s_mov_b64 s[20:21], s[4:5]
    s_mov_b64 s[24:25], s[6:7]
    s_mov_b64 s[28:29], s[8:9]
    """)
    stamp(a, "karg")
    Q = []
    def dma(c):
        sl = (c % 4) * 24576
        for k, (v, r, so) in enumerate([(12, R_X, c*128), (13, R_X, c*128), (10, R_G, c*458752), (10, R_G, c*458752+57344), (11, R_U, c*458752), (11, R_U, c*458752+57344)]):
            a(f"s_add_u32 m0, s56, {sl + (k//2)*8192 + (k%2)*1024}\ns_mov_b32 s57, {so}\nbuffer_load_dwordx4 v{v}, {rs(r)}, s57 offen lds")
            Q.append(c)
    dma(0)
    stamp(a, "d0")
    a("s_branch L_back_go_on")
    a("L_front:")
    stamp(a, "fin")
    a(f"""
    v_bfe_u32 v4, v2, 4, 1
    v_lshrrev_b32 v5, 5, v2         ; k half
    v_bfe_u32 v6, v2, 2, 2
    v_lshrrev_b32 v7, 1, v6
    v_lshl_add_u32 v7, v4, 1, v7
    v_xor_b32 v7, v7, v1
    v_lshl_add_u32 v6, v5, 3, v6
    v_lshlrev_b32 v6, 7, v6
    v_lshl_add_u32 v6, v7, 5, v6
    v_lshl_add_u32 v6, v4, 13, v6
    v_and_b32 v7, 3, v2
    v_lshl_add_u32 v6, v7, 3, v6
    v_add_u32 v16, 0x2000, v6
    v_and_b32 v6, 31, v2
    v_bfe_u32 v7, v6, 1, 3
    v_xor_b32 v7, v7, v5
    v_lshlrev_b32 v6, 7, v6
    """)
    for s in range(4):
        a(f"v_xor_b32 v8, {2*s}, v7")
        a(f"v_lshl_add_u32 v{20+s}, v8, 4, v6")
    a("s_branch L_front_go_on")

    a("L_pf_go_on:")
    if not O.cp0:
        a(f"""
        s_cmp_lt_u32 s52, 16
        s_cbranch_scc1 L_nocp
        s_getpc_b64 s[44:45]
        L_pc:
        s_sub_u32 s44, s44, L_pc-{KN}
        s_subb_u32 s45, s45, 0
        s_and_b32 s54, s52, 1
        s_lshl_b32 s54, s54, 6
        v_add_u32 v3, s54, v2
        v_min_u32 v3, (L_code_end-{KN}-4)/128, v3
        v_lshlrev_b32 v3, 7, v3
        global_load_dword v23, v3, s[44:45]
        L_nocp:
        """)
    if O.touch:
        a.c("one first touch per workgroup, so that the address translations are there when they are needed")
        a("""
        s_cmp_lt_u32 s52, 14
        s_cselect_b64 s[44:45], s[16:17], s[12:13]
        s_cmp_lt_u32 s52, 12
        s_cselect_b64 s[44:45], s[10:11], s[44:45]
        s_cmp_lt_u32 s52, 8
        s_cselect_b64 s[44:45], s[8:9], s[44:45]
        s_cmp_lt_u32 s52, 4
        s_cselect_b64 s[44:45], s[6:7], s[44:45]
        s_and_b32 s54, s52, 3
        s_lshl_b32 s54, s54, 21
        s_cmp_lt_u32 s52, 14
        s_cselect_b32 s54, s54, 0
        s_load_dword s87, s[44:45], s54
        """)
    nonce1(a, True)
    for c in range(O.npf0, 16):
        if c == O.r2:
            a("""
            s_getreg_b32 s86, hwreg(HW_REG_XCC_ID, 0, 4)
            s_lshl_b32 s86, s86, 24
            s_lshl_b32 s89, s49, 2
            s_add_u32 s88, s88, s89
            v_mov_b32 v31, s88
            s_waitcnt lgkmcnt(0)
            """)
            nonce2(a, 12); mark = npf[0]
        if c == O.r3:
            a(f"s_waitcnt vmcnt({npf[0] - mark})")
            nonce3(a, 12)
            a("v_xor_b32 v30, s86, v12")
            stamp(a, "non")
        pf(c)
    stamp(a, "hia")
    if O.hold >= 0: a(f"s_waitcnt vmcnt({O.hold})")
    stamp(a, "hib")
    a.c("announce this workgroup's die; fill its inbox and that of the paired producer with the not-yet-written pattern;")
    a.c("bring the lines of the h buffer into L2 before they are written")
    a(f"""
    global_store_dword v31, v30, s[16:17]
    s_lshl_b32 s54, s49, 3
    s_add_u32 s54, s54, s48
    s_lshl_b32 s57, s54, 13
    s_add_u32 s57, s57, {P_OFF}
    v_lshl_add_u32 v3, v2, 4, s57
    v_add_u32 v8, 0x1000, v3
    s_lshl_b32 s54, s54, 7
    s_add_u32 s54, s54, {PZ_OFF}
    v_mov_b32 v13, s54
    v_mov_b32 v4, -1
    v_mov_b32 v5, -1
    v_mov_b32 v6, -1
    v_mov_b32 v7, -1
    s_cmp_lt_u32 s52, 14
    """)
    for k in range(8):
        a(f"global_store_dwordx4 v{3 if k < 4 else 8}, v[4:7], s[16:17] offset:{(k % 4)*1024} sc1")
    a(f"""
    s_cbranch_scc0 L_pz_one
    v_subrev_u32 v3, {14*8*8192}, v3
    v_subrev_u32 v8, {14*8*8192}, v8
    """)
    for k in range(8):
        a(f"global_store_dwordx4 v{3 if k < 4 else 8}, v[4:7], s[16:17] offset:{(k % 4)*1024} sc1")
    a(f"""
    L_pz_one:
    s_lshl_b32 s54, s52, 6
    v_add_u32 v3, s54, v2
    v_min_u32 v3, 895, v3
    s_mul_i32 s54, s48, 114688
    s_add_u32 s54, s54, {HA_OFF}
    v_lshl_add_u32 v3, v3, 7, s54
    global_load_dword v24, v3, s[16:17]
    s_waitcnt lgkmcnt(0)
    s_barrier
    s_waitcnt vmcnt(1)
    global_store_dword v13, v12, s[16:17] sc1
    s_barrier
    """)
    stamp(a, "pfi")
    a("s_branch L_pf_front")
    a(f"""
    L_pf_other:
    s_cmp_ge_u32 s53, 4
    s_cbranch_scc1 L_back_pf
    s_waitcnt lgkmcnt(0)
    s_barrier
    s_barrier
    L_pf_front:
    """)
    pf_role(a, "f")
    a(FRONT_SETUP)
    a(f"""
    v_mov_b32 v5, {SY_LDS + 32}
    ds_read_b32 v12, v5
    s_mov_b32 s90, 0
    v_bfrev_b32 v14, 2
    v_bfrev_b32 v15, 2
    s_waitcnt lgkmcnt(0)
    v_xor_b32 v3, s86, v12
    s_barrier
    s_branch L_hload
    L_back_pf:
    v_and_b32 v1, 3, v1
    """)
    a(LDS_INIT)
    pf_role(a, "b")
    a("s_waitcnt lgkmcnt(0)")
    for p in back_setup(): a(p)
    a("s_barrier")
    wdl = wd_list()
    for i, d in enumerate(wdl):
        if i == O.wdk: a("s_barrier")
        a(d)
    a("ds_read_b32 v5, v16 offset:32")
    a("s_branch L_p2")

    a("L_back_go_on:")
    dma(1)
    stamp(a, "d1")
    nonce1(a, False)
    a(P1_ROLE)
    pieces = back_setup()
    if not O.bdef:
        for p in pieces: a(p)
        pieces = []
    dma(2)
    issued, wd = 3, 0
    for c in range(16):
        stamp(a, f"w{c}")
        a(f"s_waitcnt vmcnt({len(Q) - 1 - max(i for i, t in enumerate(Q) if t == c)})" + (" lgkmcnt(0)" if c == O.n3 + 2 else ""))
        stamp(a, f"v{c}")
        a("s_barrier")
        stamp(a, f"c{c}")
        if c == O.n3:
            assert Q.index("n") < max(i for i, t in enumerate(Q) if t == c)
            nonce3(a, 5)
        if issued < 16:
            dma(issued); issued += 1
        else:
            n = min({13: O.wd13, 14: O.wd14, 15: 14}[c], 14 - wd)
            for d in wdl[wd:wd+n]:
                a(d); Q.append("d")
            wd += n
        if c == O.n2:
            a("s_waitcnt lgkmcnt(0)")
            nonce2(a, 5); Q.append("n")
        elif pieces and c >= O.bdef: a(pieces.pop(0))
    assert not pieces
    a("L_p2:")
    stamp(a, "p2in")
    def areg(slot, t, n, o=0):
        base = (slot*4 + t) * 4 + o
        return ar(base, n) if slot < 10 else vr(64 + base - 160, n)
    def areads(s, slot):
        out = []
        for t in range(4):
            out.append(f"ds_read_b64_tr_b16 {areg(slot, t, 2)}, v{20+t} offset:{s*4096}")
            out.append(f"ds_read_b64_tr_b16 {areg(slot, t, 2, 2)}, v{20+t} offset:{s*4096+1024}")
        return out
    def lsync(k):
        a(f"""
        ds_write_b32 v14, v15 offset:{16*k}
        L_sy{k}:
        ds_read_b128 v[40:43], v16 offset:{16*k}
        s_waitcnt lgkmcnt(0)
        v_and_b32 v40, v40, v41
        v_and_b32 v42, v42, v43
        v_and_b32 v40, v40, v42
        v_cmp_eq_u32 vcc, 0, v40
        s_cbranch_vccnz L_sy{k}
        """)
    NP, N1 = O.NP, O.N1
    a(f"s_waitcnt vmcnt({14 - N1})")
    lsync(0)
    stamp(a, "wd1")
    for s in range(N1):
        if s >= 1: a("s_waitcnt lgkmcnt(6)")
        for r in areads(s, s): a(r)
    if NP > N1:
        a(f"s_waitcnt vmcnt({14 - NP})")
        lsync(1)
        stamp(a, "wd2")
        for s in range(N1, NP):
            if s > N1: a("s_waitcnt lgkmcnt(6)")
            for r in areads(s, s): a(r)
    a(f"""
    s_cmp_lt_u32 s49, 14
    s_cbranch_scc1 L_nob2
    s_barrier
    L_nob2:
    s_waitcnt lgkmcnt(8)
    """)
    stamp(a, "rdy")
    AC = 24
    groups = {2: [[0],[1,2],[3,4],[5,6],[7,8],[9,10],[11,12],[13]],
              3: [[0],[1],[2,3],[4,5],[6,7],[8,9],[10,11],[12],[13]]}[O.fine]
    def breg(s): return 40 + 4*(s % 4)
    NI = len(groups) + 1
    it_of = {s_: gi + 1 for gi, g in enumerate(groups) for s_ in g}
    plan = [[] for _ in range(NI)]
    room = [0] + [O.cap * len(groups[i - 1]) for i in range(1, NI)]
    i = NI - 1
    for s_ in range(13, NP - 1, -1):
        for r in reversed(areads(s_, s_ % 12)):
            i = min(i, it_of[s_] - 1 - O.slk)
            while room[i] == 0: i -= 1
            assert i >= 1 and (s_ < 12 or i > it_of[s_ - 12]), (s_, i)
            plan[i].insert(0, (r, f"A{s_}")); room[i] -= 1
    LQ = ["P"] * 8
    landed = NP - 1
    def emit(x):
        a(x[0])
        if x[1]: LQ.append(x[1])
    for it in range(NI):
        prev = groups[it - 1] if it else []
        need = [f"B{s_}" for s_ in prev] + [f"A{s_}" for s_ in prev if s_ >= NP]
        if it == 1: need.append("P")
        if it == NI - 1: need.append("Z")
        w = ""
        top = max([int(x[1][1:]) for x in plan[it]], default=-1)
        if top > landed:
            w += f" vmcnt({13 - top})"; landed = top
        n = 8
        if need:
            for t_ in need: assert t_ in LQ and (t_[0] != "A" or LQ.count(t_) == 8), (it, t_)
            n = len(LQ) - 1 - max(len(LQ) - 1 - LQ[::-1].index(t_) for t_ in need)
            w += f" lgkmcnt({n})"
        if w: a("s_waitcnt" + w)
        items = []
        if it < len(groups):
            a("s_barrier")
            stamp(a, f"b{it}")
            if it == len(groups) - 1: stamp(a, "bl")
            items += [(f"ds_read_b128 {vr(breg(s_),4)}, v19 offset:{s_*4096}", f"B{s_}") for s_ in groups[it]]
            if it == len(groups) - 2: items.append(("ds_read_b32 v9, v16 offset:36", "Z"))
        else:
            items += [("v_cmp_ne_u32 vcc, v5, v9", None), ("s_mov_b32 s80, 0\ns_mov_b32 s44, 0xffff0000", None), ("s_cbranch_vccnz L_pz_wait\nL_pz_ok:", None)]
        if n + sum(1 for x in items + plan[it] if x[1]) > 15:
            plan[it][0] = (f"s_waitcnt lgkmcnt({15 - len(plan[it])})\n" + plan[it][0][0], plan[it][0][1])
        items += plan[it]
        if not prev:
            for x in items: emit(x)
        nm = 4 * len(prev); k = 0
        for s_ in prev:
            for t in range(4):
                cin = "0" if s_ == 0 else vr(AC+4*t, 4)
                a(f"v_mfma_f32_16x16x32_bf16 {vr(AC+4*t,4)}, {areg(s_ % 12, t, 4)}, {vr(breg(s_),4)}, {cin}")
                k += 1
                take = -(-len(items) // (nm - k + 1))
                for x in items[:take]: emit(x)
                items = items[take:]
    stamp(a, "mend")
    a("s_nop 0")
    for g in range(2):
        for i in range(4):
            if g == 0 and i == 2: a("s_nop 1")
            a(f"v_cvt_pk_bf16_f32 v{40+4*g+i}, v{AC+8*g+2*i}, v{AC+8*g+2*i+1}")
        for i in range(4):
            a(f"v_min_u32 v{40+4*g+i}, -2, v{40+4*g+i}")
        a(f"buffer_store_dwordx4 {vr(40+4*g,4)}, v8, {rs(R_WS)}, 0 offen offset:{g*512} sc1")
    stamp(a, "pst")
    a("s_waitcnt vmcnt(0)")
    stamp(a, "ack")
    a(f"""
    L_poll2:
    buffer_load_dwordx4 v[64:67], v6, {rs(R_WS)}, 0 offen sc1
    buffer_load_dwordx4 v[68:71], v6, {rs(R_WS)}, 0 offen offset:1024 sc1
    s_add_u32 s80, s80, 1
    s_cmp_ge_u32 s80, {SPIN}
    s_waitcnt vmcnt(1)
    v_max3_u32 v4, v64, v65, v66
    v_lshlrev_b32 v72, 16, v64
    v_and_b32 v73, s44, v64
    v_lshlrev_b32 v74, 16, v65
    v_and_b32 v75, s44, v65
    v_lshlrev_b32 v76, 16, v66
    v_and_b32 v77, s44, v66
    v_lshlrev_b32 v78, 16, v67
    v_and_b32 v79, s44, v67
    s_waitcnt vmcnt(0)
    v_max3_u32 v4, v4, v67, v68
    v_max3_u32 v5, v69, v70, v71
    v_max_u32 v4, v4, v5
    v_cmp_eq_u32 vcc, -1, v4
    s_cbranch_scc1 L_fin
    {"s_cbranch_vccnz L_poll2" if O.sl2 == 0 else f"s_cbranch_vccz L_fin"}
    {"" if O.sl2 == 0 else f"s_sleep {O.sl2}"}
    {"" if O.sl2 == 0 else "s_branch L_poll2"}
    L_fin:
    v_lshlrev_b32 v80, 16, v68
    v_and_b32 v81, s44, v68
    v_lshlrev_b32 v82, 16, v69
    v_and_b32 v83, s44, v69
    v_lshlrev_b32 v84, 16, v70
    v_and_b32 v85, s44, v70
    v_lshlrev_b32 v86, 16, v71
    v_and_b32 v87, s44, v71
    v_pk_add_f32 v[72:73], v[72:73], v[80:81]
    v_pk_add_f32 v[76:77], v[76:77], v[84:85]
    v_pk_add_f32 v[74:75], v[74:75], v[82:83]
    v_pk_add_f32 v[78:79], v[78:79], v[86:87]
    s_nop 0
    v_permlane32_swap_b32 v72, v76
    v_permlane32_swap_b32 v73, v77
    v_permlane32_swap_b32 v74, v78
    v_permlane32_swap_b32 v75, v79
    v_pk_add_f32 v[72:73], v[72:73], v[76:77]
    v_pk_add_f32 v[74:75], v[74:75], v[78:79]
    s_nop 1
    v_permlane16_swap_b32 v72, v74
    v_permlane16_swap_b32 v73, v75
    s_nop 0
    v_pk_add_f32 v[72:73], v[72:73], v[74:75]
    v_cvt_pk_bf16_f32 v64, v72, v73
    buffer_store_dword v64, v7, {rs(R_OUT)}, 0 offen
    {"s_waitcnt vmcnt(0)" if (O.stamp and O.endwait) else ""}
    """)
    if "npoll" in PTS:
        i = PTS["npoll"]
        a(f"s_waitcnt lgkmcnt(0)\ns_mul_i32 s{64+2*i}, s80, 100\ns_add_u32 s{64+2*i}, s{64+2*i}, s64")
    stamp_flush(a)
    a("L_end:")
    a("s_endpgm")
    a(f"""
    L_pz_wait:
    s_sleep 4
    buffer_load_dword v9, v18, {rs(R_WS)}, 0 offen sc1
    s_add_u32 s80, s80, 1
    s_cmp_ge_u32 s80, {SPIN}
    s_waitcnt vmcnt(0)
    v_cmp_ne_u32 vcc, v5, v9
    s_cbranch_scc1 L_pz_out
    s_cbranch_vccnz L_pz_wait
    L_pz_out:
    s_mov_b32 s80, {1000 if O.stamp else 0}
    s_branch L_pz_ok
    """)
    a("L_front_go_on:")
    later = lines(f"""
    v_add_u32 v17, 49152, v16
    v_add_u32 v24, 49152, v20
    v_add_u32 v25, 49152, v21
    v_add_u32 v26, 49152, v22
    v_add_u32 v27, 49152, v23
    v_lshrrev_b32 v6, 1, v1
    s_lshl_b32 s54, s52, 1
    v_add_u32 v6, s54, v6
    v_lshlrev_b32 v6, 3, v6
    v_bfe_u32 v7, v2, 4, 1
    s_lshl_b32 s54, s47, 2
    v_add3_u32 v6, v6, v7, s54
    v_lshlrev_b32 v6, 10, v6
    v_and_b32 v7, 1, v1
    v_lshl_add_u32 v7, v7, 1, v5
    v_lshl_add_u32 v6, v7, 8, v6
    v_and_b32 v7, 15, v2
    v_lshl_add_u32 v14, v7, 4, v6
    v_add_u32 v14, {HA_OFF}, v14
    s_lshl_b32 s54, s48, 1
    s_add_u32 s54, s54, s47
    s_lshl_b32 s54, s54, 7
    s_lshr_b32 s57, s49, 1
    s_lshl_b32 s57, s57, 4
    s_add_u32 s54, s54, s57
    s_add_u32 s54, s54, {FA_OFF}
    v_lshl_add_u32 v15, v1, 2, s54
    s_mov_b32 s44, 0xbfb8aa3b
    s_mov_b32 s45, 0xbfb8aa3b
    v_mov_b32 v5, {SY_LDS + 32}
    s_mov_b32 s90, 1
    """ + P1_ROLE + FRONT_SETUP)
    if not O.fdef:
        a("s_waitcnt lgkmcnt(0)")
        for x in later: a(x)
        later = []
    ACC = [32, 48]
    def reads(c, s):
        slot = c % 4
        rng, so = slot // 2, (slot % 2) * 24576
        b = 12*s
        return [f"ds_read_b64_tr_b16 a[{b}:{b+1}], v{16+rng} offset:{so + 2048*s}",
                f"ds_read_b64_tr_b16 a[{b+2}:{b+3}], v{16+rng} offset:{so + 2048*s + 512}",
                f"ds_read_b128 a[{b+4}:{b+7}], v{20+4*rng+s} offset:{so}",
                f"ds_read_b128 a[{b+8}:{b+11}], v{20+4*rng+s} offset:{so + 4096}"]
    def mfma(c, s, mi):
        b = 12*s
        cin = "0" if (c == 0 and s == 0) else vr(ACC[mi], 16)
        return f"v_mfma_f32_32x32x16_bf16 {vr(ACC[mi],16)}, {ar(b,4)}, {ar(b+4+4*mi,4)}, {cin}"
    stamp(a, "fr")
    a("s_barrier")
    stamp(a, "c0")
    for s in range(3):
        for r in reads(0, s): a(r)
    for c in range(15):
        now, later = later[:O.fdef], later[O.fdef:]
        for s in range(3):
            a(f"s_waitcnt lgkmcnt({[8,8,4][s]})")
            for mi in range(2):
                a(mfma(c, s, mi))
                if s == 0:
                    for r in reads(c, 3)[2*mi:2*mi+2]: a(r)
                else:
                    k = -(-len(now) // (4 - 2*(s-1) - mi))
                    for x in now[:k]: a(x)
                    now = now[k:]
        if c == O.n3 + 3: a("ds_read_b32 v12, v5")
        if c == O.n3 + 4:
            assert not later
            a("v_xor_b32 v3, s86, v12")
        a("s_waitcnt lgkmcnt(0)")
        a("s_barrier")
        stamp(a, f"c{c+1}")
        rr = [r for s in range(3) for r in reads(c + 1, s)]
        for r in rr[:4]: a(r)
        a(mfma(c, 3, 0))
        for r in rr[4:8]: a(r)
        a(mfma(c, 3, 1))
        for r in rr[8:]: a(r)
    a.c("last chunk: the first 32 rows finish first, their epilogue overlaps the MFMAs of the other 32")
    c = 15
    a("s_waitcnt lgkmcnt(8)")
    a(mfma(c, 0, 0))
    for r in reads(c, 3): a(r)
    a("s_waitcnt lgkmcnt(8)")
    a(mfma(c, 1, 0))
    a("s_waitcnt lgkmcnt(4)")
    a(mfma(c, 2, 0))
    a("s_waitcnt lgkmcnt(0)")
    a(mfma(c, 3, 0))
    a(mfma(c, 0, 1))
    a("s_nop 7\ns_nop 2")
    def epi(mi):
        A = ACC[mi]; t = 64 + 16*mi
        o = []
        for r in range(0, 8, 2):
            o.append(f"v_pk_mul_f32 v[{t+r}:{t+r+1}], v[{A+r}:{A+r+1}], s[44:45]")
        for r in range(8):
            o.append(f"v_exp_f32 v{t+r}, v{t+r}")
        for r in range(0, 8, 2):
            o.append(f"v_pk_mul_f32 v[{t+8+r}:{t+9+r}], v[{A+r}:{A+r+1}], v[{A+8+r}:{A+9+r}]")
        for r in range(0, 8, 2):
            o.append(f"v_pk_add_f32 v[{t+r}:{t+r+1}], v[{t+r}:{t+r+1}], 1.0 op_sel_hi:[1,0]")
        for r in range(8):
            o.append(f"v_rcp_f32 v{t+r}, v{t+r}")
        o.append("s_nop 0")
        for r in range(0, 8, 2):
            o.append(f"v_pk_mul_f32 v[{t+r}:{t+r+1}], v[{t+r}:{t+r+1}], v[{t+8+r}:{t+9+r}]")
        for d in range(4):
            o.append(f"v_cvt_pk_bf16_f32 v{4+4*mi+d}, v{t+2*d}, v{t+2*d+1}")
        o.append(f"buffer_store_dwordx4 v[{4+4*mi}:{7+4*mi}], v14, {rs(R_WS)}, 0 offen offset:{2048*mi}")
        return o
    for i, x in enumerate(epi(0)):
        if i == 0: a(mfma(c, 1, 1))
        if i == 5: a(mfma(c, 2, 1))
        if i == 8: a(mfma(c, 3, 1))
        a(x)
    for x in epi(1): a(x)
    stamp(a, "hst")
    a(f"""
    s_waitcnt vmcnt(0)
    buffer_store_dword v3, v15, {rs(R_WS)}, 0 offen
    """)
    stamp(a, "flg")
    a(f"""
    L_hload:
    s_mov_b32 s80, 0
    s_cmp_lg_u32 s53, 0
    s_cbranch_scc1 L_poll1
    v_and_b32 v22, 7, v2
    v_lshl_add_u32 v22, v22, 7, s91
    L_pz0:
    buffer_load_dword v21, v22, {rs(R_WS)}, 0 offen sc1
    buffer_load_dword v20, v18, {rs(R_WS)}, 0 offen sc1
    s_add_u32 s80, s80, 1
    s_cmp_ge_u32 s80, {O.kfast}
    s_waitcnt vmcnt(0)
    v_cmp_ne_u32 vcc, v12, v21
    s_cbranch_vccz L_pz0_ok
    s_cbranch_scc1 L_poll1
    v_cmp_ne_u32 vcc, v3, v20
    s_cbranch_vccz L_go
    s_sleep 2
    s_branch L_pz0
    L_pz0_ok:
    v_mov_b32 v21, {SY_LDS + 36}
    v_cmp_ne_u32 vcc, v3, v20
    ds_write_b32 v21, v12
    s_waitcnt lgkmcnt(0)
    s_cbranch_vccz L_go
    L_poll1:
    buffer_load_dword v20, v18, {rs(R_WS)}, 0 offen sc1
    s_add_u32 s80, s80, 1
    s_cmp_ge_u32 s80, {O.kfast}
    s_cbranch_scc1 L_slow
    s_waitcnt vmcnt(0)
    v_cmp_ne_u32 vcc, v3, v20
    s_cbranch_vccz L_go
    s_sleep {O.sl1}
    s_branch L_poll1
    L_go:
    """)
    stamp(a, "go")
    def hload(s):
        a(f"s_add_u32 m0, s55, {s*4096}")
        a(f"s_add_u32 s57, s{82 if s < 7 else 83}, {s*8192}")
        a(f"buffer_load_dwordx4 v19, {rs(R_WS)}, s57 offen sc1 lds")
    hl = 0
    while hl < O.hlead:
        hload(hl); hl += 1
    for gi, g in enumerate(groups):
        a(f"s_waitcnt vmcnt({hl - 1 - g[-1]})")
        a("s_barrier")
        for _ in range(len(groups[min(gi + 1, len(groups) - 1)])):
            if hl < 14:
                hload(hl); hl += 1
    stamp_flush(a)
    a.c("a producer publishes the write-through copy of h unless its whole group is seen on this die")
    a(f"""
    s_cmp_eq_u32 s90, 0
    s_cbranch_scc1 L_nob
    buffer_load_dword v20, v29, {rs(R_WS)}, 0 offen sc1
    s_waitcnt vmcnt(0)
    v_cmp_ne_u32 vcc, v3, v20
    s_cbranch_vccz L_nob
    """)
    sendb(a)
    a.c("one wave of the launch moves the epoch on: d_debug first, so that a late reader can tell")
    a(f"""
    L_nob:
    s_lshl_b32 s54, s2, 3
    s_add_u32 s54, s54, s53
    s_cmp_eq_u32 s54, {255*8 + 3}
    s_cbranch_scc0 L_front_end
    v_mov_b32 v3, 0
    v_mov_b32 v4, {EP_OFF}
    s_mov_b64 exec, 1
    global_store_dword v3, v12, s[14:15] sc1
    s_waitcnt vmcnt(0)
    global_store_dword v4, v12, s[16:17] sc1
    L_front_end:
    s_endpgm
    """)
    a.c("the producers are not all on this die (or are very late): fall back to the write-through copies")
    a("""
    L_slow:
    s_cmp_eq_u32 s90, 0
    s_cbranch_scc1 L_slow_sent
    """)
    sendb(a)
    a(f"""
    s_mov_b32 s90, 0
    L_slow_sent:
    s_movk_i32 s57, {FB_OFF - FA_OFF}
    s_mov_b32 s80, 0
    L_slow_poll:
    buffer_load_dword v20, v18, {rs(R_WS)}, 0 offen sc1
    buffer_load_dword v21, v18, {rs(R_WS)}, s57 offen sc1
    s_add_u32 s80, s80, 1
    s_waitcnt vmcnt(0)
    v_cmp_ne_u32 vcc, v3, v20
    s_cbranch_vccz L_go
    v_cmp_ne_u32 vcc, v12, v21
    s_cbranch_vccz L_slow_b
    s_sleep 8
    s_cmp_lt_u32 s80, {SPIN}
    s_cbranch_scc1 L_slow_poll
    L_slow_b:
    s_add_u32 s82, s82, {HB_OFF - HA_OFF}
    s_add_u32 s83, s83, {HB_OFF - HA_OFF}
    s_branch L_go
    """)
    a("L_code_end:")
    return a

if __name__ == "__main__":
    opts(sys.argv[2:])
    a = gen()
    hdr = HEADER + f"; @launch grid=(256,1,1) block=(512,1,1) lds={LDS}\n.amdgcn_target \"amdgcn-amd-amdhsa--gfx950\"\n"
    open(sys.argv[1], "w").write(hdr + a.text() + kdesc(KN, NV + NA, NV))
```

```python
import os, sys
from asmlib import *

KN = "standalone__swiglu_ffn__sampling_kernel"
X_B, W_B, OUT_B, WS_B = 128*1024*2, 1024*3584*2, 128*1024*2, 268435456
FA_OFF = 0
FB_OFF = FA_OFF + 4096
EP_OFF = FA_OFF + 8192
RG_OFF = FA_OFF + 12288
PZ_OFF = FA_OFF + 16384
HA_OFF = 65536
P_OFF = 1 << 20
HB_OFF = (3 << 20) + HA_OFF
ST_OFF = 8 << 20
R_X, R_G, R_U, R_D, R_WS, R_OUT = 20, 24, 28, 32, 36, 40
WD_LDS = 98304
SY_LDS = WD_LDS + 57344
LDS = SY_LDS + 64
SPIN = int(os.environ.get("DIAG_SPIN", 1 << 18))
NV, NA = 96, 160

class O:
    stamp = 0; sync = 1; sw = 4; endwait = 1
    kfast = 64; sl1 = 1; sl2 = 0
    xg = 4; xlead = 2; r2 = 6; r3 = 11; hold = 6; wdk = 3; touch = 1; npf0 = 3
    wd13 = 0; wd14 = 5; hlead = 5; fine = 3
    NP = 8; N1 = 8; cap = 5; slk = 1
    fdef = 0; bdef = 0; cp0 = 1; cp1 = 0; vt = 0; dfl = 0; dord = 0; pfl = 0; prio = 0; vtc = 7; n2 = 2; n3 = 6
PTS = {}
def opts(argv):
    for x in argv:
        k, v = x.split("=")
        if k == "pts":
            PTS.clear(); PTS["start"] = 0
            for i, nm in enumerate(v.split(",")): PTS[nm] = i + 1
            O.stamp = 1
        else:
            assert hasattr(O, k), k
            setattr(O, k, int(v))
def rs(r): return f"s[{r}:{r+3}]"
def stamp(a, name):
    if O.stamp and name in PTS:
        idx = PTS[name]
        a(f"s_memrealtime s[{64+2*idx}:{65+2*idx}]")
_fl = [0]
def stamp_flush(a):
    if not O.stamp: return
    _fl[0] += 1
    L = f"L_sf{_fl[0]}"
    a(f"""
    s_memrealtime s[78:79]
    s_cmp_lg_u32 s53, {O.sw}
    s_cbranch_scc1 {L}
    s_waitcnt lgkmcnt(0)
    """)
    for i in range(8):
        a(f"v_mov_b32 v{80+i}, s{64+2*i}")
    a(f"""
    s_lshl_b32 s63, s2, 5
    s_add_u32 s63, s63, {ST_OFF}
    v_mov_b32 v88, s63
    s_mov_b64 exec, 1
    buffer_store_dwordx4 v[80:83], v88, {rs(R_WS)}, 0 offen
    buffer_store_dwordx4 v[84:87], v88, {rs(R_WS)}, 0 offen offset:16
    s_mov_b64 exec, -1
    {L}:
    """)
def lines(txt):
    return [x.strip() for x in txt.split("\n") if x.strip()]

def pf_role(a, tag):
    a(f"""
    s_mov_b32 s50, 1
    s_cmp_ge_u32 s52, 3
    s_addc_u32 s51, s52, 0
    s_cmp_ge_u32 s52, 10
    s_addc_u32 s51, s51, 0
    s_mov_b32 s46, 0
    s_cmp_ge_u32 s52, 14
    s_cbranch_scc0 L_pf_role_{tag}
    s_and_b32 s50, s52, 1
    s_mul_i32 s46, s50, 7
    s_cmp_ge_u32 s52, 16
    s_cselect_b32 s51, 11, 3
    L_pf_role_{tag}:
    """)
P1_ROLE = """
    s_mov_b32 s50, 0
    s_cmp_ge_u32 s49, 3
    s_addc_u32 s51, s49, 0
    s_cmp_ge_u32 s49, 10
    s_addc_u32 s51, s51, 0
    s_mov_b32 s46, 0
"""
FRONT_SETUP = f"""
    s_getreg_b32 s86, hwreg(HW_REG_XCC_ID, 0, 4)
    s_lshl_b32 s86, s86, 24
    s_lshl_b32 s55, s53, 10
    s_lshl_b32 s82, s46, 13
    s_sub_u32 s83, 0, s82
    s_mul_i32 s54, s48, 112
    s_lshl_b32 s57, s50, 2
    s_add_u32 s54, s54, s57
    v_add_u32 v6, s54, v1
    v_lshlrev_b32 v6, 10, v6
    v_lshl_add_u32 v19, v2, 4, v6
    v_add_u32 v19, {HA_OFF}, v19
    s_lshl_b32 s54, s48, 1
    s_add_u32 s54, s54, s50
    s_lshl_b32 s54, s54, 7
    s_add_u32 s54, s54, {FA_OFF}
    v_min_u32 v6, 27, v2
    v_lshl_add_u32 v18, v6, 2, s54
    s_lshl_b32 s54, s48, 7
    s_add_u32 s54, s54, {RG_OFF}
    v_and_b32 v6, 31, v2
    v_lshl_add_u32 v29, v6, 2, s54
    v_and_b32 v7, 1, v6
    v_lshlrev_b32 v7, 7, v7
    v_lshrrev_b32 v8, 1, v6
    v_lshl_add_u32 v7, v8, 4, v7
    v_cmp_gt_u32 vcc, 14, v6
    s_lshl_b32 s54, s48, 8
    s_add_u32 s54, s54, {FA_OFF}
    v_add_u32 v7, s54, v7
    v_cndmask_b32 v29, v29, v7, vcc
    s_cmp_lt_u32 s49, 14
    s_cselect_b32 s54, 14, 0
    s_add_u32 s54, s54, s49
    s_lshl_b32 s54, s54, 10
    s_add_u32 s91, s54, {PZ_OFF}
    s_mov_b32 s38, {WS_B}
    s_mov_b32 s39, 0x20000
    s_mov_b64 s[36:37], s[16:17]
"""
def back_setup():
    p = [f"""
    s_mov_b64 s[32:33], s[10:11]
    s_mov_b32 s34, {W_B}
    s_mov_b32 s35, 0x20000
    s_mov_b64 s[36:37], s[16:17]
    s_mov_b32 s38, {WS_B}
    s_mov_b32 s39, 0x20000
    s_mov_b64 s[40:41], s[12:13]
    s_mov_b32 s42, {OUT_B}
    s_mov_b32 s43, 0x20000
    s_and_b32 s55, s53, 3
    s_lshl_b32 s55, s55, 10
    s_lshl_b32 s84, s46, 16
    s_sub_u32 s85, 0, s84
    """, f"""
    v_lshrrev_b32 v3, 3, v2
    v_and_b32 v4, 7, v2
    v_and_b32 v6, 6, v3
    v_xor_b32 v4, v4, v6
    v_lshl_add_u32 v3, v1, 3, v3
    s_mul_i32 s60, s48, 448
    v_add_u32 v3, s60, v3
    v_lshlrev_b32 v3, 11, v3
    s_lshl_b32 s60, s51, 7
    v_add_u32 v3, s60, v3
    v_lshl_add_u32 v17, v4, 4, v3
    v_lshlrev_b32 v3, 10, v1
    v_lshl_add_u32 v19, v2, 4, v3
    """, f"""
    v_lshrrev_b32 v3, 4, v2
    v_bfe_u32 v4, v2, 2, 2
    v_and_b32 v7, 1, v3
    v_lshrrev_b32 v6, 1, v3
    v_lshlrev_b32 v6, 4, v6
    v_lshl_add_u32 v6, v7, 2, v6
    v_add_u32 v6, v6, v4
    v_lshlrev_b32 v6, 7, v6
    v_and_b32 v8, 3, v2
    v_lshl_add_u32 v6, v8, 3, v6
    v_add_u32 v6, {WD_LDS}, v6
    v_lshrrev_b32 v4, 1, v4
    v_lshl_add_u32 v4, v7, 1, v4
    """, "\n".join(f"v_xor_b32 v7, {t}, v4\nv_lshl_add_u32 v{20+t}, v7, 5, v6" for t in range(4)), f"""
    v_bfe_u32 v4, v2, 3, 1
    v_lshl_add_u32 v6, v1, 1, v4
    s_lshl_b32 s60, s49, 3
    v_add_u32 v6, s60, v6
    v_lshlrev_b32 v6, 3, v6
    v_add_u32 v6, s48, v6
    v_lshlrev_b32 v6, 10, v6
    v_lshl_add_u32 v6, v3, 7, v6
    v_and_b32 v7, 7, v2
    v_lshl_add_u32 v6, v7, 4, v6
    v_add_u32 v8, {P_OFF}, v6
    """, f"""
    s_cmp_lt_u32 s49, 14
    s_cselect_b32 s61, 14*8, 0
    s_add_u32 s61, s61, s60
    s_lshl_b32 s61, s61, 7
    s_add_u32 s61, s61, {PZ_OFF}
    v_lshl_add_u32 v18, v7, 7, s61
    s_add_u32 s60, s60, s48
    s_lshl_b32 s60, s60, 13
    s_add_u32 s60, s60, {P_OFF}
    v_and_b32 v6, 15, v2
    v_lshl_add_u32 v6, v1, 4, v6
    v_lshlrev_b32 v6, 4, v6
    v_lshl_add_u32 v6, v3, 11, v6
    v_add_u32 v6, s60, v6
    """, f"""
    s_lshl_b32 s60, s50, 6
    s_lshl_b32 s61, s48, 3
    s_add_u32 s60, s60, s61
    v_add_u32 v7, s60, v7
    v_lshlrev_b32 v7, 11, v7
    v_lshl_add_u32 v7, v4, 3, v7
    v_and_b32 v4, 1, v1
    v_lshl_add_u32 v7, v4, 4, v7
    v_lshrrev_b32 v4, 1, v1
    v_lshl_add_u32 v7, v4, 6, v7
    v_and_b32 v4, 1, v3
    v_lshl_add_u32 v7, v4, 2, v7
    v_lshrrev_b32 v4, 1, v3
    v_lshl_add_u32 v7, v4, 5, v7
    s_lshl_b32 s60, s51, 7
    v_add_u32 v7, s60, v7
    """]
    return p
LDS_INIT = f"""
    v_mov_b32 v16, {SY_LDS}
    v_lshl_add_u32 v14, v1, 2, v16
    v_mov_b32 v9, 0
    ds_write_b32 v14, v9
    ds_write_b32 v14, v9 offset:16
    ds_write_b32 v16, v9 offset:36
    v_mov_b32 v15, -1
"""
def nonce1(a, line):
    a(f"""
    s_movk_i32 s88, {EP_OFF}
    s_load_dword s59, s[16:17], s88
    s_load_dword s87, s[14:15], 0
    """)
    if line:
        a(f"""
        s_lshl_b32 s88, s48, 7
        s_add_u32 s88, s88, {RG_OFF}
        s_load_dword s87, s[16:17], s88
        s_add_u32 s89, s88, 64
        s_load_dword s87, s[16:17], s89
        """)
def nonce2(a, vn):
    a(f"""
    v_mov_b32 v30, 0
    s_add_u32 s59, s59, 1
    s_bitset1_b32 s59, 31
    global_load_dword v{vn}, v30, s[14:15] sc1
    """)
def nonce3(a, vn):
    a(f"""
    v_cmp_eq_u32 vcc, 0, v{vn}
    v_mov_b32 v30, s59
    v_mov_b32 v28, {SY_LDS + 32}
    v_cndmask_b32 v{vn}, v{vn}, v30, vcc
    ds_write_b32 v28, v{vn}
    """)
def wd_list():
    return [f"s_add_u32 m0, s55, {WD_LDS + s*4096}\ns_add_u32 s57, s{84 if s < 7 else 85}, {s*65536}\nbuffer_load_dwordx4 v17, {rs(R_D)}, s57 offen lds" for s in range(14)]
def sendb(a):
    a(f"""
    s_mov_b32 s57, {HB_OFF - HA_OFF}
    s_movk_i32 s58, {FB_OFF - FA_OFF}
    buffer_store_dwordx4 v[4:7], v14, {rs(R_WS)}, s57 offen sc1
    buffer_store_dwordx4 v[8:11], v14, {rs(R_WS)}, s57 offen offset:2048 sc1
    s_waitcnt vmcnt(0)
    buffer_store_dword v12, v15, {rs(R_WS)}, s58 offen sc1
    """)

def gen():
    a = Asm()
    kstart(a, KN)
    if O.stamp and O.sync:
        a("""
        s_memrealtime s[44:45]
        s_waitcnt lgkmcnt(0)
        s_add_u32 s46, s44, 612
        s_and_b32 s46, s46, 0xfffffe00
        L_sync:
        s_memrealtime s[44:45]
        s_waitcnt lgkmcnt(0)
        s_sub_u32 s47, s44, s46
        s_cmp_lt_i32 s47, 0
        s_cbranch_scc1 L_sync
        """)
    stamp(a, "start")
    a(f"""
    s_load_dwordx8 s[4:11], s[0:1], 0
    s_load_dwordx4 s[12:15], s[0:1], 32
    s_load_dwordx2 s[16:17], s[0:1], 48
    v_lshrrev_b32 v1, 6, v0         ; wave
    s_cmp_ge_u32 s2, 256
    s_cbranch_scc1 L_end
    v_readfirstlane_b32 s53, v1
    s_and_b32 s48, s2, 7            ; j
    s_lshr_b32 s49, s2, 3           ; q
    v_and_b32 v2, 63, v0            ; lane
    s_mov_b32 s22, {X_B}
    s_mov_b32 s23, 0x20000
    s_mov_b32 s26, {W_B}
    s_mov_b32 s27, 0x20000
    """)
    if O.cp0:
        a.c("wave 1 of every workgroup brings four lines of the kernel's code into this die's L2")
        a(f"""
        s_cmp_eq_u32 s53, 1
        s_cbranch_scc0 L_nocp
        s_getpc_b64 s[44:45]
        L_pc:
        v_and_b32 v3, 3, v2
        v_lshl_add_u32 v3, s49, 2, v3
        v_min_u32 v3, (L_code_end-L_pc-4)/128, v3
        v_lshlrev_b32 v3, 7, v3
        global_load_dword v31, v3, s[44:45]
        L_nocp:
        """)
    a(f"""
    s_cmp_lt_u32 s49, 14
    s_cbranch_scc1 L_p1
    s_sub_u32 s52, s49, 14          ; p
    s_cmp_lg_u32 s53, 0
    s_cbranch_scc1 L_pf_other
    """)
    a.c("prefetch wave: per 64-row chunk 50 lines of Wg (odd p) or Wu (even p), and 8 rows of x")
    a(f"""
    s_lshr_b32 s54, s52, 1
    s_mul_i32 s54, s54, 50
    v_add_u32 v3, s54, v2
    v_mul_u32_u24 v5, 9363, v3
    v_lshrrev_b32 v5, 16, v5        ; row = i / 7
    v_mul_u32_u24 v6, 7, v5
    v_sub_u32 v6, v3, v6            ; column = i % 7
    v_mul_u32_u24 v5, 7168, v5
    v_lshl_add_u32 v5, v6, 7, v5
    s_mul_i32 s54, s48, 896
    v_add_u32 v5, s54, v5
    v_cmp_gt_u32 vcc, 50, v2
    s_movk_i32 s54, 448
    v_cmp_gt_u32 s[44:45], s54, v3
    v_bfrev_b32 v7, 2
    s_lshl_b32 s54, s52, 3
    s_and_b64 vcc, vcc, s[44:45]
    v_lshrrev_b32 v3, {O.xg.bit_length() - 1}, v2
    v_add_u32 v3, s54, v3
    v_lshlrev_b32 v6, 11, v3
    v_and_b32 v3, {O.xg - 1}, v2
    v_lshl_add_u32 v6, v3, 7, v6
    v_cndmask_b32 v10, v7, v5, vcc
    v_cmp_gt_u32 vcc, {8 * O.xg}, v2
    s_bitcmp1_b32 s52, 0
    s_nop 0
    v_cndmask_b32 v11, v7, v6, vcc
    s_waitcnt lgkmcnt(0)
    s_cselect_b64 s[24:25], s[6:7], s[8:9]
    s_mov_b64 s[20:21], s[4:5]
    """)
    stamp(a, "karg")
    npf = [0]
    def pf(c):
        for g_ in range(16 // O.xg):
            if max(0, g_ * O.xg - O.xlead) == c:
                so = "0"
                if g_:
                    a(f"s_movk_i32 s58, {g_ * O.xg * 128}"); so = "s58"
                a(f"buffer_load_dword v22, v11, {rs(R_X)}, {so} offen"); npf[0] += 1
        so = "0"
        if c:
            a(f"s_mov_b32 s57, {c*64*7168}"); so = "s57"
        a(f"buffer_load_dword v20, v10, {rs(R_G)}, {so} offen {['', 'sc1', 'sc0', 'sc0 sc1'][O.pfl]}"); npf[0] += 1
    for c in range(O.npf0): pf(c)
    a("s_branch L_pf_go_on")
    a(f"""
    L_p1:
    s_and_b32 s47, s49, 1
    s_lshr_b32 s52, s49, 1
    s_mul_i32 s54, s48, 7
    s_add_u32 s52, s52, s54
    s_cmp_lt_u32 s53, 4
    s_cbranch_scc1 L_front
    v_and_b32 v1, 3, v1
    s_lshl_b32 s54, s52, 7
    v_lshrrev_b32 v3, 3, v2
    v_and_b32 v4, 7, v2
    v_lshl_add_u32 v5, v1, 4, v3
    v_mul_u32_u24 v6, 7168, v5
    v_add_u32 v6, s54, v6
    v_and_b32 v7, 2, v3
    v_xor_b32 v7, v7, v4
    v_lshl_add_u32 v10, v7, 4, v6
    v_xor_b32 v11, 64, v10
    v_lshrrev_b32 v7, 1, v3
    v_xor_b32 v7, v7, v4
    s_lshl_b32 s54, s47, 6
    v_add_u32 v5, s54, v5
    v_lshlrev_b32 v5, 11, v5
    v_lshl_add_u32 v12, v7, 4, v5
    v_xor_b32 v13, 64, v12
    v_add_u32 v13, 0x4000, v13
    s_and_b32 s56, s53, 3
    s_lshl_b32 s56, s56, 11
    s_mov_b32 s30, {W_B}
    s_mov_b32 s31, 0x20000
    """)
    a(LDS_INIT)
    a("""
    s_waitcnt lgkmcnt(0)
    s_mov_b64 s[20:21], s[4:5]
    s_mov_b64 s[24:25], s[6:7]
    s_mov_b64 s[28:29], s[8:9]
    """)
    stamp(a, "karg")
    Q = []
    def dma(c):
        sl = (c % 4) * 24576
        L = list(enumerate([(12, R_X, c*128), (13, R_X, c*128), (10, R_G, c*458752), (10, R_G, c*458752+57344), (11, R_U, c*458752), (11, R_U, c*458752+57344)]))
        if O.dord == 1: L = [L[i] for i in (0, 2, 4, 1, 3, 5)]
        if O.dord == 2: L = [L[i] for i in (2, 3, 4, 5, 0, 1)]
        for k, (v, r, so) in L:
            a(f"s_add_u32 m0, s56, {sl + (k//2)*8192 + (k%2)*1024}\ns_mov_b32 s57, {so}\nbuffer_load_dwordx4 v{v}, {rs(r)}, s57 offen {['', 'sc1', 'sc0', 'sc0 sc1'][O.dfl]} lds")
            Q.append(c)
    dma(0)
    stamp(a, "d0")
    a("s_branch L_back_go_on")
    a("L_front:")
    stamp(a, "fin")
    a(f"""
    v_bfe_u32 v4, v2, 4, 1
    v_lshrrev_b32 v5, 5, v2         ; k half
    v_bfe_u32 v6, v2, 2, 2
    v_lshrrev_b32 v7, 1, v6
    v_lshl_add_u32 v7, v4, 1, v7
    v_xor_b32 v7, v7, v1
    v_lshl_add_u32 v6, v5, 3, v6
    v_lshlrev_b32 v6, 7, v6
    v_lshl_add_u32 v6, v7, 5, v6
    v_lshl_add_u32 v6, v4, 13, v6
    v_and_b32 v7, 3, v2
    v_lshl_add_u32 v6, v7, 3, v6
    v_add_u32 v16, 0x2000, v6
    v_and_b32 v6, 31, v2
    v_bfe_u32 v7, v6, 1, 3
    v_xor_b32 v7, v7, v5
    v_lshlrev_b32 v6, 7, v6
    """)
    for s in range(4):
        a(f"v_xor_b32 v8, {2*s}, v7")
        a(f"v_lshl_add_u32 v{20+s}, v8, 4, v6")
    a("s_branch L_front_go_on")

    a("L_pf_go_on:")
    if not O.cp0:
        a(f"""
        s_cmp_lt_u32 s52, 16
        s_cbranch_scc1 L_nocp
        s_getpc_b64 s[44:45]
        L_pc:
        s_sub_u32 s44, s44, L_pc-{KN}
        s_subb_u32 s45, s45, 0
        s_and_b32 s54, s52, 1
        s_lshl_b32 s54, s54, 6
        v_add_u32 v3, s54, v2
        v_min_u32 v3, (L_code_end-{KN}-4)/128, v3
        v_lshlrev_b32 v3, 7, v3
        global_load_dword v23, v3, s[44:45]
        L_nocp:
        """)
    if O.touch:
        a.c("one first touch per workgroup, so that the address translations are there when they are needed")
        a("""
        s_cmp_lt_u32 s52, 14
        s_cselect_b64 s[44:45], s[16:17], s[12:13]
        s_cmp_lt_u32 s52, 12
        s_cselect_b64 s[44:45], s[10:11], s[44:45]
        s_cmp_lt_u32 s52, 8
        s_cselect_b64 s[44:45], s[8:9], s[44:45]
        s_cmp_lt_u32 s52, 4
        s_cselect_b64 s[44:45], s[6:7], s[44:45]
        s_and_b32 s54, s52, 3
        s_lshl_b32 s54, s54, 21
        s_cmp_lt_u32 s52, 14
        s_cselect_b32 s54, s54, 0
        s_load_dword s87, s[44:45], s54
        """)
    nonce1(a, True)
    for c in range(O.npf0, 16):
        if c == O.r2:
            a("""
            s_getreg_b32 s86, hwreg(HW_REG_XCC_ID, 0, 4)
            s_lshl_b32 s86, s86, 24
            s_lshl_b32 s89, s49, 2
            s_add_u32 s88, s88, s89
            v_mov_b32 v31, s88
            s_waitcnt lgkmcnt(0)
            """)
            nonce2(a, 12); mark = npf[0]
        if c == O.r3:
            a(f"s_waitcnt vmcnt({npf[0] - mark})")
            nonce3(a, 12)
            a("v_xor_b32 v30, s86, v12")
            stamp(a, "non")
        pf(c)
    stamp(a, "hia")
    if O.hold >= 0: a(f"s_waitcnt vmcnt({O.hold})")
    stamp(a, "hib")
    a.c("announce this workgroup's die; fill its inbox and that of the paired producer with the not-yet-written pattern;")
    a.c("bring the lines of the h buffer into L2 before they are written")
    a(f"""
    global_store_dword v31, v30, s[16:17]
    s_lshl_b32 s54, s49, 3
    s_add_u32 s54, s54, s48
    s_lshl_b32 s57, s54, 13
    s_add_u32 s57, s57, {P_OFF}
    v_lshl_add_u32 v3, v2, 4, s57
    v_add_u32 v8, 0x1000, v3
    s_lshl_b32 s54, s54, 7
    s_add_u32 s54, s54, {PZ_OFF}
    v_mov_b32 v13, s54
    v_mov_b32 v4, -1
    v_mov_b32 v5, -1
    v_mov_b32 v6, -1
    v_mov_b32 v7, -1
    s_cmp_lt_u32 s52, 14
    """)
    for k in range(8):
        a(f"global_store_dwordx4 v{3 if k < 4 else 8}, v[4:7], s[16:17] offset:{(k % 4)*1024} sc1")
    a(f"""
    s_cbranch_scc0 L_pz_one
    v_subrev_u32 v3, {14*8*8192}, v3
    v_subrev_u32 v8, {14*8*8192}, v8
    """)
    for k in range(8):
        a(f"global_store_dwordx4 v{3 if k < 4 else 8}, v[4:7], s[16:17] offset:{(k % 4)*1024} sc1")
    a(f"""
    L_pz_one:
    s_lshl_b32 s54, s52, 6
    v_add_u32 v3, s54, v2
    v_min_u32 v3, 895, v3
    s_mul_i32 s54, s48, 114688
    s_add_u32 s54, s54, {HA_OFF}
    v_lshl_add_u32 v3, v3, 7, s54
    global_load_dword v24, v3, s[16:17]
    s_waitcnt lgkmcnt(0)
    s_barrier
    s_waitcnt vmcnt(1)
    global_store_dword v13, v12, s[16:17] sc1
    s_barrier
    """)
    stamp(a, "pfi")
    a("s_branch L_pf_front")
    a(f"""
    L_pf_other:
    s_cmp_ge_u32 s53, 4
    s_cbranch_scc1 L_back_pf
    s_waitcnt lgkmcnt(0)
    s_barrier
    s_barrier
    """)
    if O.vt & 2:
        a("""
        s_cmp_eq_u32 s53, 2
        s_cbranch_scc0 L_pf_front
        v_mov_b32 v6, 0
        global_load_dword v31, v6, s[12:13]
        """)
    if O.cp1:
        a.c("touch the code of the later phases again: it is the oldest resident of the L2 by now")
        a(f"""
        s_cmp_eq_u32 s53, 1
        s_cbranch_scc0 L_pf_front
        s_getpc_b64 s[44:45]
        L_pc1:
        v_min_u32 v3, 5, v2
        s_mul_i32 s54, s52, 6
        v_add_u32 v3, s54, v3
        v_min_u32 v3, (L_code_end-L_pc1-4)/128, v3
        v_lshlrev_b32 v3, 7, v3
        global_load_dword v31, v3, s[44:45]
        """)
    a(f"""
    L_pf_front:
    """)
    pf_role(a, "f")
    a(FRONT_SETUP)
    a(f"""
    v_mov_b32 v5, {SY_LDS + 32}
    ds_read_b32 v12, v5
    s_mov_b32 s90, 0
    v_bfrev_b32 v14, 2
    v_bfrev_b32 v15, 2
    s_waitcnt lgkmcnt(0)
    v_xor_b32 v3, s86, v12
    s_barrier
    s_branch L_hload
    L_back_pf:
    v_and_b32 v1, 3, v1
    """)
    a(LDS_INIT)
    pf_role(a, "b")
    a("s_waitcnt lgkmcnt(0)")
    for p in back_setup(): a(p)
    a("s_barrier")
    wdl = wd_list()
    for i, d in enumerate(wdl):
        if i == O.wdk: a("s_barrier")
        a(d)
    a("ds_read_b32 v5, v16 offset:32")
    a("s_branch L_p2")

    a("L_back_go_on:")
    if O.prio & 1: a("s_setprio 1")
    dma(1)
    stamp(a, "d1")
    nonce1(a, False)
    a(P1_ROLE)
    pieces = back_setup()
    if not O.bdef:
        for p in pieces: a(p)
        pieces = []
    dma(2)
    issued, wd = 3, 0
    for c in range(16):
        stamp(a, f"w{c}")
        a(f"s_waitcnt vmcnt({len(Q) - 1 - max(i for i, t in enumerate(Q) if t == c)})" + (" lgkmcnt(0)" if c == O.n3 + 2 else ""))
        stamp(a, f"v{c}")
        a("s_barrier")
        stamp(a, f"c{c}")
        if c == O.n3:
            assert Q.index("n") < max(i for i, t in enumerate(Q) if t == c)
            nonce3(a, 5)
        if issued < 16:
            dma(issued); issued += 1
        else:
            n = min({13: O.wd13, 14: O.wd14, 15: 14}[c], 14 - wd)
            for d in wdl[wd:wd+n]:
                a(d); Q.append("d")
            wd += n
        if c == O.n2:
            a("s_waitcnt lgkmcnt(0)")
            nonce2(a, 5); Q.append("n")
        elif pieces and c >= O.bdef: a(pieces.pop(0))
    assert not pieces
    a("L_p2:")
    stamp(a, "p2in")
    def areg(slot, t, n, o=0):
        base = (slot*4 + t) * 4 + o
        return ar(base, n) if slot < 10 else vr(64 + base - 160, n)
    def areads(s, slot):
        out = []
        for t in range(4):
            out.append(f"ds_read_b64_tr_b16 {areg(slot, t, 2)}, v{20+t} offset:{s*4096}")
            out.append(f"ds_read_b64_tr_b16 {areg(slot, t, 2, 2)}, v{20+t} offset:{s*4096+1024}")
        return out
    def lsync(k):
        a(f"""
        ds_write_b32 v14, v15 offset:{16*k}
        L_sy{k}:
        ds_read_b128 v[40:43], v16 offset:{16*k}
        s_waitcnt lgkmcnt(0)
        v_and_b32 v40, v40, v41
        v_and_b32 v42, v42, v43
        v_and_b32 v40, v40, v42
        v_cmp_eq_u32 vcc, 0, v40
        s_cbranch_vccnz L_sy{k}
        """)
    NP, N1 = O.NP, O.N1
    a(f"s_waitcnt vmcnt({14 - N1})")
    lsync(0)
    stamp(a, "wd1")
    for s in range(N1):
        if s >= 1: a("s_waitcnt lgkmcnt(6)")
        for r in areads(s, s): a(r)
    if NP > N1:
        a(f"s_waitcnt vmcnt({14 - NP})")
        lsync(1)
        stamp(a, "wd2")
        for s in range(N1, NP):
            if s > N1: a("s_waitcnt lgkmcnt(6)")
            for r in areads(s, s): a(r)
    a(f"""
    s_cmp_lt_u32 s49, 14
    s_cbranch_scc1 L_nob2
    s_barrier
    L_nob2:
    s_waitcnt lgkmcnt(8)
    """)
    stamp(a, "rdy")
    AC = 24
    groups = {2: [[0],[1,2],[3,4],[5,6],[7,8],[9,10],[11,12],[13]],
              3: [[0],[1],[2,3],[4,5],[6,7],[8,9],[10,11],[12],[13]]}[O.fine]
    def breg(s): return 40 + 4*(s % 4)
    NI = len(groups) + 1
    it_of = {s_: gi + 1 for gi, g in enumerate(groups) for s_ in g}
    plan = [[] for _ in range(NI)]
    room = [0] + [O.cap * len(groups[i - 1]) for i in range(1, NI)]
    i = NI - 1
    for s_ in range(13, NP - 1, -1):
        for r in reversed(areads(s_, s_ % 12)):
            i = min(i, it_of[s_] - 1 - O.slk)
            while room[i] == 0: i -= 1
            assert i >= 1 and (s_ < 12 or i > it_of[s_ - 12]), (s_, i)
            plan[i].insert(0, (r, f"A{s_}")); room[i] -= 1
    LQ = ["P"] * 8
    landed = NP - 1
    def emit(x):
        a(x[0])
        if x[1]: LQ.append(x[1])
    for it in range(NI):
        prev = groups[it - 1] if it else []
        need = [f"B{s_}" for s_ in prev] + [f"A{s_}" for s_ in prev if s_ >= NP]
        if it == 1: need.append("P")
        if it == NI - 1: need.append("Z")
        w = ""
        top = max([int(x[1][1:]) for x in plan[it]], default=-1)
        if top > landed:
            w += f" vmcnt({13 - top})"; landed = top
        n = 8
        if need:
            for t_ in need: assert t_ in LQ and (t_[0] != "A" or LQ.count(t_) == 8), (it, t_)
            n = len(LQ) - 1 - max(len(LQ) - 1 - LQ[::-1].index(t_) for t_ in need)
            w += f" lgkmcnt({n})"
        if w: a("s_waitcnt" + w)
        items = []
        if it < len(groups):
            a("s_barrier")
            stamp(a, f"b{it}")
            if it == len(groups) - 1: stamp(a, "bl")
            items += [(f"ds_read_b128 {vr(breg(s_),4)}, v19 offset:{s_*4096}", f"B{s_}") for s_ in groups[it]]
            if it == len(groups) - 2: items.append(("ds_read_b32 v9, v16 offset:36", "Z"))
        else:
            items += [("v_cmp_ne_u32 vcc, v5, v9", None), ("s_mov_b32 s80, 0\ns_mov_b32 s44, 0xffff0000", None), ("s_cbranch_vccnz L_pz_wait\nL_pz_ok:", None)]
        if n + sum(1 for x in items + plan[it] if x[1]) > 15:
            plan[it][0] = (f"s_waitcnt lgkmcnt({15 - len(plan[it])})\n" + plan[it][0][0], plan[it][0][1])
        items += plan[it]
        if not prev:
            for x in items: emit(x)
        nm = 4 * len(prev); k = 0
        for s_ in prev:
            for t in range(4):
                cin = "0" if s_ == 0 else vr(AC+4*t, 4)
                a(f"v_mfma_f32_16x16x32_bf16 {vr(AC+4*t,4)}, {areg(s_ % 12, t, 4)}, {vr(breg(s_),4)}, {cin}")
                k += 1
                take = -(-len(items) // (nm - k + 1))
                for x in items[:take]: emit(x)
                items = items[take:]
    stamp(a, "mend")
    a("s_nop 0")
    for g in range(2):
        for i in range(4):
            if g == 0 and i == 2: a("s_nop 1")
            a(f"v_cvt_pk_bf16_f32 v{40+4*g+i}, v{AC+8*g+2*i}, v{AC+8*g+2*i+1}")
        for i in range(4):
            a(f"v_min_u32 v{40+4*g+i}, -2, v{40+4*g+i}")
        a(f"buffer_store_dwordx4 {vr(40+4*g,4)}, v8, {rs(R_WS)}, 0 offen offset:{g*512} sc1")
    stamp(a, "pst")
    a("s_waitcnt vmcnt(0)")
    stamp(a, "ack")
    a(f"""
    L_poll2:
    buffer_load_dwordx4 v[64:67], v6, {rs(R_WS)}, 0 offen sc1
    buffer_load_dwordx4 v[68:71], v6, {rs(R_WS)}, 0 offen offset:1024 sc1
    s_add_u32 s80, s80, 1
    s_cmp_ge_u32 s80, {SPIN}
    s_waitcnt vmcnt(1)
    v_max3_u32 v4, v64, v65, v66
    v_lshlrev_b32 v72, 16, v64
    v_and_b32 v73, s44, v64
    v_lshlrev_b32 v74, 16, v65
    v_and_b32 v75, s44, v65
    v_lshlrev_b32 v76, 16, v66
    v_and_b32 v77, s44, v66
    v_lshlrev_b32 v78, 16, v67
    v_and_b32 v79, s44, v67
    s_waitcnt vmcnt(0)
    v_max3_u32 v4, v4, v67, v68
    v_max3_u32 v5, v69, v70, v71
    v_max_u32 v4, v4, v5
    v_cmp_eq_u32 vcc, -1, v4
    s_cbranch_scc1 L_fin
    {"s_cbranch_vccnz L_poll2" if O.sl2 == 0 else f"s_cbranch_vccz L_fin"}
    {"" if O.sl2 == 0 else f"s_sleep {O.sl2}"}
    {"" if O.sl2 == 0 else "s_branch L_poll2"}
    L_fin:
    v_lshlrev_b32 v80, 16, v68
    v_and_b32 v81, s44, v68
    v_lshlrev_b32 v82, 16, v69
    v_and_b32 v83, s44, v69
    v_lshlrev_b32 v84, 16, v70
    v_and_b32 v85, s44, v70
    v_lshlrev_b32 v86, 16, v71
    v_and_b32 v87, s44, v71
    v_pk_add_f32 v[72:73], v[72:73], v[80:81]
    v_pk_add_f32 v[76:77], v[76:77], v[84:85]
    v_pk_add_f32 v[74:75], v[74:75], v[82:83]
    v_pk_add_f32 v[78:79], v[78:79], v[86:87]
    s_nop 0
    v_permlane32_swap_b32 v72, v76
    v_permlane32_swap_b32 v73, v77
    v_permlane32_swap_b32 v74, v78
    v_permlane32_swap_b32 v75, v79
    v_pk_add_f32 v[72:73], v[72:73], v[76:77]
    v_pk_add_f32 v[74:75], v[74:75], v[78:79]
    s_nop 1
    v_permlane16_swap_b32 v72, v74
    v_permlane16_swap_b32 v73, v75
    s_nop 0
    v_pk_add_f32 v[72:73], v[72:73], v[74:75]
    v_cvt_pk_bf16_f32 v64, v72, v73
    buffer_store_dword v64, v7, {rs(R_OUT)}, 0 offen
    {"s_waitcnt vmcnt(0)" if (O.stamp and O.endwait) else ""}
    """)
    if "npoll" in PTS:
        i = PTS["npoll"]
        a(f"s_waitcnt lgkmcnt(0)\ns_mul_i32 s{64+2*i}, s80, 100\ns_add_u32 s{64+2*i}, s{64+2*i}, s64")
    stamp_flush(a)
    a("L_end:")
    a("s_endpgm")
    a(f"""
    L_pz_wait:
    s_sleep 4
    buffer_load_dword v9, v18, {rs(R_WS)}, 0 offen sc1
    s_add_u32 s80, s80, 1
    s_cmp_ge_u32 s80, {SPIN}
    s_waitcnt vmcnt(0)
    v_cmp_ne_u32 vcc, v5, v9
    s_cbranch_scc1 L_pz_out
    s_cbranch_vccnz L_pz_wait
    L_pz_out:
    s_mov_b32 s80, {1000 if O.stamp else 0}
    s_branch L_pz_ok
    """)
    a("L_front_go_on:")
    if O.prio & 2: a("s_setprio 1")
    later = lines(f"""
    v_add_u32 v17, 49152, v16
    v_add_u32 v24, 49152, v20
    v_add_u32 v25, 49152, v21
    v_add_u32 v26, 49152, v22
    v_add_u32 v27, 49152, v23
    v_lshrrev_b32 v6, 1, v1
    s_lshl_b32 s54, s52, 1
    v_add_u32 v6, s54, v6
    v_lshlrev_b32 v6, 3, v6
    v_bfe_u32 v7, v2, 4, 1
    s_lshl_b32 s54, s47, 2
    v_add3_u32 v6, v6, v7, s54
    v_lshlrev_b32 v6, 10, v6
    v_and_b32 v7, 1, v1
    v_lshl_add_u32 v7, v7, 1, v5
    v_lshl_add_u32 v6, v7, 8, v6
    v_and_b32 v7, 15, v2
    v_lshl_add_u32 v14, v7, 4, v6
    v_add_u32 v14, {HA_OFF}, v14
    s_lshl_b32 s54, s48, 1
    s_add_u32 s54, s54, s47
    s_lshl_b32 s54, s54, 7
    s_lshr_b32 s57, s49, 1
    s_lshl_b32 s57, s57, 4
    s_add_u32 s54, s54, s57
    s_add_u32 s54, s54, {FA_OFF}
    v_lshl_add_u32 v15, v1, 2, s54
    s_mov_b32 s44, 0xbfb8aa3b
    s_mov_b32 s45, 0xbfb8aa3b
    v_mov_b32 v5, {SY_LDS + 32}
    s_mov_b32 s90, 1
    """ + P1_ROLE + FRONT_SETUP)
    if not O.fdef:
        a("s_waitcnt lgkmcnt(0)")
        for x in later: a(x)
        later = []
    ACC = [32, 48]
    def reads(c, s):
        slot = c % 4
        rng, so = slot // 2, (slot % 2) * 24576
        b = 12*s
        return [f"ds_read_b64_tr_b16 a[{b}:{b+1}], v{16+rng} offset:{so + 2048*s}",
                f"ds_read_b64_tr_b16 a[{b+2}:{b+3}], v{16+rng} offset:{so + 2048*s + 512}",
                f"ds_read_b128 a[{b+4}:{b+7}], v{20+4*rng+s} offset:{so}",
                f"ds_read_b128 a[{b+8}:{b+11}], v{20+4*rng+s} offset:{so + 4096}"]
    def mfma(c, s, mi):
        b = 12*s
        cin = "0" if (c == 0 and s == 0) else vr(ACC[mi], 16)
        return f"v_mfma_f32_32x32x16_bf16 {vr(ACC[mi],16)}, {ar(b,4)}, {ar(b+4+4*mi,4)}, {cin}"
    stamp(a, "fr")
    a("s_barrier")
    stamp(a, "c0")
    for s in range(3):
        for r in reads(0, s): a(r)
    for c in range(15):
        now, later = later[:O.fdef], later[O.fdef:]
        for s in range(3):
            a(f"s_waitcnt lgkmcnt({[8,8,4][s]})")
            for mi in range(2):
                a(mfma(c, s, mi))
                if s == 0:
                    for r in reads(c, 3)[2*mi:2*mi+2]: a(r)
                else:
                    k = -(-len(now) // (4 - 2*(s-1) - mi))
                    for x in now[:k]: a(x)
                    now = now[k:]
        if c == O.vtc and O.vt:
            a(f"""
            s_cmp_lg_u32 s53, 2
            s_cbranch_scc1 L_novt
            v_mov_b32 v6, 0
            {f"buffer_load_dword v31, v29, {rs(R_WS)}, 0 offen" if O.vt & 1 else ""}
            {"global_load_dword v31, v6, s[12:13]" if O.vt & 2 else ""}
            L_novt:
            """)
        if c == O.n3 + 3: a("ds_read_b32 v12, v5")
        if c == O.n3 + 4:
            assert not later
            a("v_xor_b32 v3, s86, v12")
        a("s_waitcnt lgkmcnt(0)")
        a("s_barrier")
        stamp(a, f"c{c+1}")
        rr = [r for s in range(3) for r in reads(c + 1, s)]
        for r in rr[:4]: a(r)
        a(mfma(c, 3, 0))
        for r in rr[4:8]: a(r)
        a(mfma(c, 3, 1))
        for r in rr[8:]: a(r)
    a.c("last chunk: the first 32 rows finish first, their epilogue overlaps the MFMAs of the other 32")
    c = 15
    a("s_waitcnt lgkmcnt(8)")
    a(mfma(c, 0, 0))
    for r in reads(c, 3): a(r)
    a("s_waitcnt lgkmcnt(8)")
    a(mfma(c, 1, 0))
    a("s_waitcnt lgkmcnt(4)")
    a(mfma(c, 2, 0))
    a("s_waitcnt lgkmcnt(0)")
    a(mfma(c, 3, 0))
    a(mfma(c, 0, 1))
    a("s_nop 7\ns_nop 2")
    def epi(mi):
        A = ACC[mi]; t = 64 + 16*mi
        o = []
        for r in range(0, 8, 2):
            o.append(f"v_pk_mul_f32 v[{t+r}:{t+r+1}], v[{A+r}:{A+r+1}], s[44:45]")
        for r in range(8):
            o.append(f"v_exp_f32 v{t+r}, v{t+r}")
        for r in range(0, 8, 2):
            o.append(f"v_pk_mul_f32 v[{t+8+r}:{t+9+r}], v[{A+r}:{A+r+1}], v[{A+8+r}:{A+9+r}]")
        for r in range(0, 8, 2):
            o.append(f"v_pk_add_f32 v[{t+r}:{t+r+1}], v[{t+r}:{t+r+1}], 1.0 op_sel_hi:[1,0]")
        for r in range(8):
            o.append(f"v_rcp_f32 v{t+r}, v{t+r}")
        o.append("s_nop 0")
        for r in range(0, 8, 2):
            o.append(f"v_pk_mul_f32 v[{t+r}:{t+r+1}], v[{t+r}:{t+r+1}], v[{t+8+r}:{t+9+r}]")
        for d in range(4):
            o.append(f"v_cvt_pk_bf16_f32 v{4+4*mi+d}, v{t+2*d}, v{t+2*d+1}")
        o.append(f"buffer_store_dwordx4 v[{4+4*mi}:{7+4*mi}], v14, {rs(R_WS)}, 0 offen offset:{2048*mi}")
        return o
    for i, x in enumerate(epi(0)):
        if i == 0: a(mfma(c, 1, 1))
        if i == 5: a(mfma(c, 2, 1))
        if i == 8: a(mfma(c, 3, 1))
        a(x)
    for x in epi(1): a(x)
    stamp(a, "hst")
    a(f"""
    s_waitcnt vmcnt(0)
    buffer_store_dword v3, v15, {rs(R_WS)}, 0 offen
    """)
    stamp(a, "flg")
    a(f"""
    L_hload:
    s_mov_b32 s80, 0
    s_cmp_lg_u32 s53, 0
    s_cbranch_scc1 L_poll1
    v_and_b32 v22, 7, v2
    v_lshl_add_u32 v22, v22, 7, s91
    L_pz0:
    buffer_load_dword v21, v22, {rs(R_WS)}, 0 offen sc1
    buffer_load_dword v20, v18, {rs(R_WS)}, 0 offen sc1
    s_add_u32 s80, s80, 1
    s_cmp_ge_u32 s80, {O.kfast}
    s_waitcnt vmcnt(0)
    v_cmp_ne_u32 vcc, v12, v21
    s_cbranch_vccz L_pz0_ok
    s_cbranch_scc1 L_poll1
    v_cmp_ne_u32 vcc, v3, v20
    s_cbranch_vccz L_go
    s_sleep 2
    s_branch L_pz0
    L_pz0_ok:
    v_mov_b32 v21, {SY_LDS + 36}
    v_cmp_ne_u32 vcc, v3, v20
    ds_write_b32 v21, v12
    s_waitcnt lgkmcnt(0)
    s_cbranch_vccz L_go
    L_poll1:
    buffer_load_dword v20, v18, {rs(R_WS)}, 0 offen sc1
    s_add_u32 s80, s80, 1
    s_cmp_ge_u32 s80, {O.kfast}
    s_cbranch_scc1 L_slow
    s_waitcnt vmcnt(0)
    v_cmp_ne_u32 vcc, v3, v20
    s_cbranch_vccz L_go
    s_sleep {O.sl1}
    s_branch L_poll1
    L_go:
    """)
    stamp(a, "go")
    def hload(s):
        a(f"s_add_u32 m0, s55, {s*4096}")
        a(f"s_add_u32 s57, s{82 if s < 7 else 83}, {s*8192}")
        a(f"buffer_load_dwordx4 v19, {rs(R_WS)}, s57 offen sc1 lds")
    hl = 0
    while hl < O.hlead:
        hload(hl); hl += 1
    for gi, g in enumerate(groups):
        a(f"s_waitcnt vmcnt({hl - 1 - g[-1]})")
        a("s_barrier")
        for _ in range(len(groups[min(gi + 1, len(groups) - 1)])):
            if hl < 14:
                hload(hl); hl += 1
    stamp_flush(a)
    a.c("a producer publishes the write-through copy of h unless its whole group is seen on this die")
    a(f"""
    s_cmp_eq_u32 s90, 0
    s_cbranch_scc1 L_nob
    buffer_load_dword v20, v29, {rs(R_WS)}, 0 offen sc1
    s_waitcnt vmcnt(0)
    v_cmp_ne_u32 vcc, v3, v20
    s_cbranch_vccz L_nob
    """)
    sendb(a)
    a.c("one wave of the launch moves the epoch on: d_debug first, so that a late reader can tell")
    a(f"""
    L_nob:
    s_lshl_b32 s54, s2, 3
    s_add_u32 s54, s54, s53
    s_cmp_eq_u32 s54, {255*8 + 3}
    s_cbranch_scc0 L_front_end
    v_mov_b32 v3, 0
    v_mov_b32 v4, {EP_OFF}
    s_mov_b64 exec, 1
    global_store_dword v3, v12, s[14:15] sc1
    s_waitcnt vmcnt(0)
    global_store_dword v4, v12, s[16:17] sc1
    L_front_end:
    s_endpgm
    """)
    a.c("the producers are not all on this die (or are very late): fall back to the write-through copies")
    a("""
    L_slow:
    s_cmp_eq_u32 s90, 0
    s_cbranch_scc1 L_slow_sent
    """)
    sendb(a)
    a(f"""
    s_mov_b32 s90, 0
    L_slow_sent:
    s_movk_i32 s57, {FB_OFF - FA_OFF}
    s_mov_b32 s80, 0
    L_slow_poll:
    buffer_load_dword v20, v18, {rs(R_WS)}, 0 offen sc1
    buffer_load_dword v21, v18, {rs(R_WS)}, s57 offen sc1
    s_add_u32 s80, s80, 1
    s_waitcnt vmcnt(0)
    v_cmp_ne_u32 vcc, v3, v20
    s_cbranch_vccz L_go
    v_cmp_ne_u32 vcc, v12, v21
    s_cbranch_vccz L_slow_b
    s_sleep 8
    s_cmp_lt_u32 s80, {SPIN}
    s_cbranch_scc1 L_slow_poll
    L_slow_b:
    s_add_u32 s82, s82, {HB_OFF - HA_OFF}
    s_add_u32 s83, s83, {HB_OFF - HA_OFF}
    s_branch L_go
    """)
    a("L_code_end:")
    return a

if __name__ == "__main__":
    opts(sys.argv[2:])
    a = gen()
    hdr = HEADER + f"; @launch grid=(256,1,1) block=(512,1,1) lds={LDS}\n.amdgcn_target \"amdgcn-amd-amdhsa--gfx950\"\n"
    open(sys.argv[1], "w").write(hdr + a.text() + kdesc(KN, NV + NA, NV))
```

```python
import os, sys
from asmlib import *

KN = "standalone__swiglu_ffn__sampling_kernel"
X_B, W_B, OUT_B, WS_B = 128*1024*2, 1024*3584*2, 128*1024*2, 268435456
FA_OFF = 0
FB_OFF = FA_OFF + 4096
EP_OFF = FA_OFF + 8192
RG_OFF = FA_OFF + 12288
PZ_OFF = FA_OFF + 16384
HA_OFF = 65536
P_OFF = 1 << 20
HB_OFF = (3 << 20) + HA_OFF
ST_OFF = 8 << 20
R_X, R_G, R_U, R_D, R_WS, R_OUT = 20, 24, 28, 32, 36, 40
WD_LDS = 98304
SY_LDS = WD_LDS + 57344
LDS = SY_LDS + 64
SPIN = int(os.environ.get("DIAG_SPIN", 1 << 18))
NV, NA = 96, 160

class O:
    stamp = 0; sync = 1; sw = 4; endwait = 1
    kfast = 64; sl1 = 1; sl2 = 0
    xg = 4; xlead = 2; r2 = 8; r3 = 13; hold = 6; wdk = 3; touch = 1; npf0 = 3
    wd13 = 0; wd14 = 5; hlead = 5; fine = 3
    NP = 8; N1 = 8; cap = 5; slk = 1
    fdef = 0; bdef = 0; cp0 = 1; cp1 = 0; roll = 0; upd = 0; vt = 0; dfl = 0; dord = 0; pfl = 0; prio = 0; vtc = 7; n2 = 5; n3 = 9
PTS = {}
def opts(argv):
    for x in argv:
        k, v = x.split("=")
        if k == "pts":
            PTS.clear(); PTS["start"] = 0
            for i, nm in enumerate(v.split(",")): PTS[nm] = i + 1
            O.stamp = 1
        else:
            assert hasattr(O, k), k
            setattr(O, k, int(v))
def rs(r): return f"s[{r}:{r+3}]"
def stamp(a, name):
    if O.stamp and name in PTS:
        idx = PTS[name]
        a(f"s_memrealtime s[{64+2*idx}:{65+2*idx}]")
_fl = [0]
def stamp_flush(a):
    if not O.stamp: return
    _fl[0] += 1
    L = f"L_sf{_fl[0]}"
    a(f"""
    s_memrealtime s[78:79]
    s_cmp_lg_u32 s53, {O.sw}
    s_cbranch_scc1 {L}
    s_waitcnt lgkmcnt(0)
    """)
    for i in range(8):
        a(f"v_mov_b32 v{80+i}, s{64+2*i}")
    a(f"""
    s_lshl_b32 s63, s2, 5
    s_add_u32 s63, s63, {ST_OFF}
    v_mov_b32 v88, s63
    s_mov_b64 exec, 1
    buffer_store_dwordx4 v[80:83], v88, {rs(R_WS)}, 0 offen
    buffer_store_dwordx4 v[84:87], v88, {rs(R_WS)}, 0 offen offset:16
    s_mov_b64 exec, -1
    {L}:
    """)
def lines(txt):
    return [x.strip() for x in txt.split("\n") if x.strip()]

def pf_role(a, tag):
    a(f"""
    s_mov_b32 s50, 1
    s_cmp_ge_u32 s52, 3
    s_addc_u32 s51, s52, 0
    s_cmp_ge_u32 s52, 10
    s_addc_u32 s51, s51, 0
    s_mov_b32 s46, 0
    s_cmp_ge_u32 s52, 14
    s_cbranch_scc0 L_pf_role_{tag}
    s_and_b32 s50, s52, 1
    s_mul_i32 s46, s50, 7
    s_cmp_ge_u32 s52, 16
    s_cselect_b32 s51, 11, 3
    L_pf_role_{tag}:
    """)
P1_ROLE = """
    s_mov_b32 s50, 0
    s_cmp_ge_u32 s49, 3
    s_addc_u32 s51, s49, 0
    s_cmp_ge_u32 s49, 10
    s_addc_u32 s51, s51, 0
    s_mov_b32 s46, 0
"""
FRONT_SETUP = f"""
    s_getreg_b32 s86, hwreg(HW_REG_XCC_ID, 0, 4)
    s_lshl_b32 s86, s86, 24
    s_lshl_b32 s55, s53, 10
    s_lshl_b32 s82, s46, 13
    s_sub_u32 s83, 0, s82
    s_mul_i32 s54, s48, 112
    s_lshl_b32 s57, s50, 2
    s_add_u32 s54, s54, s57
    v_add_u32 v6, s54, v1
    v_lshlrev_b32 v6, 10, v6
    v_lshl_add_u32 v19, v2, 4, v6
    v_add_u32 v19, {HA_OFF}, v19
    s_lshl_b32 s54, s48, 1
    s_add_u32 s54, s54, s50
    s_lshl_b32 s54, s54, 7
    s_add_u32 s54, s54, {FA_OFF}
    v_min_u32 v6, 27, v2
    v_lshl_add_u32 v18, v6, 2, s54
    s_lshl_b32 s54, s48, 7
    s_add_u32 s54, s54, {RG_OFF}
    v_and_b32 v6, 31, v2
    v_lshl_add_u32 v29, v6, 2, s54
    v_and_b32 v7, 1, v6
    v_lshlrev_b32 v7, 7, v7
    v_lshrrev_b32 v8, 1, v6
    v_lshl_add_u32 v7, v8, 4, v7
    v_cmp_gt_u32 vcc, 14, v6
    s_lshl_b32 s54, s48, 8
    s_add_u32 s54, s54, {FA_OFF}
    v_add_u32 v7, s54, v7
    v_cndmask_b32 v29, v29, v7, vcc
    s_cmp_lt_u32 s49, 14
    s_cselect_b32 s54, 14, 0
    s_add_u32 s54, s54, s49
    s_lshl_b32 s54, s54, 10
    s_add_u32 s91, s54, {PZ_OFF}
    s_mov_b32 s38, {WS_B}
    s_mov_b32 s39, 0x20000
    s_mov_b64 s[36:37], s[16:17]
"""
def back_setup():
    p = [f"""
    s_mov_b64 s[32:33], s[10:11]
    s_mov_b32 s34, {W_B}
    s_mov_b32 s35, 0x20000
    s_mov_b64 s[36:37], s[16:17]
    s_mov_b32 s38, {WS_B}
    s_mov_b32 s39, 0x20000
    s_mov_b64 s[40:41], s[12:13]
    s_mov_b32 s42, {OUT_B}
    s_mov_b32 s43, 0x20000
    s_and_b32 s55, s53, 3
    s_lshl_b32 s55, s55, 10
    s_lshl_b32 s84, s46, 16
    s_sub_u32 s85, 0, s84
    """, f"""
    v_lshrrev_b32 v3, 3, v2
    v_and_b32 v4, 7, v2
    v_and_b32 v6, 6, v3
    v_xor_b32 v4, v4, v6
    v_lshl_add_u32 v3, v1, 3, v3
    s_mul_i32 s60, s48, 448
    v_add_u32 v3, s60, v3
    v_lshlrev_b32 v3, 11, v3
    s_lshl_b32 s60, s51, 7
    v_add_u32 v3, s60, v3
    v_lshl_add_u32 v17, v4, 4, v3
    v_lshlrev_b32 v3, 10, v1
    v_lshl_add_u32 v19, v2, 4, v3
    """, f"""
    v_lshrrev_b32 v3, 4, v2
    v_bfe_u32 v4, v2, 2, 2
    v_and_b32 v7, 1, v3
    v_lshrrev_b32 v6, 1, v3
    v_lshlrev_b32 v6, 4, v6
    v_lshl_add_u32 v6, v7, 2, v6
    v_add_u32 v6, v6, v4
    v_lshlrev_b32 v6, 7, v6
    v_and_b32 v8, 3, v2
    v_lshl_add_u32 v6, v8, 3, v6
    v_add_u32 v6, {WD_LDS}, v6
    v_lshrrev_b32 v4, 1, v4
    v_lshl_add_u32 v4, v7, 1, v4
    """, "\n".join(f"v_xor_b32 v7, {t}, v4\nv_lshl_add_u32 v{20+t}, v7, 5, v6" for t in range(4)), f"""
    v_bfe_u32 v4, v2, 3, 1
    v_lshl_add_u32 v6, v1, 1, v4
    s_lshl_b32 s60, s49, 3
    v_add_u32 v6, s60, v6
    v_lshlrev_b32 v6, 3, v6
    v_add_u32 v6, s48, v6
    v_lshlrev_b32 v6, 10, v6
    v_lshl_add_u32 v6, v3, 7, v6
    v_and_b32 v7, 7, v2
    v_lshl_add_u32 v6, v7, 4, v6
    v_add_u32 v8, {P_OFF}, v6
    """, f"""
    s_cmp_lt_u32 s49, 14
    s_cselect_b32 s61, 14*8, 0
    s_add_u32 s61, s61, s60
    s_lshl_b32 s61, s61, 7
    s_add_u32 s61, s61, {PZ_OFF}
    v_lshl_add_u32 v18, v7, 7, s61
    s_add_u32 s60, s60, s48
    s_lshl_b32 s60, s60, 13
    s_add_u32 s60, s60, {P_OFF}
    v_and_b32 v6, 15, v2
    v_lshl_add_u32 v6, v1, 4, v6
    v_lshlrev_b32 v6, 4, v6
    v_lshl_add_u32 v6, v3, 11, v6
    v_add_u32 v6, s60, v6
    """, f"""
    s_lshl_b32 s60, s50, 6
    s_lshl_b32 s61, s48, 3
    s_add_u32 s60, s60, s61
    v_add_u32 v7, s60, v7
    v_lshlrev_b32 v7, 11, v7
    v_lshl_add_u32 v7, v4, 3, v7
    v_and_b32 v4, 1, v1
    v_lshl_add_u32 v7, v4, 4, v7
    v_lshrrev_b32 v4, 1, v1
    v_lshl_add_u32 v7, v4, 6, v7
    v_and_b32 v4, 1, v3
    v_lshl_add_u32 v7, v4, 2, v7
    v_lshrrev_b32 v4, 1, v3
    v_lshl_add_u32 v7, v4, 5, v7
    s_lshl_b32 s60, s51, 7
    v_add_u32 v7, s60, v7
    """]
    return p
LDS_INIT = f"""
    v_mov_b32 v16, {SY_LDS}
    v_lshl_add_u32 v14, v1, 2, v16
    v_mov_b32 v9, 0
    ds_write_b32 v14, v9
    ds_write_b32 v14, v9 offset:16
    ds_write_b32 v16, v9 offset:36
    v_mov_b32 v15, -1
"""
def nonce1(a, line):
    a(f"""
    s_movk_i32 s88, {EP_OFF}
    s_load_dword s59, s[16:17], s88
    s_load_dword s87, s[14:15], 0
    """)
    if line:
        a(f"""
        s_lshl_b32 s88, s48, 7
        s_add_u32 s88, s88, {RG_OFF}
        s_load_dword s87, s[16:17], s88
        s_add_u32 s89, s88, 64
        s_load_dword s87, s[16:17], s89
        """)
def nonce2(a, vn):
    a(f"""
    v_mov_b32 v30, 0
    s_add_u32 s59, s59, 1
    s_bitset1_b32 s59, 31
    global_load_dword v{vn}, v30, s[14:15] sc1
    """)
def nonce3(a, vn):
    a(f"""
    v_cmp_eq_u32 vcc, 0, v{vn}
    v_mov_b32 v30, s59
    v_mov_b32 v28, {SY_LDS + 32}
    v_cndmask_b32 v{vn}, v{vn}, v30, vcc
    ds_write_b32 v28, v{vn}
    """)
def wd_list():
    return [f"s_add_u32 m0, s55, {WD_LDS + s*4096}\ns_add_u32 s57, s{84 if s < 7 else 85}, {s*65536}\nbuffer_load_dwordx4 v17, {rs(R_D)}, s57 offen lds" for s in range(14)]
def sendb(a):
    a(f"""
    s_mov_b32 s57, {HB_OFF - HA_OFF}
    s_movk_i32 s58, {FB_OFF - FA_OFF}
    buffer_store_dwordx4 v[4:7], v14, {rs(R_WS)}, s57 offen sc1
    buffer_store_dwordx4 v[8:11], v14, {rs(R_WS)}, s57 offen offset:2048 sc1
    s_waitcnt vmcnt(0)
    buffer_store_dword v12, v15, {rs(R_WS)}, s58 offen sc1
    """)

def update(a, done):
    a.c("one wave of the launch moves the epoch on: d_debug first, so that a late reader can tell")
    a(f"""
    s_lshl_b32 s54, s2, 3
    s_add_u32 s54, s54, s53
    s_cmp_eq_u32 s54, {255*8 + 3}
    s_cbranch_scc0 {done}
    v_mov_b32 v26, 0
    v_mov_b32 v27, {EP_OFF}
    s_mov_b64 exec, 1
    global_store_dword v26, v12, s[14:15] sc1
    s_waitcnt vmcnt(0)
    global_store_dword v27, v12, s[16:17] sc1
    s_mov_b64 exec, -1
    {done}:
    """)

def gen():
    a = Asm()
    kstart(a, KN)
    if O.stamp and O.sync:
        a("""
        s_memrealtime s[44:45]
        s_waitcnt lgkmcnt(0)
        s_add_u32 s46, s44, 612
        s_and_b32 s46, s46, 0xfffffe00
        L_sync:
        s_memrealtime s[44:45]
        s_waitcnt lgkmcnt(0)
        s_sub_u32 s47, s44, s46
        s_cmp_lt_i32 s47, 0
        s_cbranch_scc1 L_sync
        """)
    stamp(a, "start")
    a(f"""
    s_load_dwordx8 s[4:11], s[0:1], 0
    s_load_dwordx4 s[12:15], s[0:1], 32
    s_load_dwordx2 s[16:17], s[0:1], 48
    v_lshrrev_b32 v1, 6, v0         ; wave
    s_cmp_ge_u32 s2, 256
    s_cbranch_scc1 L_end
    v_readfirstlane_b32 s53, v1
    s_and_b32 s48, s2, 7            ; j
    s_lshr_b32 s49, s2, 3           ; q
    v_and_b32 v2, 63, v0            ; lane
    s_mov_b32 s22, {X_B}
    s_mov_b32 s23, 0x20000
    s_mov_b32 s26, {W_B}
    s_mov_b32 s27, 0x20000
    """)
    if O.cp0:
        a.c("wave 1 of every workgroup brings four lines of the kernel's code into this die's L2")
        a(f"""
        s_cmp_eq_u32 s53, 1
        s_cbranch_scc0 L_nocp
        s_getpc_b64 s[44:45]
        L_pc:
        v_and_b32 v3, 3, v2
        v_lshl_add_u32 v3, s49, 2, v3
        v_min_u32 v3, (L_code_end-L_pc-4)/128, v3
        v_lshlrev_b32 v3, 7, v3
        global_load_dword v31, v3, s[44:45]
        L_nocp:
        """)
    a(f"""
    s_cmp_lt_u32 s49, 14
    s_cbranch_scc1 L_p1
    s_sub_u32 s52, s49, 14          ; p
    s_cmp_lg_u32 s53, 0
    s_cbranch_scc1 L_pf_other
    """)
    a.c("prefetch wave: per 64-row chunk 50 lines of Wg (odd p) or Wu (even p), and 8 rows of x")
    a(f"""
    s_lshr_b32 s54, s52, 1
    s_mul_i32 s54, s54, 50
    v_add_u32 v3, s54, v2
    v_mul_u32_u24 v5, 9363, v3
    v_lshrrev_b32 v5, 16, v5        ; row = i / 7
    v_mul_u32_u24 v6, 7, v5
    v_sub_u32 v6, v3, v6            ; column = i % 7
    v_mul_u32_u24 v5, 7168, v5
    v_lshl_add_u32 v5, v6, 7, v5
    s_mul_i32 s54, s48, 896
    v_add_u32 v5, s54, v5
    v_cmp_gt_u32 vcc, 50, v2
    s_movk_i32 s54, 448
    v_cmp_gt_u32 s[44:45], s54, v3
    v_bfrev_b32 v7, 2
    s_lshl_b32 s54, s52, 3
    s_and_b64 vcc, vcc, s[44:45]
    v_lshrrev_b32 v3, {O.xg.bit_length() - 1}, v2
    v_add_u32 v3, s54, v3
    v_lshlrev_b32 v6, 11, v3
    v_and_b32 v3, {O.xg - 1}, v2
    v_lshl_add_u32 v6, v3, 7, v6
    v_cndmask_b32 v10, v7, v5, vcc
    v_cmp_gt_u32 vcc, {8 * O.xg}, v2
    s_bitcmp1_b32 s52, 0
    s_nop 0
    v_cndmask_b32 v11, v7, v6, vcc
    s_waitcnt lgkmcnt(0)
    s_cselect_b64 s[24:25], s[6:7], s[8:9]
    s_mov_b64 s[20:21], s[4:5]
    """)
    stamp(a, "karg")
    npf = [0]
    def pf(c):
        for g_ in range(16 // O.xg):
            if max(0, g_ * O.xg - O.xlead) == c:
                so = "0"
                if g_:
                    a(f"s_movk_i32 s58, {g_ * O.xg * 128}"); so = "s58"
                a(f"buffer_load_dword v22, v11, {rs(R_X)}, {so} offen"); npf[0] += 1
        so = "0"
        if c:
            a(f"s_mov_b32 s57, {c*64*7168}"); so = "s57"
        a(f"buffer_load_dword v20, v10, {rs(R_G)}, {so} offen {['', 'sc1', 'sc0', 'sc0 sc1'][O.pfl]}"); npf[0] += 1
    for c in range(O.npf0): pf(c)
    a("s_branch L_pf_go_on")
    a(f"""
    L_p1:
    s_and_b32 s47, s49, 1
    s_lshr_b32 s52, s49, 1
    s_mul_i32 s54, s48, 7
    s_add_u32 s52, s52, s54
    s_cmp_lt_u32 s53, 4
    s_cbranch_scc1 L_front
    v_and_b32 v1, 3, v1
    s_lshl_b32 s54, s52, 7
    v_lshrrev_b32 v3, 3, v2
    v_and_b32 v4, 7, v2
    v_lshl_add_u32 v5, v1, 4, v3
    v_mul_u32_u24 v6, 7168, v5
    v_add_u32 v6, s54, v6
    v_and_b32 v7, 2, v3
    v_xor_b32 v7, v7, v4
    v_lshl_add_u32 v10, v7, 4, v6
    v_xor_b32 v11, 64, v10
    v_lshrrev_b32 v7, 1, v3
    v_xor_b32 v7, v7, v4
    s_lshl_b32 s54, s47, 6
    v_add_u32 v5, s54, v5
    v_lshlrev_b32 v5, 11, v5
    v_lshl_add_u32 v12, v7, 4, v5
    v_xor_b32 v13, 64, v12
    v_add_u32 v13, 0x4000, v13
    s_and_b32 s56, s53, 3
    s_lshl_b32 s56, s56, 11
    s_mov_b32 s30, {W_B}
    s_mov_b32 s31, 0x20000
    """)
    a(LDS_INIT)
    a("""
    s_waitcnt lgkmcnt(0)
    s_mov_b64 s[20:21], s[4:5]
    s_mov_b64 s[24:25], s[6:7]
    s_mov_b64 s[28:29], s[8:9]
    """)
    stamp(a, "karg")
    Q = []
    def dma(c):
        sl = (c % 4) * 24576
        L = list(enumerate([(12, R_X, c*128), (13, R_X, c*128), (10, R_G, c*458752), (10, R_G, c*458752+57344), (11, R_U, c*458752), (11, R_U, c*458752+57344)]))
        if O.dord == 1: L = [L[i] for i in (0, 2, 4, 1, 3, 5)]
        if O.dord == 2: L = [L[i] for i in (2, 3, 4, 5, 0, 1)]
        for k, (v, r, so) in L:
            a(f"s_add_u32 m0, s56, {sl + (k//2)*8192 + (k%2)*1024}\ns_mov_b32 s57, {so}\nbuffer_load_dwordx4 v{v}, {rs(r)}, s57 offen {['', 'sc1', 'sc0', 'sc0 sc1'][O.dfl]} lds")
            Q.append(c)
    dma(0)
    stamp(a, "d0")
    a("s_branch L_back_go_on")
    a("L_front:")
    stamp(a, "fin")
    a(f"""
    v_bfe_u32 v4, v2, 4, 1
    v_lshrrev_b32 v5, 5, v2         ; k half
    v_bfe_u32 v6, v2, 2, 2
    v_lshrrev_b32 v7, 1, v6
    v_lshl_add_u32 v7, v4, 1, v7
    v_xor_b32 v7, v7, v1
    v_lshl_add_u32 v6, v5, 3, v6
    v_lshlrev_b32 v6, 7, v6
    v_lshl_add_u32 v6, v7, 5, v6
    v_lshl_add_u32 v6, v4, 13, v6
    v_and_b32 v7, 3, v2
    v_lshl_add_u32 v6, v7, 3, v6
    v_add_u32 v16, 0x2000, v6
    v_and_b32 v6, 31, v2
    v_bfe_u32 v7, v6, 1, 3
    v_xor_b32 v7, v7, v5
    v_lshlrev_b32 v6, 7, v6
    """)
    for s in range(4):
        a(f"v_xor_b32 v8, {2*s}, v7")
        a(f"v_lshl_add_u32 v{20+s}, v8, 4, v6")
    a("s_branch L_front_go_on")

    a("L_pf_go_on:")
    if not O.cp0:
        a(f"""
        s_cmp_lt_u32 s52, 16
        s_cbranch_scc1 L_nocp
        s_getpc_b64 s[44:45]
        L_pc:
        s_sub_u32 s44, s44, L_pc-{KN}
        s_subb_u32 s45, s45, 0
        s_and_b32 s54, s52, 1
        s_lshl_b32 s54, s54, 6
        v_add_u32 v3, s54, v2
        v_min_u32 v3, (L_code_end-{KN}-4)/128, v3
        v_lshlrev_b32 v3, 7, v3
        global_load_dword v23, v3, s[44:45]
        L_nocp:
        """)
    if O.touch:
        a.c("one first touch per workgroup, so that the address translations are there when they are needed")
        a("""
        s_cmp_lt_u32 s52, 14
        s_cselect_b64 s[44:45], s[16:17], s[12:13]
        s_cmp_lt_u32 s52, 12
        s_cselect_b64 s[44:45], s[10:11], s[44:45]
        s_cmp_lt_u32 s52, 8
        s_cselect_b64 s[44:45], s[8:9], s[44:45]
        s_cmp_lt_u32 s52, 4
        s_cselect_b64 s[44:45], s[6:7], s[44:45]
        s_and_b32 s54, s52, 3
        s_lshl_b32 s54, s54, 21
        s_cmp_lt_u32 s52, 14
        s_cselect_b32 s54, s54, 0
        s_load_dword s87, s[44:45], s54
        """)
    nonce1(a, True)
    for c in range(O.npf0, 16):
        if c == O.r2:
            a("""
            s_getreg_b32 s86, hwreg(HW_REG_XCC_ID, 0, 4)
            s_lshl_b32 s86, s86, 24
            s_lshl_b32 s89, s49, 2
            s_add_u32 s88, s88, s89
            v_mov_b32 v31, s88
            s_waitcnt lgkmcnt(0)
            """)
            nonce2(a, 12); mark = npf[0]
        if c == O.r3:
            a(f"s_waitcnt vmcnt({npf[0] - mark})")
            nonce3(a, 12)
            a("v_xor_b32 v30, s86, v12")
            stamp(a, "non")
        pf(c)
    stamp(a, "hia")
    if O.hold >= 0: a(f"s_waitcnt vmcnt({O.hold})")
    stamp(a, "hib")
    a.c("announce this workgroup's die; fill its inbox and that of the paired producer with the not-yet-written pattern;")
    a.c("bring the lines of the h buffer into L2 before they are written")
    a(f"""
    global_store_dword v31, v30, s[16:17]
    s_lshl_b32 s54, s49, 3
    s_add_u32 s54, s54, s48
    s_lshl_b32 s57, s54, 13
    s_add_u32 s57, s57, {P_OFF}
    v_lshl_add_u32 v3, v2, 4, s57
    v_add_u32 v8, 0x1000, v3
    s_lshl_b32 s54, s54, 7
    s_add_u32 s54, s54, {PZ_OFF}
    v_mov_b32 v13, s54
    v_mov_b32 v4, -1
    v_mov_b32 v5, -1
    v_mov_b32 v6, -1
    v_mov_b32 v7, -1
    s_cmp_lt_u32 s52, 14
    """)
    for k in range(8):
        a(f"global_store_dwordx4 v{3 if k < 4 else 8}, v[4:7], s[16:17] offset:{(k % 4)*1024} sc1")
    a(f"""
    s_cbranch_scc0 L_pz_one
    v_subrev_u32 v3, {14*8*8192}, v3
    v_subrev_u32 v8, {14*8*8192}, v8
    """)
    for k in range(8):
        a(f"global_store_dwordx4 v{3 if k < 4 else 8}, v[4:7], s[16:17] offset:{(k % 4)*1024} sc1")
    a(f"""
    L_pz_one:
    s_lshl_b32 s54, s52, 6
    v_add_u32 v3, s54, v2
    v_min_u32 v3, 895, v3
    s_mul_i32 s54, s48, 114688
    s_add_u32 s54, s54, {HA_OFF}
    v_lshl_add_u32 v3, v3, 7, s54
    global_load_dword v24, v3, s[16:17]
    s_waitcnt lgkmcnt(0)
    s_barrier
    s_waitcnt vmcnt(1)
    global_store_dword v13, v12, s[16:17] sc1
    s_barrier
    """)
    stamp(a, "pfi")
    a("s_branch L_pf_front")
    a(f"""
    L_pf_other:
    s_cmp_ge_u32 s53, 4
    s_cbranch_scc1 L_back_pf
    s_waitcnt lgkmcnt(0)
    s_barrier
    s_barrier
    """)
    if O.vt & 2:
        a("""
        s_cmp_eq_u32 s53, 2
        s_cbranch_scc0 L_pf_front
        v_mov_b32 v6, 0
        global_load_dword v31, v6, s[12:13]
        """)
    if O.cp1:
        a.c("touch the code of the later phases again: it is the oldest resident of the L2 by now")
        a(f"""
        s_cmp_eq_u32 s53, 1
        s_cbranch_scc0 L_pf_front
        s_getpc_b64 s[44:45]
        L_pc1:
        v_min_u32 v3, 5, v2
        s_mul_i32 s54, s52, 6
        v_add_u32 v3, s54, v3
        v_min_u32 v3, (L_code_end-L_pc1-4)/128, v3
        v_lshlrev_b32 v3, 7, v3
        global_load_dword v31, v3, s[44:45]
        """)
    a(f"""
    L_pf_front:
    """)
    pf_role(a, "f")
    a(FRONT_SETUP)
    a(f"""
    v_mov_b32 v5, {SY_LDS + 32}
    ds_read_b32 v12, v5
    s_mov_b32 s90, 0
    v_bfrev_b32 v14, 2
    v_bfrev_b32 v15, 2
    s_waitcnt lgkmcnt(0)
    v_xor_b32 v3, s86, v12
    """)
    if O.upd == 0: update(a, "L_upd_done")
    a(f"""
    s_barrier
    s_branch L_hload
    L_back_pf:
    v_and_b32 v1, 3, v1
    """)
    a(LDS_INIT)
    pf_role(a, "b")
    a("s_waitcnt lgkmcnt(0)")
    for p in back_setup(): a(p)
    a("s_barrier")
    wdl = wd_list()
    for i, d in enumerate(wdl):
        if i == O.wdk: a("s_barrier")
        a(d)
    a("ds_read_b32 v5, v16 offset:32")
    a("s_branch L_p2")

    a("L_back_go_on:")
    if O.prio & 1: a("s_setprio 1")
    dma(1)
    stamp(a, "d1")
    nonce1(a, False)
    a(P1_ROLE)
    pieces = back_setup()
    if not O.bdef:
        for p in pieces: a(p)
        pieces = []
    issued, wd, c0 = 3, 0, 0
    if O.roll:
        assert not pieces
        a("s_waitcnt lgkmcnt(0)")
        nonce2(a, 5)
        dma(2)
        a(f"""
        s_movk_i32 s62, {3*128}
        s_mov_b32 s63, {3*458752}
        s_mov_b32 s89, {3*458752 + 57344}
        s_mov_b32 s81, 0
        L_ld_loop:
        """)
        for c in range(4):
            sl = ((c + 3) % 4) * 24576
            a(f"""
            s_waitcnt vmcnt(12)
            s_barrier
            s_add_u32 m0, s56, {sl}
            s_nop 0
            buffer_load_dwordx4 v12, {rs(R_X)}, s62 offen lds
            s_add_u32 m0, s56, {sl + 1024}
            s_nop 0
            buffer_load_dwordx4 v13, {rs(R_X)}, s62 offen lds
            s_add_u32 m0, s56, {sl + 8192}
            s_addk_i32 s62, 128
            buffer_load_dwordx4 v10, {rs(R_G)}, s63 offen lds
            s_add_u32 m0, s56, {sl + 8192 + 1024}
            s_nop 0
            buffer_load_dwordx4 v10, {rs(R_G)}, s89 offen lds
            s_add_u32 m0, s56, {sl + 16384}
            s_nop 0
            buffer_load_dwordx4 v11, {rs(R_U)}, s63 offen lds
            s_add_u32 m0, s56, {sl + 16384 + 1024}
            s_add_u32 s63, s63, 458752
            buffer_load_dwordx4 v11, {rs(R_U)}, s89 offen lds
            s_add_u32 s89, s89, 458752
            """)
        a("""
        s_add_u32 s81, s81, 1
        s_cmp_lt_u32 s81, 3
        s_cbranch_scc1 L_ld_loop
        """)
        for c in range(3, 15): Q.extend([c] * 6)
        Q.insert(0, "n")
        issued, c0 = 15, 12
        O.n2, O.n3 = -1, 12
    else:
        dma(2)
    for c in range(c0, 16):
        stamp(a, f"w{c}")
        a(f"s_waitcnt vmcnt({len(Q) - 1 - max(i for i, t in enumerate(Q) if t == c)})" + (" lgkmcnt(0)" if c == O.n3 + (1 if O.roll else 2) else ""))
        stamp(a, f"v{c}")
        a("s_barrier")
        stamp(a, f"c{c}")
        if c == O.n3:
            assert Q.index("n") < max(i for i, t in enumerate(Q) if t == c)
            nonce3(a, 5)
        if issued < 16:
            dma(issued); issued += 1
        else:
            n = min({13: O.wd13, 14: O.wd14, 15: 14}[c], 14 - wd)
            for d in wdl[wd:wd+n]:
                a(d); Q.append("d")
            wd += n
        if c == O.n2:
            a("s_waitcnt lgkmcnt(0)")
            nonce2(a, 5); Q.append("n")
        elif pieces and c >= O.bdef: a(pieces.pop(0))
    assert not pieces
    a("L_p2:")
    stamp(a, "p2in")
    def areg(slot, t, n, o=0):
        base = (slot*4 + t) * 4 + o
        return ar(base, n) if slot < 10 else vr(64 + base - 160, n)
    def areads(s, slot):
        out = []
        for t in range(4):
            out.append(f"ds_read_b64_tr_b16 {areg(slot, t, 2)}, v{20+t} offset:{s*4096}")
            out.append(f"ds_read_b64_tr_b16 {areg(slot, t, 2, 2)}, v{20+t} offset:{s*4096+1024}")
        return out
    def lsync(k):
        a(f"""
        ds_write_b32 v14, v15 offset:{16*k}
        L_sy{k}:
        ds_read_b128 v[40:43], v16 offset:{16*k}
        s_waitcnt lgkmcnt(0)
        v_and_b32 v40, v40, v41
        v_and_b32 v42, v42, v43
        v_and_b32 v40, v40, v42
        v_cmp_eq_u32 vcc, 0, v40
        s_cbranch_vccnz L_sy{k}
        """)
    NP, N1 = O.NP, O.N1
    a(f"s_waitcnt vmcnt({14 - N1})")
    lsync(0)
    stamp(a, "wd1")
    for s in range(N1):
        if s >= 1: a("s_waitcnt lgkmcnt(6)")
        for r in areads(s, s): a(r)
    if NP > N1:
        a(f"s_waitcnt vmcnt({14 - NP})")
        lsync(1)
        stamp(a, "wd2")
        for s in range(N1, NP):
            if s > N1: a("s_waitcnt lgkmcnt(6)")
            for r in areads(s, s): a(r)
    a(f"""
    s_cmp_lt_u32 s49, 14
    s_cbranch_scc1 L_nob2
    s_barrier
    L_nob2:
    s_waitcnt lgkmcnt(8)
    """)
    stamp(a, "rdy")
    AC = 24
    groups = {2: [[0],[1,2],[3,4],[5,6],[7,8],[9,10],[11,12],[13]],
              3: [[0],[1],[2,3],[4,5],[6,7],[8,9],[10,11],[12],[13]]}[O.fine]
    def breg(s): return 40 + 4*(s % 4)
    NI = len(groups) + 1
    it_of = {s_: gi + 1 for gi, g in enumerate(groups) for s_ in g}
    plan = [[] for _ in range(NI)]
    room = [0] + [O.cap * len(groups[i - 1]) for i in range(1, NI)]
    i = NI - 1
    for s_ in range(13, NP - 1, -1):
        for r in reversed(areads(s_, s_ % 12)):
            i = min(i, it_of[s_] - 1 - O.slk)
            while room[i] == 0: i -= 1
            assert i >= 1 and (s_ < 12 or i > it_of[s_ - 12]), (s_, i)
            plan[i].insert(0, (r, f"A{s_}")); room[i] -= 1
    LQ = ["P"] * 8
    landed = NP - 1
    def emit(x):
        a(x[0])
        if x[1]: LQ.append(x[1])
    for it in range(NI):
        prev = groups[it - 1] if it else []
        need = [f"B{s_}" for s_ in prev] + [f"A{s_}" for s_ in prev if s_ >= NP]
        if it == 1: need.append("P")
        if it == NI - 1: need.append("Z")
        w = ""
        top = max([int(x[1][1:]) for x in plan[it]], default=-1)
        if top > landed:
            w += f" vmcnt({13 - top})"; landed = top
        n = 8
        if need:
            for t_ in need: assert t_ in LQ and (t_[0] != "A" or LQ.count(t_) == 8), (it, t_)
            n = len(LQ) - 1 - max(len(LQ) - 1 - LQ[::-1].index(t_) for t_ in need)
            w += f" lgkmcnt({n})"
        if w: a("s_waitcnt" + w)
        items = []
        if it < len(groups):
            a("s_barrier")
            stamp(a, f"b{it}")
            if it == len(groups) - 1: stamp(a, "bl")
            items += [(f"ds_read_b128 {vr(breg(s_),4)}, v19 offset:{s_*4096}", f"B{s_}") for s_ in groups[it]]
            if it == len(groups) - 2: items.append(("ds_read_b32 v9, v16 offset:36", "Z"))
        else:
            items += [("v_cmp_ne_u32 vcc, v5, v9", None), ("s_mov_b32 s80, 0\ns_mov_b32 s44, 0xffff0000", None), ("s_cbranch_vccnz L_pz_wait\nL_pz_ok:", None)]
        if n + sum(1 for x in items + plan[it] if x[1]) > 15:
            plan[it][0] = (f"s_waitcnt lgkmcnt({15 - len(plan[it])})\n" + plan[it][0][0], plan[it][0][1])
        items += plan[it]
        if not prev:
            for x in items: emit(x)
        nm = 4 * len(prev); k = 0
        for s_ in prev:
            for t in range(4):
                cin = "0" if s_ == 0 else vr(AC+4*t, 4)
                a(f"v_mfma_f32_16x16x32_bf16 {vr(AC+4*t,4)}, {areg(s_ % 12, t, 4)}, {vr(breg(s_),4)}, {cin}")
                k += 1
                take = -(-len(items) // (nm - k + 1))
                for x in items[:take]: emit(x)
                items = items[take:]
    stamp(a, "mend")
    a("s_nop 0")
    for g in range(2):
        for i in range(4):
            if g == 0 and i == 2: a("s_nop 1")
            a(f"v_cvt_pk_bf16_f32 v{40+4*g+i}, v{AC+8*g+2*i}, v{AC+8*g+2*i+1}")
        for i in range(4):
            a(f"v_min_u32 v{40+4*g+i}, -2, v{40+4*g+i}")
        a(f"buffer_store_dwordx4 {vr(40+4*g,4)}, v8, {rs(R_WS)}, 0 offen offset:{g*512} sc1")
    stamp(a, "pst")
    a("s_waitcnt vmcnt(0)")
    stamp(a, "ack")
    a(f"""
    L_poll2:
    buffer_load_dwordx4 v[64:67], v6, {rs(R_WS)}, 0 offen sc1
    buffer_load_dwordx4 v[68:71], v6, {rs(R_WS)}, 0 offen offset:1024 sc1
    s_add_u32 s80, s80, 1
    s_cmp_ge_u32 s80, {SPIN}
    s_waitcnt vmcnt(1)
    v_max3_u32 v4, v64, v65, v66
    v_lshlrev_b32 v72, 16, v64
    v_and_b32 v73, s44, v64
    v_lshlrev_b32 v74, 16, v65
    v_and_b32 v75, s44, v65
    v_lshlrev_b32 v76, 16, v66
    v_and_b32 v77, s44, v66
    v_lshlrev_b32 v78, 16, v67
    v_and_b32 v79, s44, v67
    s_waitcnt vmcnt(0)
    v_max3_u32 v4, v4, v67, v68
    v_max3_u32 v5, v69, v70, v71
    v_max_u32 v4, v4, v5
    v_cmp_eq_u32 vcc, -1, v4
    s_cbranch_scc1 L_fin
    {"s_cbranch_vccnz L_poll2" if O.sl2 == 0 else f"s_cbranch_vccz L_fin"}
    {"" if O.sl2 == 0 else f"s_sleep {O.sl2}"}
    {"" if O.sl2 == 0 else "s_branch L_poll2"}
    L_fin:
    v_lshlrev_b32 v80, 16, v68
    v_and_b32 v81, s44, v68
    v_lshlrev_b32 v82, 16, v69
    v_and_b32 v83, s44, v69
    v_lshlrev_b32 v84, 16, v70
    v_and_b32 v85, s44, v70
    v_lshlrev_b32 v86, 16, v71
    v_and_b32 v87, s44, v71
    v_pk_add_f32 v[72:73], v[72:73], v[80:81]
    v_pk_add_f32 v[76:77], v[76:77], v[84:85]
    v_pk_add_f32 v[74:75], v[74:75], v[82:83]
    v_pk_add_f32 v[78:79], v[78:79], v[86:87]
    s_nop 0
    v_permlane32_swap_b32 v72, v76
    v_permlane32_swap_b32 v73, v77
    v_permlane32_swap_b32 v74, v78
    v_permlane32_swap_b32 v75, v79
    v_pk_add_f32 v[72:73], v[72:73], v[76:77]
    v_pk_add_f32 v[74:75], v[74:75], v[78:79]
    s_nop 1
    v_permlane16_swap_b32 v72, v74
    v_permlane16_swap_b32 v73, v75
    s_nop 0
    v_pk_add_f32 v[72:73], v[72:73], v[74:75]
    v_cvt_pk_bf16_f32 v64, v72, v73
    buffer_store_dword v64, v7, {rs(R_OUT)}, 0 offen
    {"s_waitcnt vmcnt(0)" if (O.stamp and O.endwait) else ""}
    """)
    if "npoll" in PTS:
        i = PTS["npoll"]
        a(f"s_waitcnt lgkmcnt(0)\ns_mul_i32 s{64+2*i}, s80, 100\ns_add_u32 s{64+2*i}, s{64+2*i}, s64")
    stamp_flush(a)
    a("L_end:")
    a("s_endpgm")
    a(f"""
    L_pz_wait:
    s_sleep 4
    buffer_load_dword v9, v18, {rs(R_WS)}, 0 offen sc1
    s_add_u32 s80, s80, 1
    s_cmp_ge_u32 s80, {SPIN}
    s_waitcnt vmcnt(0)
    v_cmp_ne_u32 vcc, v5, v9
    s_cbranch_scc1 L_pz_out
    s_cbranch_vccnz L_pz_wait
    L_pz_out:
    s_mov_b32 s80, {1000 if O.stamp else 0}
    s_branch L_pz_ok
    """)
    a("L_front_go_on:")
    if O.prio & 2: a("s_setprio 1")
    later = lines(f"""
    v_add_u32 v17, 49152, v16
    v_add_u32 v24, 49152, v20
    v_add_u32 v25, 49152, v21
    v_add_u32 v26, 49152, v22
    v_add_u32 v27, 49152, v23
    v_lshrrev_b32 v6, 1, v1
    s_lshl_b32 s54, s52, 1
    v_add_u32 v6, s54, v6
    v_lshlrev_b32 v6, 3, v6
    v_bfe_u32 v7, v2, 4, 1
    s_lshl_b32 s54, s47, 2
    v_add3_u32 v6, v6, v7, s54
    v_lshlrev_b32 v6, 10, v6
    v_and_b32 v7, 1, v1
    v_lshl_add_u32 v7, v7, 1, v5
    v_lshl_add_u32 v6, v7, 8, v6
    v_and_b32 v7, 15, v2
    v_lshl_add_u32 v14, v7, 4, v6
    v_add_u32 v14, {HA_OFF}, v14
    s_lshl_b32 s54, s48, 1
    s_add_u32 s54, s54, s47
    s_lshl_b32 s54, s54, 7
    s_lshr_b32 s57, s49, 1
    s_lshl_b32 s57, s57, 4
    s_add_u32 s54, s54, s57
    s_add_u32 s54, s54, {FA_OFF}
    v_lshl_add_u32 v15, v1, 2, s54
    s_mov_b32 s44, 0xbfb8aa3b
    s_mov_b32 s45, 0xbfb8aa3b
    v_mov_b32 v5, {SY_LDS + 32}
    s_mov_b32 s90, 1
    """ + P1_ROLE + FRONT_SETUP)
    if not O.fdef:
        a("s_waitcnt lgkmcnt(0)")
        for x in later: a(x)
        later = []
    ACC = [32, 48]
    def reads(c, s):
        slot = c % 4
        rng, so = slot // 2, (slot % 2) * 24576
        b = 12*s
        return [f"ds_read_b64_tr_b16 a[{b}:{b+1}], v{16+rng} offset:{so + 2048*s}",
                f"ds_read_b64_tr_b16 a[{b+2}:{b+3}], v{16+rng} offset:{so + 2048*s + 512}",
                f"ds_read_b128 a[{b+4}:{b+7}], v{20+4*rng+s} offset:{so}",
                f"ds_read_b128 a[{b+8}:{b+11}], v{20+4*rng+s} offset:{so + 4096}"]
    def mfma(c, s, mi):
        b = 12*s
        cin = "0" if (c == 0 and s == 0 and not O.roll) else vr(ACC[mi], 16)
        return f"v_mfma_f32_32x32x16_bf16 {vr(ACC[mi],16)}, {ar(b,4)}, {ar(b+4+4*mi,4)}, {cin}"
    if O.roll:
        assert not later
        for r in range(32): a(f"v_mov_b32 v{32+r}, 0")
        a("s_mov_b32 s81, 0")
    stamp(a, "fr")
    a("s_barrier")
    stamp(a, "c0")
    for s in range(3):
        for r in reads(0, s): a(r)
    for c in ([0, 1, 2, 3, 12, 13, 14] if O.roll else range(15)):
        if O.roll and c == 0: a("L_mm_loop:")
        if O.roll and c == 12:
            a("""
            s_add_u32 s81, s81, 1
            s_cmp_lt_u32 s81, 3
            s_cbranch_scc1 L_mm_loop
            """)
        now, later = later[:O.fdef], later[O.fdef:]
        for s in range(3):
            a(f"s_waitcnt lgkmcnt({[8,8,4][s]})")
            for mi in range(2):
                a(mfma(c, s, mi))
                if s == 0:
                    for r in reads(c, 3)[2*mi:2*mi+2]: a(r)
                else:
                    k = -(-len(now) // (4 - 2*(s-1) - mi))
                    for x in now[:k]: a(x)
                    now = now[k:]
        if c == O.vtc and O.vt:
            a(f"""
            s_cmp_lg_u32 s53, 2
            s_cbranch_scc1 L_novt
            v_mov_b32 v6, 0
            {f"buffer_load_dword v31, v29, {rs(R_WS)}, 0 offen" if O.vt & 1 else ""}
            {"global_load_dword v31, v6, s[12:13]" if O.vt & 2 else ""}
            L_novt:
            """)
        if c == O.n3 + (1 if O.roll else 3): a("ds_read_b32 v12, v5")
        if c == O.n3 + (2 if O.roll else 4):
            assert not later
            a("v_xor_b32 v3, s86, v12")
        a("s_waitcnt lgkmcnt(0)")
        a("s_barrier")
        if not (O.roll and c < 12): stamp(a, f"c{c+1}")
        rr = [r for s in range(3) for r in reads(c + 1, s)]
        for r in rr[:4]: a(r)
        a(mfma(c, 3, 0))
        for r in rr[4:8]: a(r)
        a(mfma(c, 3, 1))
        for r in rr[8:]: a(r)
    a.c("last chunk: the first 32 rows finish first, their epilogue overlaps the MFMAs of the other 32")
    c = 15
    a("s_waitcnt lgkmcnt(8)")
    a(mfma(c, 0, 0))
    for r in reads(c, 3): a(r)
    a("s_waitcnt lgkmcnt(8)")
    a(mfma(c, 1, 0))
    a("s_waitcnt lgkmcnt(4)")
    a(mfma(c, 2, 0))
    a("s_waitcnt lgkmcnt(0)")
    a(mfma(c, 3, 0))
    a(mfma(c, 0, 1))
    a("s_nop 7\ns_nop 2")
    def epi(mi):
        A = ACC[mi]; t = 64 + 16*mi
        o = []
        for r in range(0, 8, 2):
            o.append(f"v_pk_mul_f32 v[{t+r}:{t+r+1}], v[{A+r}:{A+r+1}], s[44:45]")
        for r in range(8):
            o.append(f"v_exp_f32 v{t+r}, v{t+r}")
        for r in range(0, 8, 2):
            o.append(f"v_pk_mul_f32 v[{t+8+r}:{t+9+r}], v[{A+r}:{A+r+1}], v[{A+8+r}:{A+9+r}]")
        for r in range(0, 8, 2):
            o.append(f"v_pk_add_f32 v[{t+r}:{t+r+1}], v[{t+r}:{t+r+1}], 1.0 op_sel_hi:[1,0]")
        for r in range(8):
            o.append(f"v_rcp_f32 v{t+r}, v{t+r}")
        o.append("s_nop 0")
        for r in range(0, 8, 2):
            o.append(f"v_pk_mul_f32 v[{t+r}:{t+r+1}], v[{t+r}:{t+r+1}], v[{t+8+r}:{t+9+r}]")
        for d in range(4):
            o.append(f"v_cvt_pk_bf16_f32 v{4+4*mi+d}, v{t+2*d}, v{t+2*d+1}")
        o.append(f"buffer_store_dwordx4 v[{4+4*mi}:{7+4*mi}], v14, {rs(R_WS)}, 0 offen offset:{2048*mi}")
        return o
    for i, x in enumerate(epi(0)):
        if i == 0: a(mfma(c, 1, 1))
        if i == 5: a(mfma(c, 2, 1))
        if i == 8: a(mfma(c, 3, 1))
        a(x)
    for x in epi(1): a(x)
    stamp(a, "hst")
    a(f"""
    s_waitcnt vmcnt(0)
    buffer_store_dword v3, v15, {rs(R_WS)}, 0 offen
    """)
    stamp(a, "flg")
    a(f"""
    L_hload:
    s_mov_b32 s80, 0
    s_cmp_lg_u32 s53, 0
    s_cbranch_scc1 L_poll1
    v_and_b32 v22, 7, v2
    v_lshl_add_u32 v22, v22, 7, s91
    L_pz0:
    buffer_load_dword v21, v22, {rs(R_WS)}, 0 offen sc1
    buffer_load_dword v20, v18, {rs(R_WS)}, 0 offen sc1
    s_add_u32 s80, s80, 1
    s_cmp_ge_u32 s80, {O.kfast}
    s_waitcnt vmcnt(0)
    v_cmp_ne_u32 vcc, v12, v21
    s_cbranch_vccz L_pz0_ok
    s_cbranch_scc1 L_poll1
    v_cmp_ne_u32 vcc, v3, v20
    s_cbranch_vccz L_go
    s_sleep 2
    s_branch L_pz0
    L_pz0_ok:
    v_mov_b32 v21, {SY_LDS + 36}
    v_cmp_ne_u32 vcc, v3, v20
    ds_write_b32 v21, v12
    s_waitcnt lgkmcnt(0)
    s_cbranch_vccz L_go
    L_poll1:
    buffer_load_dword v20, v18, {rs(R_WS)}, 0 offen sc1
    s_add_u32 s80, s80, 1
    s_cmp_ge_u32 s80, {O.kfast}
    s_cbranch_scc1 L_slow
    s_waitcnt vmcnt(0)
    v_cmp_ne_u32 vcc, v3, v20
    s_cbranch_vccz L_go
    s_sleep {O.sl1}
    s_branch L_poll1
    L_go:
    """)
    stamp(a, "go")
    def hload(s):
        a(f"s_add_u32 m0, s55, {s*4096}")
        a(f"s_add_u32 s57, s{82 if s < 7 else 83}, {s*8192}")
        a(f"buffer_load_dwordx4 v19, {rs(R_WS)}, s57 offen sc1 lds")
    hl = 0
    while hl < O.hlead:
        hload(hl); hl += 1
    for gi, g in enumerate(groups):
        a(f"s_waitcnt vmcnt({hl - 1 - g[-1]})")
        a("s_barrier")
        for _ in range(len(groups[min(gi + 1, len(groups) - 1)])):
            if hl < 14:
                hload(hl); hl += 1
    stamp_flush(a)
    a.c("a producer publishes the write-through copy of h unless its whole group is seen on this die")
    a(f"""
    s_cmp_eq_u32 s90, 0
    s_cbranch_scc1 L_nob
    buffer_load_dword v20, v29, {rs(R_WS)}, 0 offen sc1
    s_waitcnt vmcnt(0)
    v_cmp_ne_u32 vcc, v3, v20
    s_cbranch_vccz L_nob
    """)
    sendb(a)
    a("L_nob:")
    if O.upd == 1: update(a, "L_front_end")
    a("s_endpgm")
    a.c("the producers are not all on this die (or are very late): fall back to the write-through copies")
    a("""
    L_slow:
    s_cmp_eq_u32 s90, 0
    s_cbranch_scc1 L_slow_sent
    """)
    sendb(a)
    a(f"""
    s_mov_b32 s90, 0
    L_slow_sent:
    s_movk_i32 s57, {FB_OFF - FA_OFF}
    s_mov_b32 s80, 0
    L_slow_poll:
    buffer_load_dword v20, v18, {rs(R_WS)}, 0 offen sc1
    buffer_load_dword v21, v18, {rs(R_WS)}, s57 offen sc1
    s_add_u32 s80, s80, 1
    s_waitcnt vmcnt(0)
    v_cmp_ne_u32 vcc, v3, v20
    s_cbranch_vccz L_go
    v_cmp_ne_u32 vcc, v12, v21
    s_cbranch_vccz L_slow_b
    s_sleep 8
    s_cmp_lt_u32 s80, {SPIN}
    s_cbranch_scc1 L_slow_poll
    L_slow_b:
    s_add_u32 s82, s82, {HB_OFF - HA_OFF}
    s_add_u32 s83, s83, {HB_OFF - HA_OFF}
    s_branch L_go
    """)
    a("L_code_end:")
    return a

if __name__ == "__main__":
    opts(sys.argv[2:])
    a = gen()
    hdr = HEADER + f"; @launch grid=(256,1,1) block=(512,1,1) lds={LDS}\n.amdgcn_target \"amdgcn-amd-amdhsa--gfx950\"\n"
    open(sys.argv[1], "w").write(hdr + a.text() + kdesc(KN, NV + NA, NV))
```

```python
import os, sys
from asmlib import *

KN = "standalone__swiglu_ffn__sampling_kernel"
X_B, W_B, OUT_B, WS_B = 128*1024*2, 1024*3584*2, 128*1024*2, 268435456
FA_OFF = 0
FB_OFF = FA_OFF + 4096
EP_OFF = FA_OFF + 8192
RG_OFF = FA_OFF + 12288
PZ_OFF = FA_OFF + 16384
HA_OFF = 65536
P_OFF = 1 << 20
HB_OFF = (3 << 20) + HA_OFF
ST_OFF = 8 << 20
R_X, R_G, R_U, R_D, R_WS, R_OUT = 20, 24, 28, 32, 36, 40
WD_LDS = 98304
SY_LDS = WD_LDS + 57344
LDS = SY_LDS + 64
SPIN = int(os.environ.get("DIAG_SPIN", 1 << 18))
NV, NA = 96, 160

class O:
    stamp = 0; sync = 1; sw = 4; endwait = 1
    kfast = 64; sl1 = 0; sl2 = 0
    xg = 4; xlead = 2; r2 = 8; r3 = 13; hold = 6; wdk = 3; touch = 1; npf0 = 3
    wd13 = 0; wd14 = 5; hlead = 5; fine = 3
    NP = 12; N1 = 6; cap = 3; slk = 1
    fdef = 0; bdef = 0; cp0 = 1; cp1 = 0; roll = 0; upd = 0; own = 1; f2 = 6; f3 = 11; mark = 0; epi = 0; vt = 0; dfl = 0; dord = 0; pfl = 0; prio = 0; vtc = 7; n2 = 5; n3 = 9
PTS = {}
def opts(argv):
    for x in argv:
        k, v = x.split("=")
        if k == "pts":
            PTS.clear(); PTS["start"] = 0
            for i, nm in enumerate(v.split(",")): PTS[nm] = i + 1
            O.stamp = 1
        else:
            assert hasattr(O, k), k
            setattr(O, k, int(v))
def rs(r): return f"s[{r}:{r+3}]"
def stamp(a, name):
    if O.stamp and name in PTS:
        idx = PTS[name]
        a(f"s_memrealtime s[{64+2*idx}:{65+2*idx}]")
_fl = [0]
def stamp_flush(a):
    if not O.stamp: return
    _fl[0] += 1
    L = f"L_sf{_fl[0]}"
    a(f"""
    s_memrealtime s[78:79]
    s_cmp_lg_u32 s53, {O.sw}
    s_cbranch_scc1 {L}
    s_waitcnt lgkmcnt(0)
    """)
    for i in range(8):
        a(f"v_mov_b32 v{80+i}, s{64+2*i}")
    a(f"""
    s_lshl_b32 s63, s2, 5
    s_add_u32 s63, s63, {ST_OFF}
    v_mov_b32 v88, s63
    s_mov_b64 exec, 1
    buffer_store_dwordx4 v[80:83], v88, {rs(R_WS)}, 0 offen
    buffer_store_dwordx4 v[84:87], v88, {rs(R_WS)}, 0 offen offset:16
    s_mov_b64 exec, -1
    {L}:
    """)
def lines(txt):
    return [x.strip() for x in txt.split("\n") if x.strip()]

def pf_role(a, tag):
    a(f"""
    s_mov_b32 s50, 1
    s_cmp_ge_u32 s52, 3
    s_addc_u32 s51, s52, 0
    s_cmp_ge_u32 s52, 10
    s_addc_u32 s51, s51, 0
    s_mov_b32 s46, 0
    s_cmp_ge_u32 s52, 14
    s_cbranch_scc0 L_pf_role_{tag}
    s_and_b32 s50, s52, 1
    s_mul_i32 s46, s50, 7
    s_cmp_ge_u32 s52, 16
    s_cselect_b32 s51, 11, 3
    L_pf_role_{tag}:
    """)
P1_ROLE = """
    s_mov_b32 s50, 0
    s_cmp_ge_u32 s49, 3
    s_addc_u32 s51, s49, 0
    s_cmp_ge_u32 s49, 10
    s_addc_u32 s51, s51, 0
    s_mov_b32 s46, 0
"""
FRONT_SETUP = f"""
    s_getreg_b32 s86, hwreg(HW_REG_XCC_ID, 0, 4)
    s_lshl_b32 s86, s86, 24
    s_lshl_b32 s55, s53, 10
    s_lshl_b32 s82, s46, 13
    s_sub_u32 s83, 0, s82
    s_mul_i32 s54, s48, 112
    s_lshl_b32 s57, s50, 2
    s_add_u32 s54, s54, s57
    v_add_u32 v6, s54, v1
    v_lshlrev_b32 v6, 10, v6
    v_lshl_add_u32 v19, v2, 4, v6
    v_add_u32 v19, {HA_OFF}, v19
    s_lshl_b32 s54, s48, 1
    s_add_u32 s54, s54, s50
    s_lshl_b32 s54, s54, 7
    s_add_u32 s54, s54, {FA_OFF}
    v_min_u32 v6, 27, v2
    v_lshl_add_u32 v18, v6, 2, s54
    s_lshl_b32 s54, s48, 7
    s_add_u32 s54, s54, {RG_OFF}
    v_and_b32 v6, 31, v2
    v_lshl_add_u32 v29, v6, 2, s54
    v_and_b32 v7, 1, v6
    v_lshlrev_b32 v7, 7, v7
    v_lshrrev_b32 v8, 1, v6
    v_lshl_add_u32 v7, v8, 4, v7
    v_cmp_gt_u32 vcc, 14, v6
    s_lshl_b32 s54, s48, 8
    s_add_u32 s54, s54, {FA_OFF}
    v_add_u32 v7, s54, v7
    v_cndmask_b32 v29, v29, v7, vcc
    s_cmp_lt_u32 s49, 14
    s_cselect_b32 s54, 14, 0
    s_add_u32 s54, s54, s49
    s_lshl_b32 s54, s54, 10
    s_add_u32 s91, s54, {PZ_OFF}
    s_mov_b32 s38, {WS_B}
    s_mov_b32 s39, 0x20000
    s_mov_b64 s[36:37], s[16:17]
"""
def back_setup():
    p = [f"""
    s_mov_b64 s[32:33], s[10:11]
    s_mov_b32 s34, {W_B}
    s_mov_b32 s35, 0x20000
    s_mov_b64 s[36:37], s[16:17]
    s_mov_b32 s38, {WS_B}
    s_mov_b32 s39, 0x20000
    s_mov_b64 s[40:41], s[12:13]
    s_mov_b32 s42, {OUT_B}
    s_mov_b32 s43, 0x20000
    s_and_b32 s55, s53, 3
    s_lshl_b32 s55, s55, 10
    s_lshl_b32 s84, s46, 16
    s_sub_u32 s85, 0, s84
    s_getpc_b64 s[92:93]
    s_lshr_b32 s81, s55, 8
    s_add_u32 s81, s81, {SY_LDS}
    """, f"""
    v_lshrrev_b32 v3, 3, v2
    v_and_b32 v4, 7, v2
    v_and_b32 v6, 6, v3
    v_xor_b32 v4, v4, v6
    v_lshl_add_u32 v3, v1, 3, v3
    s_mul_i32 s60, s48, 448
    v_add_u32 v3, s60, v3
    v_lshlrev_b32 v3, 11, v3
    s_lshl_b32 s60, s51, 7
    v_add_u32 v3, s60, v3
    v_lshl_add_u32 v17, v4, 4, v3
    v_lshlrev_b32 v3, 10, v1
    v_lshl_add_u32 v19, v2, 4, v3
    """, f"""
    v_lshrrev_b32 v3, 4, v2
    v_bfe_u32 v4, v2, 2, 2
    v_and_b32 v7, 1, v3
    v_lshrrev_b32 v6, 1, v3
    v_lshlrev_b32 v6, 4, v6
    v_lshl_add_u32 v6, v7, 2, v6
    v_add_u32 v6, v6, v4
    v_lshlrev_b32 v6, 7, v6
    v_and_b32 v8, 3, v2
    v_lshl_add_u32 v6, v8, 3, v6
    v_add_u32 v6, {WD_LDS}, v6
    v_lshrrev_b32 v4, 1, v4
    v_lshl_add_u32 v4, v7, 1, v4
    """, "\n".join(f"v_xor_b32 v7, {t}, v4\nv_lshl_add_u32 v{20+t}, v7, 5, v6" for t in range(4)), f"""
    v_bfe_u32 v4, v2, 3, 1
    v_lshl_add_u32 v6, v1, 1, v4
    s_lshl_b32 s60, s49, 3
    v_add_u32 v6, s60, v6
    v_lshlrev_b32 v6, 3, v6
    v_add_u32 v6, s48, v6
    v_lshlrev_b32 v6, 10, v6
    v_lshl_add_u32 v6, v3, 7, v6
    v_and_b32 v7, 7, v2
    v_lshl_add_u32 v6, v7, 4, v6
    v_add_u32 v8, {P_OFF}, v6
    """, f"""
    s_cmp_lt_u32 s49, 14
    s_cselect_b32 s61, 14*8, 0
    s_add_u32 s61, s61, s60
    s_lshl_b32 s61, s61, 7
    s_add_u32 s61, s61, {PZ_OFF}
    v_lshl_add_u32 v18, v7, 7, s61
    s_add_u32 s60, s60, s48
    s_lshl_b32 s60, s60, 13
    s_add_u32 s60, s60, {P_OFF}
    v_and_b32 v6, 15, v2
    v_lshl_add_u32 v6, v1, 4, v6
    v_lshlrev_b32 v6, 4, v6
    v_lshl_add_u32 v6, v3, 11, v6
    v_add_u32 v6, s60, v6
    """, f"""
    s_lshl_b32 s60, s50, 6
    s_lshl_b32 s61, s48, 3
    s_add_u32 s60, s60, s61
    v_add_u32 v7, s60, v7
    v_lshlrev_b32 v7, 11, v7
    v_lshl_add_u32 v7, v4, 3, v7
    v_and_b32 v4, 1, v1
    v_lshl_add_u32 v7, v4, 4, v7
    v_lshrrev_b32 v4, 1, v1
    v_lshl_add_u32 v7, v4, 6, v7
    v_and_b32 v4, 1, v3
    v_lshl_add_u32 v7, v4, 2, v7
    v_lshrrev_b32 v4, 1, v3
    v_lshl_add_u32 v7, v4, 5, v7
    s_lshl_b32 s60, s51, 7
    v_add_u32 v7, s60, v7
    """]
    return p
LDS_INIT = f"""
    v_mov_b32 v16, {SY_LDS}
    v_lshl_add_u32 v14, v1, 2, v16
    v_mov_b32 v9, 0
    ds_write_b32 v14, v9
    ds_write_b32 v14, v9 offset:16
    ds_write_b32 v16, v9 offset:36
    v_mov_b32 v15, -1
"""
def nonce1(a, line):
    a(f"""
    s_movk_i32 s88, {EP_OFF}
    s_load_dword s59, s[16:17], s88
    s_load_dword s87, s[14:15], 0
    """)
    if line:
        a(f"""
        s_lshl_b32 s88, s48, 7
        s_add_u32 s88, s88, {RG_OFF}
        s_load_dword s87, s[16:17], s88
        s_add_u32 s89, s88, 64
        s_load_dword s87, s[16:17], s89
        """)
def nonce2(a, vn):
    a(f"""
    v_mov_b32 v30, 0
    s_add_u32 s59, s59, 1
    s_bitset1_b32 s59, 31
    global_load_dword v{vn}, v30, s[14:15] sc1
    """)
def nonce3(a, vn, share=True):
    a(f"""
    v_cmp_eq_u32 vcc, 0, v{vn}
    v_mov_b32 v30, s59
    {f"v_mov_b32 v28, {SY_LDS + 32}" if share else "s_nop 0"}
    v_cndmask_b32 v{vn}, v{vn}, v30, vcc
    {f"ds_write_b32 v28, v{vn}" if share else ""}
    """)
def wd_list():
    L = [f"s_add_u32 m0, s55, {WD_LDS + s*4096}\ns_add_u32 s57, s{84 if s < 7 else 85}, {s*65536}\nbuffer_load_dwordx4 v17, {rs(R_D)}, s57 offen lds" for s in range(14)]
    if O.mark:
        for k, n in enumerate([O.N1] + ([O.NP] if O.NP > O.N1 else [])):
            L[n - 1] += f"\ns_add_u32 m0, s81, {16*k}\ns_mov_b64 exec, 1\nglobal_load_lds_dword v9, s[92:93]\ns_mov_b64 exec, -1"
    return L
def sendb(a):
    a(f"""
    s_mov_b32 s57, {HB_OFF - HA_OFF}
    s_movk_i32 s58, {FB_OFF - FA_OFF}
    buffer_store_dwordx4 v[4:7], v14, {rs(R_WS)}, s57 offen sc1
    buffer_store_dwordx4 v[8:11], v14, {rs(R_WS)}, s57 offen offset:2048 sc1
    s_waitcnt vmcnt(0)
    buffer_store_dword v12, v15, {rs(R_WS)}, s58 offen sc1
    """)

def update(a, done):
    a.c("one wave of the launch moves the epoch on: d_debug first, so that a late reader can tell")
    a(f"""
    s_lshl_b32 s54, s2, 3
    s_add_u32 s54, s54, s53
    s_cmp_eq_u32 s54, {255*8 + 3}
    s_cbranch_scc0 {done}
    v_mov_b32 v26, 0
    v_mov_b32 v27, {EP_OFF}
    s_mov_b64 exec, 1
    global_store_dword v26, v12, s[14:15] sc1
    s_waitcnt vmcnt(0)
    global_store_dword v27, v12, s[16:17] sc1
    s_mov_b64 exec, -1
    {done}:
    """)

def gen():
    a = Asm()
    kstart(a, KN)
    if O.stamp and O.sync:
        a("""
        s_memrealtime s[44:45]
        s_waitcnt lgkmcnt(0)
        s_add_u32 s46, s44, 612
        s_and_b32 s46, s46, 0xfffffe00
        L_sync:
        s_memrealtime s[44:45]
        s_waitcnt lgkmcnt(0)
        s_sub_u32 s47, s44, s46
        s_cmp_lt_i32 s47, 0
        s_cbranch_scc1 L_sync
        """)
    stamp(a, "start")
    a(f"""
    s_load_dwordx8 s[4:11], s[0:1], 0
    s_load_dwordx4 s[12:15], s[0:1], 32
    s_load_dwordx2 s[16:17], s[0:1], 48
    v_lshrrev_b32 v1, 6, v0         ; wave
    s_cmp_ge_u32 s2, 256
    s_cbranch_scc1 L_end
    v_readfirstlane_b32 s53, v1
    s_and_b32 s48, s2, 7            ; j
    s_lshr_b32 s49, s2, 3           ; q
    v_and_b32 v2, 63, v0            ; lane
    s_mov_b32 s22, {X_B}
    s_mov_b32 s23, 0x20000
    s_mov_b32 s26, {W_B}
    s_mov_b32 s27, 0x20000
    """)
    if O.cp0:
        a.c("wave 1 of every workgroup brings four lines of the kernel's code into this die's L2")
        a(f"""
        s_cmp_eq_u32 s53, 1
        s_cbranch_scc0 L_nocp
        s_getpc_b64 s[44:45]
        L_pc:
        v_and_b32 v3, 3, v2
        v_lshl_add_u32 v3, s49, 2, v3
        v_min_u32 v3, (L_code_end-L_pc-4)/128, v3
        v_lshlrev_b32 v3, 7, v3
        global_load_dword v31, v3, s[44:45]
        L_nocp:
        """)
    a(f"""
    s_cmp_lt_u32 s49, 14
    s_cbranch_scc1 L_p1
    s_sub_u32 s52, s49, 14          ; p
    s_cmp_lg_u32 s53, 0
    s_cbranch_scc1 L_pf_other
    """)
    a.c("prefetch wave: per 64-row chunk 50 lines of Wg (odd p) or Wu (even p), and 8 rows of x")
    a(f"""
    s_lshr_b32 s54, s52, 1
    s_mul_i32 s54, s54, 50
    v_add_u32 v3, s54, v2
    v_mul_u32_u24 v5, 9363, v3
    v_lshrrev_b32 v5, 16, v5        ; row = i / 7
    v_mul_u32_u24 v6, 7, v5
    v_sub_u32 v6, v3, v6            ; column = i % 7
    v_mul_u32_u24 v5, 7168, v5
    v_lshl_add_u32 v5, v6, 7, v5
    s_mul_i32 s54, s48, 896
    v_add_u32 v5, s54, v5
    v_cmp_gt_u32 vcc, 50, v2
    s_movk_i32 s54, 448
    v_cmp_gt_u32 s[44:45], s54, v3
    v_bfrev_b32 v7, 2
    s_lshl_b32 s54, s52, 3
    s_and_b64 vcc, vcc, s[44:45]
    v_lshrrev_b32 v3, {O.xg.bit_length() - 1}, v2
    v_add_u32 v3, s54, v3
    v_lshlrev_b32 v6, 11, v3
    v_and_b32 v3, {O.xg - 1}, v2
    v_lshl_add_u32 v6, v3, 7, v6
    v_cndmask_b32 v10, v7, v5, vcc
    v_cmp_gt_u32 vcc, {8 * O.xg}, v2
    s_bitcmp1_b32 s52, 0
    s_nop 0
    v_cndmask_b32 v11, v7, v6, vcc  ; rows >= 128 fall out of range
    s_waitcnt lgkmcnt(0)
    s_cselect_b64 s[24:25], s[6:7], s[8:9]
    s_mov_b64 s[20:21], s[4:5]
    """)
    stamp(a, "karg")
    npf = [0]
    def pf(c):
        for g_ in range(16 // O.xg):
            if max(0, g_ * O.xg - O.xlead) == c:
                so = "0"
                if g_:
                    a(f"s_movk_i32 s58, {g_ * O.xg * 128}"); so = "s58"
                a(f"buffer_load_dword v22, v11, {rs(R_X)}, {so} offen"); npf[0] += 1
        so = "0"
        if c:
            a(f"s_mov_b32 s57, {c*64*7168}"); so = "s57"
        a(f"buffer_load_dword v20, v10, {rs(R_G)}, {so} offen {['', 'sc1', 'sc0', 'sc0 sc1'][O.pfl]}"); npf[0] += 1
    for c in range(O.npf0): pf(c)
    a("s_branch L_pf_go_on")
    a(f"""
    L_p1:
    s_and_b32 s47, s49, 1
    s_lshr_b32 s52, s49, 1
    s_mul_i32 s54, s48, 7
    s_add_u32 s52, s52, s54
    s_cmp_lt_u32 s53, 4
    s_cbranch_scc1 L_front
    v_and_b32 v1, 3, v1
    s_lshl_b32 s54, s52, 7
    v_lshrrev_b32 v3, 3, v2
    v_and_b32 v4, 7, v2
    v_lshl_add_u32 v5, v1, 4, v3
    v_mul_u32_u24 v6, 7168, v5
    v_add_u32 v6, s54, v6
    v_and_b32 v7, 2, v3
    v_xor_b32 v7, v7, v4
    v_lshl_add_u32 v10, v7, 4, v6
    v_xor_b32 v11, 64, v10
    v_lshrrev_b32 v7, 1, v3
    v_xor_b32 v7, v7, v4
    s_lshl_b32 s54, s47, 6
    v_add_u32 v5, s54, v5
    v_lshlrev_b32 v5, 11, v5
    v_lshl_add_u32 v12, v7, 4, v5
    v_xor_b32 v13, 64, v12
    v_add_u32 v13, 0x4000, v13
    s_and_b32 s56, s53, 3
    s_lshl_b32 s56, s56, 11
    s_mov_b32 s30, {W_B}
    s_mov_b32 s31, 0x20000
    """)
    a(LDS_INIT)
    a("""
    s_waitcnt lgkmcnt(0)
    s_mov_b64 s[20:21], s[4:5]
    s_mov_b64 s[24:25], s[6:7]
    s_mov_b64 s[28:29], s[8:9]
    """)
    stamp(a, "karg")
    Q = []
    def dma(c):
        sl = (c % 4) * 24576
        L = list(enumerate([(12, R_X, c*128), (13, R_X, c*128), (10, R_G, c*458752), (10, R_G, c*458752+57344), (11, R_U, c*458752), (11, R_U, c*458752+57344)]))
        if O.dord == 1: L = [L[i] for i in (0, 2, 4, 1, 3, 5)]
        if O.dord == 2: L = [L[i] for i in (2, 3, 4, 5, 0, 1)]
        for k, (v, r, so) in L:
            a(f"s_add_u32 m0, s56, {sl + (k//2)*8192 + (k%2)*1024}\ns_mov_b32 s57, {so}\nbuffer_load_dwordx4 v{v}, {rs(r)}, s57 offen {['', 'sc1', 'sc0', 'sc0 sc1'][O.dfl]} lds")
            Q.append(c)
    dma(0)
    stamp(a, "d0")
    a("s_branch L_back_go_on")
    a("L_front:")
    stamp(a, "fin")
    a(f"""
    v_bfe_u32 v4, v2, 4, 1
    v_lshrrev_b32 v5, 5, v2         ; k half
    v_bfe_u32 v6, v2, 2, 2
    v_lshrrev_b32 v7, 1, v6
    v_lshl_add_u32 v7, v4, 1, v7
    v_xor_b32 v7, v7, v1
    v_lshl_add_u32 v6, v5, 3, v6
    v_lshlrev_b32 v6, 7, v6
    v_lshl_add_u32 v6, v7, 5, v6
    v_lshl_add_u32 v6, v4, 13, v6
    v_and_b32 v7, 3, v2
    v_lshl_add_u32 v6, v7, 3, v6
    v_add_u32 v16, 0x2000, v6
    v_and_b32 v6, 31, v2
    v_bfe_u32 v7, v6, 1, 3
    v_xor_b32 v7, v7, v5
    v_lshlrev_b32 v6, 7, v6
    """)
    for s in range(4):
        a(f"v_xor_b32 v8, {2*s}, v7")
        a(f"v_lshl_add_u32 v{20+s}, v8, 4, v6")
    a("s_branch L_front_go_on")

    a("L_pf_go_on:")
    if not O.cp0:
        a(f"""
        s_cmp_lt_u32 s52, 16
        s_cbranch_scc1 L_nocp
        s_getpc_b64 s[44:45]
        L_pc:
        s_sub_u32 s44, s44, L_pc-{KN}
        s_subb_u32 s45, s45, 0
        s_and_b32 s54, s52, 1
        s_lshl_b32 s54, s54, 6
        v_add_u32 v3, s54, v2
        v_min_u32 v3, (L_code_end-{KN}-4)/128, v3
        v_lshlrev_b32 v3, 7, v3
        global_load_dword v23, v3, s[44:45]
        L_nocp:
        """)
    if O.touch:
        a.c("one first touch per workgroup, so that the address translations are there when they are needed")
        a("""
        s_cmp_lt_u32 s52, 14
        s_cselect_b64 s[44:45], s[16:17], s[12:13]
        s_cmp_lt_u32 s52, 12
        s_cselect_b64 s[44:45], s[10:11], s[44:45]
        s_cmp_lt_u32 s52, 8
        s_cselect_b64 s[44:45], s[8:9], s[44:45]
        s_cmp_lt_u32 s52, 4
        s_cselect_b64 s[44:45], s[6:7], s[44:45]
        s_and_b32 s54, s52, 3
        s_lshl_b32 s54, s54, 21
        s_cmp_lt_u32 s52, 14
        s_cselect_b32 s54, s54, 0
        s_load_dword s87, s[44:45], s54
        """)
    nonce1(a, True)
    for c in range(O.npf0, 16):
        if c == O.r2:
            a("""
            s_getreg_b32 s86, hwreg(HW_REG_XCC_ID, 0, 4)
            s_lshl_b32 s86, s86, 24
            s_lshl_b32 s89, s49, 2
            s_add_u32 s88, s88, s89
            v_mov_b32 v31, s88
            s_waitcnt lgkmcnt(0)
            """)
            nonce2(a, 12); mark = npf[0]
        if c == O.r3:
            a(f"s_waitcnt vmcnt({npf[0] - mark})")
            nonce3(a, 12)
            a("v_xor_b32 v30, s86, v12")
            stamp(a, "non")
        pf(c)
    stamp(a, "hia")
    if O.hold >= 0: a(f"s_waitcnt vmcnt({O.hold})")
    stamp(a, "hib")
    a.c("announce this workgroup's die; fill its inbox and that of the paired producer with the not-yet-written pattern;")
    a.c("bring the lines of the h buffer into L2 before they are written")
    a(f"""
    global_store_dword v31, v30, s[16:17]
    s_lshl_b32 s54, s49, 3
    s_add_u32 s54, s54, s48
    s_lshl_b32 s57, s54, 13
    s_add_u32 s57, s57, {P_OFF}
    v_lshl_add_u32 v3, v2, 4, s57
    v_add_u32 v8, 0x1000, v3
    s_lshl_b32 s54, s54, 7
    s_add_u32 s54, s54, {PZ_OFF}
    v_mov_b32 v13, s54
    v_mov_b32 v4, -1
    v_mov_b32 v5, -1
    v_mov_b32 v6, -1
    v_mov_b32 v7, -1
    s_cmp_lt_u32 s52, 14
    """)
    for k in range(8):
        a(f"global_store_dwordx4 v{3 if k < 4 else 8}, v[4:7], s[16:17] offset:{(k % 4)*1024} sc1")
    a(f"""
    s_cbranch_scc0 L_pz_one
    v_subrev_u32 v3, {14*8*8192}, v3
    v_subrev_u32 v8, {14*8*8192}, v8
    """)
    for k in range(8):
        a(f"global_store_dwordx4 v{3 if k < 4 else 8}, v[4:7], s[16:17] offset:{(k % 4)*1024} sc1")
    a(f"""
    L_pz_one:
    s_lshl_b32 s54, s52, 6
    v_add_u32 v3, s54, v2
    v_min_u32 v3, 895, v3
    s_mul_i32 s54, s48, 114688
    s_add_u32 s54, s54, {HA_OFF}
    v_lshl_add_u32 v3, v3, 7, s54
    global_load_dword v24, v3, s[16:17]
    s_waitcnt lgkmcnt(0)
    s_barrier
    s_waitcnt vmcnt(1)
    global_store_dword v13, v12, s[16:17] sc1
    s_barrier
    """)
    stamp(a, "pfi")
    a("s_branch L_pf_front")
    a(f"""
    L_pf_other:
    s_cmp_ge_u32 s53, 4
    s_cbranch_scc1 L_back_pf
    s_waitcnt lgkmcnt(0)
    s_barrier
    s_barrier
    """)
    if O.vt & 2:
        a("""
        s_cmp_eq_u32 s53, 2
        s_cbranch_scc0 L_pf_front
        v_mov_b32 v6, 0
        global_load_dword v31, v6, s[12:13]
        """)
    if O.cp1:
        a.c("touch the code of the later phases again: it is the oldest resident of the L2 by now")
        a(f"""
        s_cmp_eq_u32 s53, 1
        s_cbranch_scc0 L_pf_front
        s_getpc_b64 s[44:45]
        L_pc1:
        v_min_u32 v3, 5, v2
        s_mul_i32 s54, s52, 6
        v_add_u32 v3, s54, v3
        v_min_u32 v3, (L_code_end-L_pc1-4)/128, v3
        v_lshlrev_b32 v3, 7, v3
        global_load_dword v31, v3, s[44:45]
        """)
    a(f"""
    L_pf_front:
    """)
    pf_role(a, "f")
    a(FRONT_SETUP)
    a(f"""
    v_mov_b32 v5, {SY_LDS + 32}
    ds_read_b32 v12, v5
    s_mov_b32 s90, 0
    v_bfrev_b32 v14, 2
    v_bfrev_b32 v15, 2
    s_waitcnt lgkmcnt(0)
    v_xor_b32 v3, s86, v12
    """)
    if O.upd == 0: update(a, "L_upd_done")
    a(f"""
    s_barrier
    s_branch L_hload
    L_back_pf:
    v_and_b32 v1, 3, v1
    """)
    a(LDS_INIT)
    pf_role(a, "b")
    a("s_waitcnt lgkmcnt(0)")
    for p in back_setup(): a(p)
    a("s_barrier")
    wdl = wd_list()
    for i, d in enumerate(wdl):
        if i == O.wdk: a("s_barrier")
        a(d)
    a("ds_read_b32 v5, v16 offset:32")
    a("s_branch L_p2")

    a("L_back_go_on:")
    if O.prio & 1: a("s_setprio 1")
    dma(1)
    stamp(a, "d1")
    nonce1(a, False)
    a(P1_ROLE)
    pieces = back_setup()
    if not O.bdef:
        for p in pieces: a(p)
        pieces = []
    issued, wd, c0 = 3, 0, 0
    if O.roll:
        assert not pieces
        a("s_waitcnt lgkmcnt(0)")
        nonce2(a, 5)
        dma(2)
        a(f"""
        s_movk_i32 s62, {3*128}
        s_mov_b32 s63, {3*458752}
        s_mov_b32 s89, {3*458752 + 57344}
        s_mov_b32 s81, 0
        L_ld_loop:
        """)
        for c in range(4):
            sl = ((c + 3) % 4) * 24576
            a(f"""
            s_waitcnt vmcnt(12)
            s_barrier
            s_add_u32 m0, s56, {sl}
            s_nop 0
            buffer_load_dwordx4 v12, {rs(R_X)}, s62 offen lds
            s_add_u32 m0, s56, {sl + 1024}
            s_nop 0
            buffer_load_dwordx4 v13, {rs(R_X)}, s62 offen lds
            s_add_u32 m0, s56, {sl + 8192}
            s_addk_i32 s62, 128
            buffer_load_dwordx4 v10, {rs(R_G)}, s63 offen lds
            s_add_u32 m0, s56, {sl + 8192 + 1024}
            s_nop 0
            buffer_load_dwordx4 v10, {rs(R_G)}, s89 offen lds
            s_add_u32 m0, s56, {sl + 16384}
            s_nop 0
            buffer_load_dwordx4 v11, {rs(R_U)}, s63 offen lds
            s_add_u32 m0, s56, {sl + 16384 + 1024}
            s_add_u32 s63, s63, 458752
            buffer_load_dwordx4 v11, {rs(R_U)}, s89 offen lds
            s_add_u32 s89, s89, 458752
            """)
        a("""
        s_add_u32 s81, s81, 1
        s_cmp_lt_u32 s81, 3
        s_cbranch_scc1 L_ld_loop
        """)
        for c in range(3, 15): Q.extend([c] * 6)
        Q.insert(0, "n")
        issued, c0 = 15, 12
        O.n2, O.n3 = -1, 12
    else:
        dma(2)
    for c in range(c0, 16):
        stamp(a, f"w{c}")
        a(f"s_waitcnt vmcnt({len(Q) - 1 - max(i for i, t in enumerate(Q) if t == c)})" + (" lgkmcnt(0)" if (c == O.n3 + (1 if O.roll else 2) and not O.own) else ""))
        stamp(a, f"v{c}")
        a("s_barrier")
        stamp(a, f"c{c}")
        if c == O.n3:
            assert Q.index("n") < max(i for i, t in enumerate(Q) if t == c)
            nonce3(a, 5, not O.own)
        if issued < 16:
            dma(issued); issued += 1
        else:
            n = min({13: O.wd13, 14: O.wd14, 15: 14}[c], 14 - wd)
            for d in wdl[wd:wd+n]:
                a(d); Q.extend(["d"] * d.count("_load_"))
            wd += n
        if c == O.n2:
            a("s_waitcnt lgkmcnt(0)")
            nonce2(a, 5); Q.append("n")
        elif pieces and c >= O.bdef: a(pieces.pop(0))
    assert not pieces
    a("L_p2:")
    stamp(a, "p2in")
    def areg(slot, t, n, o=0):
        base = (slot*4 + t) * 4 + o
        return ar(base, n) if slot < 10 else vr(64 + base - 160, n)
    def areads(s, slot):
        out = []
        for t in range(4):
            out.append(f"ds_read_b64_tr_b16 {areg(slot, t, 2)}, v{20+t} offset:{s*4096}")
            out.append(f"ds_read_b64_tr_b16 {areg(slot, t, 2, 2)}, v{20+t} offset:{s*4096+1024}")
        return out
    def lsync(k):
        a(f"""
        {"" if O.mark else f"ds_write_b32 v14, v15 offset:{16*k}"}
        L_sy{k}:
        ds_read_b128 v[40:43], v16 offset:{16*k}
        s_waitcnt lgkmcnt(0)
        v_and_b32 v40, v40, v41
        v_and_b32 v42, v42, v43
        v_and_b32 v40, v40, v42
        v_cmp_eq_u32 vcc, 0, v40
        s_cbranch_vccnz L_sy{k}
        """)
    NP, N1 = O.NP, O.N1
    if not O.mark: a(f"s_waitcnt vmcnt({14 - N1})")
    stamp(a, "wv")
    lsync(0)
    stamp(a, "wd1")
    for s in range(N1):
        if s >= 1: a("s_waitcnt lgkmcnt(6)")
        for r in areads(s, s): a(r)
    if NP > N1:
        if not O.mark: a(f"s_waitcnt vmcnt({14 - NP})")
        lsync(1)
        stamp(a, "wd2")
        for s in range(N1, NP):
            if s > N1: a("s_waitcnt lgkmcnt(6)")
            for r in areads(s, s): a(r)
    a(f"""
    s_cmp_lt_u32 s49, 14
    s_cbranch_scc1 L_nob2
    s_barrier
    L_nob2:
    s_waitcnt lgkmcnt(8)
    """)
    stamp(a, "rdy")
    if "all" in PTS:
        a("s_waitcnt vmcnt(0)"); stamp(a, "all")
    AC = 24
    groups = {2: [[0],[1,2],[3,4],[5,6],[7,8],[9,10],[11,12],[13]],
              3: [[0],[1],[2,3],[4,5],[6,7],[8,9],[10,11],[12],[13]]}[O.fine]
    def breg(s): return 40 + 4*(s % 4)
    NI = len(groups) + 1
    it_of = {s_: gi + 1 for gi, g in enumerate(groups) for s_ in g}
    plan = [[] for _ in range(NI)]
    room = [0] + [O.cap * len(groups[i - 1]) for i in range(1, NI)]
    i = NI - 1
    for s_ in range(13, NP - 1, -1):
        for r in reversed(areads(s_, s_ % 12)):
            i = min(i, it_of[s_] - 1 - O.slk)
            while room[i] == 0: i -= 1
            assert i >= 1 and (s_ < 12 or i > it_of[s_ - 12]), (s_, i)
            plan[i].insert(0, (r, f"A{s_}")); room[i] -= 1
    LQ = ["P"] * 8
    landed = NP - 1
    def emit(x):
        a(x[0])
        if x[1]: LQ.append(x[1])
    for it in range(NI):
        prev = groups[it - 1] if it else []
        need = [f"B{s_}" for s_ in prev] + [f"A{s_}" for s_ in prev if s_ >= NP]
        if it == 1: need.append("P")
        if it == NI - 1: need.append("Z")
        w = ""
        top = max([int(x[1][1:]) for x in plan[it]], default=-1)
        if top > landed:
            w += f" vmcnt({13 - top})"; landed = top
        n = 8
        if need:
            for t_ in need: assert t_ in LQ and (t_[0] != "A" or LQ.count(t_) == 8), (it, t_)
            n = len(LQ) - 1 - max(len(LQ) - 1 - LQ[::-1].index(t_) for t_ in need)
            w += f" lgkmcnt({n})"
        if w: a("s_waitcnt" + w)
        items = []
        if it < len(groups):
            a("s_barrier")
            stamp(a, f"b{it}")
            if it == len(groups) - 1: stamp(a, "bl")
            items += [(f"ds_read_b128 {vr(breg(s_),4)}, v19 offset:{s_*4096}", f"B{s_}") for s_ in groups[it]]
            if it == len(groups) - 2: items.append(("ds_read_b32 v9, v16 offset:36", "Z"))
        else:
            items += [("v_cmp_ne_u32 vcc, v5, v9", None), ("s_mov_b32 s80, 0\ns_mov_b32 s44, 0xffff0000", None), ("s_cbranch_vccnz L_pz_wait\nL_pz_ok:", None)]
        if n + sum(1 for x in items + plan[it] if x[1]) > 15:
            plan[it][0] = (f"s_waitcnt lgkmcnt({15 - len(plan[it])})\n" + plan[it][0][0], plan[it][0][1])
        items += plan[it]
        if not prev:
            for x in items: emit(x)
        nm = 4 * len(prev); k = 0
        for s_ in prev:
            for t in range(4):
                cin = "0" if s_ == 0 else vr(AC+4*t, 4)
                a(f"v_mfma_f32_16x16x32_bf16 {vr(AC+4*t,4)}, {areg(s_ % 12, t, 4)}, {vr(breg(s_),4)}, {cin}")
                k += 1
                take = -(-len(items) // (nm - k + 1))
                for x in items[:take]: emit(x)
                items = items[take:]
    stamp(a, "mend")
    a("s_nop 0")
    for g in range(2):
        for i in range(4):
            if g == 0 and i == 2: a("s_nop 1")
            a(f"v_cvt_pk_bf16_f32 v{40+4*g+i}, v{AC+8*g+2*i}, v{AC+8*g+2*i+1}")
        for i in range(4):
            a(f"v_min_u32 v{40+4*g+i}, -2, v{40+4*g+i}")
        a(f"buffer_store_dwordx4 {vr(40+4*g,4)}, v8, {rs(R_WS)}, 0 offen offset:{g*512} sc1")
    stamp(a, "pst")
    a("s_waitcnt vmcnt(0)")
    stamp(a, "ack")
    a(f"""
    L_poll2:
    buffer_load_dwordx4 v[64:67], v6, {rs(R_WS)}, 0 offen sc1
    buffer_load_dwordx4 v[68:71], v6, {rs(R_WS)}, 0 offen offset:1024 sc1
    s_add_u32 s80, s80, 1
    s_cmp_ge_u32 s80, {SPIN}
    s_waitcnt vmcnt(1)
    v_max3_u32 v4, v64, v65, v66
    v_lshlrev_b32 v72, 16, v64
    v_and_b32 v73, s44, v64
    v_lshlrev_b32 v74, 16, v65
    v_and_b32 v75, s44, v65
    v_lshlrev_b32 v76, 16, v66
    v_and_b32 v77, s44, v66
    v_lshlrev_b32 v78, 16, v67
    v_and_b32 v79, s44, v67
    s_waitcnt vmcnt(0)
    v_max3_u32 v4, v4, v67, v68
    v_max3_u32 v5, v69, v70, v71
    v_max_u32 v4, v4, v5
    v_cmp_eq_u32 vcc, -1, v4
    s_cbranch_scc1 L_fin
    {"s_cbranch_vccnz L_poll2" if O.sl2 == 0 else f"s_cbranch_vccz L_fin"}
    {"" if O.sl2 == 0 else f"s_sleep {O.sl2}"}
    {"" if O.sl2 == 0 else "s_branch L_poll2"}
    L_fin:
    v_lshlrev_b32 v80, 16, v68
    v_and_b32 v81, s44, v68
    v_lshlrev_b32 v82, 16, v69
    v_and_b32 v83, s44, v69
    v_lshlrev_b32 v84, 16, v70
    v_and_b32 v85, s44, v70
    v_lshlrev_b32 v86, 16, v71
    v_and_b32 v87, s44, v71
    v_pk_add_f32 v[72:73], v[72:73], v[80:81]
    v_pk_add_f32 v[76:77], v[76:77], v[84:85]
    v_pk_add_f32 v[74:75], v[74:75], v[82:83]
    v_pk_add_f32 v[78:79], v[78:79], v[86:87]
    s_nop 0
    v_permlane32_swap_b32 v72, v76
    v_permlane32_swap_b32 v73, v77
    v_permlane32_swap_b32 v74, v78
    v_permlane32_swap_b32 v75, v79
    v_pk_add_f32 v[72:73], v[72:73], v[76:77]
    v_pk_add_f32 v[74:75], v[74:75], v[78:79]
    s_nop 1
    v_permlane16_swap_b32 v72, v74
    v_permlane16_swap_b32 v73, v75
    s_nop 0
    v_pk_add_f32 v[72:73], v[72:73], v[74:75]
    v_cvt_pk_bf16_f32 v64, v72, v73
    buffer_store_dword v64, v7, {rs(R_OUT)}, 0 offen
    {"s_waitcnt vmcnt(0)" if (O.stamp and O.endwait) else ""}
    """)
    if "npoll" in PTS:
        i = PTS["npoll"]
        a(f"s_waitcnt lgkmcnt(0)\ns_mul_i32 s{64+2*i}, s80, 100\ns_add_u32 s{64+2*i}, s{64+2*i}, s64")
    stamp_flush(a)
    a("L_end:")
    a("s_endpgm")
    a(f"""
    L_pz_wait:
    s_sleep 4
    buffer_load_dword v9, v18, {rs(R_WS)}, 0 offen sc1
    s_add_u32 s80, s80, 1
    s_cmp_ge_u32 s80, {SPIN}
    s_waitcnt vmcnt(0)
    v_cmp_ne_u32 vcc, v5, v9
    s_cbranch_scc1 L_pz_out
    s_cbranch_vccnz L_pz_wait
    L_pz_out:
    s_mov_b32 s80, {1000 if O.stamp else 0}
    s_branch L_pz_ok
    """)
    a("L_front_go_on:")
    if O.prio & 2: a("s_setprio 1")
    later = lines(f"""
    v_add_u32 v17, 49152, v16
    v_add_u32 v24, 49152, v20
    v_add_u32 v25, 49152, v21
    v_add_u32 v26, 49152, v22
    v_add_u32 v27, 49152, v23
    v_lshrrev_b32 v6, 1, v1
    s_lshl_b32 s54, s52, 1
    v_add_u32 v6, s54, v6
    v_lshlrev_b32 v6, 3, v6
    v_bfe_u32 v7, v2, 4, 1
    s_lshl_b32 s54, s47, 2
    v_add3_u32 v6, v6, v7, s54
    v_lshlrev_b32 v6, 10, v6
    v_and_b32 v7, 1, v1
    v_lshl_add_u32 v7, v7, 1, v5
    v_lshl_add_u32 v6, v7, 8, v6
    v_and_b32 v7, 15, v2
    v_lshl_add_u32 v14, v7, 4, v6
    v_add_u32 v14, {HA_OFF}, v14
    s_lshl_b32 s54, s48, 1
    s_add_u32 s54, s54, s47
    s_lshl_b32 s54, s54, 7
    s_lshr_b32 s57, s49, 1
    s_lshl_b32 s57, s57, 4
    s_add_u32 s54, s54, s57
    s_add_u32 s54, s54, {FA_OFF}
    v_lshl_add_u32 v15, v1, 2, s54
    s_mov_b32 s44, 0xbfb8aa3b
    s_mov_b32 s45, 0xbfb8aa3b
    v_mov_b32 v5, {SY_LDS + 32}
    s_mov_b32 s90, 1
    """ + P1_ROLE + FRONT_SETUP)
    if not O.fdef:
        a("s_waitcnt lgkmcnt(0)")
        if O.own: nonce1(a, False)
        for x in later: a(x)
        later = []
    ACC = [32, 48]
    def reads(c, s):
        slot = c % 4
        rng, so = slot // 2, (slot % 2) * 24576
        b = 12*s
        return [f"ds_read_b64_tr_b16 a[{b}:{b+1}], v{16+rng} offset:{so + 2048*s}",
                f"ds_read_b64_tr_b16 a[{b+2}:{b+3}], v{16+rng} offset:{so + 2048*s + 512}",
                f"ds_read_b128 a[{b+4}:{b+7}], v{20+4*rng+s} offset:{so}",
                f"ds_read_b128 a[{b+8}:{b+11}], v{20+4*rng+s} offset:{so + 4096}"]
    def mfma(c, s, mi):
        b = 12*s
        cin = "0" if (c == 0 and s == 0 and not O.roll) else vr(ACC[mi], 16)
        return f"v_mfma_f32_32x32x16_bf16 {vr(ACC[mi],16)}, {ar(b,4)}, {ar(b+4+4*mi,4)}, {cin}"
    if O.roll:
        assert not later
        for r in range(32): a(f"v_mov_b32 v{32+r}, 0")
        a("s_mov_b32 s81, 0")
    stamp(a, "fr")
    a("s_barrier")
    stamp(a, "c0")
    for s in range(3):
        for r in reads(0, s): a(r)
    for c in ([0, 1, 2, 3, 12, 13, 14] if O.roll else range(15)):
        if O.roll and c == 0: a("L_mm_loop:")
        if O.roll and c == 12:
            a("""
            s_add_u32 s81, s81, 1
            s_cmp_lt_u32 s81, 3
            s_cbranch_scc1 L_mm_loop
            """)
        now, later = later[:O.fdef], later[O.fdef:]
        for s in range(3):
            a(f"s_waitcnt lgkmcnt({[8,8,4][s]})")
            for mi in range(2):
                a(mfma(c, s, mi))
                if s == 0:
                    for r in reads(c, 3)[2*mi:2*mi+2]: a(r)
                else:
                    k = -(-len(now) // (4 - 2*(s-1) - mi))
                    for x in now[:k]: a(x)
                    now = now[k:]
        if c == O.vtc and O.vt:
            a(f"""
            s_cmp_lg_u32 s53, 2
            s_cbranch_scc1 L_novt
            v_mov_b32 v6, 0
            {f"buffer_load_dword v31, v29, {rs(R_WS)}, 0 offen" if O.vt & 1 else ""}
            {"global_load_dword v31, v6, s[12:13]" if O.vt & 2 else ""}
            L_novt:
            """)
        if O.own:
            if c == O.f2: nonce2(a, 12)
            if c == O.f3:
                a("s_waitcnt vmcnt(0)")
                nonce3(a, 12, False)
                a("v_xor_b32 v3, s86, v12")
        elif c == O.n3 + (1 if O.roll else 3): a("ds_read_b32 v12, v5")
        if c == O.n3 + (2 if O.roll else 4) and not O.own:
            assert not later
            a("v_xor_b32 v3, s86, v12")
        a("s_waitcnt lgkmcnt(0)")
        a("s_barrier")
        if not (O.roll and c < 12): stamp(a, f"c{c+1}")
        rr = [r for s in range(3) for r in reads(c + 1, s)]
        for r in rr[:4]: a(r)
        a(mfma(c, 3, 0))
        for r in rr[4:8]: a(r)
        a(mfma(c, 3, 1))
        for r in rr[8:]: a(r)
    a.c("last chunk: the first 32 rows finish first, their epilogue overlaps the MFMAs of the other 32")
    c = 15
    a("s_waitcnt lgkmcnt(8)")
    a(mfma(c, 0, 0))
    for r in reads(c, 3): a(r)
    a("s_waitcnt lgkmcnt(8)")
    a(mfma(c, 1, 0))
    a("s_waitcnt lgkmcnt(4)")
    a(mfma(c, 2, 0))
    a("s_waitcnt lgkmcnt(0)")
    a(mfma(c, 3, 0))
    a(mfma(c, 0, 1))
    a("s_nop 7\ns_nop 2")
    def epi(mi):
        A = ACC[mi]; t = 64 + 16*mi
        o = []
        if O.epi:
            pk = O.epi == 1
            def mul2(d, x, y): return [f"v_pk_mul_f32 v[{d}:{d+1}], v[{x}:{x+1}], v[{y}:{y+1}]"] if pk else [f"v_mul_f32 v{d}, v{x}, v{y}", f"v_mul_f32 v{d+1}, v{x+1}, v{y+1}"]
            def scl2(d, x): return [f"v_pk_mul_f32 v[{d}:{d+1}], v[{x}:{x+1}], s[44:45]"] if pk else [f"v_mul_f32 v{d}, s44, v{x}", f"v_mul_f32 v{d+1}, s44, v{x+1}"]
            def add2(d): return [f"v_pk_add_f32 v[{d}:{d+1}], v[{d}:{d+1}], 1.0 op_sel_hi:[1,0]"] if pk else [f"v_add_f32 v{d}, 1.0, v{d}", f"v_add_f32 v{d+1}, 1.0, v{d+1}"]
            ex = lambda r: f"v_exp_f32 v{t+r}, v{t+r}"
            rc = lambda r: f"v_rcp_f32 v{t+r}, v{t+r}"
            o += scl2(t, A) + scl2(t+2, A+2)
            o += [ex(0)] + scl2(t+4, A+4) + [ex(1)] + scl2(t+6, A+6)
            o += [ex(2)] + mul2(t+8, A, A+8) + [ex(3)] + add2(t)
            o += [ex(4)] + mul2(t+10, A+2, A+10) + [ex(5)] + add2(t+2)
            o += [ex(6)] + mul2(t+12, A+4, A+12) + [ex(7)] + add2(t+4)
            o += [rc(0)] + mul2(t+14, A+6, A+14) + [rc(1)] + add2(t+6)
            o += [rc(2)] + mul2(t, t, t+8) + [rc(3), rc(4), f"v_cvt_pk_bf16_f32 v{4+4*mi}, v{t}, v{t+1}", rc(5)] + mul2(t+2, t+2, t+10)
            o += [rc(6)] + mul2(t+4, t+4, t+12) + [rc(7), f"v_cvt_pk_bf16_f32 v{5+4*mi}, v{t+2}, v{t+3}"] + mul2(t+6, t+6, t+14)
            o += [f"v_cvt_pk_bf16_f32 v{6+4*mi}, v{t+4}, v{t+5}", f"v_cvt_pk_bf16_f32 v{7+4*mi}, v{t+6}, v{t+7}"]
            o.append(f"buffer_store_dwordx4 v[{4+4*mi}:{7+4*mi}], v14, {rs(R_WS)}, 0 offen offset:{2048*mi}")
            return o
        for r in range(0, 8, 2):
            o.append(f"v_pk_mul_f32 v[{t+r}:{t+r+1}], v[{A+r}:{A+r+1}], s[44:45]")
        for r in range(8):
            o.append(f"v_exp_f32 v{t+r}, v{t+r}")
        for r in range(0, 8, 2):
            o.append(f"v_pk_mul_f32 v[{t+8+r}:{t+9+r}], v[{A+r}:{A+r+1}], v[{A+8+r}:{A+9+r}]")
        for r in range(0, 8, 2):
            o.append(f"v_pk_add_f32 v[{t+r}:{t+r+1}], v[{t+r}:{t+r+1}], 1.0 op_sel_hi:[1,0]")
        for r in range(8):
            o.append(f"v_rcp_f32 v{t+r}, v{t+r}")
        o.append("s_nop 0")
        for r in range(0, 8, 2):
            o.append(f"v_pk_mul_f32 v[{t+r}:{t+r+1}], v[{t+r}:{t+r+1}], v[{t+8+r}:{t+9+r}]")
        for d in range(4):
            o.append(f"v_cvt_pk_bf16_f32 v{4+4*mi+d}, v{t+2*d}, v{t+2*d+1}")
        o.append(f"buffer_store_dwordx4 v[{4+4*mi}:{7+4*mi}], v14, {rs(R_WS)}, 0 offen offset:{2048*mi}")
        return o
    for i, x in enumerate(epi(0)):
        if i == 0: a(mfma(c, 1, 1))
        if i == 5: a(mfma(c, 2, 1))
        if i == 8: a(mfma(c, 3, 1))
        a(x)
    for x in epi(1): a(x)
    stamp(a, "hst")
    a(f"""
    s_waitcnt vmcnt(0)
    buffer_store_dword v3, v15, {rs(R_WS)}, 0 offen
    """)
    stamp(a, "flg")
    a(f"""
    L_hload:
    s_mov_b32 s80, 0
    s_cmp_lg_u32 s53, 0
    s_cbranch_scc1 L_poll1
    v_and_b32 v22, 7, v2
    v_lshl_add_u32 v22, v22, 7, s91
    L_pz0:
    buffer_load_dword v21, v22, {rs(R_WS)}, 0 offen sc1
    buffer_load_dword v20, v18, {rs(R_WS)}, 0 offen sc1
    s_add_u32 s80, s80, 1
    s_cmp_ge_u32 s80, {O.kfast}
    s_waitcnt vmcnt(0)
    v_cmp_ne_u32 vcc, v12, v21
    s_cbranch_vccz L_pz0_ok
    s_cbranch_scc1 L_poll1
    v_cmp_ne_u32 vcc, v3, v20
    s_cbranch_vccz L_go
    s_sleep 2
    s_branch L_pz0
    L_pz0_ok:
    v_mov_b32 v21, {SY_LDS + 36}
    v_cmp_ne_u32 vcc, v3, v20
    ds_write_b32 v21, v12
    s_waitcnt lgkmcnt(0)
    s_cbranch_vccz L_go
    L_poll1:
    buffer_load_dword v20, v18, {rs(R_WS)}, 0 offen sc1
    s_add_u32 s80, s80, 1
    s_cmp_ge_u32 s80, {O.kfast}
    s_cbranch_scc1 L_slow
    s_waitcnt vmcnt(0)
    v_cmp_ne_u32 vcc, v3, v20
    s_cbranch_vccz L_go
    {f"s_sleep {O.sl1}" if O.sl1 else ""}
    s_branch L_poll1
    L_go:
    """)
    stamp(a, "go")
    def hload(s):
        a(f"s_add_u32 m0, s55, {s*4096}")
        a(f"s_add_u32 s57, s{82 if s < 7 else 83}, {s*8192}")
        a(f"buffer_load_dwordx4 v19, {rs(R_WS)}, s57 offen sc1 lds")
    hl = 0
    while hl < O.hlead:
        hload(hl); hl += 1
    for gi, g in enumerate(groups):
        a(f"s_waitcnt vmcnt({hl - 1 - g[-1]})")
        a("s_barrier")
        for _ in range(len(groups[min(gi + 1, len(groups) - 1)])):
            if hl < 14:
                hload(hl); hl += 1
    stamp_flush(a)
    a.c("a producer publishes the write-through copy of h unless its whole group is seen on this die")
    a(f"""
    s_cmp_eq_u32 s90, 0
    s_cbranch_scc1 L_nob
    buffer_load_dword v20, v29, {rs(R_WS)}, 0 offen sc1
    s_waitcnt vmcnt(0)
    v_cmp_ne_u32 vcc, v3, v20
    s_cbranch_vccz L_nob
    """)
    sendb(a)
    a("L_nob:")
    if O.upd == 1: update(a, "L_front_end")
    a("s_endpgm")
    a.c("the producers are not all on this die (or are very late): fall back to the write-through copies")
    a("""
    L_slow:
    s_cmp_eq_u32 s90, 0
    s_cbranch_scc1 L_slow_sent
    """)
    sendb(a)
    a(f"""
    s_mov_b32 s90, 0
    L_slow_sent:
    s_movk_i32 s57, {FB_OFF - FA_OFF}
    s_mov_b32 s80, 0
    L_slow_poll:
    buffer_load_dword v20, v18, {rs(R_WS)}, 0 offen sc1
    buffer_load_dword v21, v18, {rs(R_WS)}, s57 offen sc1
    s_add_u32 s80, s80, 1
    s_waitcnt vmcnt(0)
    v_cmp_ne_u32 vcc, v3, v20
    s_cbranch_vccz L_go
    v_cmp_ne_u32 vcc, v12, v21
    s_cbranch_vccz L_slow_b
    s_sleep 8
    s_cmp_lt_u32 s80, {SPIN}
    s_cbranch_scc1 L_slow_poll
    L_slow_b:
    s_add_u32 s82, s82, {HB_OFF - HA_OFF}
    s_add_u32 s83, s83, {HB_OFF - HA_OFF}
    s_branch L_go
    """)
    a("L_code_end:")
    return a

if __name__ == "__main__":
    opts(sys.argv[2:])
    a = gen()
    hdr = HEADER + f"; @launch grid=(256,1,1) block=(512,1,1) lds={LDS}\n.amdgcn_target \"amdgcn-amd-amdhsa--gfx950\"\n"
    open(sys.argv[1], "w").write(hdr + a.text() + kdesc(KN, NV + NA, NV))
```

```python
import os, sys
from asmlib import *

KN = "standalone__swiglu_ffn__sampling_kernel"
X_B, W_B, OUT_B, WS_B = 128*1024*2, 1024*3584*2, 128*1024*2, 268435456
FA_OFF = 0
FB_OFF = FA_OFF + 4096
EP_OFF = FA_OFF + 8192
RG_OFF = FA_OFF + 12288
PZ_OFF = FA_OFF + 16384
HA_OFF = 65536
P_OFF = 1 << 20
HB_OFF = (3 << 20) + HA_OFF
ST_OFF = 8 << 20
R_X, R_G, R_U, R_D, R_WS, R_OUT = 20, 24, 28, 32, 36, 40
WD_LDS = 98304
SY_LDS = WD_LDS + 57344
LDS = SY_LDS + 64
SPIN = int(os.environ.get("DIAG_SPIN", 1 << 18))
NV, NA = 96, 160

class O:
    stamp = 0; sync = 1; sw = 4; endwait = 1
    kfast = 64; sl1 = 0; sl2 = 0
    xg = 4; xlead = 2; r2 = 8; r3 = 13; hold = 6; wdk = 3; touch = 1; npf0 = 3
    wd13 = 3; wd14 = 5; hlead = 5; fine = 3
    NP = 12; N1 = 6; cap = 3; slk = 1
    fdef = 0; bdef = 0; cp0 = 1; cp1 = 0; roll = 0; upd = 0; own = 1; f2 = 6; f3 = 11; mark = 0; epi = 0; pzdma = 1; vt = 0; dfl = 0; dord = 0; pfl = 0; prio = 0; vtc = 7; n2 = 5; n3 = 9
PTS = {}
def opts(argv):
    for x in argv:
        k, v = x.split("=")
        if k == "pts":
            PTS.clear(); PTS["start"] = 0
            for i, nm in enumerate(v.split(",")): PTS[nm] = i + 1
            O.stamp = 1
        else:
            assert hasattr(O, k), k
            setattr(O, k, int(v))
def rs(r): return f"s[{r}:{r+3}]"
def stamp(a, name):
    if O.stamp and name in PTS:
        idx = PTS[name]
        a(f"s_memrealtime s[{64+2*idx}:{65+2*idx}]")
_fl = [0]
def stamp_flush(a):
    if not O.stamp: return
    _fl[0] += 1
    L = f"L_sf{_fl[0]}"
    a(f"""
    s_memrealtime s[78:79]
    s_cmp_lg_u32 s53, {O.sw}
    s_cbranch_scc1 {L}
    s_waitcnt lgkmcnt(0)
    """)
    for i in range(8):
        a(f"v_mov_b32 v{80+i}, s{64+2*i}")
    a(f"""
    s_lshl_b32 s63, s2, 5
    s_add_u32 s63, s63, {ST_OFF}
    v_mov_b32 v88, s63
    s_mov_b64 exec, 1
    buffer_store_dwordx4 v[80:83], v88, {rs(R_WS)}, 0 offen
    buffer_store_dwordx4 v[84:87], v88, {rs(R_WS)}, 0 offen offset:16
    s_mov_b64 exec, -1
    {L}:
    """)
def lines(txt):
    return [x.strip() for x in txt.split("\n") if x.strip()]

def pf_role(a, tag):
    a(f"""
    s_mov_b32 s50, 1
    s_cmp_ge_u32 s52, 3
    s_addc_u32 s51, s52, 0
    s_cmp_ge_u32 s52, 10
    s_addc_u32 s51, s51, 0
    s_mov_b32 s46, 0
    s_cmp_ge_u32 s52, 14
    s_cbranch_scc0 L_pf_role_{tag}
    s_and_b32 s50, s52, 1
    s_mul_i32 s46, s50, 7
    s_cmp_ge_u32 s52, 16
    s_cselect_b32 s51, 11, 3
    L_pf_role_{tag}:
    """)
P1_ROLE = """
    s_mov_b32 s50, 0
    s_cmp_ge_u32 s49, 3
    s_addc_u32 s51, s49, 0
    s_cmp_ge_u32 s49, 10
    s_addc_u32 s51, s51, 0
    s_mov_b32 s46, 0
"""
FRONT_SETUP = f"""
    s_getreg_b32 s86, hwreg(HW_REG_XCC_ID, 0, 4)
    s_lshl_b32 s86, s86, 24
    s_lshl_b32 s55, s53, 10
    s_lshl_b32 s82, s46, 13
    s_sub_u32 s83, 0, s82
    s_mul_i32 s54, s48, 112
    s_lshl_b32 s57, s50, 2
    s_add_u32 s54, s54, s57
    v_add_u32 v6, s54, v1
    v_lshlrev_b32 v6, 10, v6
    v_lshl_add_u32 v19, v2, 4, v6
    v_add_u32 v19, {HA_OFF}, v19
    s_lshl_b32 s54, s48, 1
    s_add_u32 s54, s54, s50
    s_lshl_b32 s54, s54, 7
    s_add_u32 s54, s54, {FA_OFF}
    v_min_u32 v6, 27, v2
    v_lshl_add_u32 v18, v6, 2, s54
    s_lshl_b32 s54, s48, 7
    s_add_u32 s54, s54, {RG_OFF}
    v_and_b32 v6, 31, v2
    v_lshl_add_u32 v29, v6, 2, s54
    v_and_b32 v7, 1, v6
    v_lshlrev_b32 v7, 7, v7
    v_lshrrev_b32 v8, 1, v6
    v_lshl_add_u32 v7, v8, 4, v7
    v_cmp_gt_u32 vcc, 14, v6
    s_lshl_b32 s54, s48, 8
    s_add_u32 s54, s54, {FA_OFF}
    v_add_u32 v7, s54, v7
    v_cndmask_b32 v29, v29, v7, vcc
    s_cmp_lt_u32 s49, 14
    s_cselect_b32 s54, 14, 0
    s_add_u32 s54, s54, s49
    s_lshl_b32 s54, s54, 10
    s_add_u32 s91, s54, {PZ_OFF}
    s_mov_b32 s38, {WS_B}
    s_mov_b32 s39, 0x20000
    s_mov_b64 s[36:37], s[16:17]
"""
def back_setup():
    p = [f"""
    s_mov_b64 s[32:33], s[10:11]
    s_mov_b32 s34, {W_B}
    s_mov_b32 s35, 0x20000
    s_mov_b64 s[36:37], s[16:17]
    s_mov_b32 s38, {WS_B}
    s_mov_b32 s39, 0x20000
    s_mov_b64 s[40:41], s[12:13]
    s_mov_b32 s42, {OUT_B}
    s_mov_b32 s43, 0x20000
    s_and_b32 s55, s53, 3
    s_lshl_b32 s55, s55, 10
    s_lshl_b32 s84, s46, 16
    s_sub_u32 s85, 0, s84
    s_getpc_b64 s[92:93]
    s_lshr_b32 s81, s55, 8
    s_add_u32 s81, s81, {SY_LDS}
    """, f"""
    v_lshrrev_b32 v3, 3, v2
    v_and_b32 v4, 7, v2
    v_and_b32 v6, 6, v3
    v_xor_b32 v4, v4, v6
    v_lshl_add_u32 v3, v1, 3, v3
    s_mul_i32 s60, s48, 448
    v_add_u32 v3, s60, v3
    v_lshlrev_b32 v3, 11, v3
    s_lshl_b32 s60, s51, 7
    v_add_u32 v3, s60, v3
    v_lshl_add_u32 v17, v4, 4, v3
    v_lshlrev_b32 v3, 10, v1
    v_lshl_add_u32 v19, v2, 4, v3
    """, f"""
    v_lshrrev_b32 v3, 4, v2
    v_bfe_u32 v4, v2, 2, 2
    v_and_b32 v7, 1, v3
    v_lshrrev_b32 v6, 1, v3
    v_lshlrev_b32 v6, 4, v6
    v_lshl_add_u32 v6, v7, 2, v6
    v_add_u32 v6, v6, v4
    v_lshlrev_b32 v6, 7, v6
    v_and_b32 v8, 3, v2
    v_lshl_add_u32 v6, v8, 3, v6
    v_add_u32 v6, {WD_LDS}, v6
    v_lshrrev_b32 v4, 1, v4
    v_lshl_add_u32 v4, v7, 1, v4
    """, "\n".join(f"v_xor_b32 v7, {t}, v4\nv_lshl_add_u32 v{20+t}, v7, 5, v6" for t in range(4)), f"""
    v_bfe_u32 v4, v2, 3, 1
    v_lshl_add_u32 v6, v1, 1, v4
    s_lshl_b32 s60, s49, 3
    v_add_u32 v6, s60, v6
    v_lshlrev_b32 v6, 3, v6
    v_add_u32 v6, s48, v6
    v_lshlrev_b32 v6, 10, v6
    v_lshl_add_u32 v6, v3, 7, v6
    v_and_b32 v7, 7, v2
    v_lshl_add_u32 v6, v7, 4, v6
    v_add_u32 v8, {P_OFF}, v6
    """, f"""
    s_cmp_lt_u32 s49, 14
    s_cselect_b32 s61, 14*8, 0
    s_add_u32 s61, s61, s60
    s_lshl_b32 s61, s61, 7
    s_add_u32 s61, s61, {PZ_OFF}
    v_lshl_add_u32 v18, v7, 7, s61
    s_add_u32 s60, s60, s48
    s_lshl_b32 s60, s60, 13
    s_add_u32 s60, s60, {P_OFF}
    v_and_b32 v6, 15, v2
    v_lshl_add_u32 v6, v1, 4, v6
    v_lshlrev_b32 v6, 4, v6
    v_lshl_add_u32 v6, v3, 11, v6
    v_add_u32 v6, s60, v6
    """, f"""
    s_lshl_b32 s60, s50, 6
    s_lshl_b32 s61, s48, 3
    s_add_u32 s60, s60, s61
    v_add_u32 v7, s60, v7
    v_lshlrev_b32 v7, 11, v7
    v_lshl_add_u32 v7, v4, 3, v7
    v_and_b32 v4, 1, v1
    v_lshl_add_u32 v7, v4, 4, v7
    v_lshrrev_b32 v4, 1, v1
    v_lshl_add_u32 v7, v4, 6, v7
    v_and_b32 v4, 1, v3
    v_lshl_add_u32 v7, v4, 2, v7
    v_lshrrev_b32 v4, 1, v3
    v_lshl_add_u32 v7, v4, 5, v7
    s_lshl_b32 s60, s51, 7
    v_add_u32 v7, s60, v7
    """]
    return p
LDS_INIT = f"""
    v_mov_b32 v16, {SY_LDS}
    v_lshl_add_u32 v14, v1, 2, v16
    v_mov_b32 v9, 0
    ds_write_b32 v14, v9
    ds_write_b32 v14, v9 offset:16
    ds_write_b32 v16, v9 offset:36
    v_mov_b32 v15, -1
"""
def nonce1(a, line):
    a(f"""
    s_movk_i32 s88, {EP_OFF}
    s_load_dword s59, s[16:17], s88
    s_load_dword s87, s[14:15], 0
    """)
    if line:
        a(f"""
        s_lshl_b32 s88, s48, 7
        s_add_u32 s88, s88, {RG_OFF}
        s_load_dword s87, s[16:17], s88
        s_add_u32 s89, s88, 64
        s_load_dword s87, s[16:17], s89
        """)
def nonce2(a, vn):
    a(f"""
    v_mov_b32 v30, 0
    s_add_u32 s59, s59, 1
    s_bitset1_b32 s59, 31
    global_load_dword v{vn}, v30, s[14:15] sc1
    """)
def nonce3(a, vn, share=True):
    a(f"""
    v_cmp_eq_u32 vcc, 0, v{vn}
    v_mov_b32 v30, s59
    {f"v_mov_b32 v28, {SY_LDS + 32}" if share else "s_nop 0"}
    v_cndmask_b32 v{vn}, v{vn}, v30, vcc
    {f"ds_write_b32 v28, v{vn}" if share else ""}
    """)
def wd_list():
    L = [f"s_add_u32 m0, s55, {WD_LDS + s*4096}\ns_add_u32 s57, s{84 if s < 7 else 85}, {s*65536}\nbuffer_load_dwordx4 v17, {rs(R_D)}, s57 offen lds" for s in range(14)]
    if O.mark:
        for k, n in enumerate([O.N1] + ([O.NP] if O.NP > O.N1 else [])):
            L[n - 1] += f"\ns_add_u32 m0, s81, {16*k}\ns_mov_b64 exec, 1\nglobal_load_lds_dword v9, s[92:93]\ns_mov_b64 exec, -1"
    return L
def sendb(a):
    a(f"""
    s_mov_b32 s57, {HB_OFF - HA_OFF}
    s_movk_i32 s58, {FB_OFF - FA_OFF}
    buffer_store_dwordx4 v[4:7], v14, {rs(R_WS)}, s57 offen sc1
    buffer_store_dwordx4 v[8:11], v14, {rs(R_WS)}, s57 offen offset:2048 sc1
    s_waitcnt vmcnt(0)
    buffer_store_dword v12, v15, {rs(R_WS)}, s58 offen sc1
    """)

def update(a, done):
    a.c("one wave of the launch moves the epoch on: d_debug first, so that a late reader can tell")
    a(f"""
    s_lshl_b32 s54, s2, 3
    s_add_u32 s54, s54, s53
    s_cmp_eq_u32 s54, {255*8 + 3}
    s_cbranch_scc0 {done}
    v_mov_b32 v26, 0
    v_mov_b32 v27, {EP_OFF}
    s_mov_b64 exec, 1
    global_store_dword v26, v12, s[14:15] sc1
    s_waitcnt vmcnt(0)
    global_store_dword v27, v12, s[16:17] sc1
    s_mov_b64 exec, -1
    {done}:
    """)

def gen():
    a = Asm()
    kstart(a, KN)
    if O.stamp and O.sync:
        a("""
        s_memrealtime s[44:45]
        s_waitcnt lgkmcnt(0)
        s_add_u32 s46, s44, 612
        s_and_b32 s46, s46, 0xfffffe00
        L_sync:
        s_memrealtime s[44:45]
        s_waitcnt lgkmcnt(0)
        s_sub_u32 s47, s44, s46
        s_cmp_lt_i32 s47, 0
        s_cbranch_scc1 L_sync
        """)
    stamp(a, "start")
    a(f"""
    s_load_dwordx8 s[4:11], s[0:1], 0
    s_load_dwordx4 s[12:15], s[0:1], 32
    s_load_dwordx2 s[16:17], s[0:1], 48
    v_lshrrev_b32 v1, 6, v0         ; wave
    s_cmp_ge_u32 s2, 256
    s_cbranch_scc1 L_end
    v_readfirstlane_b32 s53, v1
    s_and_b32 s48, s2, 7            ; j
    s_lshr_b32 s49, s2, 3           ; q
    v_and_b32 v2, 63, v0            ; lane
    s_mov_b32 s22, {X_B}
    s_mov_b32 s23, 0x20000
    s_mov_b32 s26, {W_B}
    s_mov_b32 s27, 0x20000
    """)
    if O.cp0:
        a.c("wave 1 of every workgroup brings four lines of the kernel's code into this die's L2")
        a(f"""
        s_cmp_eq_u32 s53, 1
        s_cbranch_scc0 L_nocp
        s_getpc_b64 s[44:45]
        L_pc:
        v_and_b32 v3, 3, v2
        v_lshl_add_u32 v3, s49, 2, v3
        v_min_u32 v3, (L_code_end-L_pc-4)/128, v3
        v_lshlrev_b32 v3, 7, v3
        global_load_dword v31, v3, s[44:45]
        L_nocp:
        """)
    a(f"""
    s_cmp_lt_u32 s49, 14
    s_cbranch_scc1 L_p1
    s_sub_u32 s52, s49, 14          ; p
    s_cmp_lg_u32 s53, 0
    s_cbranch_scc1 L_pf_other
    """)
    a.c("prefetch wave: per 64-row chunk 50 lines of Wg (odd p) or Wu (even p), and 8 rows of x")
    a(f"""
    s_lshr_b32 s54, s52, 1
    s_mul_i32 s54, s54, 50
    v_add_u32 v3, s54, v2
    v_mul_u32_u24 v5, 9363, v3
    v_lshrrev_b32 v5, 16, v5        ; row = i / 7
    v_mul_u32_u24 v6, 7, v5
    v_sub_u32 v6, v3, v6            ; column = i % 7
    v_mul_u32_u24 v5, 7168, v5
    v_lshl_add_u32 v5, v6, 7, v5
    s_mul_i32 s54, s48, 896
    v_add_u32 v5, s54, v5
    v_cmp_gt_u32 vcc, 50, v2
    s_movk_i32 s54, 448
    v_cmp_gt_u32 s[44:45], s54, v3
    v_bfrev_b32 v7, 2
    s_lshl_b32 s54, s52, 3
    s_and_b64 vcc, vcc, s[44:45]
    v_lshrrev_b32 v3, {O.xg.bit_length() - 1}, v2
    v_add_u32 v3, s54, v3
    v_lshlrev_b32 v6, 11, v3
    v_and_b32 v3, {O.xg - 1}, v2
    v_lshl_add_u32 v6, v3, 7, v6
    v_cndmask_b32 v10, v7, v5, vcc
    v_cmp_gt_u32 vcc, {8 * O.xg}, v2
    s_bitcmp1_b32 s52, 0
    s_nop 0
    v_cndmask_b32 v11, v7, v6, vcc  ; rows >= 128 fall out of range
    s_waitcnt lgkmcnt(0)
    s_cselect_b64 s[24:25], s[6:7], s[8:9]
    s_mov_b64 s[20:21], s[4:5]
    """)
    stamp(a, "karg")
    npf = [0]
    def pf(c):
        for g_ in range(16 // O.xg):
            if max(0, g_ * O.xg - O.xlead) == c:
                so = "0"
                if g_:
                    a(f"s_movk_i32 s58, {g_ * O.xg * 128}"); so = "s58"
                a(f"buffer_load_dword v22, v11, {rs(R_X)}, {so} offen"); npf[0] += 1
        so = "0"
        if c:
            a(f"s_mov_b32 s57, {c*64*7168}"); so = "s57"
        a(f"buffer_load_dword v20, v10, {rs(R_G)}, {so} offen {['', 'sc1', 'sc0', 'sc0 sc1'][O.pfl]}"); npf[0] += 1
    for c in range(O.npf0): pf(c)
    a("s_branch L_pf_go_on")
    a(f"""
    L_p1:
    s_and_b32 s47, s49, 1
    s_lshr_b32 s52, s49, 1
    s_mul_i32 s54, s48, 7
    s_add_u32 s52, s52, s54
    s_cmp_lt_u32 s53, 4
    s_cbranch_scc1 L_front
    v_and_b32 v1, 3, v1
    s_lshl_b32 s54, s52, 7
    v_lshrrev_b32 v3, 3, v2
    v_and_b32 v4, 7, v2
    v_lshl_add_u32 v5, v1, 4, v3
    v_mul_u32_u24 v6, 7168, v5
    v_add_u32 v6, s54, v6
    v_and_b32 v7, 2, v3
    v_xor_b32 v7, v7, v4
    v_lshl_add_u32 v10, v7, 4, v6
    v_xor_b32 v11, 64, v10
    v_lshrrev_b32 v7, 1, v3
    v_xor_b32 v7, v7, v4
    s_lshl_b32 s54, s47, 6
    v_add_u32 v5, s54, v5
    v_lshlrev_b32 v5, 11, v5
    v_lshl_add_u32 v12, v7, 4, v5
    v_xor_b32 v13, 64, v12
    v_add_u32 v13, 0x4000, v13
    s_and_b32 s56, s53, 3
    s_lshl_b32 s56, s56, 11
    s_mov_b32 s30, {W_B}
    s_mov_b32 s31, 0x20000
    """)
    a(LDS_INIT)
    a("""
    s_waitcnt lgkmcnt(0)
    s_mov_b64 s[20:21], s[4:5]
    s_mov_b64 s[24:25], s[6:7]
    s_mov_b64 s[28:29], s[8:9]
    """)
    stamp(a, "karg")
    Q = []
    def dma(c):
        sl = (c % 4) * 24576
        L = list(enumerate([(12, R_X, c*128), (13, R_X, c*128), (10, R_G, c*458752), (10, R_G, c*458752+57344), (11, R_U, c*458752), (11, R_U, c*458752+57344)]))
        if O.dord == 1: L = [L[i] for i in (0, 2, 4, 1, 3, 5)]
        if O.dord == 2: L = [L[i] for i in (2, 3, 4, 5, 0, 1)]
        for k, (v, r, so) in L:
            a(f"s_add_u32 m0, s56, {sl + (k//2)*8192 + (k%2)*1024}\ns_mov_b32 s57, {so}\nbuffer_load_dwordx4 v{v}, {rs(r)}, s57 offen {['', 'sc1', 'sc0', 'sc0 sc1'][O.dfl]} lds")
            Q.append(c)
    dma(0)
    stamp(a, "d0")
    a("s_branch L_back_go_on")
    a("L_front:")
    stamp(a, "fin")
    a(f"""
    v_bfe_u32 v4, v2, 4, 1
    v_lshrrev_b32 v5, 5, v2         ; k half
    v_bfe_u32 v6, v2, 2, 2
    v_lshrrev_b32 v7, 1, v6
    v_lshl_add_u32 v7, v4, 1, v7
    v_xor_b32 v7, v7, v1
    v_lshl_add_u32 v6, v5, 3, v6
    v_lshlrev_b32 v6, 7, v6
    v_lshl_add_u32 v6, v7, 5, v6
    v_lshl_add_u32 v6, v4, 13, v6
    v_and_b32 v7, 3, v2
    v_lshl_add_u32 v6, v7, 3, v6
    v_add_u32 v16, 0x2000, v6
    v_and_b32 v6, 31, v2
    v_bfe_u32 v7, v6, 1, 3
    v_xor_b32 v7, v7, v5
    v_lshlrev_b32 v6, 7, v6
    """)
    for s in range(4):
        a(f"v_xor_b32 v8, {2*s}, v7")
        a(f"v_lshl_add_u32 v{20+s}, v8, 4, v6")
    a("s_branch L_front_go_on")

    a("L_pf_go_on:")
    if not O.cp0:
        a(f"""
        s_cmp_lt_u32 s52, 16
        s_cbranch_scc1 L_nocp
        s_getpc_b64 s[44:45]
        L_pc:
        s_sub_u32 s44, s44, L_pc-{KN}
        s_subb_u32 s45, s45, 0
        s_and_b32 s54, s52, 1
        s_lshl_b32 s54, s54, 6
        v_add_u32 v3, s54, v2
        v_min_u32 v3, (L_code_end-{KN}-4)/128, v3
        v_lshlrev_b32 v3, 7, v3
        global_load_dword v23, v3, s[44:45]
        L_nocp:
        """)
    if O.touch:
        a.c("one first touch per workgroup, so that the address translations are there when they are needed")
        a("""
        s_cmp_lt_u32 s52, 14
        s_cselect_b64 s[44:45], s[16:17], s[12:13]
        s_cmp_lt_u32 s52, 12
        s_cselect_b64 s[44:45], s[10:11], s[44:45]
        s_cmp_lt_u32 s52, 8
        s_cselect_b64 s[44:45], s[8:9], s[44:45]
        s_cmp_lt_u32 s52, 4
        s_cselect_b64 s[44:45], s[6:7], s[44:45]
        s_and_b32 s54, s52, 3
        s_lshl_b32 s54, s54, 21
        s_cmp_lt_u32 s52, 14
        s_cselect_b32 s54, s54, 0
        s_load_dword s87, s[44:45], s54
        """)
    nonce1(a, True)
    for c in range(O.npf0, 16):
        if c == O.r2:
            a("""
            s_getreg_b32 s86, hwreg(HW_REG_XCC_ID, 0, 4)
            s_lshl_b32 s86, s86, 24
            s_lshl_b32 s89, s49, 2
            s_add_u32 s88, s88, s89
            v_mov_b32 v31, s88
            s_waitcnt lgkmcnt(0)
            """)
            nonce2(a, 12); mark = npf[0]
        if c == O.r3:
            a(f"s_waitcnt vmcnt({npf[0] - mark})")
            nonce3(a, 12)
            a("v_xor_b32 v30, s86, v12")
            stamp(a, "non")
        pf(c)
    stamp(a, "hia")
    if O.hold >= 0: a(f"s_waitcnt vmcnt({O.hold})")
    stamp(a, "hib")
    a.c("announce this workgroup's die; fill its inbox and that of the paired producer with the not-yet-written pattern;")
    a.c("bring the lines of the h buffer into L2 before they are written")
    a(f"""
    global_store_dword v31, v30, s[16:17]
    s_lshl_b32 s54, s49, 3
    s_add_u32 s54, s54, s48
    s_lshl_b32 s57, s54, 13
    s_add_u32 s57, s57, {P_OFF}
    v_lshl_add_u32 v3, v2, 4, s57
    v_add_u32 v8, 0x1000, v3
    s_lshl_b32 s54, s54, 7
    s_add_u32 s54, s54, {PZ_OFF}
    v_mov_b32 v13, s54
    v_mov_b32 v4, -1
    v_mov_b32 v5, -1
    v_mov_b32 v6, -1
    v_mov_b32 v7, -1
    s_cmp_lt_u32 s52, 14
    """)
    for k in range(8):
        a(f"global_store_dwordx4 v{3 if k < 4 else 8}, v[4:7], s[16:17] offset:{(k % 4)*1024} sc1")
    a(f"""
    s_cbranch_scc0 L_pz_one
    v_subrev_u32 v3, {14*8*8192}, v3
    v_subrev_u32 v8, {14*8*8192}, v8
    """)
    for k in range(8):
        a(f"global_store_dwordx4 v{3 if k < 4 else 8}, v[4:7], s[16:17] offset:{(k % 4)*1024} sc1")
    a(f"""
    L_pz_one:
    s_lshl_b32 s54, s52, 6
    v_add_u32 v3, s54, v2
    v_min_u32 v3, 895, v3
    s_mul_i32 s54, s48, 114688
    s_add_u32 s54, s54, {HA_OFF}
    v_lshl_add_u32 v3, v3, 7, s54
    global_load_dword v24, v3, s[16:17]
    s_waitcnt lgkmcnt(0)
    s_barrier
    s_waitcnt vmcnt(1)
    global_store_dword v13, v12, s[16:17] sc1
    s_barrier
    """)
    stamp(a, "pfi")
    a("s_branch L_pf_front")
    a(f"""
    L_pf_other:
    s_cmp_ge_u32 s53, 4
    s_cbranch_scc1 L_back_pf
    s_waitcnt lgkmcnt(0)
    s_barrier
    s_barrier
    """)
    if O.vt & 2:
        a("""
        s_cmp_eq_u32 s53, 2
        s_cbranch_scc0 L_pf_front
        v_mov_b32 v6, 0
        global_load_dword v31, v6, s[12:13]
        """)
    if O.cp1:
        a.c("touch the code of the later phases again: it is the oldest resident of the L2 by now")
        a(f"""
        s_cmp_eq_u32 s53, 1
        s_cbranch_scc0 L_pf_front
        s_getpc_b64 s[44:45]
        L_pc1:
        v_min_u32 v3, 5, v2
        s_mul_i32 s54, s52, 6
        v_add_u32 v3, s54, v3
        v_min_u32 v3, (L_code_end-L_pc1-4)/128, v3
        v_lshlrev_b32 v3, 7, v3
        global_load_dword v31, v3, s[44:45]
        """)
    a(f"""
    L_pf_front:
    """)
    pf_role(a, "f")
    a(FRONT_SETUP)
    a(f"""
    v_mov_b32 v5, {SY_LDS + 32}
    ds_read_b32 v12, v5
    s_mov_b32 s90, 0
    v_bfrev_b32 v14, 2
    v_bfrev_b32 v15, 2
    s_waitcnt lgkmcnt(0)
    v_xor_b32 v3, s86, v12
    """)
    if O.upd == 0: update(a, "L_upd_done")
    a(f"""
    s_barrier
    s_branch L_hload
    L_back_pf:
    v_and_b32 v1, 3, v1
    """)
    a(LDS_INIT)
    pf_role(a, "b")
    a("s_waitcnt lgkmcnt(0)")
    for p in back_setup(): a(p)
    a("s_barrier")
    wdl = wd_list()
    for i, d in enumerate(wdl):
        if i == O.wdk: a("s_barrier")
        a(d)
    a("ds_read_b32 v5, v16 offset:32")
    a("s_branch L_p2")

    a("L_back_go_on:")
    if O.prio & 1: a("s_setprio 1")
    dma(1)
    stamp(a, "d1")
    nonce1(a, False)
    a(P1_ROLE)
    pieces = back_setup()
    if not O.bdef:
        for p in pieces: a(p)
        pieces = []
    issued, wd, c0 = 3, 0, 0
    if O.roll:
        assert not pieces
        a("s_waitcnt lgkmcnt(0)")
        nonce2(a, 5)
        dma(2)
        a(f"""
        s_movk_i32 s62, {3*128}
        s_mov_b32 s63, {3*458752}
        s_mov_b32 s89, {3*458752 + 57344}
        s_mov_b32 s81, 0
        L_ld_loop:
        """)
        for c in range(4):
            sl = ((c + 3) % 4) * 24576
            a(f"""
            s_waitcnt vmcnt(12)
            s_barrier
            s_add_u32 m0, s56, {sl}
            s_nop 0
            buffer_load_dwordx4 v12, {rs(R_X)}, s62 offen lds
            s_add_u32 m0, s56, {sl + 1024}
            s_nop 0
            buffer_load_dwordx4 v13, {rs(R_X)}, s62 offen lds
            s_add_u32 m0, s56, {sl + 8192}
            s_addk_i32 s62, 128
            buffer_load_dwordx4 v10, {rs(R_G)}, s63 offen lds
            s_add_u32 m0, s56, {sl + 8192 + 1024}
            s_nop 0
            buffer_load_dwordx4 v10, {rs(R_G)}, s89 offen lds
            s_add_u32 m0, s56, {sl + 16384}
            s_nop 0
            buffer_load_dwordx4 v11, {rs(R_U)}, s63 offen lds
            s_add_u32 m0, s56, {sl + 16384 + 1024}
            s_add_u32 s63, s63, 458752
            buffer_load_dwordx4 v11, {rs(R_U)}, s89 offen lds
            s_add_u32 s89, s89, 458752
            """)
        a("""
        s_add_u32 s81, s81, 1
        s_cmp_lt_u32 s81, 3
        s_cbranch_scc1 L_ld_loop
        """)
        for c in range(3, 15): Q.extend([c] * 6)
        Q.insert(0, "n")
        issued, c0 = 15, 12
        O.n2, O.n3 = -1, 12
    else:
        dma(2)
    for c in range(c0, 16):
        stamp(a, f"w{c}")
        a(f"s_waitcnt vmcnt({len(Q) - 1 - max(i for i, t in enumerate(Q) if t == c)})" + (" lgkmcnt(0)" if (c == O.n3 + (1 if O.roll else 2) and not O.own) else ""))
        stamp(a, f"v{c}")
        a("s_barrier")
        stamp(a, f"c{c}")
        if c == O.n3:
            assert Q.index("n") < max(i for i, t in enumerate(Q) if t == c)
            nonce3(a, 5, not O.own)
        if issued < 16:
            dma(issued); issued += 1
        else:
            n = min({13: O.wd13, 14: O.wd14, 15: 14}[c], 14 - wd)
            for d in wdl[wd:wd+n]:
                a(d); Q.extend(["d"] * d.count("_load_"))
            wd += n
        if c == O.n2:
            a("s_waitcnt lgkmcnt(0)")
            nonce2(a, 5); Q.append("n")
        elif pieces and c >= O.bdef: a(pieces.pop(0))
    assert not pieces
    a("L_p2:")
    stamp(a, "p2in")
    def areg(slot, t, n, o=0):
        base = (slot*4 + t) * 4 + o
        return ar(base, n) if slot < 10 else vr(64 + base - 160, n)
    def areads(s, slot):
        out = []
        for t in range(4):
            out.append(f"ds_read_b64_tr_b16 {areg(slot, t, 2)}, v{20+t} offset:{s*4096}")
            out.append(f"ds_read_b64_tr_b16 {areg(slot, t, 2, 2)}, v{20+t} offset:{s*4096+1024}")
        return out
    def lsync(k):
        a(f"""
        {"" if O.mark else f"ds_write_b32 v14, v15 offset:{16*k}"}
        L_sy{k}:
        ds_read_b128 v[40:43], v16 offset:{16*k}
        s_waitcnt lgkmcnt(0)
        v_and_b32 v40, v40, v41
        v_and_b32 v42, v42, v43
        v_and_b32 v40, v40, v42
        v_cmp_eq_u32 vcc, 0, v40
        s_cbranch_vccnz L_sy{k}
        """)
    NP, N1 = O.NP, O.N1
    if not O.mark: a(f"s_waitcnt vmcnt({14 - N1})")
    stamp(a, "wv")
    lsync(0)
    stamp(a, "wd1")
    for s in range(N1):
        if s >= 1: a("s_waitcnt lgkmcnt(6)")
        for r in areads(s, s): a(r)
    if NP > N1:
        if not O.mark: a(f"s_waitcnt vmcnt({14 - NP})")
        lsync(1)
        stamp(a, "wd2")
        for s in range(N1, NP):
            if s > N1: a("s_waitcnt lgkmcnt(6)")
            for r in areads(s, s): a(r)
    a(f"""
    s_cmp_lt_u32 s49, 14
    s_cbranch_scc1 L_nob2
    s_barrier
    L_nob2:
    s_waitcnt lgkmcnt(8)
    """)
    stamp(a, "rdy")
    if "all" in PTS:
        a("s_waitcnt vmcnt(0)"); stamp(a, "all")
    AC = 24
    groups = {2: [[0],[1,2],[3,4],[5,6],[7,8],[9,10],[11,12],[13]],
              3: [[0],[1],[2,3],[4,5],[6,7],[8,9],[10,11],[12],[13]]}[O.fine]
    def breg(s): return 40 + 4*(s % 4)
    NI = len(groups) + 1
    it_of = {s_: gi + 1 for gi, g in enumerate(groups) for s_ in g}
    plan = [[] for _ in range(NI)]
    room = [0] + [O.cap * len(groups[i - 1]) for i in range(1, NI)]
    i = NI - 1
    for s_ in range(13, NP - 1, -1):
        for r in reversed(areads(s_, s_ % 12)):
            i = min(i, it_of[s_] - 1 - O.slk)
            while room[i] == 0: i -= 1
            assert i >= 1 and (s_ < 12 or i > it_of[s_ - 12]), (s_, i)
            plan[i].insert(0, (r, f"A{s_}")); room[i] -= 1
    LQ = ["P"] * 8
    landed = NP - 1
    def emit(x):
        a(x[0])
        if x[1]: LQ.append(x[1])
    for it in range(NI):
        prev = groups[it - 1] if it else []
        need = [f"B{s_}" for s_ in prev] + [f"A{s_}" for s_ in prev if s_ >= NP]
        if it == 1: need.append("P")
        if it == NI - 1: need.append("Z")
        w = ""
        top = max([int(x[1][1:]) for x in plan[it]], default=-1)
        if top > landed:
            w += f" vmcnt({13 - top})"; landed = top
        n = 8
        if need:
            for t_ in need: assert t_ in LQ and (t_[0] != "A" or LQ.count(t_) == 8), (it, t_)
            n = len(LQ) - 1 - max(len(LQ) - 1 - LQ[::-1].index(t_) for t_ in need)
            w += f" lgkmcnt({n})"
        if w: a("s_waitcnt" + w)
        items = []
        if it < len(groups):
            a("s_barrier")
            stamp(a, f"b{it}")
            if it == len(groups) - 1: stamp(a, "bl")
            items += [(f"ds_read_b128 {vr(breg(s_),4)}, v19 offset:{s_*4096}", f"B{s_}") for s_ in groups[it]]
            if it == len(groups) - 2: items.append(("ds_read_b32 v9, v16 offset:36", "Z"))
        else:
            items += [("v_cmp_ne_u32 vcc, v5, v9", None), ("s_mov_b32 s80, 0\ns_mov_b32 s44, 0xffff0000", None), ("s_cbranch_vccnz L_pz_wait\nL_pz_ok:", None)]
        if n + sum(1 for x in items + plan[it] if x[1]) > 15:
            plan[it][0] = (f"s_waitcnt lgkmcnt({15 - len(plan[it])})\n" + plan[it][0][0], plan[it][0][1])
        items += plan[it]
        if not prev:
            for x in items: emit(x)
        nm = 4 * len(prev); k = 0
        for s_ in prev:
            for t in range(4):
                cin = "0" if s_ == 0 else vr(AC+4*t, 4)
                a(f"v_mfma_f32_16x16x32_bf16 {vr(AC+4*t,4)}, {areg(s_ % 12, t, 4)}, {vr(breg(s_),4)}, {cin}")
                k += 1
                take = -(-len(items) // (nm - k + 1))
                for x in items[:take]: emit(x)
                items = items[take:]
    stamp(a, "mend")
    a("s_nop 0")
    for g in range(2):
        for i in range(4):
            if g == 0 and i == 2: a("s_nop 1")
            a(f"v_cvt_pk_bf16_f32 v{40+4*g+i}, v{AC+8*g+2*i}, v{AC+8*g+2*i+1}")
        for i in range(4):
            a(f"v_min_u32 v{40+4*g+i}, -2, v{40+4*g+i}")
        a(f"buffer_store_dwordx4 {vr(40+4*g,4)}, v8, {rs(R_WS)}, 0 offen offset:{g*512} sc1")
    stamp(a, "pst")
    a("s_waitcnt vmcnt(0)")
    stamp(a, "ack")
    a(f"""
    L_poll2:
    buffer_load_dwordx4 v[64:67], v6, {rs(R_WS)}, 0 offen sc1
    buffer_load_dwordx4 v[68:71], v6, {rs(R_WS)}, 0 offen offset:1024 sc1
    s_add_u32 s80, s80, 1
    s_cmp_ge_u32 s80, {SPIN}
    s_waitcnt vmcnt(1)
    v_max3_u32 v4, v64, v65, v66
    v_lshlrev_b32 v72, 16, v64
    v_and_b32 v73, s44, v64
    v_lshlrev_b32 v74, 16, v65
    v_and_b32 v75, s44, v65
    v_lshlrev_b32 v76, 16, v66
    v_and_b32 v77, s44, v66
    v_lshlrev_b32 v78, 16, v67
    v_and_b32 v79, s44, v67
    s_waitcnt vmcnt(0)
    v_max3_u32 v4, v4, v67, v68
    v_max3_u32 v5, v69, v70, v71
    v_max_u32 v4, v4, v5
    v_cmp_eq_u32 vcc, -1, v4
    s_cbranch_scc1 L_fin
    {"s_cbranch_vccnz L_poll2" if O.sl2 == 0 else f"s_cbranch_vccz L_fin"}
    {"" if O.sl2 == 0 else f"s_sleep {O.sl2}"}
    {"" if O.sl2 == 0 else "s_branch L_poll2"}
    L_fin:
    v_lshlrev_b32 v80, 16, v68
    v_and_b32 v81, s44, v68
    v_lshlrev_b32 v82, 16, v69
    v_and_b32 v83, s44, v69
    v_lshlrev_b32 v84, 16, v70
    v_and_b32 v85, s44, v70
    v_lshlrev_b32 v86, 16, v71
    v_and_b32 v87, s44, v71
    v_pk_add_f32 v[72:73], v[72:73], v[80:81]
    v_pk_add_f32 v[76:77], v[76:77], v[84:85]
    v_pk_add_f32 v[74:75], v[74:75], v[82:83]
    v_pk_add_f32 v[78:79], v[78:79], v[86:87]
    s_nop 0
    v_permlane32_swap_b32 v72, v76
    v_permlane32_swap_b32 v73, v77
    v_permlane32_swap_b32 v74, v78
    v_permlane32_swap_b32 v75, v79
    v_pk_add_f32 v[72:73], v[72:73], v[76:77]
    v_pk_add_f32 v[74:75], v[74:75], v[78:79]
    s_nop 1
    v_permlane16_swap_b32 v72, v74
    v_permlane16_swap_b32 v73, v75
    s_nop 0
    v_pk_add_f32 v[72:73], v[72:73], v[74:75]
    v_cvt_pk_bf16_f32 v64, v72, v73
    buffer_store_dword v64, v7, {rs(R_OUT)}, 0 offen
    {"s_waitcnt vmcnt(0)" if (O.stamp and O.endwait) else ""}
    """)
    if "npoll" in PTS:
        i = PTS["npoll"]
        a(f"s_waitcnt lgkmcnt(0)\ns_mul_i32 s{64+2*i}, s80, 100\ns_add_u32 s{64+2*i}, s{64+2*i}, s64")
    stamp_flush(a)
    a("L_end:")
    a("s_endpgm")
    a(f"""
    L_pz_wait:
    s_sleep 4
    buffer_load_dword v9, v18, {rs(R_WS)}, 0 offen sc1
    s_add_u32 s80, s80, 1
    s_cmp_ge_u32 s80, {SPIN}
    s_waitcnt vmcnt(0)
    v_cmp_ne_u32 vcc, v5, v9
    s_cbranch_scc1 L_pz_out
    s_cbranch_vccnz L_pz_wait
    L_pz_out:
    s_mov_b32 s80, {1000 if O.stamp else 0}
    s_branch L_pz_ok
    """)
    a("L_front_go_on:")
    if O.prio & 2: a("s_setprio 1")
    later = lines(f"""
    v_add_u32 v17, 49152, v16
    v_add_u32 v24, 49152, v20
    v_add_u32 v25, 49152, v21
    v_add_u32 v26, 49152, v22
    v_add_u32 v27, 49152, v23
    v_lshrrev_b32 v6, 1, v1
    s_lshl_b32 s54, s52, 1
    v_add_u32 v6, s54, v6
    v_lshlrev_b32 v6, 3, v6
    v_bfe_u32 v7, v2, 4, 1
    s_lshl_b32 s54, s47, 2
    v_add3_u32 v6, v6, v7, s54
    v_lshlrev_b32 v6, 10, v6
    v_and_b32 v7, 1, v1
    v_lshl_add_u32 v7, v7, 1, v5
    v_lshl_add_u32 v6, v7, 8, v6
    v_and_b32 v7, 15, v2
    v_lshl_add_u32 v14, v7, 4, v6
    v_add_u32 v14, {HA_OFF}, v14
    s_lshl_b32 s54, s48, 1
    s_add_u32 s54, s54, s47
    s_lshl_b32 s54, s54, 7
    s_lshr_b32 s57, s49, 1
    s_lshl_b32 s57, s57, 4
    s_add_u32 s54, s54, s57
    s_add_u32 s54, s54, {FA_OFF}
    v_lshl_add_u32 v15, v1, 2, s54
    s_mov_b32 s44, 0xbfb8aa3b
    s_mov_b32 s45, 0xbfb8aa3b
    v_mov_b32 v5, {SY_LDS + 32}
    s_mov_b32 s90, 1
    """ + P1_ROLE + FRONT_SETUP)
    if not O.fdef:
        a("s_waitcnt lgkmcnt(0)")
        if O.own: nonce1(a, False)
        for x in later: a(x)
        later = []
    ACC = [32, 48]
    def reads(c, s):
        slot = c % 4
        rng, so = slot // 2, (slot % 2) * 24576
        b = 12*s
        return [f"ds_read_b64_tr_b16 a[{b}:{b+1}], v{16+rng} offset:{so + 2048*s}",
                f"ds_read_b64_tr_b16 a[{b+2}:{b+3}], v{16+rng} offset:{so + 2048*s + 512}",
                f"ds_read_b128 a[{b+4}:{b+7}], v{20+4*rng+s} offset:{so}",
                f"ds_read_b128 a[{b+8}:{b+11}], v{20+4*rng+s} offset:{so + 4096}"]
    def mfma(c, s, mi):
        b = 12*s
        cin = "0" if (c == 0 and s == 0 and not O.roll) else vr(ACC[mi], 16)
        return f"v_mfma_f32_32x32x16_bf16 {vr(ACC[mi],16)}, {ar(b,4)}, {ar(b+4+4*mi,4)}, {cin}"
    if O.roll:
        assert not later
        for r in range(32): a(f"v_mov_b32 v{32+r}, 0")
        a("s_mov_b32 s81, 0")
    stamp(a, "fr")
    a("s_barrier")
    stamp(a, "c0")
    for s in range(3):
        for r in reads(0, s): a(r)
    for c in ([0, 1, 2, 3, 12, 13, 14] if O.roll else range(15)):
        if O.roll and c == 0: a("L_mm_loop:")
        if O.roll and c == 12:
            a("""
            s_add_u32 s81, s81, 1
            s_cmp_lt_u32 s81, 3
            s_cbranch_scc1 L_mm_loop
            """)
        now, later = later[:O.fdef], later[O.fdef:]
        for s in range(3):
            a(f"s_waitcnt lgkmcnt({[8,8,4][s]})")
            for mi in range(2):
                a(mfma(c, s, mi))
                if s == 0:
                    for r in reads(c, 3)[2*mi:2*mi+2]: a(r)
                else:
                    k = -(-len(now) // (4 - 2*(s-1) - mi))
                    for x in now[:k]: a(x)
                    now = now[k:]
        if c == O.vtc and O.vt:
            a(f"""
            s_cmp_lg_u32 s53, 2
            s_cbranch_scc1 L_novt
            v_mov_b32 v6, 0
            {f"buffer_load_dword v31, v29, {rs(R_WS)}, 0 offen" if O.vt & 1 else ""}
            {"global_load_dword v31, v6, s[12:13]" if O.vt & 2 else ""}
            L_novt:
            """)
        if O.own:
            if c == O.f2: nonce2(a, 12)
            if c == O.f3:
                a("s_waitcnt vmcnt(0)")
                nonce3(a, 12, False)
                a("v_xor_b32 v3, s86, v12")
        elif c == O.n3 + (1 if O.roll else 3): a("ds_read_b32 v12, v5")
        if c == O.n3 + (2 if O.roll else 4) and not O.own:
            assert not later
            a("v_xor_b32 v3, s86, v12")
        a("s_waitcnt lgkmcnt(0)")
        a("s_barrier")
        if not (O.roll and c < 12): stamp(a, f"c{c+1}")
        rr = [r for s in range(3) for r in reads(c + 1, s)]
        for r in rr[:4]: a(r)
        a(mfma(c, 3, 0))
        for r in rr[4:8]: a(r)
        a(mfma(c, 3, 1))
        for r in rr[8:]: a(r)
    a.c("last chunk: the first 32 rows finish first, their epilogue overlaps the MFMAs of the other 32")
    c = 15
    a("s_waitcnt lgkmcnt(8)")
    a(mfma(c, 0, 0))
    for r in reads(c, 3): a(r)
    a("s_waitcnt lgkmcnt(8)")
    a(mfma(c, 1, 0))
    a("s_waitcnt lgkmcnt(4)")
    a(mfma(c, 2, 0))
    a("s_waitcnt lgkmcnt(0)")
    a(mfma(c, 3, 0))
    a(mfma(c, 0, 1))
    a("s_nop 7\ns_nop 2")
    def epi(mi):
        A = ACC[mi]; t = 64 + 16*mi
        o = []
        if O.epi:
            pk = O.epi == 1
            def mul2(d, x, y): return [f"v_pk_mul_f32 v[{d}:{d+1}], v[{x}:{x+1}], v[{y}:{y+1}]"] if pk else [f"v_mul_f32 v{d}, v{x}, v{y}", f"v_mul_f32 v{d+1}, v{x+1}, v{y+1}"]
            def scl2(d, x): return [f"v_pk_mul_f32 v[{d}:{d+1}], v[{x}:{x+1}], s[44:45]"] if pk else [f"v_mul_f32 v{d}, s44, v{x}", f"v_mul_f32 v{d+1}, s44, v{x+1}"]
            def add2(d): return [f"v_pk_add_f32 v[{d}:{d+1}], v[{d}:{d+1}], 1.0 op_sel_hi:[1,0]"] if pk else [f"v_add_f32 v{d}, 1.0, v{d}", f"v_add_f32 v{d+1}, 1.0, v{d+1}"]
            ex = lambda r: f"v_exp_f32 v{t+r}, v{t+r}"
            rc = lambda r: f"v_rcp_f32 v{t+r}, v{t+r}"
            o += scl2(t, A) + scl2(t+2, A+2)
            o += [ex(0)] + scl2(t+4, A+4) + [ex(1)] + scl2(t+6, A+6)
            o += [ex(2)] + mul2(t+8, A, A+8) + [ex(3)] + add2(t)
            o += [ex(4)] + mul2(t+10, A+2, A+10) + [ex(5)] + add2(t+2)
            o += [ex(6)] + mul2(t+12, A+4, A+12) + [ex(7)] + add2(t+4)
            o += [rc(0)] + mul2(t+14, A+6, A+14) + [rc(1)] + add2(t+6)
            o += [rc(2)] + mul2(t, t, t+8) + [rc(3), rc(4), f"v_cvt_pk_bf16_f32 v{4+4*mi}, v{t}, v{t+1}", rc(5)] + mul2(t+2, t+2, t+10)
            o += [rc(6)] + mul2(t+4, t+4, t+12) + [rc(7), f"v_cvt_pk_bf16_f32 v{5+4*mi}, v{t+2}, v{t+3}"] + mul2(t+6, t+6, t+14)
            o += [f"v_cvt_pk_bf16_f32 v{6+4*mi}, v{t+4}, v{t+5}", f"v_cvt_pk_bf16_f32 v{7+4*mi}, v{t+6}, v{t+7}"]
            o.append(f"buffer_store_dwordx4 v[{4+4*mi}:{7+4*mi}], v14, {rs(R_WS)}, 0 offen offset:{2048*mi}")
            return o
        for r in range(0, 8, 2):
            o.append(f"v_pk_mul_f32 v[{t+r}:{t+r+1}], v[{A+r}:{A+r+1}], s[44:45]")
        for r in range(8):
            o.append(f"v_exp_f32 v{t+r}, v{t+r}")
        for r in range(0, 8, 2):
            o.append(f"v_pk_mul_f32 v[{t+8+r}:{t+9+r}], v[{A+r}:{A+r+1}], v[{A+8+r}:{A+9+r}]")
        for r in range(0, 8, 2):
            o.append(f"v_pk_add_f32 v[{t+r}:{t+r+1}], v[{t+r}:{t+r+1}], 1.0 op_sel_hi:[1,0]")
        for r in range(8):
            o.append(f"v_rcp_f32 v{t+r}, v{t+r}")
        o.append("s_nop 0")
        for r in range(0, 8, 2):
            o.append(f"v_pk_mul_f32 v[{t+r}:{t+r+1}], v[{t+r}:{t+r+1}], v[{t+8+r}:{t+9+r}]")
        for d in range(4):
            o.append(f"v_cvt_pk_bf16_f32 v{4+4*mi+d}, v{t+2*d}, v{t+2*d+1}")
        o.append(f"buffer_store_dwordx4 v[{4+4*mi}:{7+4*mi}], v14, {rs(R_WS)}, 0 offen offset:{2048*mi}")
        return o
    for i, x in enumerate(epi(0)):
        if i == 0: a(mfma(c, 1, 1))
        if i == 5: a(mfma(c, 2, 1))
        if i == 8: a(mfma(c, 3, 1))
        a(x)
    for x in epi(1): a(x)
    stamp(a, "hst")
    a(f"""
    s_waitcnt vmcnt(0)
    buffer_store_dword v3, v15, {rs(R_WS)}, 0 offen
    """)
    stamp(a, "flg")
    a(f"""
    L_hload:
    s_mov_b32 s80, 0
    s_cmp_lg_u32 s53, 0
    s_cbranch_scc1 L_poll1
    v_and_b32 v22, 7, v2
    v_lshl_add_u32 v22, v22, 7, s91
    L_pz0:
    buffer_load_dword v21, v22, {rs(R_WS)}, 0 offen sc1
    buffer_load_dword v20, v18, {rs(R_WS)}, 0 offen sc1
    s_add_u32 s80, s80, 1
    s_cmp_ge_u32 s80, {O.kfast}
    s_waitcnt vmcnt(0)
    v_cmp_ne_u32 vcc, v12, v21
    s_cbranch_vccz L_pz0_ok
    s_cbranch_scc1 L_poll1
    v_cmp_ne_u32 vcc, v3, v20
    s_cbranch_vccz L_go
    s_sleep 2
    s_branch L_pz0
    L_pz0_ok:
    """)
    if O.pzdma:
        a.c("hand the news to the back waves: copy one of the flags into LDS, ahead of the first rows of h")
        a(f"""
        v_cmp_ne_u32 vcc, v3, v20
        s_mov_b32 m0, {SY_LDS + 36}
        s_mov_b64 exec, 1
        buffer_load_dword v22, {rs(R_WS)}, 0 offen sc1 lds
        s_mov_b64 exec, -1
        """)
    else:
        a(f"""
        v_mov_b32 v21, {SY_LDS + 36}
        v_cmp_ne_u32 vcc, v3, v20
        ds_write_b32 v21, v12
        s_waitcnt lgkmcnt(0)
        """)
    a(f"""
    s_cbranch_vccz L_go
    L_poll1:
    buffer_load_dword v20, v18, {rs(R_WS)}, 0 offen sc1
    s_add_u32 s80, s80, 1
    s_cmp_ge_u32 s80, {O.kfast}
    s_cbranch_scc1 L_slow
    s_waitcnt vmcnt(0)
    v_cmp_ne_u32 vcc, v3, v20
    s_cbranch_vccz L_go
    {f"s_sleep {O.sl1}" if O.sl1 else ""}
    s_branch L_poll1
    L_go:
    """)
    stamp(a, "go")
    def hload(s):
        a(f"s_add_u32 m0, s55, {s*4096}")
        a(f"s_add_u32 s57, s{82 if s < 7 else 83}, {s*8192}")
        a(f"buffer_load_dwordx4 v19, {rs(R_WS)}, s57 offen sc1 lds")
    hl = 0
    while hl < O.hlead:
        hload(hl); hl += 1
    for gi, g in enumerate(groups):
        a(f"s_waitcnt vmcnt({hl - 1 - g[-1]})")
        a("s_barrier")
        for _ in range(len(groups[min(gi + 1, len(groups) - 1)])):
            if hl < 14:
                hload(hl); hl += 1
    stamp_flush(a)
    a.c("a producer publishes the write-through copy of h unless its whole group is seen on this die")
    a(f"""
    s_cmp_eq_u32 s90, 0
    s_cbranch_scc1 L_nob
    buffer_load_dword v20, v29, {rs(R_WS)}, 0 offen sc1
    s_waitcnt vmcnt(0)
    v_cmp_ne_u32 vcc, v3, v20
    s_cbranch_vccz L_nob
    """)
    sendb(a)
    a("L_nob:")
    if O.upd == 1: update(a, "L_front_end")
    a("s_endpgm")
    a.c("the producers are not all on this die (or are very late): fall back to the write-through copies")
    a("""
    L_slow:
    s_cmp_eq_u32 s90, 0
    s_cbranch_scc1 L_slow_sent
    """)
    sendb(a)
    a(f"""
    s_mov_b32 s90, 0
    L_slow_sent:
    s_movk_i32 s57, {FB_OFF - FA_OFF}
    s_mov_b32 s80, 0
    L_slow_poll:
    buffer_load_dword v20, v18, {rs(R_WS)}, 0 offen sc1
    buffer_load_dword v21, v18, {rs(R_WS)}, s57 offen sc1
    s_add_u32 s80, s80, 1
    s_waitcnt vmcnt(0)
    v_cmp_ne_u32 vcc, v3, v20
    s_cbranch_vccz L_go
    v_cmp_ne_u32 vcc, v12, v21
    s_cbranch_vccz L_slow_b
    s_sleep 8
    s_cmp_lt_u32 s80, {SPIN}
    s_cbranch_scc1 L_slow_poll
    L_slow_b:
    s_add_u32 s82, s82, {HB_OFF - HA_OFF}
    s_add_u32 s83, s83, {HB_OFF - HA_OFF}
    s_branch L_go
    """)
    a("L_code_end:")
    return a

if __name__ == "__main__":
    opts(sys.argv[2:])
    a = gen()
    hdr = HEADER + f"; @launch grid=(256,1,1) block=(512,1,1) lds={LDS}\n.amdgcn_target \"amdgcn-amd-amdhsa--gfx950\"\n"
    open(sys.argv[1], "w").write(hdr + a.text() + kdesc(KN, NV + NA, NV))
```

```python
import os, sys
from asmlib import *

KN = "standalone__swiglu_ffn__sampling_kernel"
X_B, W_B, OUT_B, WS_B = 128*1024*2, 1024*3584*2, 128*1024*2, 268435456
FA_OFF = 0
FB_OFF = FA_OFF + 4096
EP_OFF = FA_OFF + 8192
RG_OFF = FA_OFF + 12288
PZ_OFF = FA_OFF + 16384
HA_OFF = 65536
P_OFF = 1 << 20
HB_OFF = (3 << 20) + HA_OFF
ST_OFF = 8 << 20
R_X, R_G, R_U, R_D, R_WS, R_OUT = 20, 24, 28, 32, 36, 40
WD_LDS = 98304
SY_LDS = WD_LDS + 57344
LDS = SY_LDS + 64
SPIN = int(os.environ.get("DIAG_SPIN", 1 << 18))
NV, NA = 96, 160

class O:
    stamp = 0; sync = 1; sw = 4; endwait = 1
    kfast = 64; sl1 = 0; sl2 = 0
    xg = 4; xlead = 2; r2 = 8; r3 = 13; hold = 6; wdk = 3; touch = 1; npf0 = 3
    wd13 = 3; wd14 = 5; hlead = 5; fine = 3
    NP = 12; N1 = 6; cap = 3; slk = 1
    fdef = 0; bdef = 0; cp0 = 1; cp1 = 0; roll = 0; upd = 0; own = 1; f2 = 6; f3 = 11; mark = 0; epi = 0; pzdma = 0; lag = 1; rfirst = 0; vt = 0; dfl = 0; dord = 0; pfl = 0; prio = 0; vtc = 7; n2 = 5; n3 = 9
PTS = {}
def opts(argv):
    for x in argv:
        k, v = x.split("=")
        if k == "pts":
            PTS.clear(); PTS["start"] = 0
            for i, nm in enumerate(v.split(",")): PTS[nm] = i + 1
            O.stamp = 1
        else:
            assert hasattr(O, k), k
            setattr(O, k, int(v))
def rs(r): return f"s[{r}:{r+3}]"
def stamp(a, name):
    if O.stamp and name in PTS:
        idx = PTS[name]
        a(f"s_memrealtime s[{64+2*idx}:{65+2*idx}]")
_fl = [0]
def stamp_flush(a):
    if not O.stamp: return
    _fl[0] += 1
    L = f"L_sf{_fl[0]}"
    a(f"""
    s_memrealtime s[78:79]
    s_cmp_lg_u32 s53, {O.sw}
    s_cbranch_scc1 {L}
    s_waitcnt lgkmcnt(0)
    """)
    for i in range(8):
        a(f"v_mov_b32 v{80+i}, s{64+2*i}")
    a(f"""
    s_lshl_b32 s63, s2, 5
    s_add_u32 s63, s63, {ST_OFF}
    v_mov_b32 v88, s63
    s_mov_b64 exec, 1
    buffer_store_dwordx4 v[80:83], v88, {rs(R_WS)}, 0 offen
    buffer_store_dwordx4 v[84:87], v88, {rs(R_WS)}, 0 offen offset:16
    s_mov_b64 exec, -1
    {L}:
    """)
def lines(txt):
    return [x.strip() for x in txt.split("\n") if x.strip()]

def pf_role(a, tag):
    a(f"""
    s_mov_b32 s50, 1
    s_cmp_ge_u32 s52, 3
    s_addc_u32 s51, s52, 0
    s_cmp_ge_u32 s52, 10
    s_addc_u32 s51, s51, 0
    s_mov_b32 s46, 0
    s_cmp_ge_u32 s52, 14
    s_cbranch_scc0 L_pf_role_{tag}
    s_and_b32 s50, s52, 1
    s_mul_i32 s46, s50, 7
    s_cmp_ge_u32 s52, 16
    s_cselect_b32 s51, 11, 3
    L_pf_role_{tag}:
    """)
P1_ROLE = """
    s_mov_b32 s50, 0
    s_cmp_ge_u32 s49, 3
    s_addc_u32 s51, s49, 0
    s_cmp_ge_u32 s49, 10
    s_addc_u32 s51, s51, 0
    s_mov_b32 s46, 0
"""
FRONT_SETUP = f"""
    s_getreg_b32 s86, hwreg(HW_REG_XCC_ID, 0, 4)
    s_lshl_b32 s86, s86, 24
    s_lshl_b32 s55, s53, 10
    s_lshl_b32 s82, s46, 13
    s_sub_u32 s83, 0, s82
    s_mul_i32 s54, s48, 112
    s_lshl_b32 s57, s50, 2
    s_add_u32 s54, s54, s57
    v_add_u32 v6, s54, v1
    v_lshlrev_b32 v6, 10, v6
    v_lshl_add_u32 v19, v2, 4, v6
    v_add_u32 v19, {HA_OFF}, v19
    s_lshl_b32 s54, s48, 1
    s_add_u32 s54, s54, s50
    s_lshl_b32 s54, s54, 7
    s_add_u32 s54, s54, {FA_OFF}
    v_min_u32 v6, 27, v2
    v_lshl_add_u32 v18, v6, 2, s54
    s_lshl_b32 s54, s48, 7
    s_add_u32 s54, s54, {RG_OFF}
    v_and_b32 v6, 31, v2
    v_lshl_add_u32 v29, v6, 2, s54
    v_and_b32 v7, 1, v6
    v_lshlrev_b32 v7, 7, v7
    v_lshrrev_b32 v8, 1, v6
    v_lshl_add_u32 v7, v8, 4, v7
    v_cmp_gt_u32 vcc, 14, v6
    s_lshl_b32 s54, s48, 8
    s_add_u32 s54, s54, {FA_OFF}
    v_add_u32 v7, s54, v7
    v_cndmask_b32 v29, v29, v7, vcc
    s_cmp_lt_u32 s49, 14
    s_cselect_b32 s54, 14, 0
    s_add_u32 s54, s54, s49
    s_lshl_b32 s54, s54, 10
    s_add_u32 s91, s54, {PZ_OFF}
    s_mov_b32 s38, {WS_B}
    s_mov_b32 s39, 0x20000
    s_mov_b64 s[36:37], s[16:17]
"""
def back_setup():
    p = [f"""
    s_mov_b64 s[32:33], s[10:11]
    s_mov_b32 s34, {W_B}
    s_mov_b32 s35, 0x20000
    s_mov_b64 s[36:37], s[16:17]
    s_mov_b32 s38, {WS_B}
    s_mov_b32 s39, 0x20000
    s_mov_b64 s[40:41], s[12:13]
    s_mov_b32 s42, {OUT_B}
    s_mov_b32 s43, 0x20000
    s_and_b32 s55, s53, 3
    s_lshl_b32 s55, s55, 10
    s_lshl_b32 s84, s46, 16
    s_sub_u32 s85, 0, s84
    {"s_getpc_b64 s[92:93]" if O.mark else ""}
    {"s_lshr_b32 s81, s55, 8" if O.mark else ""}
    {f"s_add_u32 s81, s81, {SY_LDS}" if O.mark else ""}
    """, f"""
    v_lshrrev_b32 v3, 3, v2
    v_and_b32 v4, 7, v2
    v_and_b32 v6, 6, v3
    v_xor_b32 v4, v4, v6
    v_lshl_add_u32 v3, v1, 3, v3
    s_mul_i32 s60, s48, 448
    v_add_u32 v3, s60, v3
    v_lshlrev_b32 v3, 11, v3
    s_lshl_b32 s60, s51, 7
    v_add_u32 v3, s60, v3
    v_lshl_add_u32 v17, v4, 4, v3
    v_lshlrev_b32 v3, 10, v1
    v_lshl_add_u32 v19, v2, 4, v3
    """, f"""
    v_lshrrev_b32 v3, 4, v2
    v_bfe_u32 v4, v2, 2, 2
    v_and_b32 v7, 1, v3
    v_lshrrev_b32 v6, 1, v3
    v_lshlrev_b32 v6, 4, v6
    v_lshl_add_u32 v6, v7, 2, v6
    v_add_u32 v6, v6, v4
    v_lshlrev_b32 v6, 7, v6
    v_and_b32 v8, 3, v2
    v_lshl_add_u32 v6, v8, 3, v6
    v_add_u32 v6, {WD_LDS}, v6
    v_lshrrev_b32 v4, 1, v4
    v_lshl_add_u32 v4, v7, 1, v4
    """, "\n".join(f"v_xor_b32 v7, {t}, v4\nv_lshl_add_u32 v{20+t}, v7, 5, v6" for t in range(4)), f"""
    v_bfe_u32 v4, v2, 3, 1
    v_lshl_add_u32 v6, v1, 1, v4
    s_lshl_b32 s60, s49, 3
    v_add_u32 v6, s60, v6
    v_lshlrev_b32 v6, 3, v6
    v_add_u32 v6, s48, v6
    v_lshlrev_b32 v6, 10, v6
    v_lshl_add_u32 v6, v3, 7, v6
    v_and_b32 v7, 7, v2
    v_lshl_add_u32 v6, v7, 4, v6
    v_add_u32 v8, {P_OFF}, v6
    """, f"""
    s_cmp_lt_u32 s49, 14
    s_cselect_b32 s61, 14*8, 0
    s_add_u32 s61, s61, s60
    s_lshl_b32 s61, s61, 7
    s_add_u32 s61, s61, {PZ_OFF}
    v_lshl_add_u32 v18, v7, 7, s61
    s_add_u32 s60, s60, s48
    s_lshl_b32 s60, s60, 13
    s_add_u32 s60, s60, {P_OFF}
    v_and_b32 v6, 15, v2
    v_lshl_add_u32 v6, v1, 4, v6
    v_lshlrev_b32 v6, 4, v6
    v_lshl_add_u32 v6, v3, 11, v6
    v_add_u32 v6, s60, v6
    """, f"""
    s_lshl_b32 s60, s50, 6
    s_lshl_b32 s61, s48, 3
    s_add_u32 s60, s60, s61
    v_add_u32 v7, s60, v7
    v_lshlrev_b32 v7, 11, v7
    v_lshl_add_u32 v7, v4, 3, v7
    v_and_b32 v4, 1, v1
    v_lshl_add_u32 v7, v4, 4, v7
    v_lshrrev_b32 v4, 1, v1
    v_lshl_add_u32 v7, v4, 6, v7
    v_and_b32 v4, 1, v3
    v_lshl_add_u32 v7, v4, 2, v7
    v_lshrrev_b32 v4, 1, v3
    v_lshl_add_u32 v7, v4, 5, v7
    s_lshl_b32 s60, s51, 7
    v_add_u32 v7, s60, v7
    """]
    return p
LDS_INIT = f"""
    v_mov_b32 v16, {SY_LDS}
    v_lshl_add_u32 v14, v1, 2, v16
    v_mov_b32 v9, 0
    ds_write_b32 v14, v9
    ds_write_b32 v14, v9 offset:16
    ds_write_b32 v16, v9 offset:36
    v_mov_b32 v15, -1
"""
def nonce1(a, line):
    a(f"""
    s_movk_i32 s88, {EP_OFF}
    s_load_dword s59, s[16:17], s88
    s_load_dword s87, s[14:15], 0
    """)
    if line:
        a(f"""
        s_lshl_b32 s88, s48, 7
        s_add_u32 s88, s88, {RG_OFF}
        s_load_dword s87, s[16:17], s88
        s_add_u32 s89, s88, 64
        s_load_dword s87, s[16:17], s89
        """)
def nonce2(a, vn):
    a(f"""
    v_mov_b32 v30, 0
    s_add_u32 s59, s59, 1
    s_bitset1_b32 s59, 31
    global_load_dword v{vn}, v30, s[14:15] sc1
    """)
def nonce3(a, vn, share=True):
    a(f"""
    v_cmp_eq_u32 vcc, 0, v{vn}
    v_mov_b32 v30, s59
    {f"v_mov_b32 v28, {SY_LDS + 32}" if share else "s_nop 0"}
    v_cndmask_b32 v{vn}, v{vn}, v30, vcc
    {f"ds_write_b32 v28, v{vn}" if share else ""}
    """)
def wd_list():
    L = [f"s_add_u32 m0, s55, {WD_LDS + s*4096}\ns_add_u32 s57, s{84 if s < 7 else 85}, {s*65536}\nbuffer_load_dwordx4 v17, {rs(R_D)}, s57 offen lds" for s in range(14)]
    if O.mark:
        for k, n in enumerate([O.N1] + ([O.NP] if O.NP > O.N1 else [])):
            L[n - 1] += f"\ns_add_u32 m0, s81, {16*k}\ns_mov_b64 exec, 1\nglobal_load_lds_dword v9, s[92:93]\ns_mov_b64 exec, -1"
    return L
def sendb(a):
    a(f"""
    s_mov_b32 s57, {HB_OFF - HA_OFF}
    s_movk_i32 s58, {FB_OFF - FA_OFF}
    buffer_store_dwordx4 v[4:7], v14, {rs(R_WS)}, s57 offen sc1
    buffer_store_dwordx4 v[8:11], v14, {rs(R_WS)}, s57 offen offset:2048 sc1
    s_waitcnt vmcnt(0)
    buffer_store_dword v12, v15, {rs(R_WS)}, s58 offen sc1
    """)

def update(a, done):
    a.c("one wave of the launch moves the epoch on: d_debug first, so that a late reader can tell")
    a(f"""
    s_lshl_b32 s54, s2, 3
    s_add_u32 s54, s54, s53
    s_cmp_eq_u32 s54, {255*8 + 3}
    s_cbranch_scc0 {done}
    v_mov_b32 v26, 0
    v_mov_b32 v27, {EP_OFF}
    s_mov_b64 exec, 1
    global_store_dword v26, v12, s[14:15] sc1
    s_waitcnt vmcnt(0)
    global_store_dword v27, v12, s[16:17] sc1
    s_mov_b64 exec, -1
    {done}:
    """)

NOTES = """;
"""

def gen():
    a = Asm()
    kstart(a, KN)
    if O.stamp and O.sync:
        a("""
        s_memrealtime s[44:45]
        s_waitcnt lgkmcnt(0)
        s_add_u32 s46, s44, 612
        s_and_b32 s46, s46, 0xfffffe00
        L_sync:
        s_memrealtime s[44:45]
        s_waitcnt lgkmcnt(0)
        s_sub_u32 s47, s44, s46
        s_cmp_lt_i32 s47, 0
        s_cbranch_scc1 L_sync
        """)
    stamp(a, "start")
    a(f"""
    s_load_dwordx8 s[4:11], s[0:1], 0
    s_load_dwordx4 s[12:15], s[0:1], 32
    s_load_dwordx2 s[16:17], s[0:1], 48
    v_lshrrev_b32 v1, 6, v0         ; wave
    s_cmp_ge_u32 s2, 256
    s_cbranch_scc1 L_end
    v_readfirstlane_b32 s53, v1
    s_and_b32 s48, s2, 7            ; j
    s_lshr_b32 s49, s2, 3           ; q
    v_and_b32 v2, 63, v0            ; lane
    s_mov_b32 s22, {X_B}
    s_mov_b32 s23, 0x20000
    s_mov_b32 s26, {W_B}
    s_mov_b32 s27, 0x20000
    """)
    if O.cp0:
        a.c("wave 1 of every workgroup brings four lines of the kernel's code into this die's L2")
        a(f"""
        s_cmp_eq_u32 s53, 1
        s_cbranch_scc0 L_nocp
        s_getpc_b64 s[44:45]
        L_pc:
        v_and_b32 v3, 3, v2
        v_lshl_add_u32 v3, s49, 2, v3
        v_min_u32 v3, (L_code_end-L_pc-4)/128, v3
        v_lshlrev_b32 v3, 7, v3
        global_load_dword v31, v3, s[44:45]
        L_nocp:
        """)
    a(f"""
    s_cmp_lt_u32 s49, 14
    s_cbranch_scc1 L_p1
    s_sub_u32 s52, s49, 14          ; p
    s_cmp_lg_u32 s53, 0
    s_cbranch_scc1 L_pf_other
    """)
    a.c("prefetch wave: per 64-row chunk 50 lines of Wg (odd p) or Wu (even p), and 8 rows of x")
    a(f"""
    s_lshr_b32 s54, s52, 1
    s_mul_i32 s54, s54, 50
    v_add_u32 v3, s54, v2
    v_mul_u32_u24 v5, 9363, v3
    v_lshrrev_b32 v5, 16, v5        ; row = i / 7
    v_mul_u32_u24 v6, 7, v5
    v_sub_u32 v6, v3, v6            ; column = i % 7
    v_mul_u32_u24 v5, 7168, v5
    v_lshl_add_u32 v5, v6, 7, v5
    s_mul_i32 s54, s48, 896
    v_add_u32 v5, s54, v5
    v_cmp_gt_u32 vcc, 50, v2
    s_movk_i32 s54, 448
    v_cmp_gt_u32 s[44:45], s54, v3
    v_bfrev_b32 v7, 2
    s_lshl_b32 s54, s52, 3
    s_and_b64 vcc, vcc, s[44:45]
    v_lshrrev_b32 v3, {O.xg.bit_length() - 1}, v2
    v_add_u32 v3, s54, v3
    v_lshlrev_b32 v6, 11, v3
    v_and_b32 v3, {O.xg - 1}, v2
    v_lshl_add_u32 v6, v3, 7, v6
    v_cndmask_b32 v10, v7, v5, vcc
    v_cmp_gt_u32 vcc, {8 * O.xg}, v2
    s_bitcmp1_b32 s52, 0
    s_nop 0
    v_cndmask_b32 v11, v7, v6, vcc  ; rows >= 128 fall out of range
    s_waitcnt lgkmcnt(0)
    s_cselect_b64 s[24:25], s[6:7], s[8:9]
    s_mov_b64 s[20:21], s[4:5]
    """)
    stamp(a, "karg")
    npf = [0]
    def pf(c):
        for g_ in range(16 // O.xg):
            if max(0, g_ * O.xg - O.xlead) == c:
                so = "0"
                if g_:
                    a(f"s_movk_i32 s58, {g_ * O.xg * 128}"); so = "s58"
                a(f"buffer_load_dword v22, v11, {rs(R_X)}, {so} offen"); npf[0] += 1
        so = "0"
        if c:
            a(f"s_mov_b32 s57, {c*64*7168}"); so = "s57"
        a(f"buffer_load_dword v20, v10, {rs(R_G)}, {so} offen {['', 'sc1', 'sc0', 'sc0 sc1'][O.pfl]}"); npf[0] += 1
    for c in range(O.npf0): pf(c)
    a("s_branch L_pf_go_on")
    a(f"""
    L_p1:
    s_and_b32 s47, s49, 1
    s_lshr_b32 s52, s49, 1
    s_mul_i32 s54, s48, 7
    s_add_u32 s52, s52, s54
    s_cmp_lt_u32 s53, 4
    s_cbranch_scc1 L_front
    v_and_b32 v1, 3, v1
    s_lshl_b32 s54, s52, 7
    v_lshrrev_b32 v3, 3, v2
    v_and_b32 v4, 7, v2
    v_lshl_add_u32 v5, v1, 4, v3
    v_mul_u32_u24 v6, 7168, v5
    v_add_u32 v6, s54, v6
    v_and_b32 v7, 2, v3
    v_xor_b32 v7, v7, v4
    v_lshl_add_u32 v10, v7, 4, v6
    v_xor_b32 v11, 64, v10
    v_lshrrev_b32 v7, 1, v3
    v_xor_b32 v7, v7, v4
    s_lshl_b32 s54, s47, 6
    v_add_u32 v5, s54, v5
    v_lshlrev_b32 v5, 11, v5
    v_lshl_add_u32 v12, v7, 4, v5
    v_xor_b32 v13, 64, v12
    v_add_u32 v13, 0x4000, v13
    s_and_b32 s56, s53, 3
    s_lshl_b32 s56, s56, 11
    s_mov_b32 s30, {W_B}
    s_mov_b32 s31, 0x20000
    """)
    a(LDS_INIT)
    a("""
    s_waitcnt lgkmcnt(0)
    s_mov_b64 s[20:21], s[4:5]
    s_mov_b64 s[24:25], s[6:7]
    s_mov_b64 s[28:29], s[8:9]
    """)
    stamp(a, "karg")
    Q = []
    def dma(c):
        sl = (c % 4) * 24576
        L = list(enumerate([(12, R_X, c*128), (13, R_X, c*128), (10, R_G, c*458752), (10, R_G, c*458752+57344), (11, R_U, c*458752), (11, R_U, c*458752+57344)]))
        if O.dord == 1: L = [L[i] for i in (0, 2, 4, 1, 3, 5)]
        if O.dord == 2: L = [L[i] for i in (2, 3, 4, 5, 0, 1)]
        for k, (v, r, so) in L:
            a(f"s_add_u32 m0, s56, {sl + (k//2)*8192 + (k%2)*1024}\ns_mov_b32 s57, {so}\nbuffer_load_dwordx4 v{v}, {rs(r)}, s57 offen {['', 'sc1', 'sc0', 'sc0 sc1'][O.dfl]} lds")
            Q.append(c)
    dma(0)
    stamp(a, "d0")
    a("s_branch L_back_go_on")
    a("L_front:")
    stamp(a, "fin")
    a(f"""
    v_bfe_u32 v4, v2, 4, 1
    v_lshrrev_b32 v5, 5, v2         ; k half
    v_bfe_u32 v6, v2, 2, 2
    v_lshrrev_b32 v7, 1, v6
    v_lshl_add_u32 v7, v4, 1, v7
    v_xor_b32 v7, v7, v1
    v_lshl_add_u32 v6, v5, 3, v6
    v_lshlrev_b32 v6, 7, v6
    v_lshl_add_u32 v6, v7, 5, v6
    v_lshl_add_u32 v6, v4, 13, v6
    v_and_b32 v7, 3, v2
    v_lshl_add_u32 v6, v7, 3, v6
    v_add_u32 v16, 0x2000, v6
    v_and_b32 v6, 31, v2
    v_bfe_u32 v7, v6, 1, 3
    v_xor_b32 v7, v7, v5
    v_lshlrev_b32 v6, 7, v6
    """)
    for s in range(4):
        a(f"v_xor_b32 v8, {2*s}, v7")
        a(f"v_lshl_add_u32 v{20+s}, v8, 4, v6")
    a("s_branch L_front_go_on")

    a("L_pf_go_on:")
    if not O.cp0:
        a(f"""
        s_cmp_lt_u32 s52, 16
        s_cbranch_scc1 L_nocp
        s_getpc_b64 s[44:45]
        L_pc:
        s_sub_u32 s44, s44, L_pc-{KN}
        s_subb_u32 s45, s45, 0
        s_and_b32 s54, s52, 1
        s_lshl_b32 s54, s54, 6
        v_add_u32 v3, s54, v2
        v_min_u32 v3, (L_code_end-{KN}-4)/128, v3
        v_lshlrev_b32 v3, 7, v3
        global_load_dword v23, v3, s[44:45]
        L_nocp:
        """)
    if O.touch:
        a.c("one first touch per workgroup, so that the address translations are there when they are needed")
        a("""
        s_cmp_lt_u32 s52, 14
        s_cselect_b64 s[44:45], s[16:17], s[12:13]
        s_cmp_lt_u32 s52, 12
        s_cselect_b64 s[44:45], s[10:11], s[44:45]
        s_cmp_lt_u32 s52, 8
        s_cselect_b64 s[44:45], s[8:9], s[44:45]
        s_cmp_lt_u32 s52, 4
        s_cselect_b64 s[44:45], s[6:7], s[44:45]
        s_and_b32 s54, s52, 3
        s_lshl_b32 s54, s54, 21
        s_cmp_lt_u32 s52, 14
        s_cselect_b32 s54, s54, 0
        s_load_dword s87, s[44:45], s54
        """)
    nonce1(a, True)
    for c in range(O.npf0, 16):
        if c == O.r2:
            a("""
            s_getreg_b32 s86, hwreg(HW_REG_XCC_ID, 0, 4)
            s_lshl_b32 s86, s86, 24
            s_lshl_b32 s89, s49, 2
            s_add_u32 s88, s88, s89
            v_mov_b32 v31, s88
            s_waitcnt lgkmcnt(0)
            """)
            nonce2(a, 12); mark = npf[0]
        if c == O.r3:
            a(f"s_waitcnt vmcnt({npf[0] - mark})")
            nonce3(a, 12)
            a("v_xor_b32 v30, s86, v12")
            stamp(a, "non")
        pf(c)
    stamp(a, "hia")
    if O.hold >= 0: a(f"s_waitcnt vmcnt({O.hold})")
    stamp(a, "hib")
    a.c("announce this workgroup's die; fill its inbox and that of the paired producer with the not-yet-written pattern;")
    a.c("bring the lines of the h buffer into L2 before they are written")
    a(f"""
    global_store_dword v31, v30, s[16:17]
    s_lshl_b32 s54, s49, 3
    s_add_u32 s54, s54, s48
    s_lshl_b32 s57, s54, 13
    s_add_u32 s57, s57, {P_OFF}
    v_lshl_add_u32 v3, v2, 4, s57
    v_add_u32 v8, 0x1000, v3
    s_lshl_b32 s54, s54, 7
    s_add_u32 s54, s54, {PZ_OFF}
    v_mov_b32 v13, s54
    v_mov_b32 v4, -1
    v_mov_b32 v5, -1
    v_mov_b32 v6, -1
    v_mov_b32 v7, -1
    s_cmp_lt_u32 s52, 14
    """)
    for k in range(8):
        a(f"global_store_dwordx4 v{3 if k < 4 else 8}, v[4:7], s[16:17] offset:{(k % 4)*1024} sc1")
    a(f"""
    s_cbranch_scc0 L_pz_one
    v_subrev_u32 v3, {14*8*8192}, v3
    v_subrev_u32 v8, {14*8*8192}, v8
    """)
    for k in range(8):
        a(f"global_store_dwordx4 v{3 if k < 4 else 8}, v[4:7], s[16:17] offset:{(k % 4)*1024} sc1")
    a(f"""
    L_pz_one:
    s_lshl_b32 s54, s52, 6
    v_add_u32 v3, s54, v2
    v_min_u32 v3, 895, v3
    s_mul_i32 s54, s48, 114688
    s_add_u32 s54, s54, {HA_OFF}
    v_lshl_add_u32 v3, v3, 7, s54
    global_load_dword v24, v3, s[16:17]
    s_waitcnt lgkmcnt(0)
    s_barrier
    s_waitcnt vmcnt(1)
    global_store_dword v13, v12, s[16:17] sc1
    s_barrier
    """)
    stamp(a, "pfi")
    a("s_branch L_pf_front")
    a(f"""
    L_pf_other:
    s_cmp_ge_u32 s53, 4
    s_cbranch_scc1 L_back_pf
    s_waitcnt lgkmcnt(0)
    s_barrier
    s_barrier
    """)
    if O.vt & 2:
        a("""
        s_cmp_eq_u32 s53, 2
        s_cbranch_scc0 L_pf_front
        v_mov_b32 v6, 0
        global_load_dword v31, v6, s[12:13]
        """)
    if O.cp1:
        a.c("touch the code of the later phases again: it is the oldest resident of the L2 by now")
        a(f"""
        s_cmp_eq_u32 s53, 1
        s_cbranch_scc0 L_pf_front
        s_getpc_b64 s[44:45]
        L_pc1:
        v_min_u32 v3, 5, v2
        s_mul_i32 s54, s52, 6
        v_add_u32 v3, s54, v3
        v_min_u32 v3, (L_code_end-L_pc1-4)/128, v3
        v_lshlrev_b32 v3, 7, v3
        global_load_dword v31, v3, s[44:45]
        """)
    a(f"""
    L_pf_front:
    """)
    pf_role(a, "f")
    a(FRONT_SETUP)
    a(f"""
    v_mov_b32 v5, {SY_LDS + 32}
    ds_read_b32 v12, v5
    s_mov_b32 s90, 0
    v_bfrev_b32 v14, 2
    v_bfrev_b32 v15, 2
    s_waitcnt lgkmcnt(0)
    v_xor_b32 v3, s86, v12
    """)
    if O.upd == 0: update(a, "L_upd_done")
    a(f"""
    s_barrier
    s_branch L_hload
    L_back_pf:
    v_and_b32 v1, 3, v1
    """)
    a(LDS_INIT)
    pf_role(a, "b")
    a("s_waitcnt lgkmcnt(0)")
    for p in back_setup(): a(p)
    a("s_barrier")
    wdl = wd_list()
    for i, d in enumerate(wdl):
        if i == O.wdk: a("s_barrier")
        a(d)
    a("ds_read_b32 v5, v16 offset:32")
    a("s_branch L_p2")

    a("L_back_go_on:")
    if O.prio & 1: a("s_setprio 1")
    dma(1)
    stamp(a, "d1")
    nonce1(a, False)
    a(P1_ROLE)
    pieces = back_setup()
    if not O.bdef:
        for p in pieces: a(p)
        pieces = []
    issued, wd, c0 = 3, 0, 0
    if O.roll:
        assert not pieces
        a("s_waitcnt lgkmcnt(0)")
        nonce2(a, 5)
        dma(2)
        a(f"""
        s_movk_i32 s62, {3*128}
        s_mov_b32 s63, {3*458752}
        s_mov_b32 s89, {3*458752 + 57344}
        s_mov_b32 s81, 0
        L_ld_loop:
        """)
        for c in range(4):
            sl = ((c + 3) % 4) * 24576
            a(f"""
            s_waitcnt vmcnt(12)
            s_barrier
            s_add_u32 m0, s56, {sl}
            s_nop 0
            buffer_load_dwordx4 v12, {rs(R_X)}, s62 offen lds
            s_add_u32 m0, s56, {sl + 1024}
            s_nop 0
            buffer_load_dwordx4 v13, {rs(R_X)}, s62 offen lds
            s_add_u32 m0, s56, {sl + 8192}
            s_addk_i32 s62, 128
            buffer_load_dwordx4 v10, {rs(R_G)}, s63 offen lds
            s_add_u32 m0, s56, {sl + 8192 + 1024}
            s_nop 0
            buffer_load_dwordx4 v10, {rs(R_G)}, s89 offen lds
            s_add_u32 m0, s56, {sl + 16384}
            s_nop 0
            buffer_load_dwordx4 v11, {rs(R_U)}, s63 offen lds
            s_add_u32 m0, s56, {sl + 16384 + 1024}
            s_add_u32 s63, s63, 458752
            buffer_load_dwordx4 v11, {rs(R_U)}, s89 offen lds
            s_add_u32 s89, s89, 458752
            """)
        a("""
        s_add_u32 s81, s81, 1
        s_cmp_lt_u32 s81, 3
        s_cbranch_scc1 L_ld_loop
        """)
        for c in range(3, 15): Q.extend([c] * 6)
        Q.insert(0, "n")
        issued, c0 = 15, 12
        O.n2, O.n3 = -1, 12
    else:
        dma(2)
    for c in range(c0, 16):
        stamp(a, f"w{c}")
        a(f"s_waitcnt vmcnt({len(Q) - 1 - max(i for i, t in enumerate(Q) if t == c)})" + (" lgkmcnt(0)" if (c == O.n3 + (1 if O.roll else 2) and not O.own) else ""))
        stamp(a, f"v{c}")
        a("s_barrier")
        stamp(a, f"c{c}")
        if c == O.n3:
            assert Q.index("n") < max(i for i, t in enumerate(Q) if t == c)
            nonce3(a, 5, not O.own)
        if issued < 16:
            dma(issued); issued += 1
        else:
            n = min({13: O.wd13, 14: O.wd14, 15: 14}[c], 14 - wd)
            for d in wdl[wd:wd+n]:
                a(d); Q.extend(["d"] * d.count("_load_"))
            wd += n
        if c == O.n2:
            a("s_waitcnt lgkmcnt(0)")
            nonce2(a, 5); Q.append("n")
        elif pieces and c >= O.bdef: a(pieces.pop(0))
    assert not pieces
    a("L_p2:")
    stamp(a, "p2in")
    def areg(slot, t, n, o=0):
        base = (slot*4 + t) * 4 + o
        return ar(base, n) if slot < 10 else vr(64 + base - 160, n)
    def areads(s, slot):
        out = []
        for t in range(4):
            out.append(f"ds_read_b64_tr_b16 {areg(slot, t, 2)}, v{20+t} offset:{s*4096}")
            out.append(f"ds_read_b64_tr_b16 {areg(slot, t, 2, 2)}, v{20+t} offset:{s*4096+1024}")
        return out
    def lsync(k):
        a(f"""
        {"" if O.mark else f"ds_write_b32 v14, v15 offset:{16*k}"}
        L_sy{k}:
        ds_read_b128 v[40:43], v16 offset:{16*k}
        s_waitcnt lgkmcnt(0)
        v_and_b32 v40, v40, v41
        v_and_b32 v42, v42, v43
        v_and_b32 v40, v40, v42
        v_cmp_eq_u32 vcc, 0, v40
        s_cbranch_vccnz L_sy{k}
        """)
    NP, N1 = O.NP, O.N1
    if not O.mark: a(f"s_waitcnt vmcnt({14 - N1})")
    stamp(a, "wv")
    lsync(0)
    stamp(a, "wd1")
    for s in range(N1):
        if s >= 1: a("s_waitcnt lgkmcnt(6)")
        for r in areads(s, s): a(r)
    if NP > N1:
        if not O.mark: a(f"s_waitcnt vmcnt({14 - NP})")
        lsync(1)
        stamp(a, "wd2")
        for s in range(N1, NP):
            if s > N1: a("s_waitcnt lgkmcnt(6)")
            for r in areads(s, s): a(r)
    a(f"""
    s_cmp_lt_u32 s49, 14
    s_cbranch_scc1 L_nob2
    s_barrier
    L_nob2:
    s_waitcnt lgkmcnt(8)
    """)
    stamp(a, "rdy")
    if "all" in PTS:
        a("s_waitcnt vmcnt(0)"); stamp(a, "all")
    AC = 24
    groups = {2: [[0],[1,2],[3,4],[5,6],[7,8],[9,10],[11,12],[13]],
              3: [[0],[1],[2,3],[4,5],[6,7],[8,9],[10,11],[12],[13]],
              4: [[s_] for s_ in range(14)],
              8: [[0,1],[2,3],[4,5],[6,7],[8,9],[10,11],[12],[13]],
              5: [[0],[1],[2,3],[4,5,6],[7,8,9],[10,11,12],[13]],
              6: [[0],[1,2],[3,4,5],[6,7,8],[9,10,11],[12,13]],
              7: [[0],[1],[2,3],[4,5],[6,7,8],[9,10,11],[12,13]]}[O.fine]
    def breg(s): return 40 + 4*(s % 6)
    D = O.lag
    NI = len(groups) + D
    it_of = {s_: gi + D for gi, g in enumerate(groups) for s_ in g}
    plan = [[] for _ in range(NI)]
    room = [0] * D + [O.cap * len(groups[i - D]) for i in range(D, NI)]
    i = NI - 1
    for s_ in range(13, NP - 1, -1):
        for r in reversed(areads(s_, s_ % 12)):
            i = min(i, it_of[s_] - 1 - O.slk, len(groups) - 1)
            while room[i] == 0: i -= 1
            assert i >= 1 and (s_ < 12 or i > it_of[s_ - 12]), (s_, i)
            plan[i].insert(0, (r, f"A{s_}")); room[i] -= 1
    LQ = ["P"] * 8
    landed = NP - 1
    def emit(x):
        a(x[0])
        if x[1]: LQ.append(x[1])
    for it in range(NI):
        prev = groups[it - D] if it >= D else []
        need = [f"B{s_}" for s_ in prev] + [f"A{s_}" for s_ in prev if s_ >= NP]
        if it == D: need.append("P")
        if it == NI - 1: need.append("Z")
        w = ""
        top = max([int(x[1][1:]) for x in plan[it]], default=-1)
        if top > landed:
            w += f" vmcnt({13 - top})"; landed = top
        n = min(8 + it, 12)
        if need:
            for t_ in need: assert t_ in LQ and (t_[0] != "A" or LQ.count(t_) == 8), (it, t_)
            n = len(LQ) - 1 - max(len(LQ) - 1 - LQ[::-1].index(t_) for t_ in need)
            w += f" lgkmcnt({n})"
        if w: a("s_waitcnt" + w)
        items = []
        if it < len(groups):
            a("s_barrier")
            stamp(a, f"b{it}")
            if it == len(groups) - 1: stamp(a, "bl")
            items += [(f"ds_read_b128 {vr(breg(s_),4)}, v19 offset:{s_*4096}", f"B{s_}") for s_ in groups[it]]
            if it == len(groups) - 2: items.append(("ds_read_b32 v9, v16 offset:36", "Z"))
        if it == NI - 1:
            items += [("v_cmp_ne_u32 vcc, v5, v9", None), ("s_mov_b32 s80, 0\ns_mov_b32 s44, 0xffff0000", None), ("s_cbranch_vccnz L_pz_wait\nL_pz_ok:", None)]
        if n + sum(1 for x in items + plan[it] if x[1]) > 15:
            plan[it][0] = (f"s_waitcnt lgkmcnt({15 - len(plan[it])})\n" + plan[it][0][0], plan[it][0][1])
        items += plan[it]
        if not prev:
            for x in items: emit(x)
        elif O.rfirst:
            while items and items[0][1] and items[0][1][0] == "B": emit(items.pop(0))
        nm = 4 * len(prev); k = 0
        for s_ in prev:
            for t in range(4):
                cin = "0" if s_ == 0 else vr(AC+4*t, 4)
                a(f"v_mfma_f32_16x16x32_bf16 {vr(AC+4*t,4)}, {areg(s_ % 12, t, 4)}, {vr(breg(s_),4)}, {cin}")
                k += 1
                take = -(-len(items) // (nm - k + 1))
                for x in items[:take]: emit(x)
                items = items[take:]
    stamp(a, "mend")
    a("s_nop 0")
    for g in range(2):
        for i in range(4):
            if g == 0 and i == 2: a("s_nop 1")
            a(f"v_cvt_pk_bf16_f32 v{40+4*g+i}, v{AC+8*g+2*i}, v{AC+8*g+2*i+1}")
        for i in range(4):
            a(f"v_min_u32 v{40+4*g+i}, -2, v{40+4*g+i}")
        a(f"buffer_store_dwordx4 {vr(40+4*g,4)}, v8, {rs(R_WS)}, 0 offen offset:{g*512} sc1")
    stamp(a, "pst")
    a("s_waitcnt vmcnt(0)")
    stamp(a, "ack")
    a(f"""
    L_poll2:
    buffer_load_dwordx4 v[64:67], v6, {rs(R_WS)}, 0 offen sc1
    buffer_load_dwordx4 v[68:71], v6, {rs(R_WS)}, 0 offen offset:1024 sc1
    s_add_u32 s80, s80, 1
    s_cmp_ge_u32 s80, {SPIN}
    s_waitcnt vmcnt(1)
    v_max3_u32 v4, v64, v65, v66
    v_lshlrev_b32 v72, 16, v64
    v_and_b32 v73, s44, v64
    v_lshlrev_b32 v74, 16, v65
    v_and_b32 v75, s44, v65
    v_lshlrev_b32 v76, 16, v66
    v_and_b32 v77, s44, v66
    v_lshlrev_b32 v78, 16, v67
    v_and_b32 v79, s44, v67
    s_waitcnt vmcnt(0)
    v_max3_u32 v4, v4, v67, v68
    v_max3_u32 v5, v69, v70, v71
    v_max_u32 v4, v4, v5
    v_cmp_eq_u32 vcc, -1, v4
    s_cbranch_scc1 L_fin
    {"s_cbranch_vccnz L_poll2" if O.sl2 == 0 else f"s_cbranch_vccz L_fin"}
    {"" if O.sl2 == 0 else f"s_sleep {O.sl2}"}
    {"" if O.sl2 == 0 else "s_branch L_poll2"}
    L_fin:
    v_lshlrev_b32 v80, 16, v68
    v_and_b32 v81, s44, v68
    v_lshlrev_b32 v82, 16, v69
    v_and_b32 v83, s44, v69
    v_lshlrev_b32 v84, 16, v70
    v_and_b32 v85, s44, v70
    v_lshlrev_b32 v86, 16, v71
    v_and_b32 v87, s44, v71
    v_pk_add_f32 v[72:73], v[72:73], v[80:81]
    v_pk_add_f32 v[76:77], v[76:77], v[84:85]
    v_pk_add_f32 v[74:75], v[74:75], v[82:83]
    v_pk_add_f32 v[78:79], v[78:79], v[86:87]
    s_nop 0
    v_permlane32_swap_b32 v72, v76
    v_permlane32_swap_b32 v73, v77
    v_permlane32_swap_b32 v74, v78
    v_permlane32_swap_b32 v75, v79
    v_pk_add_f32 v[72:73], v[72:73], v[76:77]
    v_pk_add_f32 v[74:75], v[74:75], v[78:79]
    s_nop 1
    v_permlane16_swap_b32 v72, v74
    v_permlane16_swap_b32 v73, v75
    s_nop 0
    v_pk_add_f32 v[72:73], v[72:73], v[74:75]
    v_cvt_pk_bf16_f32 v64, v72, v73
    buffer_store_dword v64, v7, {rs(R_OUT)}, 0 offen
    {"s_waitcnt vmcnt(0)" if (O.stamp and O.endwait) else ""}
    """)
    if "npoll" in PTS:
        i = PTS["npoll"]
        a(f"s_waitcnt lgkmcnt(0)\ns_mul_i32 s{64+2*i}, s80, 100\ns_add_u32 s{64+2*i}, s{64+2*i}, s64")
    stamp_flush(a)
    a("L_end:")
    a("s_endpgm")
    a(f"""
    L_pz_wait:
    s_sleep 4
    buffer_load_dword v9, v18, {rs(R_WS)}, 0 offen sc1
    s_add_u32 s80, s80, 1
    s_cmp_ge_u32 s80, {SPIN}
    s_waitcnt vmcnt(0)
    v_cmp_ne_u32 vcc, v5, v9
    s_cbranch_scc1 L_pz_out
    s_cbranch_vccnz L_pz_wait
    L_pz_out:
    s_mov_b32 s80, {1000 if O.stamp else 0}
    s_branch L_pz_ok
    """)
    a("L_front_go_on:")
    if O.prio & 2: a("s_setprio 1")
    later = lines(f"""
    v_add_u32 v17, 49152, v16
    v_add_u32 v24, 49152, v20
    v_add_u32 v25, 49152, v21
    v_add_u32 v26, 49152, v22
    v_add_u32 v27, 49152, v23
    v_lshrrev_b32 v6, 1, v1
    s_lshl_b32 s54, s52, 1
    v_add_u32 v6, s54, v6
    v_lshlrev_b32 v6, 3, v6
    v_bfe_u32 v7, v2, 4, 1
    s_lshl_b32 s54, s47, 2
    v_add3_u32 v6, v6, v7, s54
    v_lshlrev_b32 v6, 10, v6
    v_and_b32 v7, 1, v1
    v_lshl_add_u32 v7, v7, 1, v5
    v_lshl_add_u32 v6, v7, 8, v6
    v_and_b32 v7, 15, v2
    v_lshl_add_u32 v14, v7, 4, v6
    v_add_u32 v14, {HA_OFF}, v14
    s_lshl_b32 s54, s48, 1
    s_add_u32 s54, s54, s47
    s_lshl_b32 s54, s54, 7
    s_lshr_b32 s57, s49, 1
    s_lshl_b32 s57, s57, 4
    s_add_u32 s54, s54, s57
    s_add_u32 s54, s54, {FA_OFF}
    v_lshl_add_u32 v15, v1, 2, s54
    s_mov_b32 s44, 0xbfb8aa3b
    s_mov_b32 s45, 0xbfb8aa3b
    {"" if O.own else f"v_mov_b32 v5, {SY_LDS + 32}"}
    s_mov_b32 s90, 1
    """ + P1_ROLE + FRONT_SETUP)
    if not O.fdef:
        a("s_waitcnt lgkmcnt(0)")
        if O.own: nonce1(a, False)
        for x in later: a(x)
        later = []
    ACC = [32, 48]
    def reads(c, s):
        slot = c % 4
        rng, so = slot // 2, (slot % 2) * 24576
        b = 12*s
        return [f"ds_read_b64_tr_b16 a[{b}:{b+1}], v{16+rng} offset:{so + 2048*s}",
                f"ds_read_b64_tr_b16 a[{b+2}:{b+3}], v{16+rng} offset:{so + 2048*s + 512}",
                f"ds_read_b128 a[{b+4}:{b+7}], v{20+4*rng+s} offset:{so}",
                f"ds_read_b128 a[{b+8}:{b+11}], v{20+4*rng+s} offset:{so + 4096}"]
    def mfma(c, s, mi):
        b = 12*s
        cin = "0" if (c == 0 and s == 0 and not O.roll) else vr(ACC[mi], 16)
        return f"v_mfma_f32_32x32x16_bf16 {vr(ACC[mi],16)}, {ar(b,4)}, {ar(b+4+4*mi,4)}, {cin}"
    if O.roll:
        assert not later
        for r in range(32): a(f"v_mov_b32 v{32+r}, 0")
        a("s_mov_b32 s81, 0")
    stamp(a, "fr")
    a("s_barrier")
    stamp(a, "c0")
    for s in range(3):
        for r in reads(0, s): a(r)
    for c in ([0, 1, 2, 3, 12, 13, 14] if O.roll else range(15)):
        if O.roll and c == 0: a("L_mm_loop:")
        if O.roll and c == 12:
            a("""
            s_add_u32 s81, s81, 1
            s_cmp_lt_u32 s81, 3
            s_cbranch_scc1 L_mm_loop
            """)
        now, later = later[:O.fdef], later[O.fdef:]
        for s in range(3):
            a(f"s_waitcnt lgkmcnt({[8,8,4][s]})")
            for mi in range(2):
                a(mfma(c, s, mi))
                if s == 0:
                    for r in reads(c, 3)[2*mi:2*mi+2]: a(r)
                else:
                    k = -(-len(now) // (4 - 2*(s-1) - mi))
                    for x in now[:k]: a(x)
                    now = now[k:]
        if c == O.vtc and O.vt:
            a(f"""
            s_cmp_lg_u32 s53, 2
            s_cbranch_scc1 L_novt
            v_mov_b32 v6, 0
            {f"buffer_load_dword v31, v29, {rs(R_WS)}, 0 offen" if O.vt & 1 else ""}
            {"global_load_dword v31, v6, s[12:13]" if O.vt & 2 else ""}
            L_novt:
            """)
        if O.own:
            if c == O.f2: nonce2(a, 12)
            if c == O.f3:
                a("s_waitcnt vmcnt(0)")
                nonce3(a, 12, False)
                a("v_xor_b32 v3, s86, v12")
        elif c == O.n3 + (1 if O.roll else 3): a("ds_read_b32 v12, v5")
        if c == O.n3 + (2 if O.roll else 4) and not O.own:
            assert not later
            a("v_xor_b32 v3, s86, v12")
        a("s_waitcnt lgkmcnt(0)")
        a("s_barrier")
        if not (O.roll and c < 12): stamp(a, f"c{c+1}")
        rr = [r for s in range(3) for r in reads(c + 1, s)]
        for r in rr[:4]: a(r)
        a(mfma(c, 3, 0))
        for r in rr[4:8]: a(r)
        a(mfma(c, 3, 1))
        for r in rr[8:]: a(r)
    a.c("last chunk: the first 32 rows finish first, their epilogue overlaps the MFMAs of the other 32")
    c = 15
    a("s_waitcnt lgkmcnt(8)")
    a(mfma(c, 0, 0))
    for r in reads(c, 3): a(r)
    a("s_waitcnt lgkmcnt(8)")
    a(mfma(c, 1, 0))
    a("s_waitcnt lgkmcnt(4)")
    a(mfma(c, 2, 0))
    a("s_waitcnt lgkmcnt(0)")
    a(mfma(c, 3, 0))
    a(mfma(c, 0, 1))
    a("s_nop 7\ns_nop 2")
    def epi(mi):
        A = ACC[mi]; t = 64 + 16*mi
        o = []
        if O.epi:
            pk = O.epi == 1
            def mul2(d, x, y): return [f"v_pk_mul_f32 v[{d}:{d+1}], v[{x}:{x+1}], v[{y}:{y+1}]"] if pk else [f"v_mul_f32 v{d}, v{x}, v{y}", f"v_mul_f32 v{d+1}, v{x+1}, v{y+1}"]
            def scl2(d, x): return [f"v_pk_mul_f32 v[{d}:{d+1}], v[{x}:{x+1}], s[44:45]"] if pk else [f"v_mul_f32 v{d}, s44, v{x}", f"v_mul_f32 v{d+1}, s44, v{x+1}"]
            def add2(d): return [f"v_pk_add_f32 v[{d}:{d+1}], v[{d}:{d+1}], 1.0 op_sel_hi:[1,0]"] if pk else [f"v_add_f32 v{d}, 1.0, v{d}", f"v_add_f32 v{d+1}, 1.0, v{d+1}"]
            ex = lambda r: f"v_exp_f32 v{t+r}, v{t+r}"
            rc = lambda r: f"v_rcp_f32 v{t+r}, v{t+r}"
            o += scl2(t, A) + scl2(t+2, A+2)
            o += [ex(0)] + scl2(t+4, A+4) + [ex(1)] + scl2(t+6, A+6)
            o += [ex(2)] + mul2(t+8, A, A+8) + [ex(3)] + add2(t)
            o += [ex(4)] + mul2(t+10, A+2, A+10) + [ex(5)] + add2(t+2)
            o += [ex(6)] + mul2(t+12, A+4, A+12) + [ex(7)] + add2(t+4)
            o += [rc(0)] + mul2(t+14, A+6, A+14) + [rc(1)] + add2(t+6)
            o += [rc(2)] + mul2(t, t, t+8) + [rc(3), rc(4), f"v_cvt_pk_bf16_f32 v{4+4*mi}, v{t}, v{t+1}", rc(5)] + mul2(t+2, t+2, t+10)
            o += [rc(6)] + mul2(t+4, t+4, t+12) + [rc(7), f"v_cvt_pk_bf16_f32 v{5+4*mi}, v{t+2}, v{t+3}"] + mul2(t+6, t+6, t+14)
            o += [f"v_cvt_pk_bf16_f32 v{6+4*mi}, v{t+4}, v{t+5}", f"v_cvt_pk_bf16_f32 v{7+4*mi}, v{t+6}, v{t+7}"]
            o.append(f"buffer_store_dwordx4 v[{4+4*mi}:{7+4*mi}], v14, {rs(R_WS)}, 0 offen offset:{2048*mi}")
            return o
        for r in range(0, 8, 2):
            o.append(f"v_pk_mul_f32 v[{t+r}:{t+r+1}], v[{A+r}:{A+r+1}], s[44:45]")
        for r in range(8):
            o.append(f"v_exp_f32 v{t+r}, v{t+r}")
        for r in range(0, 8, 2):
            o.append(f"v_pk_mul_f32 v[{t+8+r}:{t+9+r}], v[{A+r}:{A+r+1}], v[{A+8+r}:{A+9+r}]")
        for r in range(0, 8, 2):
            o.append(f"v_pk_add_f32 v[{t+r}:{t+r+1}], v[{t+r}:{t+r+1}], 1.0 op_sel_hi:[1,0]")
        for r in range(8):
            o.append(f"v_rcp_f32 v{t+r}, v{t+r}")
        o.append("s_nop 0")
        for r in range(0, 8, 2):
            o.append(f"v_pk_mul_f32 v[{t+r}:{t+r+1}], v[{t+r}:{t+r+1}], v[{t+8+r}:{t+9+r}]")
        for d in range(4):
            o.append(f"v_cvt_pk_bf16_f32 v{4+4*mi+d}, v{t+2*d}, v{t+2*d+1}")
        o.append(f"buffer_store_dwordx4 v[{4+4*mi}:{7+4*mi}], v14, {rs(R_WS)}, 0 offen offset:{2048*mi}")
        return o
    for i, x in enumerate(epi(0)):
        if i == 0: a(mfma(c, 1, 1))
        if i == 5: a(mfma(c, 2, 1))
        if i == 8: a(mfma(c, 3, 1))
        a(x)
    for x in epi(1): a(x)
    stamp(a, "hst")
    a(f"""
    s_waitcnt vmcnt(0)
    buffer_store_dword v3, v15, {rs(R_WS)}, 0 offen
    """)
    stamp(a, "flg")
    a(f"""
    L_hload:
    s_mov_b32 s80, 0
    s_cmp_lg_u32 s53, 0
    s_cbranch_scc1 L_poll1
    v_and_b32 v22, 7, v2
    v_lshl_add_u32 v22, v22, 7, s91
    L_pz0:
    buffer_load_dword v21, v22, {rs(R_WS)}, 0 offen sc1
    buffer_load_dword v20, v18, {rs(R_WS)}, 0 offen sc1
    s_add_u32 s80, s80, 1
    s_cmp_ge_u32 s80, {O.kfast}
    s_waitcnt vmcnt(0)
    v_cmp_ne_u32 vcc, v12, v21
    s_cbranch_vccz L_pz0_ok
    s_cbranch_scc1 L_poll1
    v_cmp_ne_u32 vcc, v3, v20
    s_cbranch_vccz L_go
    s_sleep 2
    s_branch L_pz0
    L_pz0_ok:
    """)
    if O.pzdma:
        a.c("hand the news to the back waves: copy one of the flags into LDS, ahead of the first rows of h")
        a(f"""
        v_cmp_ne_u32 vcc, v3, v20
        s_mov_b32 m0, {SY_LDS + 36}
        s_mov_b64 exec, 1
        buffer_load_dword v22, {rs(R_WS)}, 0 offen sc1 lds
        s_mov_b64 exec, -1
        """)
    else:
        a(f"""
        v_mov_b32 v21, {SY_LDS + 36}
        v_cmp_ne_u32 vcc, v3, v20
        ds_write_b32 v21, v12
        s_waitcnt lgkmcnt(0)
        """)
    a(f"""
    s_cbranch_vccz L_go
    L_poll1:
    buffer_load_dword v20, v18, {rs(R_WS)}, 0 offen sc1
    s_add_u32 s80, s80, 1
    s_cmp_ge_u32 s80, {O.kfast}
    s_cbranch_scc1 L_slow
    s_waitcnt vmcnt(0)
    v_cmp_ne_u32 vcc, v3, v20
    s_cbranch_vccz L_go
    {f"s_sleep {O.sl1}" if O.sl1 else ""}
    s_branch L_poll1
    L_go:
    """)
    stamp(a, "go")
    def hload(s):
        a(f"s_add_u32 m0, s55, {s*4096}")
        a(f"s_add_u32 s57, s{82 if s < 7 else 83}, {s*8192}")
        a(f"buffer_load_dwordx4 v19, {rs(R_WS)}, s57 offen sc1 lds")
    def hloop(lead):
        hl = 0
        while hl < lead:
            hload(hl); hl += 1
        for gi, g in enumerate(groups):
            a(f"s_waitcnt vmcnt({hl - 1 - g[-1]})")
            a("s_barrier")
            for _ in range(len(groups[min(gi + 1, len(groups) - 1)])):
                if hl < 14 and hl < lead + g[-1] + len(groups[min(gi + 1, len(groups) - 1)]) + 1:
                    hload(hl); hl += 1
    hloop(O.hlead)
    stamp_flush(a)
    a.c("a producer publishes the write-through copy of h unless its whole group is seen on this die")
    a(f"""
    s_cmp_eq_u32 s90, 0
    s_cbranch_scc1 L_nob
    buffer_load_dword v20, v29, {rs(R_WS)}, 0 offen sc1
    s_waitcnt vmcnt(0)
    v_cmp_ne_u32 vcc, v3, v20
    s_cbranch_vccz L_nob
    """)
    sendb(a)
    a("L_nob:")
    if O.upd == 1: update(a, "L_front_end")
    a("s_endpgm")
    a.c("the producers are not all on this die (or are very late): fall back to the write-through copies")
    a("""
    L_slow:
    s_cmp_eq_u32 s90, 0
    s_cbranch_scc1 L_slow_sent
    """)
    sendb(a)
    a(f"""
    s_mov_b32 s90, 0
    L_slow_sent:
    s_movk_i32 s57, {FB_OFF - FA_OFF}
    s_mov_b32 s80, 0
    L_slow_poll:
    buffer_load_dword v20, v18, {rs(R_WS)}, 0 offen sc1
    buffer_load_dword v21, v18, {rs(R_WS)}, s57 offen sc1
    s_add_u32 s80, s80, 1
    s_waitcnt vmcnt(0)
    v_cmp_ne_u32 vcc, v3, v20
    s_cbranch_vccz L_go
    v_cmp_ne_u32 vcc, v12, v21
    s_cbranch_vccz L_slow_b
    s_sleep 8
    s_cmp_lt_u32 s80, {SPIN}
    s_cbranch_scc1 L_slow_poll
    L_slow_b:
    s_add_u32 s82, s82, {HB_OFF - HA_OFF}
    s_add_u32 s83, s83, {HB_OFF - HA_OFF}
    s_branch L_go
    """)
    a("L_code_end:")
    return a

if __name__ == "__main__":
    opts(sys.argv[2:])
    a = gen()
    hdr = HEADER + NOTES + f"; @launch grid=(256,1,1) block=(512,1,1) lds={LDS}\n.amdgcn_target \"amdgcn-amd-amdhsa--gfx950\"\n"
    open(sys.argv[1], "w").write(hdr + a.text() + kdesc(KN, NV + NA, NV))
```

```python
import os, sys
from asmlib import *

KN = "standalone__swiglu_ffn__sampling_kernel"
X_B, W_B, OUT_B, WS_B = 128*1024*2, 1024*3584*2, 128*1024*2, 268435456
FA_OFF = 0
FB_OFF = FA_OFF + 4096
EP_OFF = FA_OFF + 8192
RG_OFF = FA_OFF + 12288
PZ_OFF = FA_OFF + 16384
HA_OFF = 65536
P_OFF = 1 << 20
HB_OFF = (3 << 20) + HA_OFF
ST_OFF = 8 << 20
R_X, R_G, R_U, R_D, R_WS, R_OUT = 20, 24, 28, 32, 36, 40
WD_LDS = 98304
SY_LDS = WD_LDS + 57344
LDS = SY_LDS + 64
SPIN = int(os.environ.get("DIAG_SPIN", 1 << 18))
NV, NA = 96, 160

class O:
    stamp = 0; sync = 1; sw = 4; endwait = 1
    kfast = 64; sl1 = 0; sl2 = 0
    xg = 4; xlead = 2; r2 = 8; r3 = 13; hold = 6; wdk = 3; touch = 1; npf0 = 3
    wd13 = 3; wd14 = 5; hlead = 5; fine = 3
    NP = 12; N1 = 6; cap = 3; slk = 1
    fdef = 0; bdef = 0; cp0 = 1; cp1 = 0; roll = 0; upd = 0; own = 1; f2 = 6; f3 = 11; mark = 0; epi = 0; pzdma = 0; lag = 1; rfirst = 0; vt = 0; dfl = 0; dord = 0; pfl = 0; prio = 0; vtc = 7; n2 = 5; n3 = 9
PTS = {}
def opts(argv):
    for x in argv:
        k, v = x.split("=")
        if k == "pts":
            PTS.clear(); PTS["start"] = 0
            for i, nm in enumerate(v.split(",")): PTS[nm] = i + 1
            O.stamp = 1
        else:
            assert hasattr(O, k), k
            setattr(O, k, int(v))
def rs(r): return f"s[{r}:{r+3}]"
def stamp(a, name):
    if O.stamp and name in PTS:
        idx = PTS[name]
        a(f"s_memrealtime s[{64+2*idx}:{65+2*idx}]")
_fl = [0]
def stamp_flush(a):
    if not O.stamp: return
    _fl[0] += 1
    L = f"L_sf{_fl[0]}"
    a(f"""
    s_memrealtime s[78:79]
    s_cmp_lg_u32 s53, {O.sw}
    s_cbranch_scc1 {L}
    s_waitcnt lgkmcnt(0)
    """)
    for i in range(8):
        a(f"v_mov_b32 v{80+i}, s{64+2*i}")
    a(f"""
    s_lshl_b32 s63, s2, 5
    s_add_u32 s63, s63, {ST_OFF}
    v_mov_b32 v88, s63
    s_mov_b64 exec, 1
    buffer_store_dwordx4 v[80:83], v88, {rs(R_WS)}, 0 offen
    buffer_store_dwordx4 v[84:87], v88, {rs(R_WS)}, 0 offen offset:16
    s_mov_b64 exec, -1
    {L}:
    """)
def lines(txt):
    return [x.strip() for x in txt.split("\n") if x.strip()]

def pf_role(a, tag):
    a(f"""
    s_mov_b32 s50, 1
    s_cmp_ge_u32 s52, 3
    s_addc_u32 s51, s52, 0
    s_cmp_ge_u32 s52, 10
    s_addc_u32 s51, s51, 0
    s_mov_b32 s46, 0
    s_cmp_ge_u32 s52, 14
    s_cbranch_scc0 L_pf_role_{tag}
    s_and_b32 s50, s52, 1
    s_mul_i32 s46, s50, 7
    s_cmp_ge_u32 s52, 16
    s_cselect_b32 s51, 11, 3
    L_pf_role_{tag}:
    """)
P1_ROLE = """
    s_mov_b32 s50, 0
    s_cmp_ge_u32 s49, 3
    s_addc_u32 s51, s49, 0
    s_cmp_ge_u32 s49, 10
    s_addc_u32 s51, s51, 0
    s_mov_b32 s46, 0
"""
FRONT_SETUP = f"""
    s_getreg_b32 s86, hwreg(HW_REG_XCC_ID, 0, 4)
    s_lshl_b32 s86, s86, 24
    s_lshl_b32 s55, s53, 10
    s_lshl_b32 s82, s46, 13
    s_sub_u32 s83, 0, s82
    s_mul_i32 s54, s48, 112
    s_lshl_b32 s57, s50, 2
    s_add_u32 s54, s54, s57
    v_add_u32 v6, s54, v1
    v_lshlrev_b32 v6, 10, v6
    v_lshl_add_u32 v19, v2, 4, v6
    v_add_u32 v19, {HA_OFF}, v19
    s_lshl_b32 s54, s48, 1
    s_add_u32 s54, s54, s50
    s_lshl_b32 s54, s54, 7
    s_add_u32 s54, s54, {FA_OFF}
    v_min_u32 v6, 27, v2
    v_lshl_add_u32 v18, v6, 2, s54
    s_lshl_b32 s54, s48, 7
    s_add_u32 s54, s54, {RG_OFF}
    v_and_b32 v6, 31, v2
    v_lshl_add_u32 v29, v6, 2, s54
    v_and_b32 v7, 1, v6
    v_lshlrev_b32 v7, 7, v7
    v_lshrrev_b32 v8, 1, v6
    v_lshl_add_u32 v7, v8, 4, v7
    v_cmp_gt_u32 vcc, 14, v6
    s_lshl_b32 s54, s48, 8
    s_add_u32 s54, s54, {FA_OFF}
    v_add_u32 v7, s54, v7
    v_cndmask_b32 v29, v29, v7, vcc
    s_cmp_lt_u32 s49, 14
    s_cselect_b32 s54, 14, 0
    s_add_u32 s54, s54, s49
    s_lshl_b32 s54, s54, 10
    s_add_u32 s91, s54, {PZ_OFF}
    s_mov_b32 s38, {WS_B}
    s_mov_b32 s39, 0x20000
    s_mov_b64 s[36:37], s[16:17]
"""
def back_setup():
    p = [f"""
    s_mov_b64 s[32:33], s[10:11]
    s_mov_b32 s34, {W_B}
    s_mov_b32 s35, 0x20000
    s_mov_b64 s[36:37], s[16:17]
    s_mov_b32 s38, {WS_B}
    s_mov_b32 s39, 0x20000
    s_mov_b64 s[40:41], s[12:13]
    s_mov_b32 s42, {OUT_B}
    s_mov_b32 s43, 0x20000
    s_and_b32 s55, s53, 3
    s_lshl_b32 s55, s55, 10
    s_lshl_b32 s84, s46, 16
    s_sub_u32 s85, 0, s84
    {"s_getpc_b64 s[92:93]" if O.mark else ""}
    {"s_lshr_b32 s81, s55, 8" if O.mark else ""}
    {f"s_add_u32 s81, s81, {SY_LDS}" if O.mark else ""}
    """, f"""
    v_lshrrev_b32 v3, 3, v2
    v_and_b32 v4, 7, v2
    v_and_b32 v6, 6, v3
    v_xor_b32 v4, v4, v6
    v_lshl_add_u32 v3, v1, 3, v3
    s_mul_i32 s60, s48, 448
    v_add_u32 v3, s60, v3
    v_lshlrev_b32 v3, 11, v3
    s_lshl_b32 s60, s51, 7
    v_add_u32 v3, s60, v3
    v_lshl_add_u32 v17, v4, 4, v3
    v_lshlrev_b32 v3, 10, v1
    v_lshl_add_u32 v19, v2, 4, v3
    """, f"""
    v_lshrrev_b32 v3, 4, v2
    v_bfe_u32 v4, v2, 2, 2
    v_and_b32 v7, 1, v3
    v_lshrrev_b32 v6, 1, v3
    v_lshlrev_b32 v6, 4, v6
    v_lshl_add_u32 v6, v7, 2, v6
    v_add_u32 v6, v6, v4
    v_lshlrev_b32 v6, 7, v6
    v_and_b32 v8, 3, v2
    v_lshl_add_u32 v6, v8, 3, v6
    v_add_u32 v6, {WD_LDS}, v6
    v_lshrrev_b32 v4, 1, v4
    v_lshl_add_u32 v4, v7, 1, v4
    """, "\n".join(f"v_xor_b32 v7, {t}, v4\nv_lshl_add_u32 v{20+t}, v7, 5, v6" for t in range(4)), f"""
    v_bfe_u32 v4, v2, 3, 1
    v_lshl_add_u32 v6, v1, 1, v4
    s_lshl_b32 s60, s49, 3
    v_add_u32 v6, s60, v6
    v_lshlrev_b32 v6, 3, v6
    v_add_u32 v6, s48, v6
    v_lshlrev_b32 v6, 10, v6
    v_lshl_add_u32 v6, v3, 7, v6
    v_and_b32 v7, 7, v2
    v_lshl_add_u32 v6, v7, 4, v6
    v_add_u32 v8, {P_OFF}, v6
    """, f"""
    s_cmp_lt_u32 s49, 14
    s_cselect_b32 s61, 14*8, 0
    s_add_u32 s61, s61, s60
    s_lshl_b32 s61, s61, 7
    s_add_u32 s61, s61, {PZ_OFF}
    v_lshl_add_u32 v18, v7, 7, s61
    s_add_u32 s60, s60, s48
    s_lshl_b32 s60, s60, 13
    s_add_u32 s60, s60, {P_OFF}
    v_and_b32 v6, 15, v2
    v_lshl_add_u32 v6, v1, 4, v6
    v_lshlrev_b32 v6, 4, v6
    v_lshl_add_u32 v6, v3, 11, v6
    v_add_u32 v6, s60, v6
    """, f"""
    s_lshl_b32 s60, s50, 6
    s_lshl_b32 s61, s48, 3
    s_add_u32 s60, s60, s61
    v_add_u32 v7, s60, v7
    v_lshlrev_b32 v7, 11, v7
    v_lshl_add_u32 v7, v4, 3, v7
    v_and_b32 v4, 1, v1
    v_lshl_add_u32 v7, v4, 4, v7
    v_lshrrev_b32 v4, 1, v1
    v_lshl_add_u32 v7, v4, 6, v7
    v_and_b32 v4, 1, v3
    v_lshl_add_u32 v7, v4, 2, v7
    v_lshrrev_b32 v4, 1, v3
    v_lshl_add_u32 v7, v4, 5, v7
    s_lshl_b32 s60, s51, 7
    v_add_u32 v7, s60, v7
    """]
    return p
LDS_INIT = f"""
    v_mov_b32 v16, {SY_LDS}
    v_lshl_add_u32 v14, v1, 2, v16
    v_mov_b32 v9, 0
    ds_write_b32 v14, v9
    ds_write_b32 v14, v9 offset:16
    ds_write_b32 v16, v9 offset:36
    v_mov_b32 v15, -1
"""
def nonce1(a, line):
    a(f"""
    s_movk_i32 s88, {EP_OFF}
    s_load_dword s59, s[16:17], s88
    s_load_dword s87, s[14:15], 0
    """)
    if line:
        a(f"""
        s_lshl_b32 s88, s48, 7
        s_add_u32 s88, s88, {RG_OFF}
        s_load_dword s87, s[16:17], s88
        s_add_u32 s89, s88, 64
        s_load_dword s87, s[16:17], s89
        """)
def nonce2(a, vn):
    a(f"""
    v_mov_b32 v30, 0
    s_add_u32 s59, s59, 1
    s_bitset1_b32 s59, 31
    global_load_dword v{vn}, v30, s[14:15] sc1
    """)
def nonce3(a, vn, share=True):
    a(f"""
    v_cmp_eq_u32 vcc, 0, v{vn}
    v_mov_b32 v30, s59
    {f"v_mov_b32 v28, {SY_LDS + 32}" if share else "s_nop 0"}
    v_cndmask_b32 v{vn}, v{vn}, v30, vcc
    {f"ds_write_b32 v28, v{vn}" if share else ""}
    """)
def wd_list():
    L = [f"s_add_u32 m0, s55, {WD_LDS + s*4096}\ns_add_u32 s57, s{84 if s < 7 else 85}, {s*65536}\nbuffer_load_dwordx4 v17, {rs(R_D)}, s57 offen lds" for s in range(14)]
    if O.mark:
        for k, n in enumerate([O.N1] + ([O.NP] if O.NP > O.N1 else [])):
            L[n - 1] += f"\ns_add_u32 m0, s81, {16*k}\ns_mov_b64 exec, 1\nglobal_load_lds_dword v9, s[92:93]\ns_mov_b64 exec, -1"
    return L
def sendb(a):
    a(f"""
    s_mov_b32 s57, {HB_OFF - HA_OFF}
    s_movk_i32 s58, {FB_OFF - FA_OFF}
    buffer_store_dwordx4 v[4:7], v14, {rs(R_WS)}, s57 offen sc1
    buffer_store_dwordx4 v[8:11], v14, {rs(R_WS)}, s57 offen offset:2048 sc1
    s_waitcnt vmcnt(0)
    buffer_store_dword v12, v15, {rs(R_WS)}, s58 offen sc1
    """)

def update(a, done):
    a.c("one wave of the launch moves the epoch on: d_debug first, so that a late reader can tell")
    a(f"""
    s_lshl_b32 s54, s2, 3
    s_add_u32 s54, s54, s53
    s_cmp_eq_u32 s54, {255*8 + 3}
    s_cbranch_scc0 {done}
    v_mov_b32 v26, 0
    v_mov_b32 v27, {EP_OFF}
    s_mov_b64 exec, 1
    global_store_dword v26, v12, s[14:15] sc1
    s_waitcnt vmcnt(0)
    global_store_dword v27, v12, s[16:17] sc1
    s_mov_b64 exec, -1
    {done}:
    """)

NOTES = """;
"""

def gen():
    a = Asm()
    kstart(a, KN)
    if O.stamp and O.sync:
        a("""
        s_memrealtime s[44:45]
        s_waitcnt lgkmcnt(0)
        s_add_u32 s46, s44, 612
        s_and_b32 s46, s46, 0xfffffe00
        L_sync:
        s_memrealtime s[44:45]
        s_waitcnt lgkmcnt(0)
        s_sub_u32 s47, s44, s46
        s_cmp_lt_i32 s47, 0
        s_cbranch_scc1 L_sync
        """)
    stamp(a, "start")
    a(f"""
    s_load_dwordx8 s[4:11], s[0:1], 0
    s_load_dwordx4 s[12:15], s[0:1], 32
    s_load_dwordx2 s[16:17], s[0:1], 48
    v_lshrrev_b32 v1, 6, v0         ; wave
    s_cmp_ge_u32 s2, 256
    s_cbranch_scc1 L_end
    v_readfirstlane_b32 s53, v1
    s_and_b32 s48, s2, 7            ; j
    s_lshr_b32 s49, s2, 3           ; q
    v_and_b32 v2, 63, v0            ; lane
    s_mov_b32 s22, {X_B}
    s_mov_b32 s23, 0x20000
    s_mov_b32 s26, {W_B}
    s_mov_b32 s27, 0x20000
    """)
    if O.cp0:
        a.c("wave 1 of every workgroup brings four lines of the kernel's code into this die's L2")
        a(f"""
        s_cmp_eq_u32 s53, 1
        s_cbranch_scc0 L_nocp
        s_getpc_b64 s[44:45]
        L_pc:
        v_and_b32 v3, 3, v2
        v_lshl_add_u32 v3, s49, 2, v3
        v_min_u32 v3, (L_code_end-L_pc-4)/128, v3
        v_lshlrev_b32 v3, 7, v3
        global_load_dword v31, v3, s[44:45]
        L_nocp:
        """)
    a(f"""
    s_cmp_lt_u32 s49, 14
    s_cbranch_scc1 L_p1
    s_sub_u32 s52, s49, 14          ; p
    s_cmp_lg_u32 s53, 0
    s_cbranch_scc1 L_pf_other
    """)
    a.c("prefetch wave: per 64-row chunk 50 lines of Wg (odd p) or Wu (even p), and 8 rows of x")
    a(f"""
    s_lshr_b32 s54, s52, 1
    s_mul_i32 s54, s54, 50
    v_add_u32 v3, s54, v2
    v_mul_u32_u24 v5, 9363, v3
    v_lshrrev_b32 v5, 16, v5        ; row = i / 7
    v_mul_u32_u24 v6, 7, v5
    v_sub_u32 v6, v3, v6            ; column = i % 7
    v_mul_u32_u24 v5, 7168, v5
    v_lshl_add_u32 v5, v6, 7, v5
    s_mul_i32 s54, s48, 896
    v_add_u32 v5, s54, v5
    v_cmp_gt_u32 vcc, 50, v2
    s_movk_i32 s54, 448
    v_cmp_gt_u32 s[44:45], s54, v3
    v_bfrev_b32 v7, 2
    s_lshl_b32 s54, s52, 3
    s_and_b64 vcc, vcc, s[44:45]
    v_lshrrev_b32 v3, {O.xg.bit_length() - 1}, v2
    v_add_u32 v3, s54, v3
    v_lshlrev_b32 v6, 11, v3
    v_and_b32 v3, {O.xg - 1}, v2
    v_lshl_add_u32 v6, v3, 7, v6
    v_cndmask_b32 v10, v7, v5, vcc
    v_cmp_gt_u32 vcc, {8 * O.xg}, v2
    s_bitcmp1_b32 s52, 0
    s_nop 0
    v_cndmask_b32 v11, v7, v6, vcc  ; rows >= 128 fall out of range
    s_waitcnt lgkmcnt(0)
    s_cselect_b64 s[24:25], s[6:7], s[8:9]
    s_mov_b64 s[20:21], s[4:5]
    """)
    stamp(a, "karg")
    npf = [0]
    def pf(c):
        for g_ in range(16 // O.xg):
            if max(0, g_ * O.xg - O.xlead) == c:
                so = "0"
                if g_:
                    a(f"s_movk_i32 s58, {g_ * O.xg * 128}"); so = "s58"
                a(f"buffer_load_dword v22, v11, {rs(R_X)}, {so} offen"); npf[0] += 1
        so = "0"
        if c:
            a(f"s_mov_b32 s57, {c*64*7168}"); so = "s57"
        a(f"buffer_load_dword v20, v10, {rs(R_G)}, {so} offen {['', 'sc1', 'sc0', 'sc0 sc1'][O.pfl]}"); npf[0] += 1
    for c in range(O.npf0): pf(c)
    a("s_branch L_pf_go_on")
    a(f"""
    L_p1:
    s_and_b32 s47, s49, 1
    s_lshr_b32 s52, s49, 1
    s_mul_i32 s54, s48, 7
    s_add_u32 s52, s52, s54
    s_cmp_lt_u32 s53, 4
    s_cbranch_scc1 L_front
    v_and_b32 v1, 3, v1
    s_lshl_b32 s54, s52, 7
    v_lshrrev_b32 v3, 3, v2
    v_and_b32 v4, 7, v2
    v_lshl_add_u32 v5, v1, 4, v3
    v_mul_u32_u24 v6, 7168, v5
    v_add_u32 v6, s54, v6
    v_and_b32 v7, 2, v3
    v_xor_b32 v7, v7, v4
    v_lshl_add_u32 v10, v7, 4, v6
    v_xor_b32 v11, 64, v10
    v_lshrrev_b32 v7, 1, v3
    v_xor_b32 v7, v7, v4
    s_lshl_b32 s54, s47, 6
    v_add_u32 v5, s54, v5
    v_lshlrev_b32 v5, 11, v5
    v_lshl_add_u32 v12, v7, 4, v5
    v_xor_b32 v13, 64, v12
    v_add_u32 v13, 0x4000, v13
    s_and_b32 s56, s53, 3
    s_lshl_b32 s56, s56, 11
    s_mov_b32 s30, {W_B}
    s_mov_b32 s31, 0x20000
    """)
    a(LDS_INIT)
    a("""
    s_waitcnt lgkmcnt(0)
    s_mov_b64 s[20:21], s[4:5]
    s_mov_b64 s[24:25], s[6:7]
    s_mov_b64 s[28:29], s[8:9]
    """)
    stamp(a, "karg")
    Q = []
    def dma(c):
        sl = (c % 4) * 24576
        L = list(enumerate([(12, R_X, c*128), (13, R_X, c*128), (10, R_G, c*458752), (10, R_G, c*458752+57344), (11, R_U, c*458752), (11, R_U, c*458752+57344)]))
        if O.dord == 1: L = [L[i] for i in (0, 2, 4, 1, 3, 5)]
        if O.dord == 2: L = [L[i] for i in (2, 3, 4, 5, 0, 1)]
        for k, (v, r, so) in L:
            a(f"s_add_u32 m0, s56, {sl + (k//2)*8192 + (k%2)*1024}\ns_mov_b32 s57, {so}\nbuffer_load_dwordx4 v{v}, {rs(r)}, s57 offen {['', 'sc1', 'sc0', 'sc0 sc1'][O.dfl]} lds")
            Q.append(c)
    dma(0)
    stamp(a, "d0")
    a("s_branch L_back_go_on")
    a("L_front:")
    stamp(a, "fin")
    a(f"""
    v_bfe_u32 v4, v2, 4, 1
    v_lshrrev_b32 v5, 5, v2         ; k half
    v_bfe_u32 v6, v2, 2, 2
    v_lshrrev_b32 v7, 1, v6
    v_lshl_add_u32 v7, v4, 1, v7
    v_xor_b32 v7, v7, v1
    v_lshl_add_u32 v6, v5, 3, v6
    v_lshlrev_b32 v6, 7, v6
    v_lshl_add_u32 v6, v7, 5, v6
    v_lshl_add_u32 v6, v4, 13, v6
    v_and_b32 v7, 3, v2
    v_lshl_add_u32 v6, v7, 3, v6
    v_add_u32 v16, 0x2000, v6
    v_and_b32 v6, 31, v2
    v_bfe_u32 v7, v6, 1, 3
    v_xor_b32 v7, v7, v5
    v_lshlrev_b32 v6, 7, v6
    """)
    for s in range(4):
        a(f"v_xor_b32 v8, {2*s}, v7")
        a(f"v_lshl_add_u32 v{20+s}, v8, 4, v6")
    a("s_branch L_front_go_on")

    a("L_pf_go_on:")
    if not O.cp0:
        a(f"""
        s_cmp_lt_u32 s52, 16
        s_cbranch_scc1 L_nocp
        s_getpc_b64 s[44:45]
        L_pc:
        s_sub_u32 s44, s44, L_pc-{KN}
        s_subb_u32 s45, s45, 0
        s_and_b32 s54, s52, 1
        s_lshl_b32 s54, s54, 6
        v_add_u32 v3, s54, v2
        v_min_u32 v3, (L_code_end-{KN}-4)/128, v3
        v_lshlrev_b32 v3, 7, v3
        global_load_dword v23, v3, s[44:45]
        L_nocp:
        """)
    if O.touch:
        a.c("one first touch per workgroup, so that the address translations are there when they are needed")
        a("""
        s_cmp_lt_u32 s52, 14
        s_cselect_b64 s[44:45], s[16:17], s[12:13]
        s_cmp_lt_u32 s52, 12
        s_cselect_b64 s[44:45], s[10:11], s[44:45]
        s_cmp_lt_u32 s52, 8
        s_cselect_b64 s[44:45], s[8:9], s[44:45]
        s_cmp_lt_u32 s52, 4
        s_cselect_b64 s[44:45], s[6:7], s[44:45]
        s_and_b32 s54, s52, 3
        s_lshl_b32 s54, s54, 21
        s_cmp_lt_u32 s52, 14
        s_cselect_b32 s54, s54, 0
        s_load_dword s87, s[44:45], s54
        """)
    nonce1(a, True)
    for c in range(O.npf0, 16):
        if c == O.r2:
            a("""
            s_getreg_b32 s86, hwreg(HW_REG_XCC_ID, 0, 4)
            s_lshl_b32 s86, s86, 24
            s_lshl_b32 s89, s49, 2
            s_add_u32 s88, s88, s89
            v_mov_b32 v31, s88
            s_waitcnt lgkmcnt(0)
            """)
            nonce2(a, 12); mark = npf[0]
        if c == O.r3:
            a(f"s_waitcnt vmcnt({npf[0] - mark})")
            nonce3(a, 12)
            a("v_xor_b32 v30, s86, v12")
            stamp(a, "non")
        pf(c)
    stamp(a, "hia")
    if O.hold >= 0: a(f"s_waitcnt vmcnt({O.hold})")
    stamp(a, "hib")
    a.c("announce this workgroup's die; fill its inbox and that of the paired producer with the not-yet-written pattern;")
    a.c("bring the lines of the h buffer into L2 before they are written")
    a(f"""
    global_store_dword v31, v30, s[16:17]
    s_lshl_b32 s54, s49, 3
    s_add_u32 s54, s54, s48
    s_lshl_b32 s57, s54, 13
    s_add_u32 s57, s57, {P_OFF}
    v_lshl_add_u32 v3, v2, 4, s57
    v_add_u32 v8, 0x1000, v3
    s_lshl_b32 s54, s54, 7
    s_add_u32 s54, s54, {PZ_OFF}
    v_mov_b32 v13, s54
    v_mov_b32 v4, -1
    v_mov_b32 v5, -1
    v_mov_b32 v6, -1
    v_mov_b32 v7, -1
    s_cmp_lt_u32 s52, 14
    """)
    for k in range(8):
        a(f"global_store_dwordx4 v{3 if k < 4 else 8}, v[4:7], s[16:17] offset:{(k % 4)*1024} sc1")
    a(f"""
    s_cbranch_scc0 L_pz_one
    v_subrev_u32 v3, {14*8*8192}, v3
    v_subrev_u32 v8, {14*8*8192}, v8
    """)
    for k in range(8):
        a(f"global_store_dwordx4 v{3 if k < 4 else 8}, v[4:7], s[16:17] offset:{(k % 4)*1024} sc1")
    a(f"""
    L_pz_one:
    s_lshl_b32 s54, s52, 6
    v_add_u32 v3, s54, v2
    v_min_u32 v3, 895, v3
    s_mul_i32 s54, s48, 114688
    s_add_u32 s54, s54, {HA_OFF}
    v_lshl_add_u32 v3, v3, 7, s54
    global_load_dword v24, v3, s[16:17]
    s_waitcnt lgkmcnt(0)
    s_barrier
    s_waitcnt vmcnt(1)
    global_store_dword v13, v12, s[16:17] sc1
    s_barrier
    """)
    stamp(a, "pfi")
    a("s_branch L_pf_front")
    a(f"""
    L_pf_other:
    s_cmp_ge_u32 s53, 4
    s_cbranch_scc1 L_back_pf
    s_waitcnt lgkmcnt(0)
    s_barrier
    s_barrier
    """)
    if O.vt & 2:
        a("""
        s_cmp_eq_u32 s53, 2
        s_cbranch_scc0 L_pf_front
        v_mov_b32 v6, 0
        global_load_dword v31, v6, s[12:13]
        """)
    if O.cp1:
        a.c("touch the code of the later phases again: it is the oldest resident of the L2 by now")
        a(f"""
        s_cmp_eq_u32 s53, 1
        s_cbranch_scc0 L_pf_front
        s_getpc_b64 s[44:45]
        L_pc1:
        v_min_u32 v3, 5, v2
        s_mul_i32 s54, s52, 6
        v_add_u32 v3, s54, v3
        v_min_u32 v3, (L_code_end-L_pc1-4)/128, v3
        v_lshlrev_b32 v3, 7, v3
        global_load_dword v31, v3, s[44:45]
        """)
    a(f"""
    L_pf_front:
    """)
    pf_role(a, "f")
    a(FRONT_SETUP)
    a(f"""
    v_mov_b32 v5, {SY_LDS + 32}
    ds_read_b32 v12, v5
    s_mov_b32 s90, 0
    v_bfrev_b32 v14, 2
    v_bfrev_b32 v15, 2
    s_waitcnt lgkmcnt(0)
    v_xor_b32 v3, s86, v12
    """)
    if O.upd == 0: update(a, "L_upd_done")
    a(f"""
    s_barrier
    s_branch L_hload
    L_back_pf:
    v_and_b32 v1, 3, v1
    """)
    a(LDS_INIT)
    pf_role(a, "b")
    a("s_waitcnt lgkmcnt(0)")
    for p in back_setup(): a(p)
    a("s_barrier")
    wdl = wd_list()
    for i, d in enumerate(wdl):
        if i == O.wdk: a("s_barrier")
        a(d)
    a("ds_read_b32 v5, v16 offset:32")
    a("s_branch L_p2")

    a("L_back_go_on:")
    if O.prio & 1: a("s_setprio 1")
    dma(1)
    stamp(a, "d1")
    nonce1(a, False)
    a(P1_ROLE)
    pieces = back_setup()
    if not O.bdef:
        for p in pieces: a(p)
        pieces = []
    issued, wd, c0 = 3, 0, 0
    if O.roll:
        assert not pieces
        a("s_waitcnt lgkmcnt(0)")
        nonce2(a, 5)
        dma(2)
        a(f"""
        s_movk_i32 s62, {3*128}
        s_mov_b32 s63, {3*458752}
        s_mov_b32 s89, {3*458752 + 57344}
        s_mov_b32 s81, 0
        L_ld_loop:
        """)
        for c in range(4):
            sl = ((c + 3) % 4) * 24576
            a(f"""
            s_waitcnt vmcnt(12)
            s_barrier
            s_add_u32 m0, s56, {sl}
            s_nop 0
            buffer_load_dwordx4 v12, {rs(R_X)}, s62 offen lds
            s_add_u32 m0, s56, {sl + 1024}
            s_nop 0
            buffer_load_dwordx4 v13, {rs(R_X)}, s62 offen lds
            s_add_u32 m0, s56, {sl + 8192}
            s_addk_i32 s62, 128
            buffer_load_dwordx4 v10, {rs(R_G)}, s63 offen lds
            s_add_u32 m0, s56, {sl + 8192 + 1024}
            s_nop 0
            buffer_load_dwordx4 v10, {rs(R_G)}, s89 offen lds
            s_add_u32 m0, s56, {sl + 16384}
            s_nop 0
            buffer_load_dwordx4 v11, {rs(R_U)}, s63 offen lds
            s_add_u32 m0, s56, {sl + 16384 + 1024}
            s_add_u32 s63, s63, 458752
            buffer_load_dwordx4 v11, {rs(R_U)}, s89 offen lds
            s_add_u32 s89, s89, 458752
            """)
        a("""
        s_add_u32 s81, s81, 1
        s_cmp_lt_u32 s81, 3
        s_cbranch_scc1 L_ld_loop
        """)
        for c in range(3, 15): Q.extend([c] * 6)
        Q.insert(0, "n")
        issued, c0 = 15, 12
        O.n2, O.n3 = -1, 12
    else:
        dma(2)
    for c in range(c0, 16):
        stamp(a, f"w{c}")
        a(f"s_waitcnt vmcnt({len(Q) - 1 - max(i for i, t in enumerate(Q) if t == c)})" + (" lgkmcnt(0)" if (c == O.n3 + (1 if O.roll else 2) and not O.own) else ""))
        stamp(a, f"v{c}")
        a("s_barrier")
        stamp(a, f"c{c}")
        if c == O.n3:
            assert Q.index("n") < max(i for i, t in enumerate(Q) if t == c)
            nonce3(a, 5, not O.own)
        if issued < 16:
            dma(issued); issued += 1
        else:
            n = min({13: O.wd13, 14: O.wd14, 15: 14}[c], 14 - wd)
            for d in wdl[wd:wd+n]:
                a(d); Q.extend(["d"] * d.count("_load_"))
            wd += n
        if c == O.n2:
            a("s_waitcnt lgkmcnt(0)")
            nonce2(a, 5); Q.append("n")
        elif pieces and c >= O.bdef: a(pieces.pop(0))
    assert not pieces
    a("L_p2:")
    stamp(a, "p2in")
    def areg(slot, t, n, o=0):
        base = (slot*4 + t) * 4 + o
        return ar(base, n) if slot < 10 else vr(64 + base - 160, n)
    def areads(s, slot):
        out = []
        for t in range(4):
            out.append(f"ds_read_b64_tr_b16 {areg(slot, t, 2)}, v{20+t} offset:{s*4096}")
            out.append(f"ds_read_b64_tr_b16 {areg(slot, t, 2, 2)}, v{20+t} offset:{s*4096+1024}")
        return out
    def lsync(k):
        a(f"""
        {"" if O.mark else f"ds_write_b32 v14, v15 offset:{16*k}"}
        L_sy{k}:
        ds_read_b128 v[40:43], v16 offset:{16*k}
        s_waitcnt lgkmcnt(0)
        v_and_b32 v40, v40, v41
        v_and_b32 v42, v42, v43
        v_and_b32 v40, v40, v42
        v_cmp_eq_u32 vcc, 0, v40
        s_cbranch_vccnz L_sy{k}
        """)
    NP, N1 = O.NP, O.N1
    if not O.mark: a(f"s_waitcnt vmcnt({14 - N1})")
    stamp(a, "wv")
    lsync(0)
    stamp(a, "wd1")
    for s in range(N1):
        if s >= 1: a("s_waitcnt lgkmcnt(6)")
        for r in areads(s, s): a(r)
    if NP > N1:
        if not O.mark: a(f"s_waitcnt vmcnt({14 - NP})")
        lsync(1)
        stamp(a, "wd2")
        for s in range(N1, NP):
            if s > N1: a("s_waitcnt lgkmcnt(6)")
            for r in areads(s, s): a(r)
    a(f"""
    s_cmp_lt_u32 s49, 14
    s_cbranch_scc1 L_nob2
    s_barrier
    L_nob2:
    s_waitcnt lgkmcnt(8)
    """)
    stamp(a, "rdy")
    if "all" in PTS:
        a("s_waitcnt vmcnt(0)"); stamp(a, "all")
    AC = 24
    groups = {2: [[0],[1,2],[3,4],[5,6],[7,8],[9,10],[11,12],[13]],
              3: [[0],[1],[2,3],[4,5],[6,7],[8,9],[10,11],[12],[13]],
              4: [[s_] for s_ in range(14)],
              8: [[0,1],[2,3],[4,5],[6,7],[8,9],[10,11],[12],[13]],
              5: [[0],[1],[2,3],[4,5,6],[7,8,9],[10,11,12],[13]],
              6: [[0],[1,2],[3,4,5],[6,7,8],[9,10,11],[12,13]],
              7: [[0],[1],[2,3],[4,5],[6,7,8],[9,10,11],[12,13]]}[O.fine]
    def breg(s): return 40 + 4*(s % 6)
    D = O.lag
    NI = len(groups) + D
    it_of = {s_: gi + D for gi, g in enumerate(groups) for s_ in g}
    plan = [[] for _ in range(NI)]
    room = [0] * D + [O.cap * len(groups[i - D]) for i in range(D, NI)]
    i = NI - 1
    for s_ in range(13, NP - 1, -1):
        for r in reversed(areads(s_, s_ % 12)):
            i = min(i, it_of[s_] - 1 - O.slk, len(groups) - 1)
            while room[i] == 0: i -= 1
            assert i >= 1 and (s_ < 12 or i > it_of[s_ - 12]), (s_, i)
            plan[i].insert(0, (r, f"A{s_}")); room[i] -= 1
    LQ = ["P"] * 8
    landed = NP - 1
    def emit(x):
        a(x[0])
        if x[1]: LQ.append(x[1])
    for it in range(NI):
        prev = groups[it - D] if it >= D else []
        need = [f"B{s_}" for s_ in prev] + [f"A{s_}" for s_ in prev if s_ >= NP]
        if it == D: need.append("P")
        if it == NI - 1: need.append("Z")
        w = ""
        top = max([int(x[1][1:]) for x in plan[it]], default=-1)
        if top > landed:
            w += f" vmcnt({13 - top})"; landed = top
        n = min(8 + it, 12)
        if need:
            for t_ in need: assert t_ in LQ and (t_[0] != "A" or LQ.count(t_) == 8), (it, t_)
            n = len(LQ) - 1 - max(len(LQ) - 1 - LQ[::-1].index(t_) for t_ in need)
            w += f" lgkmcnt({n})"
        if w: a("s_waitcnt" + w)
        items = []
        if it < len(groups):
            a("s_barrier")
            stamp(a, f"b{it}")
            if it == len(groups) - 1: stamp(a, "bl")
            items += [(f"ds_read_b128 {vr(breg(s_),4)}, v19 offset:{s_*4096}", f"B{s_}") for s_ in groups[it]]
            if it == len(groups) - 2: items.append(("ds_read_b32 v9, v16 offset:36", "Z"))
        if it == NI - 1:
            items += [("v_cmp_ne_u32 vcc, v5, v9", None), ("s_mov_b32 s80, 0\ns_mov_b32 s44, 0xffff0000", None), ("s_cbranch_vccnz L_pz_wait\nL_pz_ok:", None)]
        if n + sum(1 for x in items + plan[it] if x[1]) > 15:
            plan[it][0] = (f"s_waitcnt lgkmcnt({15 - len(plan[it])})\n" + plan[it][0][0], plan[it][0][1])
        items += plan[it]
        if not prev:
            for x in items: emit(x)
        elif O.rfirst:
            while items and items[0][1] and items[0][1][0] == "B": emit(items.pop(0))
        nm = 4 * len(prev); k = 0
        for s_ in prev:
            for t in range(4):
                cin = "0" if s_ == 0 else vr(AC+4*t, 4)
                a(f"v_mfma_f32_16x16x32_bf16 {vr(AC+4*t,4)}, {areg(s_ % 12, t, 4)}, {vr(breg(s_),4)}, {cin}")
                k += 1
                take = -(-len(items) // (nm - k + 1))
                for x in items[:take]: emit(x)
                items = items[take:]
    stamp(a, "mend")
    a("s_nop 0")
    for g in range(2):
        for i in range(4):
            if g == 0 and i == 2: a("s_nop 1")
            a(f"v_cvt_pk_bf16_f32 v{40+4*g+i}, v{AC+8*g+2*i}, v{AC+8*g+2*i+1}")
        for i in range(4):
            a(f"v_min_u32 v{40+4*g+i}, -2, v{40+4*g+i}")
        a(f"buffer_store_dwordx4 {vr(40+4*g,4)}, v8, {rs(R_WS)}, 0 offen offset:{g*512} sc1")
    stamp(a, "pst")
    a("s_waitcnt vmcnt(0)")
    stamp(a, "ack")
    a(f"""
    L_poll2:
    buffer_load_dwordx4 v[64:67], v6, {rs(R_WS)}, 0 offen sc1
    buffer_load_dwordx4 v[68:71], v6, {rs(R_WS)}, 0 offen offset:1024 sc1
    s_add_u32 s80, s80, 1
    s_cmp_ge_u32 s80, {SPIN}
    s_waitcnt vmcnt(1)
    v_max3_u32 v4, v64, v65, v66
    v_lshlrev_b32 v72, 16, v64
    v_and_b32 v73, s44, v64
    v_lshlrev_b32 v74, 16, v65
    v_and_b32 v75, s44, v65
    v_lshlrev_b32 v76, 16, v66
    v_and_b32 v77, s44, v66
    v_lshlrev_b32 v78, 16, v67
    v_and_b32 v79, s44, v67
    s_waitcnt vmcnt(0)
    v_max3_u32 v4, v4, v67, v68
    v_max3_u32 v5, v69, v70, v71
    v_max_u32 v4, v4, v5
    v_cmp_eq_u32 vcc, -1, v4
    s_cbranch_scc1 L_fin
    {"s_cbranch_vccnz L_poll2" if O.sl2 == 0 else f"s_cbranch_vccz L_fin"}
    {"" if O.sl2 == 0 else f"s_sleep {O.sl2}"}
    {"" if O.sl2 == 0 else "s_branch L_poll2"}
    L_fin:
    v_lshlrev_b32 v80, 16, v68
    v_and_b32 v81, s44, v68
    v_lshlrev_b32 v82, 16, v69
    v_and_b32 v83, s44, v69
    v_lshlrev_b32 v84, 16, v70
    v_and_b32 v85, s44, v70
    v_lshlrev_b32 v86, 16, v71
    v_and_b32 v87, s44, v71
    v_pk_add_f32 v[72:73], v[72:73], v[80:81]
    v_pk_add_f32 v[76:77], v[76:77], v[84:85]
    v_pk_add_f32 v[74:75], v[74:75], v[82:83]
    v_pk_add_f32 v[78:79], v[78:79], v[86:87]
    s_nop 0
    v_permlane32_swap_b32 v72, v76
    v_permlane32_swap_b32 v73, v77
    v_permlane32_swap_b32 v74, v78
    v_permlane32_swap_b32 v75, v79
    v_pk_add_f32 v[72:73], v[72:73], v[76:77]
    v_pk_add_f32 v[74:75], v[74:75], v[78:79]
    s_nop 1
    v_permlane16_swap_b32 v72, v74
    v_permlane16_swap_b32 v73, v75
    s_nop 0
    v_pk_add_f32 v[72:73], v[72:73], v[74:75]
    v_cvt_pk_bf16_f32 v64, v72, v73
    buffer_store_dword v64, v7, {rs(R_OUT)}, 0 offen
    {"s_waitcnt vmcnt(0)" if (O.stamp and O.endwait) else ""}
    """)
    if "npoll" in PTS:
        i = PTS["npoll"]
        a(f"s_waitcnt lgkmcnt(0)\ns_mul_i32 s{64+2*i}, s80, 100\ns_add_u32 s{64+2*i}, s{64+2*i}, s64")
    stamp_flush(a)
    a("L_end:")
    a("s_endpgm")
    a(f"""
    L_pz_wait:
    s_sleep 4
    buffer_load_dword v9, v18, {rs(R_WS)}, 0 offen sc1
    s_add_u32 s80, s80, 1
    s_cmp_ge_u32 s80, {SPIN}
    s_waitcnt vmcnt(0)
    v_cmp_ne_u32 vcc, v5, v9
    s_cbranch_scc1 L_pz_out
    s_cbranch_vccnz L_pz_wait
    L_pz_out:
    s_mov_b32 s80, {1000 if O.stamp else 0}
    s_branch L_pz_ok
    """)
    a("L_front_go_on:")
    if O.prio & 2: a("s_setprio 1")
    later = lines(f"""
    v_add_u32 v17, 49152, v16
    v_add_u32 v24, 49152, v20
    v_add_u32 v25, 49152, v21
    v_add_u32 v26, 49152, v22
    v_add_u32 v27, 49152, v23
    v_lshrrev_b32 v6, 1, v1
    s_lshl_b32 s54, s52, 1
    v_add_u32 v6, s54, v6
    v_lshlrev_b32 v6, 3, v6
    v_bfe_u32 v7, v2, 4, 1
    s_lshl_b32 s54, s47, 2
    v_add3_u32 v6, v6, v7, s54
    v_lshlrev_b32 v6, 10, v6
    v_and_b32 v7, 1, v1
    v_lshl_add_u32 v7, v7, 1, v5
    v_lshl_add_u32 v6, v7, 8, v6
    v_and_b32 v7, 15, v2
    v_lshl_add_u32 v14, v7, 4, v6
    v_add_u32 v14, {HA_OFF}, v14
    s_lshl_b32 s54, s48, 1
    s_add_u32 s54, s54, s47
    s_lshl_b32 s54, s54, 7
    s_lshr_b32 s57, s49, 1
    s_lshl_b32 s57, s57, 4
    s_add_u32 s54, s54, s57
    s_add_u32 s54, s54, {FA_OFF}
    v_lshl_add_u32 v15, v1, 2, s54
    s_mov_b32 s44, 0xbfb8aa3b
    s_mov_b32 s45, 0xbfb8aa3b
    {"" if O.own else f"v_mov_b32 v5, {SY_LDS + 32}"}
    s_mov_b32 s90, 1
    """ + P1_ROLE + FRONT_SETUP)
    if not O.fdef:
        a("s_waitcnt lgkmcnt(0)")
        if O.own: nonce1(a, False)
        for x in later: a(x)
        later = []
    ACC = [32, 48]
    def reads(c, s):
        slot = c % 4
        rng, so = slot // 2, (slot % 2) * 24576
        b = 12*s
        return [f"ds_read_b64_tr_b16 a[{b}:{b+1}], v{16+rng} offset:{so + 2048*s}",
                f"ds_read_b64_tr_b16 a[{b+2}:{b+3}], v{16+rng} offset:{so + 2048*s + 512}",
                f"ds_read_b128 a[{b+4}:{b+7}], v{20+4*rng+s} offset:{so}",
                f"ds_read_b128 a[{b+8}:{b+11}], v{20+4*rng+s} offset:{so + 4096}"]
    def mfma(c, s, mi):
        b = 12*s
        cin = "0" if (c == 0 and s == 0 and not O.roll) else vr(ACC[mi], 16)
        return f"v_mfma_f32_32x32x16_bf16 {vr(ACC[mi],16)}, {ar(b,4)}, {ar(b+4+4*mi,4)}, {cin}"
    if O.roll:
        assert not later
        for r in range(32): a(f"v_mov_b32 v{32+r}, 0")
        a("s_mov_b32 s81, 0")
    stamp(a, "fr")
    a("s_barrier")
    stamp(a, "c0")
    for s in range(3):
        for r in reads(0, s): a(r)
    for c in ([0, 1, 2, 3, 12, 13, 14] if O.roll else range(15)):
        if O.roll and c == 0: a("L_mm_loop:")
        if O.roll and c == 12:
            a("""
            s_add_u32 s81, s81, 1
            s_cmp_lt_u32 s81, 3
            s_cbranch_scc1 L_mm_loop
            """)
        now, later = later[:O.fdef], later[O.fdef:]
        for s in range(3):
            a(f"s_waitcnt lgkmcnt({[8,8,4][s]})")
            for mi in range(2):
                a(mfma(c, s, mi))
                if s == 0:
                    for r in reads(c, 3)[2*mi:2*mi+2]: a(r)
                else:
                    k = -(-len(now) // (4 - 2*(s-1) - mi))
                    for x in now[:k]: a(x)
                    now = now[k:]
        if c == O.vtc and O.vt:
            a(f"""
            s_cmp_lg_u32 s53, 2
            s_cbranch_scc1 L_novt
            v_mov_b32 v6, 0
            {f"buffer_load_dword v31, v29, {rs(R_WS)}, 0 offen" if O.vt & 1 else ""}
            {"global_load_dword v31, v6, s[12:13]" if O.vt & 2 else ""}
            L_novt:
            """)
        if O.own:
            if c == O.f2: nonce2(a, 12)
            if c == O.f3:
                a("s_waitcnt vmcnt(0)")
                nonce3(a, 12, False)
                a("v_xor_b32 v3, s86, v12")
        elif c == O.n3 + (1 if O.roll else 3): a("ds_read_b32 v12, v5")
        if c == O.n3 + (2 if O.roll else 4) and not O.own:
            assert not later
            a("v_xor_b32 v3, s86, v12")
        a("s_waitcnt lgkmcnt(0)")
        a("s_barrier")
        if not (O.roll and c < 12): stamp(a, f"c{c+1}")
        rr = [r for s in range(3) for r in reads(c + 1, s)]
        for r in rr[:4]: a(r)
        a(mfma(c, 3, 0))
        for r in rr[4:8]: a(r)
        a(mfma(c, 3, 1))
        for r in rr[8:]: a(r)
    a.c("last chunk: the first 32 rows finish first, their epilogue overlaps the MFMAs of the other 32")
    c = 15
    a("s_waitcnt lgkmcnt(8)")
    a(mfma(c, 0, 0))
    for r in reads(c, 3): a(r)
    a("s_waitcnt lgkmcnt(8)")
    a(mfma(c, 1, 0))
    a("s_waitcnt lgkmcnt(4)")
    a(mfma(c, 2, 0))
    a("s_waitcnt lgkmcnt(0)")
    a(mfma(c, 3, 0))
    a(mfma(c, 0, 1))
    a("s_nop 7\ns_nop 2")
    def epi(mi):
        A = ACC[mi]; t = 64 + 16*mi
        o = []
        if O.epi:
            pk = O.epi == 1
            def mul2(d, x, y): return [f"v_pk_mul_f32 v[{d}:{d+1}], v[{x}:{x+1}], v[{y}:{y+1}]"] if pk else [f"v_mul_f32 v{d}, v{x}, v{y}", f"v_mul_f32 v{d+1}, v{x+1}, v{y+1}"]
            def scl2(d, x): return [f"v_pk_mul_f32 v[{d}:{d+1}], v[{x}:{x+1}], s[44:45]"] if pk else [f"v_mul_f32 v{d}, s44, v{x}", f"v_mul_f32 v{d+1}, s44, v{x+1}"]
            def add2(d): return [f"v_pk_add_f32 v[{d}:{d+1}], v[{d}:{d+1}], 1.0 op_sel_hi:[1,0]"] if pk else [f"v_add_f32 v{d}, 1.0, v{d}", f"v_add_f32 v{d+1}, 1.0, v{d+1}"]
            ex = lambda r: f"v_exp_f32 v{t+r}, v{t+r}"
            rc = lambda r: f"v_rcp_f32 v{t+r}, v{t+r}"
            o += scl2(t, A) + scl2(t+2, A+2)
            o += [ex(0)] + scl2(t+4, A+4) + [ex(1)] + scl2(t+6, A+6)
            o += [ex(2)] + mul2(t+8, A, A+8) + [ex(3)] + add2(t)
            o += [ex(4)] + mul2(t+10, A+2, A+10) + [ex(5)] + add2(t+2)
            o += [ex(6)] + mul2(t+12, A+4, A+12) + [ex(7)] + add2(t+4)
            o += [rc(0)] + mul2(t+14, A+6, A+14) + [rc(1)] + add2(t+6)
            o += [rc(2)] + mul2(t, t, t+8) + [rc(3), rc(4), f"v_cvt_pk_bf16_f32 v{4+4*mi}, v{t}, v{t+1}", rc(5)] + mul2(t+2, t+2, t+10)
            o += [rc(6)] + mul2(t+4, t+4, t+12) + [rc(7), f"v_cvt_pk_bf16_f32 v{5+4*mi}, v{t+2}, v{t+3}"] + mul2(t+6, t+6, t+14)
            o += [f"v_cvt_pk_bf16_f32 v{6+4*mi}, v{t+4}, v{t+5}", f"v_cvt_pk_bf16_f32 v{7+4*mi}, v{t+6}, v{t+7}"]
            o.append(f"buffer_store_dwordx4 v[{4+4*mi}:{7+4*mi}], v14, {rs(R_WS)}, 0 offen offset:{2048*mi}")
            return o
        for r in range(0, 8, 2):
            o.append(f"v_pk_mul_f32 v[{t+r}:{t+r+1}], v[{A+r}:{A+r+1}], s[44:45]")
        for r in range(8):
            o.append(f"v_exp_f32 v{t+r}, v{t+r}")
        for r in range(0, 8, 2):
            o.append(f"v_pk_add_f32 v[{t+r}:{t+r+1}], v[{t+r}:{t+r+1}], 1.0 op_sel_hi:[1,0]")
        for r in range(8):
            o.append(f"v_rcp_f32 v{t+r}, v{t+r}")
        for r in range(0, 8, 2):
            o.append(f"v_pk_mul_f32 v[{t+r}:{t+r+1}], v[{t+r}:{t+r+1}], v[{A+r}:{A+r+1}]")
        for r in range(0, 8, 2):
            o.append(f"v_pk_mul_f32 v[{t+r}:{t+r+1}], v[{t+r}:{t+r+1}], v[{A+8+r}:{A+9+r}]")
        for d in range(4):
            o.append(f"v_cvt_pk_bf16_f32 v{4+4*mi+d}, v{t+2*d}, v{t+2*d+1}")
        o.append(f"buffer_store_dwordx4 v[{4+4*mi}:{7+4*mi}], v14, {rs(R_WS)}, 0 offen offset:{2048*mi}")
        return o
    for i, x in enumerate(epi(0)):
        if i == 0: a(mfma(c, 1, 1))
        if i == 5: a(mfma(c, 2, 1))
        if i == 8: a(mfma(c, 3, 1))
        a(x)
    for x in epi(1): a(x)
    stamp(a, "hst")
    a(f"""
    s_waitcnt vmcnt(0)
    buffer_store_dword v3, v15, {rs(R_WS)}, 0 offen
    """)
    stamp(a, "flg")
    a(f"""
    L_hload:
    s_mov_b32 s80, 0
    s_cmp_lg_u32 s53, 0
    s_cbranch_scc1 L_poll1
    v_and_b32 v22, 7, v2
    v_lshl_add_u32 v22, v22, 7, s91
    L_pz0:
    buffer_load_dword v21, v22, {rs(R_WS)}, 0 offen sc1
    buffer_load_dword v20, v18, {rs(R_WS)}, 0 offen sc1
    s_add_u32 s80, s80, 1
    s_cmp_ge_u32 s80, {O.kfast}
    s_waitcnt vmcnt(0)
    v_cmp_ne_u32 vcc, v12, v21
    s_cbranch_vccz L_pz0_ok
    s_cbranch_scc1 L_poll1
    v_cmp_ne_u32 vcc, v3, v20
    s_cbranch_vccz L_go
    s_sleep 2
    s_branch L_pz0
    L_pz0_ok:
    """)
    if O.pzdma:
        a.c("hand the news to the back waves: copy one of the flags into LDS, ahead of the first rows of h")
        a(f"""
        v_cmp_ne_u32 vcc, v3, v20
        s_mov_b32 m0, {SY_LDS + 36}
        s_mov_b64 exec, 1
        buffer_load_dword v22, {rs(R_WS)}, 0 offen sc1 lds
        s_mov_b64 exec, -1
        """)
    else:
        a(f"""
        v_mov_b32 v21, {SY_LDS + 36}
        v_cmp_ne_u32 vcc, v3, v20
        ds_write_b32 v21, v12
        s_waitcnt lgkmcnt(0)
        """)
    a(f"""
    s_cbranch_vccz L_go
    L_poll1:
    buffer_load_dword v20, v18, {rs(R_WS)}, 0 offen sc1
    s_add_u32 s80, s80, 1
    s_cmp_ge_u32 s80, {O.kfast}
    s_cbranch_scc1 L_slow
    s_waitcnt vmcnt(0)
    v_cmp_ne_u32 vcc, v3, v20
    s_cbranch_vccz L_go
    {f"s_sleep {O.sl1}" if O.sl1 else ""}
    s_branch L_poll1
    L_go:
    """)
    stamp(a, "go")
    def hload(s):
        a(f"s_add_u32 m0, s55, {s*4096}")
        a(f"s_add_u32 s57, s{82 if s < 7 else 83}, {s*8192}")
        a(f"buffer_load_dwordx4 v19, {rs(R_WS)}, s57 offen sc1 lds")
    def hloop(lead):
        hl = 0
        while hl < lead:
            hload(hl); hl += 1
        for gi, g in enumerate(groups):
            a(f"s_waitcnt vmcnt({hl - 1 - g[-1]})")
            a("s_barrier")
            for _ in range(len(groups[min(gi + 1, len(groups) - 1)])):
                if hl < 14 and hl < lead + g[-1] + len(groups[min(gi + 1, len(groups) - 1)]) + 1:
                    hload(hl); hl += 1
    hloop(O.hlead)
    stamp_flush(a)
    a.c("a producer publishes the write-through copy of h unless its whole group is seen on this die")
    a(f"""
    s_cmp_eq_u32 s90, 0
    s_cbranch_scc1 L_nob
    buffer_load_dword v20, v29, {rs(R_WS)}, 0 offen sc1
    s_waitcnt vmcnt(0)
    v_cmp_ne_u32 vcc, v3, v20
    s_cbranch_vccz L_nob
    """)
    sendb(a)
    a("L_nob:")
    if O.upd == 1: update(a, "L_front_end")
    a("s_endpgm")
    a.c("the producers are not all on this die (or are very late): fall back to the write-through copies")
    a("""
    L_slow:
    s_cmp_eq_u32 s90, 0
    s_cbranch_scc1 L_slow_sent
    """)
    sendb(a)
    a(f"""
    s_mov_b32 s90, 0
    L_slow_sent:
    s_movk_i32 s57, {FB_OFF - FA_OFF}
    s_mov_b32 s80, 0
    L_slow_poll:
    buffer_load_dword v20, v18, {rs(R_WS)}, 0 offen sc1
    buffer_load_dword v21, v18, {rs(R_WS)}, s57 offen sc1
    s_add_u32 s80, s80, 1
    s_waitcnt vmcnt(0)
    v_cmp_ne_u32 vcc, v3, v20
    s_cbranch_vccz L_go
    v_cmp_ne_u32 vcc, v12, v21
    s_cbranch_vccz L_slow_b
    s_sleep 8
    s_cmp_lt_u32 s80, {SPIN}
    s_cbranch_scc1 L_slow_poll
    L_slow_b:
    s_add_u32 s82, s82, {HB_OFF - HA_OFF}
    s_add_u32 s83, s83, {HB_OFF - HA_OFF}
    s_branch L_go
    """)
    a("L_code_end:")
    return a

if __name__ == "__main__":
    opts(sys.argv[2:])
    a = gen()
    hdr = HEADER + NOTES + f"; @launch grid=(256,1,1) block=(512,1,1) lds={LDS}\n.amdgcn_target \"amdgcn-amd-amdhsa--gfx950\"\n"
    open(sys.argv[1], "w").write(hdr + a.text() + kdesc(KN, NV + NA, NV))
```

```python
import os, sys
from asmlib import *

KN = "standalone__swiglu_ffn__sampling_kernel"
X_B, W_B, OUT_B, WS_B = 128*1024*2, 1024*3584*2, 128*1024*2, 268435456
FA_OFF = 0
FB_OFF = FA_OFF + 4096
EP_OFF = FA_OFF + 8192
RG_OFF = FA_OFF + 12288
PZ_OFF = FA_OFF + 16384
HA_OFF = 65536
P_OFF = 1 << 20
HB_OFF = (3 << 20) + HA_OFF
ST_OFF = 8 << 20
R_X, R_G, R_U, R_D, R_WS, R_OUT = 20, 24, 28, 32, 36, 40
WD_LDS = 98304
SY_LDS = WD_LDS + 57344
LDS = SY_LDS + 64
SPIN = int(os.environ.get("DIAG_SPIN", 1 << 18))
NV, NA = 96, 160

class O:
    stamp = 0; sync = 1; sw = 4; endwait = 1
    kfast = 64; sl1 = 0; sl2 = 0
    xg = 4; xlead = 2; r2 = 8; r3 = 13; hold = 6; wdk = 3; touch = 1; npf0 = 3
    wd13 = 3; wd14 = 5; hlead = 5; fine = 3
    NP = 12; N1 = 6; cap = 3; slk = 1
    fdef = 0; bdef = 0; cp0 = 1; cp1 = 0; roll = 0; upd = 0; own = 1; f2 = 6; f3 = 11; mark = 0; epi = 0; pzdma = 0; lag = 1; rfirst = 0; xafter = 0; vt = 0; dfl = 0; dord = 0; pfl = 0; prio = 0; vtc = 7; n2 = 5; n3 = 9
PTS = {}
def opts(argv):
    for x in argv:
        k, v = x.split("=")
        if k == "pts":
            PTS.clear(); PTS["start"] = 0
            for i, nm in enumerate(v.split(",")): PTS[nm] = i + 1
            O.stamp = 1
        else:
            assert hasattr(O, k), k
            setattr(O, k, int(v))
def rs(r): return f"s[{r}:{r+3}]"
def stamp(a, name):
    if O.stamp and name in PTS:
        idx = PTS[name]
        a(f"s_memrealtime s[{64+2*idx}:{65+2*idx}]")
_fl = [0]
def stamp_flush(a):
    if not O.stamp: return
    _fl[0] += 1
    L = f"L_sf{_fl[0]}"
    a(f"""
    s_memrealtime s[78:79]
    s_cmp_lg_u32 s53, {O.sw}
    s_cbranch_scc1 {L}
    s_waitcnt lgkmcnt(0)
    """)
    for i in range(8):
        a(f"v_mov_b32 v{80+i}, s{64+2*i}")
    a(f"""
    s_lshl_b32 s63, s2, 5
    s_add_u32 s63, s63, {ST_OFF}
    v_mov_b32 v88, s63
    s_mov_b64 exec, 1
    buffer_store_dwordx4 v[80:83], v88, {rs(R_WS)}, 0 offen
    buffer_store_dwordx4 v[84:87], v88, {rs(R_WS)}, 0 offen offset:16
    s_mov_b64 exec, -1
    {L}:
    """)
def lines(txt):
    return [x.strip() for x in txt.split("\n") if x.strip()]

def pf_role(a, tag):
    a(f"""
    s_mov_b32 s50, 1
    s_cmp_ge_u32 s52, 3
    s_addc_u32 s51, s52, 0
    s_cmp_ge_u32 s52, 10
    s_addc_u32 s51, s51, 0
    s_mov_b32 s46, 0
    s_cmp_ge_u32 s52, 14
    s_cbranch_scc0 L_pf_role_{tag}
    s_and_b32 s50, s52, 1
    s_mul_i32 s46, s50, 7
    s_cmp_ge_u32 s52, 16
    s_cselect_b32 s51, 11, 3
    L_pf_role_{tag}:
    """)
P1_ROLE = """
    s_mov_b32 s50, 0
    s_cmp_ge_u32 s49, 3
    s_addc_u32 s51, s49, 0
    s_cmp_ge_u32 s49, 10
    s_addc_u32 s51, s51, 0
    s_mov_b32 s46, 0
"""
FRONT_SETUP = f"""
    s_getreg_b32 s86, hwreg(HW_REG_XCC_ID, 0, 4)
    s_lshl_b32 s86, s86, 24
    s_lshl_b32 s55, s53, 10
    s_lshl_b32 s82, s46, 13
    s_sub_u32 s83, 0, s82
    s_mul_i32 s54, s48, 112
    s_lshl_b32 s57, s50, 2
    s_add_u32 s54, s54, s57
    v_add_u32 v6, s54, v1
    v_lshlrev_b32 v6, 10, v6
    v_lshl_add_u32 v19, v2, 4, v6
    v_add_u32 v19, {HA_OFF}, v19
    s_lshl_b32 s54, s48, 1
    s_add_u32 s54, s54, s50
    s_lshl_b32 s54, s54, 7
    s_add_u32 s54, s54, {FA_OFF}
    v_min_u32 v6, 27, v2
    v_lshl_add_u32 v18, v6, 2, s54
    s_lshl_b32 s54, s48, 7
    s_add_u32 s54, s54, {RG_OFF}
    v_and_b32 v6, 31, v2
    v_lshl_add_u32 v29, v6, 2, s54
    v_and_b32 v7, 1, v6
    v_lshlrev_b32 v7, 7, v7
    v_lshrrev_b32 v8, 1, v6
    v_lshl_add_u32 v7, v8, 4, v7
    v_cmp_gt_u32 vcc, 14, v6
    s_lshl_b32 s54, s48, 8
    s_add_u32 s54, s54, {FA_OFF}
    v_add_u32 v7, s54, v7
    v_cndmask_b32 v29, v29, v7, vcc
    s_cmp_lt_u32 s49, 14
    s_cselect_b32 s54, 14, 0
    s_add_u32 s54, s54, s49
    s_lshl_b32 s54, s54, 10
    s_add_u32 s91, s54, {PZ_OFF}
    s_mov_b32 s38, {WS_B}
    s_mov_b32 s39, 0x20000
    s_mov_b64 s[36:37], s[16:17]
"""
def back_setup():
    p = [f"""
    s_mov_b64 s[32:33], s[10:11]
    s_mov_b32 s34, {W_B}
    s_mov_b32 s35, 0x20000
    s_mov_b64 s[36:37], s[16:17]
    s_mov_b32 s38, {WS_B}
    s_mov_b32 s39, 0x20000
    s_mov_b64 s[40:41], s[12:13]
    s_mov_b32 s42, {OUT_B}
    s_mov_b32 s43, 0x20000
    s_and_b32 s55, s53, 3
    s_lshl_b32 s55, s55, 10
    s_lshl_b32 s84, s46, 16
    s_sub_u32 s85, 0, s84
    {"s_getpc_b64 s[92:93]" if O.mark else ""}
    {"s_lshr_b32 s81, s55, 8" if O.mark else ""}
    {f"s_add_u32 s81, s81, {SY_LDS}" if O.mark else ""}
    """, f"""
    v_lshrrev_b32 v3, 3, v2
    v_and_b32 v4, 7, v2
    v_and_b32 v6, 6, v3
    v_xor_b32 v4, v4, v6
    v_lshl_add_u32 v3, v1, 3, v3
    s_mul_i32 s60, s48, 448
    v_add_u32 v3, s60, v3
    v_lshlrev_b32 v3, 11, v3
    s_lshl_b32 s60, s51, 7
    v_add_u32 v3, s60, v3
    v_lshl_add_u32 v17, v4, 4, v3
    v_lshlrev_b32 v3, 10, v1
    v_lshl_add_u32 v19, v2, 4, v3
    """, f"""
    v_lshrrev_b32 v3, 4, v2
    v_bfe_u32 v4, v2, 2, 2
    v_and_b32 v7, 1, v3
    v_lshrrev_b32 v6, 1, v3
    v_lshlrev_b32 v6, 4, v6
    v_lshl_add_u32 v6, v7, 2, v6
    v_add_u32 v6, v6, v4
    v_lshlrev_b32 v6, 7, v6
    v_and_b32 v8, 3, v2
    v_lshl_add_u32 v6, v8, 3, v6
    v_add_u32 v6, {WD_LDS}, v6
    v_lshrrev_b32 v4, 1, v4
    v_lshl_add_u32 v4, v7, 1, v4
    """, "\n".join(f"v_xor_b32 v7, {t}, v4\nv_lshl_add_u32 v{20+t}, v7, 5, v6" for t in range(4)), f"""
    v_bfe_u32 v4, v2, 3, 1
    v_lshl_add_u32 v6, v1, 1, v4
    s_lshl_b32 s60, s49, 3
    v_add_u32 v6, s60, v6
    v_lshlrev_b32 v6, 3, v6
    v_add_u32 v6, s48, v6
    v_lshlrev_b32 v6, 10, v6
    v_lshl_add_u32 v6, v3, 7, v6
    v_and_b32 v7, 7, v2
    v_lshl_add_u32 v6, v7, 4, v6
    v_add_u32 v8, {P_OFF}, v6
    """, f"""
    s_cmp_lt_u32 s49, 14
    s_cselect_b32 s61, 14*8, 0
    s_add_u32 s61, s61, s60
    s_lshl_b32 s61, s61, 7
    s_add_u32 s61, s61, {PZ_OFF}
    v_lshl_add_u32 v18, v7, 7, s61
    s_add_u32 s60, s60, s48
    s_lshl_b32 s60, s60, 13
    s_add_u32 s60, s60, {P_OFF}
    v_and_b32 v6, 15, v2
    v_lshl_add_u32 v6, v1, 4, v6
    v_lshlrev_b32 v6, 4, v6
    v_lshl_add_u32 v6, v3, 11, v6
    v_add_u32 v6, s60, v6
    """, f"""
    s_lshl_b32 s60, s50, 6
    s_lshl_b32 s61, s48, 3
    s_add_u32 s60, s60, s61
    v_add_u32 v7, s60, v7
    v_lshlrev_b32 v7, 11, v7
    v_lshl_add_u32 v7, v4, 3, v7
    v_and_b32 v4, 1, v1
    v_lshl_add_u32 v7, v4, 4, v7
    v_lshrrev_b32 v4, 1, v1
    v_lshl_add_u32 v7, v4, 6, v7
    v_and_b32 v4, 1, v3
    v_lshl_add_u32 v7, v4, 2, v7
    v_lshrrev_b32 v4, 1, v3
    v_lshl_add_u32 v7, v4, 5, v7
    s_lshl_b32 s60, s51, 7
    v_add_u32 v7, s60, v7
    """]
    return p
LDS_INIT = f"""
    v_mov_b32 v16, {SY_LDS}
    v_lshl_add_u32 v14, v1, 2, v16
    v_mov_b32 v9, 0
    ds_write_b32 v14, v9
    ds_write_b32 v14, v9 offset:16
    ds_write_b32 v16, v9 offset:36
    v_mov_b32 v15, -1
"""
def nonce1(a, line):
    a(f"""
    s_movk_i32 s88, {EP_OFF}
    s_load_dword s59, s[16:17], s88
    s_load_dword s87, s[14:15], 0
    """)
    if line:
        a(f"""
        s_lshl_b32 s88, s48, 7
        s_add_u32 s88, s88, {RG_OFF}
        s_load_dword s87, s[16:17], s88
        s_add_u32 s89, s88, 64
        s_load_dword s87, s[16:17], s89
        """)
def nonce2(a, vn):
    a(f"""
    v_mov_b32 v30, 0
    s_add_u32 s59, s59, 1
    s_bitset1_b32 s59, 31
    global_load_dword v{vn}, v30, s[14:15] sc1
    """)
def nonce3(a, vn, share=True):
    a(f"""
    v_cmp_eq_u32 vcc, 0, v{vn}
    v_mov_b32 v30, s59
    {f"v_mov_b32 v28, {SY_LDS + 32}" if share else "s_nop 0"}
    v_cndmask_b32 v{vn}, v{vn}, v30, vcc
    {f"ds_write_b32 v28, v{vn}" if share else ""}
    """)
def wd_list():
    L = [f"s_add_u32 m0, s55, {WD_LDS + s*4096}\ns_add_u32 s57, s{84 if s < 7 else 85}, {s*65536}\nbuffer_load_dwordx4 v17, {rs(R_D)}, s57 offen lds" for s in range(14)]
    if O.mark:
        for k, n in enumerate([O.N1] + ([O.NP] if O.NP > O.N1 else [])):
            L[n - 1] += f"\ns_add_u32 m0, s81, {16*k}\ns_mov_b64 exec, 1\nglobal_load_lds_dword v9, s[92:93]\ns_mov_b64 exec, -1"
    return L
def sendb(a):
    a(f"""
    s_mov_b32 s57, {HB_OFF - HA_OFF}
    s_movk_i32 s58, {FB_OFF - FA_OFF}
    buffer_store_dwordx4 v[4:7], v14, {rs(R_WS)}, s57 offen sc1
    buffer_store_dwordx4 v[8:11], v14, {rs(R_WS)}, s57 offen offset:2048 sc1
    s_waitcnt vmcnt(0)
    buffer_store_dword v12, v15, {rs(R_WS)}, s58 offen sc1
    """)

def update(a, done):
    a.c("one wave of the launch moves the epoch on: d_debug first, so that a late reader can tell")
    a(f"""
    s_lshl_b32 s54, s2, 3
    s_add_u32 s54, s54, s53
    s_cmp_eq_u32 s54, {255*8 + 3}
    s_cbranch_scc0 {done}
    v_mov_b32 v26, 0
    v_mov_b32 v27, {EP_OFF}
    s_mov_b64 exec, 1
    global_store_dword v26, v12, s[14:15] sc1
    s_waitcnt vmcnt(0)
    global_store_dword v27, v12, s[16:17] sc1
    s_mov_b64 exec, -1
    {done}:
    """)

NOTES = """;
"""

def gen():
    a = Asm()
    kstart(a, KN)
    if O.stamp and O.sync:
        a("""
        s_memrealtime s[44:45]
        s_waitcnt lgkmcnt(0)
        s_add_u32 s46, s44, 612
        s_and_b32 s46, s46, 0xfffffe00
        L_sync:
        s_memrealtime s[44:45]
        s_waitcnt lgkmcnt(0)
        s_sub_u32 s47, s44, s46
        s_cmp_lt_i32 s47, 0
        s_cbranch_scc1 L_sync
        """)
    stamp(a, "start")
    a(f"""
    s_load_dwordx8 s[4:11], s[0:1], 0
    s_load_dwordx4 s[12:15], s[0:1], 32
    s_load_dwordx2 s[16:17], s[0:1], 48
    v_lshrrev_b32 v1, 6, v0         ; wave
    s_cmp_ge_u32 s2, 256
    s_cbranch_scc1 L_end
    v_readfirstlane_b32 s53, v1
    s_and_b32 s48, s2, 7            ; j
    s_lshr_b32 s49, s2, 3           ; q
    v_and_b32 v2, 63, v0            ; lane
    s_mov_b32 s22, {X_B}
    s_mov_b32 s23, 0x20000
    s_mov_b32 s26, {W_B}
    s_mov_b32 s27, 0x20000
    """)
    if O.cp0:
        a.c("wave 1 of every workgroup brings four lines of the kernel's code into this die's L2")
        a(f"""
        s_cmp_eq_u32 s53, 1
        s_cbranch_scc0 L_nocp
        s_getpc_b64 s[44:45]
        L_pc:
        v_and_b32 v3, 3, v2
        v_lshl_add_u32 v3, s49, 2, v3
        v_min_u32 v3, (L_code_end-L_pc-4)/128, v3
        v_lshlrev_b32 v3, 7, v3
        global_load_dword v31, v3, s[44:45]
        L_nocp:
        """)
    a(f"""
    s_cmp_lt_u32 s49, 14
    s_cbranch_scc1 L_p1
    s_sub_u32 s52, s49, 14          ; p
    s_cmp_lg_u32 s53, 0
    s_cbranch_scc1 L_pf_other
    """)
    a.c("prefetch wave: per 64-row chunk 50 lines of Wg (odd p) or Wu (even p), and 8 rows of x")
    a(f"""
    s_lshr_b32 s54, s52, 1
    s_mul_i32 s54, s54, 50
    v_add_u32 v3, s54, v2
    v_mul_u32_u24 v5, 9363, v3
    v_lshrrev_b32 v5, 16, v5        ; row = i / 7
    v_mul_u32_u24 v6, 7, v5
    v_sub_u32 v6, v3, v6            ; column = i % 7
    v_mul_u32_u24 v5, 7168, v5
    v_lshl_add_u32 v5, v6, 7, v5
    s_mul_i32 s54, s48, 896
    v_add_u32 v5, s54, v5
    v_cmp_gt_u32 vcc, 50, v2
    s_movk_i32 s54, 448
    v_cmp_gt_u32 s[44:45], s54, v3
    v_bfrev_b32 v7, 2
    s_lshl_b32 s54, s52, 3
    s_and_b64 vcc, vcc, s[44:45]
    v_lshrrev_b32 v3, {O.xg.bit_length() - 1}, v2
    v_add_u32 v3, s54, v3
    v_lshlrev_b32 v6, 11, v3
    v_and_b32 v3, {O.xg - 1}, v2
    v_lshl_add_u32 v6, v3, 7, v6
    v_cndmask_b32 v10, v7, v5, vcc
    v_cmp_gt_u32 vcc, {8 * O.xg}, v2
    s_bitcmp1_b32 s52, 0
    s_nop 0
    v_cndmask_b32 v11, v7, v6, vcc  ; rows >= 128 fall out of range
    s_waitcnt lgkmcnt(0)
    s_cselect_b64 s[24:25], s[6:7], s[8:9]
    s_mov_b64 s[20:21], s[4:5]
    """)
    stamp(a, "karg")
    npf = [0]
    def pf(c):
        if O.xafter and c == 0:
            a(f"buffer_load_dword v20, v10, {rs(R_G)}, 0 offen"); npf[0] += 1
            a(f"buffer_load_dword v22, v11, {rs(R_X)}, 0 offen"); npf[0] += 1
            return
        for g_ in range(16 // O.xg):
            if max(0, g_ * O.xg - O.xlead) == c:
                so = "0"
                if g_:
                    a(f"s_movk_i32 s58, {g_ * O.xg * 128}"); so = "s58"
                a(f"buffer_load_dword v22, v11, {rs(R_X)}, {so} offen"); npf[0] += 1
        so = "0"
        if c:
            a(f"s_mov_b32 s57, {c*64*7168}"); so = "s57"
        a(f"buffer_load_dword v20, v10, {rs(R_G)}, {so} offen {['', 'sc1', 'sc0', 'sc0 sc1'][O.pfl]}"); npf[0] += 1
    for c in range(O.npf0): pf(c)
    a("s_branch L_pf_go_on")
    a(f"""
    L_p1:
    s_and_b32 s47, s49, 1
    s_lshr_b32 s52, s49, 1
    s_mul_i32 s54, s48, 7
    s_add_u32 s52, s52, s54
    s_cmp_lt_u32 s53, 4
    s_cbranch_scc1 L_front
    v_and_b32 v1, 3, v1
    s_lshl_b32 s54, s52, 7
    v_lshrrev_b32 v3, 3, v2
    v_and_b32 v4, 7, v2
    v_lshl_add_u32 v5, v1, 4, v3
    v_mul_u32_u24 v6, 7168, v5
    v_add_u32 v6, s54, v6
    v_and_b32 v7, 2, v3
    v_xor_b32 v7, v7, v4
    v_lshl_add_u32 v10, v7, 4, v6
    v_xor_b32 v11, 64, v10
    v_lshrrev_b32 v7, 1, v3
    v_xor_b32 v7, v7, v4
    s_lshl_b32 s54, s47, 6
    v_add_u32 v5, s54, v5
    v_lshlrev_b32 v5, 11, v5
    v_lshl_add_u32 v12, v7, 4, v5
    v_xor_b32 v13, 64, v12
    v_add_u32 v13, 0x4000, v13
    s_and_b32 s56, s53, 3
    s_lshl_b32 s56, s56, 11
    s_mov_b32 s30, {W_B}
    s_mov_b32 s31, 0x20000
    """)
    a(LDS_INIT)
    a("""
    s_waitcnt lgkmcnt(0)
    s_mov_b64 s[20:21], s[4:5]
    s_mov_b64 s[24:25], s[6:7]
    s_mov_b64 s[28:29], s[8:9]
    """)
    stamp(a, "karg")
    Q = []
    def dma(c):
        sl = (c % 4) * 24576
        L = list(enumerate([(12, R_X, c*128), (13, R_X, c*128), (10, R_G, c*458752), (10, R_G, c*458752+57344), (11, R_U, c*458752), (11, R_U, c*458752+57344)]))
        if O.dord == 1: L = [L[i] for i in (0, 2, 4, 1, 3, 5)]
        if O.dord == 2: L = [L[i] for i in (2, 3, 4, 5, 0, 1)]
        for k, (v, r, so) in L:
            a(f"s_add_u32 m0, s56, {sl + (k//2)*8192 + (k%2)*1024}\ns_mov_b32 s57, {so}\nbuffer_load_dwordx4 v{v}, {rs(r)}, s57 offen {['', 'sc1', 'sc0', 'sc0 sc1'][O.dfl]} lds")
            Q.append(c)
    dma(0)
    stamp(a, "d0")
    a("s_branch L_back_go_on")
    a("L_front:")
    stamp(a, "fin")
    a(f"""
    v_bfe_u32 v4, v2, 4, 1
    v_lshrrev_b32 v5, 5, v2         ; k half
    v_bfe_u32 v6, v2, 2, 2
    v_lshrrev_b32 v7, 1, v6
    v_lshl_add_u32 v7, v4, 1, v7
    v_xor_b32 v7, v7, v1
    v_lshl_add_u32 v6, v5, 3, v6
    v_lshlrev_b32 v6, 7, v6
    v_lshl_add_u32 v6, v7, 5, v6
    v_lshl_add_u32 v6, v4, 13, v6
    v_and_b32 v7, 3, v2
    v_lshl_add_u32 v6, v7, 3, v6
    v_add_u32 v16, 0x2000, v6
    v_and_b32 v6, 31, v2
    v_bfe_u32 v7, v6, 1, 3
    v_xor_b32 v7, v7, v5
    v_lshlrev_b32 v6, 7, v6
    """)
    for s in range(4):
        a(f"v_xor_b32 v8, {2*s}, v7")
        a(f"v_lshl_add_u32 v{20+s}, v8, 4, v6")
    a("s_branch L_front_go_on")

    a("L_pf_go_on:")
    if not O.cp0:
        a(f"""
        s_cmp_lt_u32 s52, 16
        s_cbranch_scc1 L_nocp
        s_getpc_b64 s[44:45]
        L_pc:
        s_sub_u32 s44, s44, L_pc-{KN}
        s_subb_u32 s45, s45, 0
        s_and_b32 s54, s52, 1
        s_lshl_b32 s54, s54, 6
        v_add_u32 v3, s54, v2
        v_min_u32 v3, (L_code_end-{KN}-4)/128, v3
        v_lshlrev_b32 v3, 7, v3
        global_load_dword v23, v3, s[44:45]
        L_nocp:
        """)
    if O.touch:
        a.c("one first touch per workgroup, so that the address translations are there when they are needed")
        a("""
        s_cmp_lt_u32 s52, 14
        s_cselect_b64 s[44:45], s[16:17], s[12:13]
        s_cmp_lt_u32 s52, 12
        s_cselect_b64 s[44:45], s[10:11], s[44:45]
        s_cmp_lt_u32 s52, 8
        s_cselect_b64 s[44:45], s[8:9], s[44:45]
        s_cmp_lt_u32 s52, 4
        s_cselect_b64 s[44:45], s[6:7], s[44:45]
        s_and_b32 s54, s52, 3
        s_lshl_b32 s54, s54, 21
        s_cmp_lt_u32 s52, 14
        s_cselect_b32 s54, s54, 0
        s_load_dword s87, s[44:45], s54
        """)
    nonce1(a, True)
    for c in range(O.npf0, 16):
        if c == O.r2:
            a("""
            s_getreg_b32 s86, hwreg(HW_REG_XCC_ID, 0, 4)
            s_lshl_b32 s86, s86, 24
            s_lshl_b32 s89, s49, 2
            s_add_u32 s88, s88, s89
            v_mov_b32 v31, s88
            s_waitcnt lgkmcnt(0)
            """)
            nonce2(a, 12); mark = npf[0]
        if c == O.r3:
            a(f"s_waitcnt vmcnt({npf[0] - mark})")
            nonce3(a, 12)
            a("v_xor_b32 v30, s86, v12")
            stamp(a, "non")
        pf(c)
    stamp(a, "hia")
    if O.hold >= 0: a(f"s_waitcnt vmcnt({O.hold})")
    stamp(a, "hib")
    a.c("announce this workgroup's die; fill its inbox and that of the paired producer with the not-yet-written pattern;")
    a.c("bring the lines of the h buffer into L2 before they are written")
    a(f"""
    global_store_dword v31, v30, s[16:17]
    s_lshl_b32 s54, s49, 3
    s_add_u32 s54, s54, s48
    s_lshl_b32 s57, s54, 13
    s_add_u32 s57, s57, {P_OFF}
    v_lshl_add_u32 v3, v2, 4, s57
    v_add_u32 v8, 0x1000, v3
    s_lshl_b32 s54, s54, 7
    s_add_u32 s54, s54, {PZ_OFF}
    v_mov_b32 v13, s54
    v_mov_b32 v4, -1
    v_mov_b32 v5, -1
    v_mov_b32 v6, -1
    v_mov_b32 v7, -1
    s_cmp_lt_u32 s52, 14
    """)
    for k in range(8):
        a(f"global_store_dwordx4 v{3 if k < 4 else 8}, v[4:7], s[16:17] offset:{(k % 4)*1024} sc1")
    a(f"""
    s_cbranch_scc0 L_pz_one
    v_subrev_u32 v3, {14*8*8192}, v3
    v_subrev_u32 v8, {14*8*8192}, v8
    """)
    for k in range(8):
        a(f"global_store_dwordx4 v{3 if k < 4 else 8}, v[4:7], s[16:17] offset:{(k % 4)*1024} sc1")
    a(f"""
    L_pz_one:
    s_lshl_b32 s54, s52, 6
    v_add_u32 v3, s54, v2
    v_min_u32 v3, 895, v3
    s_mul_i32 s54, s48, 114688
    s_add_u32 s54, s54, {HA_OFF}
    v_lshl_add_u32 v3, v3, 7, s54
    global_load_dword v24, v3, s[16:17]
    s_waitcnt lgkmcnt(0)
    s_barrier
    s_waitcnt vmcnt(1)
    global_store_dword v13, v12, s[16:17] sc1
    s_barrier
    """)
    stamp(a, "pfi")
    a("s_branch L_pf_front")
    a(f"""
    L_pf_other:
    s_cmp_ge_u32 s53, 4
    s_cbranch_scc1 L_back_pf
    s_waitcnt lgkmcnt(0)
    s_barrier
    s_barrier
    """)
    if O.vt & 2:
        a("""
        s_cmp_eq_u32 s53, 2
        s_cbranch_scc0 L_pf_front
        v_mov_b32 v6, 0
        global_load_dword v31, v6, s[12:13]
        """)
    if O.cp1:
        a.c("touch the code of the later phases again: it is the oldest resident of the L2 by now")
        a(f"""
        s_cmp_eq_u32 s53, 1
        s_cbranch_scc0 L_pf_front
        s_getpc_b64 s[44:45]
        L_pc1:
        v_min_u32 v3, 5, v2
        s_mul_i32 s54, s52, 6
        v_add_u32 v3, s54, v3
        v_min_u32 v3, (L_code_end-L_pc1-4)/128, v3
        v_lshlrev_b32 v3, 7, v3
        global_load_dword v31, v3, s[44:45]
        """)
    a(f"""
    L_pf_front:
    """)
    pf_role(a, "f")
    a(FRONT_SETUP)
    a(f"""
    v_mov_b32 v5, {SY_LDS + 32}
    ds_read_b32 v12, v5
    s_mov_b32 s90, 0
    v_bfrev_b32 v14, 2
    v_bfrev_b32 v15, 2
    s_waitcnt lgkmcnt(0)
    v_xor_b32 v3, s86, v12
    """)
    if O.upd == 0: update(a, "L_upd_done")
    a(f"""
    s_barrier
    s_branch L_hload
    L_back_pf:
    v_and_b32 v1, 3, v1
    """)
    a(LDS_INIT)
    pf_role(a, "b")
    a("s_waitcnt lgkmcnt(0)")
    for p in back_setup(): a(p)
    a("s_barrier")
    wdl = wd_list()
    for i, d in enumerate(wdl):
        if i == O.wdk: a("s_barrier")
        a(d)
    a("ds_read_b32 v5, v16 offset:32")
    a("s_branch L_p2")

    a("L_back_go_on:")
    if O.prio & 1: a("s_setprio 1")
    dma(1)
    stamp(a, "d1")
    nonce1(a, False)
    a(P1_ROLE)
    pieces = back_setup()
    if not O.bdef:
        for p in pieces: a(p)
        pieces = []
    issued, wd, c0 = 3, 0, 0
    if O.roll:
        assert not pieces
        a("s_waitcnt lgkmcnt(0)")
        nonce2(a, 5)
        dma(2)
        a(f"""
        s_movk_i32 s62, {3*128}
        s_mov_b32 s63, {3*458752}
        s_mov_b32 s89, {3*458752 + 57344}
        s_mov_b32 s81, 0
        L_ld_loop:
        """)
        for c in range(4):
            sl = ((c + 3) % 4) * 24576
            a(f"""
            s_waitcnt vmcnt(12)
            s_barrier
            s_add_u32 m0, s56, {sl}
            s_nop 0
            buffer_load_dwordx4 v12, {rs(R_X)}, s62 offen lds
            s_add_u32 m0, s56, {sl + 1024}
            s_nop 0
            buffer_load_dwordx4 v13, {rs(R_X)}, s62 offen lds
            s_add_u32 m0, s56, {sl + 8192}
            s_addk_i32 s62, 128
            buffer_load_dwordx4 v10, {rs(R_G)}, s63 offen lds
            s_add_u32 m0, s56, {sl + 8192 + 1024}
            s_nop 0
            buffer_load_dwordx4 v10, {rs(R_G)}, s89 offen lds
            s_add_u32 m0, s56, {sl + 16384}
            s_nop 0
            buffer_load_dwordx4 v11, {rs(R_U)}, s63 offen lds
            s_add_u32 m0, s56, {sl + 16384 + 1024}
            s_add_u32 s63, s63, 458752
            buffer_load_dwordx4 v11, {rs(R_U)}, s89 offen lds
            s_add_u32 s89, s89, 458752
            """)
        a("""
        s_add_u32 s81, s81, 1
        s_cmp_lt_u32 s81, 3
        s_cbranch_scc1 L_ld_loop
        """)
        for c in range(3, 15): Q.extend([c] * 6)
        Q.insert(0, "n")
        issued, c0 = 15, 12
        O.n2, O.n3 = -1, 12
    else:
        dma(2)
    for c in range(c0, 16):
        stamp(a, f"w{c}")
        a(f"s_waitcnt vmcnt({len(Q) - 1 - max(i for i, t in enumerate(Q) if t == c)})" + (" lgkmcnt(0)" if (c == O.n3 + (1 if O.roll else 2) and not O.own) else ""))
        stamp(a, f"v{c}")
        a("s_barrier")
        stamp(a, f"c{c}")
        if c == O.n3:
            assert Q.index("n") < max(i for i, t in enumerate(Q) if t == c)
            nonce3(a, 5, not O.own)
        if issued < 16:
            dma(issued); issued += 1
        else:
            n = min({13: O.wd13, 14: O.wd14, 15: 14}[c], 14 - wd)
            for d in wdl[wd:wd+n]:
                a(d); Q.extend(["d"] * d.count("_load_"))
            wd += n
        if c == O.n2:
            a("s_waitcnt lgkmcnt(0)")
            nonce2(a, 5); Q.append("n")
        elif pieces and c >= O.bdef: a(pieces.pop(0))
    assert not pieces
    a("L_p2:")
    stamp(a, "p2in")
    def areg(slot, t, n, o=0):
        base = (slot*4 + t) * 4 + o
        return ar(base, n) if slot < 10 else vr(64 + base - 160, n)
    def areads(s, slot):
        out = []
        for t in range(4):
            out.append(f"ds_read_b64_tr_b16 {areg(slot, t, 2)}, v{20+t} offset:{s*4096}")
            out.append(f"ds_read_b64_tr_b16 {areg(slot, t, 2, 2)}, v{20+t} offset:{s*4096+1024}")
        return out
    def lsync(k):
        a(f"""
        {"" if O.mark else f"ds_write_b32 v14, v15 offset:{16*k}"}
        L_sy{k}:
        ds_read_b128 v[40:43], v16 offset:{16*k}
        s_waitcnt lgkmcnt(0)
        v_and_b32 v40, v40, v41
        v_and_b32 v42, v42, v43
        v_and_b32 v40, v40, v42
        v_cmp_eq_u32 vcc, 0, v40
        s_cbranch_vccnz L_sy{k}
        """)
    NP, N1 = O.NP, O.N1
    if not O.mark: a(f"s_waitcnt vmcnt({14 - N1})")
    stamp(a, "wv")
    lsync(0)
    stamp(a, "wd1")
    for s in range(N1):
        if s >= 1: a("s_waitcnt lgkmcnt(6)")
        for r in areads(s, s): a(r)
    if NP > N1:
        if not O.mark: a(f"s_waitcnt vmcnt({14 - NP})")
        lsync(1)
        stamp(a, "wd2")
        for s in range(N1, NP):
            if s > N1: a("s_waitcnt lgkmcnt(6)")
            for r in areads(s, s): a(r)
    a(f"""
    s_cmp_lt_u32 s49, 14
    s_cbranch_scc1 L_nob2
    s_barrier
    L_nob2:
    s_waitcnt lgkmcnt(8)
    """)
    stamp(a, "rdy")
    if "all" in PTS:
        a("s_waitcnt vmcnt(0)"); stamp(a, "all")
    AC = 24
    groups = {2: [[0],[1,2],[3,4],[5,6],[7,8],[9,10],[11,12],[13]],
              3: [[0],[1],[2,3],[4,5],[6,7],[8,9],[10,11],[12],[13]],
              4: [[s_] for s_ in range(14)],
              8: [[0,1],[2,3],[4,5],[6,7],[8,9],[10,11],[12],[13]],
              5: [[0],[1],[2,3],[4,5,6],[7,8,9],[10,11,12],[13]],
              6: [[0],[1,2],[3,4,5],[6,7,8],[9,10,11],[12,13]],
              7: [[0],[1],[2,3],[4,5],[6,7,8],[9,10,11],[12,13]]}[O.fine]
    def breg(s): return 40 + 4*(s % 6)
    D = O.lag
    NI = len(groups) + D
    it_of = {s_: gi + D for gi, g in enumerate(groups) for s_ in g}
    plan = [[] for _ in range(NI)]
    room = [0] * D + [O.cap * len(groups[i - D]) for i in range(D, NI)]
    i = NI - 1
    for s_ in range(13, NP - 1, -1):
        for r in reversed(areads(s_, s_ % 12)):
            i = min(i, it_of[s_] - 1 - O.slk, len(groups) - 1)
            while room[i] == 0: i -= 1
            assert i >= 1 and (s_ < 12 or i > it_of[s_ - 12]), (s_, i)
            plan[i].insert(0, (r, f"A{s_}")); room[i] -= 1
    LQ = ["P"] * 8
    landed = NP - 1
    def emit(x):
        a(x[0])
        if x[1]: LQ.append(x[1])
    for it in range(NI):
        prev = groups[it - D] if it >= D else []
        need = [f"B{s_}" for s_ in prev] + [f"A{s_}" for s_ in prev if s_ >= NP]
        if it == D: need.append("P")
        if it == NI - 1: need.append("Z")
        w = ""
        top = max([int(x[1][1:]) for x in plan[it]], default=-1)
        if top > landed:
            w += f" vmcnt({13 - top})"; landed = top
        n = min(8 + it, 12)
        if need:
            for t_ in need: assert t_ in LQ and (t_[0] != "A" or LQ.count(t_) == 8), (it, t_)
            n = len(LQ) - 1 - max(len(LQ) - 1 - LQ[::-1].index(t_) for t_ in need)
            w += f" lgkmcnt({n})"
        if w: a("s_waitcnt" + w)
        items = []
        if it < len(groups):
            a("s_barrier")
            stamp(a, f"b{it}")
            if it == len(groups) - 1: stamp(a, "bl")
            items += [(f"ds_read_b128 {vr(breg(s_),4)}, v19 offset:{s_*4096}", f"B{s_}") for s_ in groups[it]]
            if it == len(groups) - 2: items.append(("ds_read_b32 v9, v16 offset:36", "Z"))
        if it == NI - 1:
            items += [("v_cmp_ne_u32 vcc, v5, v9", None), ("s_mov_b32 s80, 0\ns_mov_b32 s44, 0xffff0000", None), ("s_cbranch_vccnz L_pz_wait\nL_pz_ok:", None)]
        if n + sum(1 for x in items + plan[it] if x[1]) > 15:
            plan[it][0] = (f"s_waitcnt lgkmcnt({15 - len(plan[it])})\n" + plan[it][0][0], plan[it][0][1])
        items += plan[it]
        if not prev:
            for x in items: emit(x)
        elif O.rfirst:
            while items and items[0][1] and items[0][1][0] == "B": emit(items.pop(0))
        nm = 4 * len(prev); k = 0
        for s_ in prev:
            for t in range(4):
                cin = "0" if s_ == 0 else vr(AC+4*t, 4)
                a(f"v_mfma_f32_16x16x32_bf16 {vr(AC+4*t,4)}, {areg(s_ % 12, t, 4)}, {vr(breg(s_),4)}, {cin}")
                k += 1
                take = -(-len(items) // (nm - k + 1))
                for x in items[:take]: emit(x)
                items = items[take:]
    stamp(a, "mend")
    a("s_nop 0")
    for g in range(2):
        for i in range(4):
            if g == 0 and i == 2: a("s_nop 1")
            a(f"v_cvt_pk_bf16_f32 v{40+4*g+i}, v{AC+8*g+2*i}, v{AC+8*g+2*i+1}")
        for i in range(4):
            a(f"v_min_u32 v{40+4*g+i}, -2, v{40+4*g+i}")
        a(f"buffer_store_dwordx4 {vr(40+4*g,4)}, v8, {rs(R_WS)}, 0 offen offset:{g*512} sc1")
    stamp(a, "pst")
    a("s_waitcnt vmcnt(0)")
    stamp(a, "ack")
    a(f"""
    L_poll2:
    buffer_load_dwordx4 v[64:67], v6, {rs(R_WS)}, 0 offen sc1
    buffer_load_dwordx4 v[68:71], v6, {rs(R_WS)}, 0 offen offset:1024 sc1
    s_add_u32 s80, s80, 1
    s_cmp_ge_u32 s80, {SPIN}
    s_waitcnt vmcnt(1)
    v_max3_u32 v4, v64, v65, v66
    v_lshlrev_b32 v72, 16, v64
    v_and_b32 v73, s44, v64
    v_lshlrev_b32 v74, 16, v65
    v_and_b32 v75, s44, v65
    v_lshlrev_b32 v76, 16, v66
    v_and_b32 v77, s44, v66
    v_lshlrev_b32 v78, 16, v67
    v_and_b32 v79, s44, v67
    s_waitcnt vmcnt(0)
    v_max3_u32 v4, v4, v67, v68
    v_max3_u32 v5, v69, v70, v71
    v_max_u32 v4, v4, v5
    v_cmp_eq_u32 vcc, -1, v4
    s_cbranch_scc1 L_fin
    {"s_cbranch_vccnz L_poll2" if O.sl2 == 0 else f"s_cbranch_vccz L_fin"}
    {"" if O.sl2 == 0 else f"s_sleep {O.sl2}"}
    {"" if O.sl2 == 0 else "s_branch L_poll2"}
    L_fin:
    v_lshlrev_b32 v80, 16, v68
    v_and_b32 v81, s44, v68
    v_lshlrev_b32 v82, 16, v69
    v_and_b32 v83, s44, v69
    v_lshlrev_b32 v84, 16, v70
    v_and_b32 v85, s44, v70
    v_lshlrev_b32 v86, 16, v71
    v_and_b32 v87, s44, v71
    v_pk_add_f32 v[72:73], v[72:73], v[80:81]
    v_pk_add_f32 v[76:77], v[76:77], v[84:85]
    v_pk_add_f32 v[74:75], v[74:75], v[82:83]
    v_pk_add_f32 v[78:79], v[78:79], v[86:87]
    s_nop 0
    v_permlane32_swap_b32 v72, v76
    v_permlane32_swap_b32 v73, v77
    v_permlane32_swap_b32 v74, v78
    v_permlane32_swap_b32 v75, v79
    v_pk_add_f32 v[72:73], v[72:73], v[76:77]
    v_pk_add_f32 v[74:75], v[74:75], v[78:79]
    s_nop 1
    v_permlane16_swap_b32 v72, v74
    v_permlane16_swap_b32 v73, v75
    s_nop 0
    v_pk_add_f32 v[72:73], v[72:73], v[74:75]
    v_cvt_pk_bf16_f32 v64, v72, v73
    buffer_store_dword v64, v7, {rs(R_OUT)}, 0 offen
    {"s_waitcnt vmcnt(0)" if (O.stamp and O.endwait) else ""}
    """)
    if "npoll" in PTS:
        i = PTS["npoll"]
        a(f"s_waitcnt lgkmcnt(0)\ns_mul_i32 s{64+2*i}, s80, 100\ns_add_u32 s{64+2*i}, s{64+2*i}, s64")
    stamp_flush(a)
    a("L_end:")
    a("s_endpgm")
    a(f"""
    L_pz_wait:
    s_sleep 4
    buffer_load_dword v9, v18, {rs(R_WS)}, 0 offen sc1
    s_add_u32 s80, s80, 1
    s_cmp_ge_u32 s80, {SPIN}
    s_waitcnt vmcnt(0)
    v_cmp_ne_u32 vcc, v5, v9
    s_cbranch_scc1 L_pz_out
    s_cbranch_vccnz L_pz_wait
    L_pz_out:
    s_mov_b32 s80, {1000 if O.stamp else 0}
    s_branch L_pz_ok
    """)
    a("L_front_go_on:")
    if O.prio & 2: a("s_setprio 1")
    later = lines(f"""
    v_add_u32 v17, 49152, v16
    v_add_u32 v24, 49152, v20
    v_add_u32 v25, 49152, v21
    v_add_u32 v26, 49152, v22
    v_add_u32 v27, 49152, v23
    v_lshrrev_b32 v6, 1, v1
    s_lshl_b32 s54, s52, 1
    v_add_u32 v6, s54, v6
    v_lshlrev_b32 v6, 3, v6
    v_bfe_u32 v7, v2, 4, 1
    s_lshl_b32 s54, s47, 2
    v_add3_u32 v6, v6, v7, s54
    v_lshlrev_b32 v6, 10, v6
    v_and_b32 v7, 1, v1
    v_lshl_add_u32 v7, v7, 1, v5
    v_lshl_add_u32 v6, v7, 8, v6
    v_and_b32 v7, 15, v2
    v_lshl_add_u32 v14, v7, 4, v6
    v_add_u32 v14, {HA_OFF}, v14
    s_lshl_b32 s54, s48, 1
    s_add_u32 s54, s54, s47
    s_lshl_b32 s54, s54, 7
    s_lshr_b32 s57, s49, 1
    s_lshl_b32 s57, s57, 4
    s_add_u32 s54, s54, s57
    s_add_u32 s54, s54, {FA_OFF}
    v_lshl_add_u32 v15, v1, 2, s54
    s_mov_b32 s44, 0xbfb8aa3b
    s_mov_b32 s45, 0xbfb8aa3b
    {"" if O.own else f"v_mov_b32 v5, {SY_LDS + 32}"}
    s_mov_b32 s90, 1
    """ + P1_ROLE + FRONT_SETUP)
    if not O.fdef:
        a("s_waitcnt lgkmcnt(0)")
        if O.own: nonce1(a, False)
        for x in later: a(x)
        later = []
    ACC = [32, 48]
    def reads(c, s):
        slot = c % 4
        rng, so = slot // 2, (slot % 2) * 24576
        b = 12*s
        return [f"ds_read_b64_tr_b16 a[{b}:{b+1}], v{16+rng} offset:{so + 2048*s}",
                f"ds_read_b64_tr_b16 a[{b+2}:{b+3}], v{16+rng} offset:{so + 2048*s + 512}",
                f"ds_read_b128 a[{b+4}:{b+7}], v{20+4*rng+s} offset:{so}",
                f"ds_read_b128 a[{b+8}:{b+11}], v{20+4*rng+s} offset:{so + 4096}"]
    def mfma(c, s, mi):
        b = 12*s
        cin = "0" if (c == 0 and s == 0 and not O.roll) else vr(ACC[mi], 16)
        return f"v_mfma_f32_32x32x16_bf16 {vr(ACC[mi],16)}, {ar(b,4)}, {ar(b+4+4*mi,4)}, {cin}"
    if O.roll:
        assert not later
        for r in range(32): a(f"v_mov_b32 v{32+r}, 0")
        a("s_mov_b32 s81, 0")
    stamp(a, "fr")
    a("s_barrier")
    stamp(a, "c0")
    for s in range(3):
        for r in reads(0, s): a(r)
    for c in ([0, 1, 2, 3, 12, 13, 14] if O.roll else range(15)):
        if O.roll and c == 0: a("L_mm_loop:")
        if O.roll and c == 12:
            a("""
            s_add_u32 s81, s81, 1
            s_cmp_lt_u32 s81, 3
            s_cbranch_scc1 L_mm_loop
            """)
        now, later = later[:O.fdef], later[O.fdef:]
        for s in range(3):
            a(f"s_waitcnt lgkmcnt({[8,8,4][s]})")
            for mi in range(2):
                a(mfma(c, s, mi))
                if s == 0:
                    for r in reads(c, 3)[2*mi:2*mi+2]: a(r)
                else:
                    k = -(-len(now) // (4 - 2*(s-1) - mi))
                    for x in now[:k]: a(x)
                    now = now[k:]
        if c == O.vtc and O.vt:
            a(f"""
            s_cmp_lg_u32 s53, 2
            s_cbranch_scc1 L_novt
            v_mov_b32 v6, 0
            {f"buffer_load_dword v31, v29, {rs(R_WS)}, 0 offen" if O.vt & 1 else ""}
            {"global_load_dword v31, v6, s[12:13]" if O.vt & 2 else ""}
            L_novt:
            """)
        if O.own:
            if c == O.f2: nonce2(a, 12)
            if c == O.f3:
                a("s_waitcnt vmcnt(0)")
                nonce3(a, 12, False)
                a("v_xor_b32 v3, s86, v12")
        elif c == O.n3 + (1 if O.roll else 3): a("ds_read_b32 v12, v5")
        if c == O.n3 + (2 if O.roll else 4) and not O.own:
            assert not later
            a("v_xor_b32 v3, s86, v12")
        a("s_waitcnt lgkmcnt(0)")
        a("s_barrier")
        if not (O.roll and c < 12): stamp(a, f"c{c+1}")
        rr = [r for s in range(3) for r in reads(c + 1, s)]
        for r in rr[:4]: a(r)
        a(mfma(c, 3, 0))
        for r in rr[4:8]: a(r)
        a(mfma(c, 3, 1))
        for r in rr[8:]: a(r)
    a.c("last chunk: the first 32 rows finish first, their epilogue overlaps the MFMAs of the other 32")
    c = 15
    a("s_waitcnt lgkmcnt(8)")
    a(mfma(c, 0, 0))
    for r in reads(c, 3): a(r)
    a("s_waitcnt lgkmcnt(8)")
    a(mfma(c, 1, 0))
    a("s_waitcnt lgkmcnt(4)")
    a(mfma(c, 2, 0))
    a("s_waitcnt lgkmcnt(0)")
    a(mfma(c, 3, 0))
    a(mfma(c, 0, 1))
    a("s_nop 7\ns_nop 2")
    def epi(mi):
        A = ACC[mi]; t = 64 + 16*mi
        o = []
        if O.epi:
            pk = O.epi == 1
            def mul2(d, x, y): return [f"v_pk_mul_f32 v[{d}:{d+1}], v[{x}:{x+1}], v[{y}:{y+1}]"] if pk else [f"v_mul_f32 v{d}, v{x}, v{y}", f"v_mul_f32 v{d+1}, v{x+1}, v{y+1}"]
            def scl2(d, x): return [f"v_pk_mul_f32 v[{d}:{d+1}], v[{x}:{x+1}], s[44:45]"] if pk else [f"v_mul_f32 v{d}, s44, v{x}", f"v_mul_f32 v{d+1}, s44, v{x+1}"]
            def add2(d): return [f"v_pk_add_f32 v[{d}:{d+1}], v[{d}:{d+1}], 1.0 op_sel_hi:[1,0]"] if pk else [f"v_add_f32 v{d}, 1.0, v{d}", f"v_add_f32 v{d+1}, 1.0, v{d+1}"]
            ex = lambda r: f"v_exp_f32 v{t+r}, v{t+r}"
            rc = lambda r: f"v_rcp_f32 v{t+r}, v{t+r}"
            o += scl2(t, A) + scl2(t+2, A+2)
            o += [ex(0)] + scl2(t+4, A+4) + [ex(1)] + scl2(t+6, A+6)
            o += [ex(2)] + mul2(t+8, A, A+8) + [ex(3)] + add2(t)
            o += [ex(4)] + mul2(t+10, A+2, A+10) + [ex(5)] + add2(t+2)
            o += [ex(6)] + mul2(t+12, A+4, A+12) + [ex(7)] + add2(t+4)
            o += [rc(0)] + mul2(t+14, A+6, A+14) + [rc(1)] + add2(t+6)
            o += [rc(2)] + mul2(t, t, t+8) + [rc(3), rc(4), f"v_cvt_pk_bf16_f32 v{4+4*mi}, v{t}, v{t+1}", rc(5)] + mul2(t+2, t+2, t+10)
            o += [rc(6)] + mul2(t+4, t+4, t+12) + [rc(7), f"v_cvt_pk_bf16_f32 v{5+4*mi}, v{t+2}, v{t+3}"] + mul2(t+6, t+6, t+14)
            o += [f"v_cvt_pk_bf16_f32 v{6+4*mi}, v{t+4}, v{t+5}", f"v_cvt_pk_bf16_f32 v{7+4*mi}, v{t+6}, v{t+7}"]
            o.append(f"buffer_store_dwordx4 v[{4+4*mi}:{7+4*mi}], v14, {rs(R_WS)}, 0 offen offset:{2048*mi}")
            return o
        for r in range(0, 8, 2):
            o.append(f"v_pk_mul_f32 v[{t+r}:{t+r+1}], v[{A+r}:{A+r+1}], s[44:45]")
        for r in range(8):
            o.append(f"v_exp_f32 v{t+r}, v{t+r}")
        for r in range(0, 8, 2):
            o.append(f"v_pk_add_f32 v[{t+r}:{t+r+1}], v[{t+r}:{t+r+1}], 1.0 op_sel_hi:[1,0]")
        for r in range(8):
            o.append(f"v_rcp_f32 v{t+r}, v{t+r}")
        for r in range(0, 8, 2):
            o.append(f"v_pk_mul_f32 v[{t+r}:{t+r+1}], v[{t+r}:{t+r+1}], v[{A+r}:{A+r+1}]")
        for r in range(0, 8, 2):
            o.append(f"v_pk_mul_f32 v[{t+r}:{t+r+1}], v[{t+r}:{t+r+1}], v[{A+8+r}:{A+9+r}]")
        for d in range(4):
            o.append(f"v_cvt_pk_bf16_f32 v{4+4*mi+d}, v{t+2*d}, v{t+2*d+1}")
        o.append(f"buffer_store_dwordx4 v[{4+4*mi}:{7+4*mi}], v14, {rs(R_WS)}, 0 offen offset:{2048*mi}")
        return o
    for i, x in enumerate(epi(0)):
        if i == 0: a(mfma(c, 1, 1))
        if i == 5: a(mfma(c, 2, 1))
        if i == 8: a(mfma(c, 3, 1))
        a(x)
    for x in epi(1): a(x)
    stamp(a, "hst")
    a(f"""
    s_waitcnt vmcnt(0)
    buffer_store_dword v3, v15, {rs(R_WS)}, 0 offen
    """)
    stamp(a, "flg")
    a(f"""
    L_hload:
    s_mov_b32 s80, 0
    s_cmp_lg_u32 s53, 0
    s_cbranch_scc1 L_poll1
    v_and_b32 v22, 7, v2
    v_lshl_add_u32 v22, v22, 7, s91
    L_pz0:
    buffer_load_dword v21, v22, {rs(R_WS)}, 0 offen sc1
    buffer_load_dword v20, v18, {rs(R_WS)}, 0 offen sc1
    s_add_u32 s80, s80, 1
    s_cmp_ge_u32 s80, {O.kfast}
    s_waitcnt vmcnt(0)
    v_cmp_ne_u32 vcc, v12, v21
    s_cbranch_vccz L_pz0_ok
    s_cbranch_scc1 L_poll1
    v_cmp_ne_u32 vcc, v3, v20
    s_cbranch_vccz L_go
    s_sleep 2
    s_branch L_pz0
    L_pz0_ok:
    """)
    if O.pzdma:
        a.c("hand the news to the back waves: copy one of the flags into LDS, ahead of the first rows of h")
        a(f"""
        v_cmp_ne_u32 vcc, v3, v20
        s_mov_b32 m0, {SY_LDS + 36}
        s_mov_b64 exec, 1
        buffer_load_dword v22, {rs(R_WS)}, 0 offen sc1 lds
        s_mov_b64 exec, -1
        """)
    else:
        a(f"""
        v_mov_b32 v21, {SY_LDS + 36}
        v_cmp_ne_u32 vcc, v3, v20
        ds_write_b32 v21, v12
        s_waitcnt lgkmcnt(0)
        """)
    a(f"""
    s_cbranch_vccz L_go
    L_poll1:
    buffer_load_dword v20, v18, {rs(R_WS)}, 0 offen sc1
    s_add_u32 s80, s80, 1
    s_cmp_ge_u32 s80, {O.kfast}
    s_cbranch_scc1 L_slow
    s_waitcnt vmcnt(0)
    v_cmp_ne_u32 vcc, v3, v20
    s_cbranch_vccz L_go
    {f"s_sleep {O.sl1}" if O.sl1 else ""}
    s_branch L_poll1
    L_go:
    """)
    stamp(a, "go")
    def hload(s):
        a(f"s_add_u32 m0, s55, {s*4096}")
        a(f"s_add_u32 s57, s{82 if s < 7 else 83}, {s*8192}")
        a(f"buffer_load_dwordx4 v19, {rs(R_WS)}, s57 offen sc1 lds")
    def hloop(lead):
        hl = 0
        while hl < lead:
            hload(hl); hl += 1
        for gi, g in enumerate(groups):
            a(f"s_waitcnt vmcnt({hl - 1 - g[-1]})")
            a("s_barrier")
            for _ in range(len(groups[min(gi + 1, len(groups) - 1)])):
                if hl < 14 and hl < lead + g[-1] + len(groups[min(gi + 1, len(groups) - 1)]) + 1:
                    hload(hl); hl += 1
    hloop(O.hlead)
    stamp_flush(a)
    a.c("a producer publishes the write-through copy of h unless its whole group is seen on this die")
    a(f"""
    s_cmp_eq_u32 s90, 0
    s_cbranch_scc1 L_nob
    buffer_load_dword v20, v29, {rs(R_WS)}, 0 offen sc1
    s_waitcnt vmcnt(0)
    v_cmp_ne_u32 vcc, v3, v20
    s_cbranch_vccz L_nob
    """)
    sendb(a)
    a("L_nob:")
    if O.upd == 1: update(a, "L_front_end")
    a("s_endpgm")
    a.c("the producers are not all on this die (or are very late): fall back to the write-through copies")
    a("""
    L_slow:
    s_cmp_eq_u32 s90, 0
    s_cbranch_scc1 L_slow_sent
    """)
    sendb(a)
    a(f"""
    s_mov_b32 s90, 0
    L_slow_sent:
    s_movk_i32 s57, {FB_OFF - FA_OFF}
    s_mov_b32 s80, 0
    L_slow_poll:
    buffer_load_dword v20, v18, {rs(R_WS)}, 0 offen sc1
    buffer_load_dword v21, v18, {rs(R_WS)}, s57 offen sc1
    s_add_u32 s80, s80, 1
    s_waitcnt vmcnt(0)
    v_cmp_ne_u32 vcc, v3, v20
    s_cbranch_vccz L_go
    v_cmp_ne_u32 vcc, v12, v21
    s_cbranch_vccz L_slow_b
    s_sleep 8
    s_cmp_lt_u32 s80, {SPIN}
    s_cbranch_scc1 L_slow_poll
    L_slow_b:
    s_add_u32 s82, s82, {HB_OFF - HA_OFF}
    s_add_u32 s83, s83, {HB_OFF - HA_OFF}
    s_branch L_go
    """)
    a("L_code_end:")
    return a

if __name__ == "__main__":
    opts(sys.argv[2:])
    a = gen()
    hdr = HEADER + NOTES + f"; @launch grid=(256,1,1) block=(512,1,1) lds={LDS}\n.amdgcn_target \"amdgcn-amd-amdhsa--gfx950\"\n"
    open(sys.argv[1], "w").write(hdr + a.text() + kdesc(KN, NV + NA, NV))
```

```python
import os, sys
from asmlib import *

KN = "standalone__swiglu_ffn__sampling_kernel"
X_B, W_B, OUT_B, WS_B = 128*1024*2, 1024*3584*2, 128*1024*2, 268435456
FA_OFF = 0
FB_OFF = FA_OFF + 4096
EP_OFF = FA_OFF + 8192
RG_OFF = FA_OFF + 12288
PZ_OFF = FA_OFF + 16384
HA_OFF = 65536
P_OFF = 1 << 20
HB_OFF = (3 << 20) + HA_OFF
ST_OFF = 8 << 20
R_X, R_G, R_U, R_D, R_WS, R_OUT = 20, 24, 28, 32, 36, 40
WD_LDS = 98304
SY_LDS = WD_LDS + 57344
LDS = SY_LDS + 64
SPIN = int(os.environ.get("DIAG_SPIN", 1 << 18))
NV, NA = 96, 160

class O:
    stamp = 0; sync = 1; sw = 4; endwait = 1
    kfast = 32; sl1 = 0; sl2 = 0
    xg = 4; xlead = 4; r2 = 8; r3 = 13; hold = 5; wdk = 5; touch = 1; npf0 = 3
    wd13 = 3; wd14 = 5; hlead = 5; fine = 3
    NP = 11; N1 = 6; cap = 3; slk = 1
    fdef = 0; bdef = 0; cp0 = 1; cp1 = 0; roll = 0; upd = 0; own = 1; f2 = 6; f3 = 11; mark = 0; epi = 0; pzdma = 1; lag = 1; rfirst = 0; xafter = 0; x3 = 3; nb = 11; npz = 2; slz = 12; pzc = 99; pzf = 99; stop = 0; vt = 0; dfl = 0; dord = 0; pfl = 0; prio = 0; vtc = 7; n2 = 5; n3 = 9
PTS = {}
def opts(argv):
    for x in argv:
        k, v = x.split("=")
        if k == "pts":
            PTS.clear(); PTS["start"] = 0
            for i, nm in enumerate(v.split(",")): PTS[nm] = i + 1
            O.stamp = 1
        else:
            assert hasattr(O, k), k
            setattr(O, k, int(v))
def rs(r): return f"s[{r}:{r+3}]"
def stamp(a, name):
    if O.stamp and name in PTS:
        idx = PTS[name]
        a(f"s_memrealtime s[{64+2*idx}:{65+2*idx}]")
_fl = [0]
def stamp_flush(a):
    if not O.stamp: return
    _fl[0] += 1
    L = f"L_sf{_fl[0]}"
    a(f"""
    s_memrealtime s[78:79]
    s_cmp_lg_u32 s53, {O.sw}
    s_cbranch_scc1 {L}
    s_waitcnt lgkmcnt(0)
    """)
    for i in range(8):
        a(f"v_mov_b32 v{80+i}, s{64+2*i}")
    a(f"""
    s_lshl_b32 s63, s2, 5
    s_add_u32 s63, s63, {ST_OFF}
    v_mov_b32 v88, s63
    s_mov_b64 exec, 1
    buffer_store_dwordx4 v[80:83], v88, {rs(R_WS)}, 0 offen
    buffer_store_dwordx4 v[84:87], v88, {rs(R_WS)}, 0 offen offset:16
    s_mov_b64 exec, -1
    {L}:
    """)
def lines(txt):
    return [x.strip() for x in txt.split("\n") if x.strip()]

def pf_role(a, tag):
    a(f"""
    s_mov_b32 s50, 1
    s_cmp_ge_u32 s52, 3
    s_addc_u32 s51, s52, 0
    s_cmp_ge_u32 s52, 10
    s_addc_u32 s51, s51, 0
    s_mov_b32 s46, 0
    s_cmp_ge_u32 s52, 14
    s_cbranch_scc0 L_pf_role_{tag}
    s_and_b32 s50, s52, 1
    s_mul_i32 s46, s50, 7
    s_cmp_ge_u32 s52, 16
    s_cselect_b32 s51, 11, 3
    L_pf_role_{tag}:
    """)
P1_ROLE = """
    s_mov_b32 s50, 0
    s_cmp_ge_u32 s49, 3
    s_addc_u32 s51, s49, 0
    s_cmp_ge_u32 s49, 10
    s_addc_u32 s51, s51, 0
    s_mov_b32 s46, 0
"""
FRONT_SETUP = f"""
    s_getreg_b32 s86, hwreg(HW_REG_XCC_ID, 0, 4)
    s_lshl_b32 s86, s86, 24
    s_lshl_b32 s55, s53, 10
    s_lshl_b32 s82, s46, 13
    s_sub_u32 s83, 0, s82
    s_mul_i32 s54, s48, 112
    s_lshl_b32 s57, s50, 2
    s_add_u32 s54, s54, s57
    v_add_u32 v6, s54, v1
    v_lshlrev_b32 v6, 10, v6
    v_lshl_add_u32 v19, v2, 4, v6
    v_add_u32 v19, {HA_OFF}, v19
    s_lshl_b32 s54, s48, 1
    s_add_u32 s54, s54, s50
    s_lshl_b32 s54, s54, 7
    s_add_u32 s54, s54, {FA_OFF}
    v_min_u32 v6, 27, v2
    v_lshl_add_u32 v18, v6, 2, s54
    s_lshl_b32 s54, s48, 7
    s_add_u32 s54, s54, {RG_OFF}
    v_and_b32 v6, 31, v2
    v_lshl_add_u32 v29, v6, 2, s54
    v_and_b32 v7, 1, v6
    v_lshlrev_b32 v7, 7, v7
    v_lshrrev_b32 v8, 1, v6
    v_lshl_add_u32 v7, v8, 4, v7
    v_cmp_gt_u32 vcc, 14, v6
    s_lshl_b32 s54, s48, 8
    s_add_u32 s54, s54, {FA_OFF}
    v_add_u32 v7, s54, v7
    v_cndmask_b32 v29, v29, v7, vcc
    s_cmp_lt_u32 s49, 14
    s_cselect_b32 s54, 14, 0
    s_add_u32 s54, s54, s49
    s_lshl_b32 s54, s54, 10
    s_add_u32 s91, s54, {PZ_OFF}
    s_mov_b32 s38, {WS_B}
    s_mov_b32 s39, 0x20000
    s_mov_b64 s[36:37], s[16:17]
"""
def back_setup():
    p = [f"""
    s_mov_b64 s[32:33], s[10:11]
    s_mov_b32 s34, {W_B}
    s_mov_b32 s35, 0x20000
    s_mov_b64 s[36:37], s[16:17]
    s_mov_b32 s38, {WS_B}
    s_mov_b32 s39, 0x20000
    s_mov_b64 s[40:41], s[12:13]
    s_mov_b32 s42, {OUT_B}
    s_mov_b32 s43, 0x20000
    s_and_b32 s55, s53, 3
    s_lshl_b32 s55, s55, 10
    s_lshl_b32 s84, s46, 16
    s_sub_u32 s85, 0, s84
    {"s_getpc_b64 s[92:93]" if O.mark else ""}
    {"s_lshr_b32 s81, s55, 8" if O.mark else ""}
    {f"s_add_u32 s81, s81, {SY_LDS}" if O.mark else ""}
    """, f"""
    v_lshrrev_b32 v3, 3, v2
    v_and_b32 v4, 7, v2
    v_and_b32 v6, 6, v3
    v_xor_b32 v4, v4, v6
    v_lshl_add_u32 v3, v1, 3, v3
    s_mul_i32 s60, s48, 448
    v_add_u32 v3, s60, v3
    v_lshlrev_b32 v3, 11, v3
    s_lshl_b32 s60, s51, 7
    v_add_u32 v3, s60, v3
    v_lshl_add_u32 v17, v4, 4, v3
    v_lshlrev_b32 v3, 10, v1
    v_lshl_add_u32 v19, v2, 4, v3
    """, f"""
    v_lshrrev_b32 v3, 4, v2
    v_bfe_u32 v4, v2, 2, 2
    v_and_b32 v7, 1, v3
    v_lshrrev_b32 v6, 1, v3
    v_lshlrev_b32 v6, 4, v6
    v_lshl_add_u32 v6, v7, 2, v6
    v_add_u32 v6, v6, v4
    v_lshlrev_b32 v6, 7, v6
    v_and_b32 v8, 3, v2
    v_lshl_add_u32 v6, v8, 3, v6
    v_add_u32 v6, {WD_LDS}, v6
    v_lshrrev_b32 v4, 1, v4
    v_lshl_add_u32 v4, v7, 1, v4
    """, "\n".join(f"v_xor_b32 v7, {t}, v4\nv_lshl_add_u32 v{20+t}, v7, 5, v6" for t in range(4)), f"""
    v_bfe_u32 v4, v2, 3, 1
    v_lshl_add_u32 v6, v1, 1, v4
    s_lshl_b32 s60, s49, 3
    v_add_u32 v6, s60, v6
    v_lshlrev_b32 v6, 3, v6
    v_add_u32 v6, s48, v6
    v_lshlrev_b32 v6, 10, v6
    v_lshl_add_u32 v6, v3, 7, v6
    v_and_b32 v7, 7, v2
    v_lshl_add_u32 v6, v7, 4, v6
    v_add_u32 v8, {P_OFF}, v6
    """, f"""
    s_cmp_lt_u32 s49, 14
    s_cselect_b32 s61, 14*8, 0
    s_add_u32 s61, s61, s60
    s_lshl_b32 s61, s61, 7
    s_add_u32 s61, s61, {PZ_OFF}
    v_lshl_add_u32 v18, v7, 7, s61
    s_add_u32 s60, s60, s48
    s_lshl_b32 s60, s60, 13
    s_add_u32 s60, s60, {P_OFF}
    v_and_b32 v6, 15, v2
    v_lshl_add_u32 v6, v1, 4, v6
    v_lshlrev_b32 v6, 4, v6
    v_lshl_add_u32 v6, v3, 11, v6
    v_add_u32 v6, s60, v6
    """, f"""
    s_lshl_b32 s60, s50, 6
    s_lshl_b32 s61, s48, 3
    s_add_u32 s60, s60, s61
    v_add_u32 v7, s60, v7
    v_lshlrev_b32 v7, 11, v7
    v_lshl_add_u32 v7, v4, 3, v7
    v_and_b32 v4, 1, v1
    v_lshl_add_u32 v7, v4, 4, v7
    v_lshrrev_b32 v4, 1, v1
    v_lshl_add_u32 v7, v4, 6, v7
    v_and_b32 v4, 1, v3
    v_lshl_add_u32 v7, v4, 2, v7
    v_lshrrev_b32 v4, 1, v3
    v_lshl_add_u32 v7, v4, 5, v7
    s_lshl_b32 s60, s51, 7
    v_add_u32 v7, s60, v7
    """]
    return p
LDS_INIT = f"""
    v_mov_b32 v16, {SY_LDS}
    v_lshl_add_u32 v14, v1, 2, v16
    v_mov_b32 v9, 0
    ds_write_b32 v14, v9
    ds_write_b32 v14, v9 offset:16
    ds_write_b32 v16, v9 offset:36
    v_mov_b32 v15, -1
"""
def nonce1(a, line):
    a(f"""
    s_movk_i32 s88, {EP_OFF}
    s_load_dword s59, s[16:17], s88
    s_load_dword s87, s[14:15], 0
    """)
    if line:
        a(f"""
        s_lshl_b32 s88, s48, 7
        s_add_u32 s88, s88, {RG_OFF}
        s_load_dword s87, s[16:17], s88
        s_add_u32 s89, s88, 64
        s_load_dword s87, s[16:17], s89
        """)
def nonce2(a, vn):
    a(f"""
    v_mov_b32 v30, 0
    s_add_u32 s59, s59, 1
    s_bitset1_b32 s59, 31
    global_load_dword v{vn}, v30, s[14:15] sc1
    """)
def nonce3(a, vn, share=True):
    a(f"""
    v_cmp_eq_u32 vcc, 0, v{vn}
    v_mov_b32 v30, s59
    {f"v_mov_b32 v28, {SY_LDS + 32}" if share else "s_nop 0"}
    v_cndmask_b32 v{vn}, v{vn}, v30, vcc
    {f"ds_write_b32 v28, v{vn}" if share else ""}
    """)
def wd_list():
    L = [f"s_add_u32 m0, s55, {WD_LDS + s*4096}\ns_add_u32 s57, s{84 if s < 7 else 85}, {s*65536}\nbuffer_load_dwordx4 v17, {rs(R_D)}, s57 offen lds" for s in range(14)]
    if O.mark:
        for k, n in enumerate([O.N1] + ([O.NP] if O.NP > O.N1 else [])):
            L[n - 1] += f"\ns_add_u32 m0, s81, {16*k}\ns_mov_b64 exec, 1\nglobal_load_lds_dword v9, s[92:93]\ns_mov_b64 exec, -1"
    return L
def sendb(a):
    a(f"""
    s_mov_b32 s57, {HB_OFF - HA_OFF}
    s_movk_i32 s58, {FB_OFF - FA_OFF}
    buffer_store_dwordx4 v[4:7], v14, {rs(R_WS)}, s57 offen sc1
    buffer_store_dwordx4 v[8:11], v14, {rs(R_WS)}, s57 offen offset:2048 sc1
    s_waitcnt vmcnt(0)
    buffer_store_dword v12, v15, {rs(R_WS)}, s58 offen sc1
    """)

def update(a, done):
    a.c("one wave of the launch moves the epoch on: d_debug first, so that a late reader can tell")
    a(f"""
    s_lshl_b32 s54, s2, 3
    s_add_u32 s54, s54, s53
    s_cmp_eq_u32 s54, {255*8 + 3}
    s_cbranch_scc0 {done}
    v_mov_b32 v26, 0
    v_mov_b32 v27, {EP_OFF}
    s_mov_b64 exec, 1
    global_store_dword v26, v12, s[14:15] sc1
    s_waitcnt vmcnt(0)
    global_store_dword v27, v12, s[16:17] sc1
    s_mov_b64 exec, -1
    {done}:
    """)

NOTES = """;
"""

def gen():
    a = Asm()
    kstart(a, KN)
    if O.stamp and O.sync:
        a("""
        s_memrealtime s[44:45]
        s_waitcnt lgkmcnt(0)
        s_add_u32 s46, s44, 612
        s_and_b32 s46, s46, 0xfffffe00
        L_sync:
        s_memrealtime s[44:45]
        s_waitcnt lgkmcnt(0)
        s_sub_u32 s47, s44, s46
        s_cmp_lt_i32 s47, 0
        s_cbranch_scc1 L_sync
        """)
    stamp(a, "start")
    a(f"""
    s_load_dwordx8 s[4:11], s[0:1], 0
    s_load_dwordx4 s[12:15], s[0:1], 32
    s_load_dwordx2 s[16:17], s[0:1], 48
    v_lshrrev_b32 v1, 6, v0         ; wave
    s_cmp_ge_u32 s2, 256
    s_cbranch_scc1 L_end
    v_readfirstlane_b32 s53, v1
    s_and_b32 s48, s2, 7            ; j
    s_lshr_b32 s49, s2, 3           ; q
    v_and_b32 v2, 63, v0            ; lane
    s_mov_b32 s22, {X_B}
    s_mov_b32 s23, 0x20000
    s_mov_b32 s26, {W_B}
    s_mov_b32 s27, 0x20000
    """)
    if O.cp0:
        a.c("wave 1 of every workgroup brings four lines of the kernel's code into this die's L2")
        a(f"""
        s_cmp_eq_u32 s53, 1
        s_cbranch_scc0 L_nocp
        s_getpc_b64 s[44:45]
        L_pc:
        v_and_b32 v3, 3, v2
        v_lshl_add_u32 v3, s49, 2, v3
        v_min_u32 v3, (L_code_end-L_pc-4)/128, v3
        v_lshlrev_b32 v3, 7, v3
        global_load_dword v31, v3, s[44:45]
        L_nocp:
        """)
    a(f"""
    s_cmp_lt_u32 s49, 14
    s_cbranch_scc1 L_p1
    s_sub_u32 s52, s49, 14          ; p
    s_cmp_lg_u32 s53, 0
    s_cbranch_scc1 L_pf_other
    """)
    a.c("prefetch wave: per 64-row chunk 50 lines of Wg (odd p) or Wu (even p), and 8 rows of x")
    a(f"""
    s_lshr_b32 s54, s52, 1
    s_mul_i32 s54, s54, 50
    v_add_u32 v3, s54, v2
    v_mul_u32_u24 v5, 9363, v3
    v_lshrrev_b32 v5, 16, v5        ; row = i / 7
    v_mul_u32_u24 v6, 7, v5
    v_sub_u32 v6, v3, v6            ; column = i % 7
    v_mul_u32_u24 v5, 7168, v5
    v_lshl_add_u32 v5, v6, 7, v5
    s_mul_i32 s54, s48, 896
    v_add_u32 v5, s54, v5
    v_cmp_gt_u32 vcc, 50, v2
    s_movk_i32 s54, 448
    v_cmp_gt_u32 s[44:45], s54, v3
    v_bfrev_b32 v7, 2
    s_lshl_b32 s54, s52, 3
    s_and_b64 vcc, vcc, s[44:45]
    v_lshrrev_b32 v3, {O.xg.bit_length() - 1}, v2
    v_add_u32 v3, s54, v3
    v_lshlrev_b32 v6, 11, v3
    v_and_b32 v3, {O.xg - 1}, v2
    v_lshl_add_u32 v6, v3, 7, v6
    v_cndmask_b32 v10, v7, v5, vcc
    v_cmp_gt_u32 vcc, {8 * O.xg}, v2
    s_bitcmp1_b32 s52, 0
    s_nop 0
    v_cndmask_b32 v11, v7, v6, vcc  ; rows >= 128 fall out of range
    s_waitcnt lgkmcnt(0)
    s_cselect_b64 s[24:25], s[6:7], s[8:9]
    s_mov_b64 s[20:21], s[4:5]
    """)
    stamp(a, "karg")
    npf = [0]
    def pf(c):
        if O.xafter and c == 0:
            a(f"buffer_load_dword v20, v10, {rs(R_G)}, 0 offen"); npf[0] += 1
            a(f"buffer_load_dword v22, v11, {rs(R_X)}, 0 offen"); npf[0] += 1
            return
        for g_ in range(16 // O.xg):
            if max(0, g_ * O.xg - O.xlead) == c:
                so = "0"
                if g_:
                    a(f"s_movk_i32 s58, {g_ * O.xg * 128}"); so = "s58"
                a(f"buffer_load_dword v22, v11, {rs(R_X)}, {so} offen"); npf[0] += 1
        so = "0"
        if c:
            a(f"s_mov_b32 s57, {c*64*7168}"); so = "s57"
        a(f"buffer_load_dword v20, v10, {rs(R_G)}, {so} offen {['', 'sc1', 'sc0', 'sc0 sc1'][O.pfl]}"); npf[0] += 1
    for c in range(O.npf0): pf(c)
    a("s_branch L_pf_go_on")
    a(f"""
    L_p1:
    s_and_b32 s47, s49, 1
    s_lshr_b32 s52, s49, 1
    s_mul_i32 s54, s48, 7
    s_add_u32 s52, s52, s54
    s_cmp_lt_u32 s53, 4
    s_cbranch_scc1 L_front
    v_and_b32 v1, 3, v1
    s_lshl_b32 s54, s52, 7
    v_lshrrev_b32 v3, 3, v2
    v_and_b32 v4, 7, v2
    v_lshl_add_u32 v5, v1, 4, v3
    v_mul_u32_u24 v6, 7168, v5
    v_add_u32 v6, s54, v6
    v_and_b32 v7, 2, v3
    v_xor_b32 v7, v7, v4
    v_lshl_add_u32 v10, v7, 4, v6
    v_xor_b32 v11, 64, v10
    v_lshrrev_b32 v7, 1, v3
    v_xor_b32 v7, v7, v4
    s_lshl_b32 s54, s47, 6
    v_add_u32 v5, s54, v5
    v_lshlrev_b32 v5, 11, v5
    v_lshl_add_u32 v12, v7, 4, v5
    v_xor_b32 v13, 64, v12
    v_add_u32 v13, 0x4000, v13
    s_and_b32 s56, s53, 3
    s_lshl_b32 s56, s56, 11
    s_mov_b32 s30, {W_B}
    s_mov_b32 s31, 0x20000
    """)
    a(LDS_INIT)
    a("""
    s_waitcnt lgkmcnt(0)
    s_mov_b64 s[20:21], s[4:5]
    s_mov_b64 s[24:25], s[6:7]
    s_mov_b64 s[28:29], s[8:9]
    """)
    stamp(a, "karg")
    Q = []
    def dma(c, part="xw"):
        sl = (c % 4) * 24576
        L = list(enumerate([(12, R_X, c*128), (13, R_X, c*128), (10, R_G, c*458752), (10, R_G, c*458752+57344), (11, R_U, c*458752), (11, R_U, c*458752+57344)]))
        if O.dord == 1: L = [L[i] for i in (0, 2, 4, 1, 3, 5)]
        if O.dord == 2: L = [L[i] for i in (2, 3, 4, 5, 0, 1)]
        for k, (v, r, so) in L:
            if ("x" if k < 2 else "w") not in part: continue
            a(f"s_add_u32 m0, s56, {sl + (k//2)*8192 + (k%2)*1024}\ns_mov_b32 s57, {so}\nbuffer_load_dwordx4 v{v}, {rs(r)}, s57 offen {['', 'sc1', 'sc0', 'sc0 sc1'][O.dfl]} lds")
            Q.append(c)
    if O.x3:
        for c in range(O.x3): dma(c, "x")
    else: dma(0)
    stamp(a, "d0")
    a("s_branch L_back_go_on")
    a("L_front:")
    stamp(a, "fin")
    a(f"""
    v_bfe_u32 v4, v2, 4, 1
    v_lshrrev_b32 v5, 5, v2         ; k half
    v_bfe_u32 v6, v2, 2, 2
    v_lshrrev_b32 v7, 1, v6
    v_lshl_add_u32 v7, v4, 1, v7
    v_xor_b32 v7, v7, v1
    v_lshl_add_u32 v6, v5, 3, v6
    v_lshlrev_b32 v6, 7, v6
    v_lshl_add_u32 v6, v7, 5, v6
    v_lshl_add_u32 v6, v4, 13, v6
    v_and_b32 v7, 3, v2
    v_lshl_add_u32 v6, v7, 3, v6
    v_add_u32 v16, 0x2000, v6
    v_and_b32 v6, 31, v2
    v_bfe_u32 v7, v6, 1, 3
    v_xor_b32 v7, v7, v5
    v_lshlrev_b32 v6, 7, v6
    """)
    for s in range(4):
        a(f"v_xor_b32 v8, {2*s}, v7")
        a(f"v_lshl_add_u32 v{20+s}, v8, 4, v6")
    a("s_branch L_front_go_on")

    a("L_pf_go_on:")
    if not O.cp0:
        a(f"""
        s_cmp_lt_u32 s52, 16
        s_cbranch_scc1 L_nocp
        s_getpc_b64 s[44:45]
        L_pc:
        s_sub_u32 s44, s44, L_pc-{KN}
        s_subb_u32 s45, s45, 0
        s_and_b32 s54, s52, 1
        s_lshl_b32 s54, s54, 6
        v_add_u32 v3, s54, v2
        v_min_u32 v3, (L_code_end-{KN}-4)/128, v3
        v_lshlrev_b32 v3, 7, v3
        global_load_dword v23, v3, s[44:45]
        L_nocp:
        """)
    if O.touch:
        a.c("one first touch per workgroup, so that the address translations are there when they are needed")
        a("""
        s_cmp_lt_u32 s52, 14
        s_cselect_b64 s[44:45], s[16:17], s[12:13]
        s_cmp_lt_u32 s52, 12
        s_cselect_b64 s[44:45], s[10:11], s[44:45]
        s_cmp_lt_u32 s52, 8
        s_cselect_b64 s[44:45], s[8:9], s[44:45]
        s_cmp_lt_u32 s52, 4
        s_cselect_b64 s[44:45], s[6:7], s[44:45]
        s_and_b32 s54, s52, 3
        s_lshl_b32 s54, s54, 21
        s_cmp_lt_u32 s52, 14
        s_cselect_b32 s54, s54, 0
        s_load_dword s87, s[44:45], s54
        """)
    nonce1(a, True)
    def poison():
        a.c("fill this workgroup's inbox and that of the paired producer with the not-yet-written pattern")
        a(f"""
        s_lshl_b32 s54, s49, 3
        s_add_u32 s54, s54, s48
        s_lshl_b32 s57, s54, 13
        s_add_u32 s57, s57, {P_OFF}
        v_lshl_add_u32 v3, v2, 4, s57
        v_add_u32 v8, 0x1000, v3
        s_lshl_b32 s54, s54, 7
        s_add_u32 s54, s54, {PZ_OFF}
        v_mov_b32 v13, s54
        v_mov_b32 v4, -1
        v_mov_b32 v5, -1
        v_mov_b32 v6, -1
        v_mov_b32 v7, -1
        s_cmp_lt_u32 s52, 14
        """)
        for k in range(8):
            a(f"global_store_dwordx4 v{3 if k < 4 else 8}, v[4:7], s[16:17] offset:{(k % 4)*1024} sc1")
        a(f"""
        s_cbranch_scc0 L_pz_one
        v_subrev_u32 v3, {14*8*8192}, v3
        v_subrev_u32 v8, {14*8*8192}, v8
        """)
        for k in range(8):
            a(f"global_store_dwordx4 v{3 if k < 4 else 8}, v[4:7], s[16:17] offset:{(k % 4)*1024} sc1")
        a("L_pz_one:")
    for c in range(O.npf0, 16):
        if c == O.pzc:
            assert not (O.r2 < c <= O.r3 and False)
            poison(); npf[0] += 8; pmark = npf[0]
        if c == O.pzf:
            assert c > O.r3 and c > O.pzc
            a(f"s_waitcnt vmcnt({npf[0] - pmark})")
            a("global_store_dword v13, v12, s[16:17] sc1"); npf[0] += 1
        if c == O.r2:
            a("""
            s_getreg_b32 s86, hwreg(HW_REG_XCC_ID, 0, 4)
            s_lshl_b32 s86, s86, 24
            s_lshl_b32 s89, s49, 2
            s_add_u32 s88, s88, s89
            v_mov_b32 v31, s88
            s_waitcnt lgkmcnt(0)
            """)
            nonce2(a, 12); mark = npf[0]
        if c == O.r3:
            a(f"s_waitcnt vmcnt({npf[0] - mark})")
            nonce3(a, 12)
            a("v_xor_b32 v30, s86, v12")
            stamp(a, "non")
        pf(c)
    stamp(a, "hia")
    if O.hold >= 0: a(f"s_waitcnt vmcnt({O.hold})")
    stamp(a, "hib")
    a.c("announce this workgroup's die; bring the lines of the h buffer into L2 before they are written")
    a("global_store_dword v31, v30, s[16:17]")
    if O.pzc > 15: poison()
    a(f"""
    s_lshl_b32 s54, s52, 6
    v_add_u32 v3, s54, v2
    v_min_u32 v3, 895, v3
    s_mul_i32 s54, s48, 114688
    s_add_u32 s54, s54, {HA_OFF}
    v_lshl_add_u32 v3, v3, 7, s54
    global_load_dword v24, v3, s[16:17]
    s_waitcnt lgkmcnt(0)
    s_barrier
    {"s_waitcnt vmcnt(1)" if O.pzf > 15 else ""}
    {"global_store_dword v13, v12, s[16:17] sc1" if O.pzf > 15 else ""}
    s_barrier
    """)
    stamp(a, "pfi")
    a("s_branch L_pf_front")
    a(f"""
    L_pf_other:
    s_cmp_ge_u32 s53, 4
    s_cbranch_scc1 L_back_pf
    s_waitcnt lgkmcnt(0)
    s_barrier
    s_barrier
    """)
    if O.vt & 2:
        a("""
        s_cmp_eq_u32 s53, 2
        s_cbranch_scc0 L_pf_front
        v_mov_b32 v6, 0
        global_load_dword v31, v6, s[12:13]
        """)
    if O.cp1:
        a.c("touch the code of the later phases again: it is the oldest resident of the L2 by now")
        a(f"""
        s_cmp_eq_u32 s53, 1
        s_cbranch_scc0 L_pf_front
        s_getpc_b64 s[44:45]
        L_pc1:
        v_min_u32 v3, 5, v2
        s_mul_i32 s54, s52, 6
        v_add_u32 v3, s54, v3
        v_min_u32 v3, (L_code_end-L_pc1-4)/128, v3
        v_lshlrev_b32 v3, 7, v3
        global_load_dword v31, v3, s[44:45]
        """)
    a(f"""
    L_pf_front:
    """)
    pf_role(a, "f")
    a(FRONT_SETUP)
    a(f"""
    v_mov_b32 v5, {SY_LDS + 32}
    ds_read_b32 v12, v5
    s_mov_b32 s90, 0
    v_bfrev_b32 v14, 2
    v_bfrev_b32 v15, 2
    s_waitcnt lgkmcnt(0)
    v_xor_b32 v3, s86, v12
    """)
    if O.upd == 0: update(a, "L_upd_done")
    if O.npz:
        a.c("look for the inbox flags while the Wd tile arrives (this also leaves them in L2 for the paired producer)")
        a(f"""
        s_cmp_lg_u32 s53, 0
        s_cbranch_scc1 L_pzp_done
        v_and_b32 v22, 7, v2
        v_lshl_add_u32 v22, v22, 7, s91
        s_mov_b32 s80, 0
        L_pzp:
        buffer_load_dword v21, v22, {rs(R_WS)}, 0 offen sc1
        s_add_u32 s80, s80, 1
        s_cmp_ge_u32 s80, {O.npz}
        s_waitcnt vmcnt(0)
        v_cmp_ne_u32 vcc, v12, v21
        s_cbranch_vccz L_pzp_done
        s_cbranch_scc1 L_pzp_done
        s_sleep {O.slz}
        s_branch L_pzp
        L_pzp_done:
        """)
    a(f"""
    s_barrier
    s_branch L_hload
    L_back_pf:
    v_and_b32 v1, 3, v1
    """)
    a(LDS_INIT)
    pf_role(a, "b")
    a("s_waitcnt lgkmcnt(0)")
    for p in back_setup(): a(p)
    a("s_barrier")
    wdl = wd_list()
    for i, d in enumerate(wdl):
        if i == O.wdk: a("s_barrier")
        a(d)
    a("ds_read_b32 v5, v16 offset:32")
    a("s_branch L_p2")

    a("L_back_go_on:")
    if O.prio & 1: a("s_setprio 1")
    if O.x3: dma(0, "w")
    dma(1, "w" if O.x3 > 1 else "xw")
    stamp(a, "d1")
    nonce1(a, False)
    a(P1_ROLE)
    pieces = back_setup()
    if not O.bdef:
        for p in pieces: a(p)
        pieces = []
    issued, wd, c0 = 3, 0, 0
    if O.roll:
        assert not pieces
        a("s_waitcnt lgkmcnt(0)")
        nonce2(a, 5)
        dma(2)
        a(f"""
        s_movk_i32 s62, {3*128}
        s_mov_b32 s63, {3*458752}
        s_mov_b32 s89, {3*458752 + 57344}
        s_mov_b32 s81, 0
        L_ld_loop:
        """)
        for c in range(4):
            sl = ((c + 3) % 4) * 24576
            a(f"""
            s_waitcnt vmcnt(12)
            s_barrier
            s_add_u32 m0, s56, {sl}
            s_nop 0
            buffer_load_dwordx4 v12, {rs(R_X)}, s62 offen lds
            s_add_u32 m0, s56, {sl + 1024}
            s_nop 0
            buffer_load_dwordx4 v13, {rs(R_X)}, s62 offen lds
            s_add_u32 m0, s56, {sl + 8192}
            s_addk_i32 s62, 128
            buffer_load_dwordx4 v10, {rs(R_G)}, s63 offen lds
            s_add_u32 m0, s56, {sl + 8192 + 1024}
            s_nop 0
            buffer_load_dwordx4 v10, {rs(R_G)}, s89 offen lds
            s_add_u32 m0, s56, {sl + 16384}
            s_nop 0
            buffer_load_dwordx4 v11, {rs(R_U)}, s63 offen lds
            s_add_u32 m0, s56, {sl + 16384 + 1024}
            s_add_u32 s63, s63, 458752
            buffer_load_dwordx4 v11, {rs(R_U)}, s89 offen lds
            s_add_u32 s89, s89, 458752
            """)
        a("""
        s_add_u32 s81, s81, 1
        s_cmp_lt_u32 s81, 3
        s_cbranch_scc1 L_ld_loop
        """)
        for c in range(3, 15): Q.extend([c] * 6)
        Q.insert(0, "n")
        issued, c0 = 15, 12
        O.n2, O.n3 = -1, 12
    else:
        dma(2, "w" if O.x3 > 2 else "xw")
    for c in range(c0, 16):
        stamp(a, f"w{c}")
        a(f"s_waitcnt vmcnt({len(Q) - 1 - max(i for i, t in enumerate(Q) if t == c)})" + (" lgkmcnt(0)" if (c == O.n3 + (1 if O.roll else 2) and not O.own) else ""))
        stamp(a, f"v{c}")
        a("s_barrier")
        stamp(a, f"c{c}")
        if c == O.n3:
            assert Q.index("n") < max(i for i, t in enumerate(Q) if t == c)
            nonce3(a, 5, not O.own)
        if issued < 16:
            dma(issued, "w" if issued < O.x3 else "xw"); issued += 1
        else:
            n = min({13: O.wd13, 14: O.wd14, 15: 14}[c], O.nb - wd)
            for d in wdl[wd:wd+n]:
                a(d); Q.extend(["d"] * d.count("_load_"))
            wd += n
        if c == O.n2:
            a("s_waitcnt lgkmcnt(0)")
            nonce2(a, 5); Q.append("n")
        elif pieces and c >= O.bdef: a(pieces.pop(0))
    assert not pieces
    if O.nb < 14: a(f"s_waitcnt vmcnt({O.nb - O.N1})")
    a("L_p2:")
    stamp(a, "p2in")
    def areg(slot, t, n, o=0):
        base = (slot*4 + t) * 4 + o
        return ar(base, n) if slot < 10 else vr(64 + base - 160, n)
    def areads(s, slot):
        out = []
        for t in range(4):
            out.append(f"ds_read_b64_tr_b16 {areg(slot, t, 2)}, v{20+t} offset:{s*4096}")
            out.append(f"ds_read_b64_tr_b16 {areg(slot, t, 2, 2)}, v{20+t} offset:{s*4096+1024}")
        return out
    def lsync(k):
        a(f"""
        {"" if O.mark else f"ds_write_b32 v14, v15 offset:{16*k}"}
        L_sy{k}:
        ds_read_b128 v[40:43], v16 offset:{16*k}
        s_waitcnt lgkmcnt(0)
        v_and_b32 v40, v40, v41
        v_and_b32 v42, v42, v43
        v_and_b32 v40, v40, v42
        v_cmp_eq_u32 vcc, 0, v40
        s_cbranch_vccnz L_sy{k}
        """)
    NP, N1 = O.NP, O.N1
    if not O.mark: a(f"s_waitcnt vmcnt({14 - N1})")
    stamp(a, "wv")
    lsync(0)
    stamp(a, "wd1")
    for s in range(N1):
        if s >= 1: a("s_waitcnt lgkmcnt(6)")
        for r in areads(s, s): a(r)
    if O.nb < 14:
        a.c("producers request the rest of their Wd tile once h is published")
        a("s_cmp_ge_u32 s49, 14")
        a("s_cbranch_scc1 L_nobf")
        a("s_barrier")
        for d in wdl[O.nb:]: a(d)
        a("L_nobf:")
    if NP > N1:
        if not O.mark: a(f"s_waitcnt vmcnt({14 - NP})")
        lsync(1)
        stamp(a, "wd2")
        for s in range(N1, NP):
            if s > N1: a("s_waitcnt lgkmcnt(6)")
            for r in areads(s, s): a(r)
    a(f"""
    s_cmp_lt_u32 s49, 14
    s_cbranch_scc1 L_nob2
    s_barrier
    L_nob2:
    s_waitcnt lgkmcnt(8)
    """)
    stamp(a, "rdy")
    if "all" in PTS:
        a("s_waitcnt vmcnt(0)"); stamp(a, "all")
    AC = 24
    groups = {2: [[0],[1,2],[3,4],[5,6],[7,8],[9,10],[11,12],[13]],
              3: [[0],[1],[2,3],[4,5],[6,7],[8,9],[10,11],[12],[13]],
              4: [[s_] for s_ in range(14)],
              8: [[0,1],[2,3],[4,5],[6,7],[8,9],[10,11],[12],[13]],
              5: [[0],[1],[2,3],[4,5,6],[7,8,9],[10,11,12],[13]],
              6: [[0],[1,2],[3,4,5],[6,7,8],[9,10,11],[12,13]],
              7: [[0],[1],[2,3],[4,5],[6,7,8],[9,10,11],[12,13]]}[O.fine]
    def breg(s): return 40 + 4*(s % 6)
    D = O.lag
    NI = len(groups) + D
    it_of = {s_: gi + D for gi, g in enumerate(groups) for s_ in g}
    plan = [[] for _ in range(NI)]
    room = [0] * D + [O.cap * len(groups[i - D]) for i in range(D, NI)]
    i = NI - 1
    for s_ in range(13, NP - 1, -1):
        for r in reversed(areads(s_, s_ % 12)):
            i = min(i, it_of[s_] - 1 - O.slk, len(groups) - 1)
            while room[i] == 0: i -= 1
            assert i >= 1 and (s_ < 12 or i > it_of[s_ - 12]), (s_, i)
            plan[i].insert(0, (r, f"A{s_}")); room[i] -= 1
    LQ = ["P"] * 8
    landed = NP - 1
    def emit(x):
        a(x[0])
        if x[1]: LQ.append(x[1])
    for it in range(NI):
        prev = groups[it - D] if it >= D else []
        need = [f"B{s_}" for s_ in prev] + [f"A{s_}" for s_ in prev if s_ >= NP]
        if it == D: need.append("P")
        if it == NI - 1: need.append("Z")
        w = ""
        top = max([int(x[1][1:]) for x in plan[it]], default=-1)
        if top > landed:
            w += f" vmcnt({13 - top})"; landed = top
        n = min(8 + it, 12)
        if need:
            for t_ in need: assert t_ in LQ and (t_[0] != "A" or LQ.count(t_) == 8), (it, t_)
            n = len(LQ) - 1 - max(len(LQ) - 1 - LQ[::-1].index(t_) for t_ in need)
            w += f" lgkmcnt({n})"
        if w: a("s_waitcnt" + w)
        items = []
        if it < len(groups):
            a("s_barrier")
            stamp(a, f"b{it}")
            if it == len(groups) - 1: stamp(a, "bl")
            items += [(f"ds_read_b128 {vr(breg(s_),4)}, v19 offset:{s_*4096}", f"B{s_}") for s_ in groups[it]]
            if it == len(groups) - 2: items.append(("ds_read_b32 v9, v16 offset:36", "Z"))
        if it == NI - 1:
            items += [("v_cmp_ne_u32 vcc, v5, v9", None), ("s_mov_b32 s80, 0\ns_mov_b32 s44, 0xffff0000", None), ("s_cbranch_vccnz L_pz_wait\nL_pz_ok:", None)]
        if n + sum(1 for x in items + plan[it] if x[1]) > 15:
            plan[it][0] = (f"s_waitcnt lgkmcnt({15 - len(plan[it])})\n" + plan[it][0][0], plan[it][0][1])
        items += plan[it]
        if not prev:
            for x in items: emit(x)
        elif O.rfirst:
            while items and items[0][1] and items[0][1][0] == "B": emit(items.pop(0))
        nm = 4 * len(prev); k = 0
        for s_ in prev:
            for t in range(4):
                cin = "0" if s_ == 0 else vr(AC+4*t, 4)
                a(f"v_mfma_f32_16x16x32_bf16 {vr(AC+4*t,4)}, {areg(s_ % 12, t, 4)}, {vr(breg(s_),4)}, {cin}")
                k += 1
                take = -(-len(items) // (nm - k + 1))
                for x in items[:take]: emit(x)
                items = items[take:]
    stamp(a, "mend")
    a("s_nop 0")
    for g in range(2):
        for i in range(4):
            if g == 0 and i == 2: a("s_nop 1")
            a(f"v_cvt_pk_bf16_f32 v{40+4*g+i}, v{AC+8*g+2*i}, v{AC+8*g+2*i+1}")
        for i in range(4):
            a(f"v_min_u32 v{40+4*g+i}, -2, v{40+4*g+i}")
        a(f"buffer_store_dwordx4 {vr(40+4*g,4)}, v8, {rs(R_WS)}, 0 offen offset:{g*512} sc1")
    stamp(a, "pst")
    a("s_waitcnt vmcnt(0)")
    stamp(a, "ack")
    a(f"""
    L_poll2:
    buffer_load_dwordx4 v[64:67], v6, {rs(R_WS)}, 0 offen sc1
    buffer_load_dwordx4 v[68:71], v6, {rs(R_WS)}, 0 offen offset:1024 sc1
    s_add_u32 s80, s80, 1
    s_cmp_ge_u32 s80, {SPIN}
    s_waitcnt vmcnt(1)
    v_max3_u32 v4, v64, v65, v66
    v_lshlrev_b32 v72, 16, v64
    v_and_b32 v73, s44, v64
    v_lshlrev_b32 v74, 16, v65
    v_and_b32 v75, s44, v65
    v_lshlrev_b32 v76, 16, v66
    v_and_b32 v77, s44, v66
    v_lshlrev_b32 v78, 16, v67
    v_and_b32 v79, s44, v67
    s_waitcnt vmcnt(0)
    v_max3_u32 v4, v4, v67, v68
    v_max3_u32 v5, v69, v70, v71
    v_max_u32 v4, v4, v5
    v_cmp_eq_u32 vcc, -1, v4
    s_cbranch_scc1 L_fin
    {"s_cbranch_vccnz L_poll2" if O.sl2 == 0 else f"s_cbranch_vccz L_fin"}
    {"" if O.sl2 == 0 else f"s_sleep {O.sl2}"}
    {"" if O.sl2 == 0 else "s_branch L_poll2"}
    L_fin:
    v_lshlrev_b32 v80, 16, v68
    v_and_b32 v81, s44, v68
    v_lshlrev_b32 v82, 16, v69
    v_and_b32 v83, s44, v69
    v_lshlrev_b32 v84, 16, v70
    v_and_b32 v85, s44, v70
    v_lshlrev_b32 v86, 16, v71
    v_and_b32 v87, s44, v71
    v_pk_add_f32 v[72:73], v[72:73], v[80:81]
    v_pk_add_f32 v[76:77], v[76:77], v[84:85]
    v_pk_add_f32 v[74:75], v[74:75], v[82:83]
    v_pk_add_f32 v[78:79], v[78:79], v[86:87]
    s_nop 0
    v_permlane32_swap_b32 v72, v76
    v_permlane32_swap_b32 v73, v77
    v_permlane32_swap_b32 v74, v78
    v_permlane32_swap_b32 v75, v79
    v_pk_add_f32 v[72:73], v[72:73], v[76:77]
    v_pk_add_f32 v[74:75], v[74:75], v[78:79]
    s_nop 1
    v_permlane16_swap_b32 v72, v74
    v_permlane16_swap_b32 v73, v75
    s_nop 0
    v_pk_add_f32 v[72:73], v[72:73], v[74:75]
    v_cvt_pk_bf16_f32 v64, v72, v73
    buffer_store_dword v64, v7, {rs(R_OUT)}, 0 offen
    {"s_waitcnt vmcnt(0)" if (O.stamp and O.endwait) else ""}
    """)
    if "npoll" in PTS:
        i = PTS["npoll"]
        a(f"s_waitcnt lgkmcnt(0)\ns_mul_i32 s{64+2*i}, s80, 100\ns_add_u32 s{64+2*i}, s{64+2*i}, s64")
    stamp_flush(a)
    a("L_end:")
    a("s_endpgm")
    a(f"""
    L_pz_wait:
    s_sleep 4
    buffer_load_dword v9, v18, {rs(R_WS)}, 0 offen sc1
    s_add_u32 s80, s80, 1
    s_cmp_ge_u32 s80, {SPIN}
    s_waitcnt vmcnt(0)
    v_cmp_ne_u32 vcc, v5, v9
    s_cbranch_scc1 L_pz_out
    s_cbranch_vccnz L_pz_wait
    L_pz_out:
    s_mov_b32 s80, {1000 if O.stamp else 0}
    s_branch L_pz_ok
    """)
    a("L_front_go_on:")
    if O.prio & 2: a("s_setprio 1")
    later = lines(f"""
    v_add_u32 v17, 49152, v16
    v_add_u32 v24, 49152, v20
    v_add_u32 v25, 49152, v21
    v_add_u32 v26, 49152, v22
    v_add_u32 v27, 49152, v23
    v_lshrrev_b32 v6, 1, v1
    s_lshl_b32 s54, s52, 1
    v_add_u32 v6, s54, v6
    v_lshlrev_b32 v6, 3, v6
    v_bfe_u32 v7, v2, 4, 1
    s_lshl_b32 s54, s47, 2
    v_add3_u32 v6, v6, v7, s54
    v_lshlrev_b32 v6, 10, v6
    v_and_b32 v7, 1, v1
    v_lshl_add_u32 v7, v7, 1, v5
    v_lshl_add_u32 v6, v7, 8, v6
    v_and_b32 v7, 15, v2
    v_lshl_add_u32 v14, v7, 4, v6
    v_add_u32 v14, {HA_OFF}, v14
    s_lshl_b32 s54, s48, 1
    s_add_u32 s54, s54, s47
    s_lshl_b32 s54, s54, 7
    s_lshr_b32 s57, s49, 1
    s_lshl_b32 s57, s57, 4
    s_add_u32 s54, s54, s57
    s_add_u32 s54, s54, {FA_OFF}
    v_lshl_add_u32 v15, v1, 2, s54
    s_mov_b32 s44, 0xbfb8aa3b
    s_mov_b32 s45, 0xbfb8aa3b
    {"" if O.own else f"v_mov_b32 v5, {SY_LDS + 32}"}
    s_mov_b32 s90, 1
    """ + P1_ROLE + FRONT_SETUP)
    if not O.fdef:
        a("s_waitcnt lgkmcnt(0)")
        if O.own: nonce1(a, False)
        for x in later: a(x)
        later = []
    ACC = [32, 48]
    def reads(c, s):
        slot = c % 4
        rng, so = slot // 2, (slot % 2) * 24576
        b = 12*s
        return [f"ds_read_b64_tr_b16 a[{b}:{b+1}], v{16+rng} offset:{so + 2048*s}",
                f"ds_read_b64_tr_b16 a[{b+2}:{b+3}], v{16+rng} offset:{so + 2048*s + 512}",
                f"ds_read_b128 a[{b+4}:{b+7}], v{20+4*rng+s} offset:{so}",
                f"ds_read_b128 a[{b+8}:{b+11}], v{20+4*rng+s} offset:{so + 4096}"]
    def mfma(c, s, mi):
        b = 12*s
        cin = "0" if (c == 0 and s == 0 and not O.roll) else vr(ACC[mi], 16)
        return f"v_mfma_f32_32x32x16_bf16 {vr(ACC[mi],16)}, {ar(b,4)}, {ar(b+4+4*mi,4)}, {cin}"
    if O.roll:
        assert not later
        for r in range(32): a(f"v_mov_b32 v{32+r}, 0")
        a("s_mov_b32 s81, 0")
    stamp(a, "fr")
    a("s_barrier")
    stamp(a, "c0")
    for s in range(3):
        for r in reads(0, s): a(r)
    for c in ([0, 1, 2, 3, 12, 13, 14] if O.roll else range(15)):
        if O.roll and c == 0: a("L_mm_loop:")
        if O.roll and c == 12:
            a("""
            s_add_u32 s81, s81, 1
            s_cmp_lt_u32 s81, 3
            s_cbranch_scc1 L_mm_loop
            """)
        now, later = later[:O.fdef], later[O.fdef:]
        for s in range(3):
            a(f"s_waitcnt lgkmcnt({[8,8,4][s]})")
            for mi in range(2):
                a(mfma(c, s, mi))
                if s == 0:
                    for r in reads(c, 3)[2*mi:2*mi+2]: a(r)
                else:
                    k = -(-len(now) // (4 - 2*(s-1) - mi))
                    for x in now[:k]: a(x)
                    now = now[k:]
        if c == O.vtc and O.vt:
            a(f"""
            s_cmp_lg_u32 s53, 2
            s_cbranch_scc1 L_novt
            v_mov_b32 v6, 0
            {f"buffer_load_dword v31, v29, {rs(R_WS)}, 0 offen" if O.vt & 1 else ""}
            {"global_load_dword v31, v6, s[12:13]" if O.vt & 2 else ""}
            L_novt:
            """)
        if O.own:
            if c == O.f2: nonce2(a, 12)
            if c == O.f3:
                a("s_waitcnt vmcnt(0)")
                nonce3(a, 12, False)
                a("v_xor_b32 v3, s86, v12")
        elif c == O.n3 + (1 if O.roll else 3): a("ds_read_b32 v12, v5")
        if c == O.n3 + (2 if O.roll else 4) and not O.own:
            assert not later
            a("v_xor_b32 v3, s86, v12")
        a("s_waitcnt lgkmcnt(0)")
        a("s_barrier")
        if not (O.roll and c < 12): stamp(a, f"c{c+1}")
        rr = [r for s in range(3) for r in reads(c + 1, s)]
        for r in rr[:4]: a(r)
        a(mfma(c, 3, 0))
        for r in rr[4:8]: a(r)
        a(mfma(c, 3, 1))
        for r in rr[8:]: a(r)
    a.c("last chunk: the first 32 rows finish first, their epilogue overlaps the MFMAs of the other 32")
    c = 15
    a("s_waitcnt lgkmcnt(8)")
    a(mfma(c, 0, 0))
    for r in reads(c, 3): a(r)
    a("s_waitcnt lgkmcnt(8)")
    a(mfma(c, 1, 0))
    a("s_waitcnt lgkmcnt(4)")
    a(mfma(c, 2, 0))
    a("s_waitcnt lgkmcnt(0)")
    a(mfma(c, 3, 0))
    a(mfma(c, 0, 1))
    a("s_nop 7\ns_nop 2")
    def epi(mi):
        A = ACC[mi]; t = 64 + 16*mi
        o = []
        if O.epi:
            pk = O.epi == 1
            def mul2(d, x, y): return [f"v_pk_mul_f32 v[{d}:{d+1}], v[{x}:{x+1}], v[{y}:{y+1}]"] if pk else [f"v_mul_f32 v{d}, v{x}, v{y}", f"v_mul_f32 v{d+1}, v{x+1}, v{y+1}"]
            def scl2(d, x): return [f"v_pk_mul_f32 v[{d}:{d+1}], v[{x}:{x+1}], s[44:45]"] if pk else [f"v_mul_f32 v{d}, s44, v{x}", f"v_mul_f32 v{d+1}, s44, v{x+1}"]
            def add2(d): return [f"v_pk_add_f32 v[{d}:{d+1}], v[{d}:{d+1}], 1.0 op_sel_hi:[1,0]"] if pk else [f"v_add_f32 v{d}, 1.0, v{d}", f"v_add_f32 v{d+1}, 1.0, v{d+1}"]
            ex = lambda r: f"v_exp_f32 v{t+r}, v{t+r}"
            rc = lambda r: f"v_rcp_f32 v{t+r}, v{t+r}"
            o += scl2(t, A) + scl2(t+2, A+2)
            o += [ex(0)] + scl2(t+4, A+4) + [ex(1)] + scl2(t+6, A+6)
            o += [ex(2)] + mul2(t+8, A, A+8) + [ex(3)] + add2(t)
            o += [ex(4)] + mul2(t+10, A+2, A+10) + [ex(5)] + add2(t+2)
            o += [ex(6)] + mul2(t+12, A+4, A+12) + [ex(7)] + add2(t+4)
            o += [rc(0)] + mul2(t+14, A+6, A+14) + [rc(1)] + add2(t+6)
            o += [rc(2)] + mul2(t, t, t+8) + [rc(3), rc(4), f"v_cvt_pk_bf16_f32 v{4+4*mi}, v{t}, v{t+1}", rc(5)] + mul2(t+2, t+2, t+10)
            o += [rc(6)] + mul2(t+4, t+4, t+12) + [rc(7), f"v_cvt_pk_bf16_f32 v{5+4*mi}, v{t+2}, v{t+3}"] + mul2(t+6, t+6, t+14)
            o += [f"v_cvt_pk_bf16_f32 v{6+4*mi}, v{t+4}, v{t+5}", f"v_cvt_pk_bf16_f32 v{7+4*mi}, v{t+6}, v{t+7}"]
            o.append(f"buffer_store_dwordx4 v[{4+4*mi}:{7+4*mi}], v14, {rs(R_WS)}, 0 offen offset:{2048*mi}")
            return o
        for r in range(0, 8, 2):
            o.append(f"v_pk_mul_f32 v[{t+r}:{t+r+1}], v[{A+r}:{A+r+1}], s[44:45]")
        for r in range(8):
            o.append(f"v_exp_f32 v{t+r}, v{t+r}")
        for r in range(0, 8, 2):
            o.append(f"v_pk_add_f32 v[{t+r}:{t+r+1}], v[{t+r}:{t+r+1}], 1.0 op_sel_hi:[1,0]")
        for r in range(8):
            o.append(f"v_rcp_f32 v{t+r}, v{t+r}")
        for r in range(0, 8, 2):
            o.append(f"v_pk_mul_f32 v[{t+r}:{t+r+1}], v[{t+r}:{t+r+1}], v[{A+r}:{A+r+1}]")
        for r in range(0, 8, 2):
            o.append(f"v_pk_mul_f32 v[{t+r}:{t+r+1}], v[{t+r}:{t+r+1}], v[{A+8+r}:{A+9+r}]")
        for d in range(4):
            o.append(f"v_cvt_pk_bf16_f32 v{4+4*mi+d}, v{t+2*d}, v{t+2*d+1}")
        o.append(f"buffer_store_dwordx4 v[{4+4*mi}:{7+4*mi}], v14, {rs(R_WS)}, 0 offen offset:{2048*mi}")
        return o
    for i, x in enumerate(epi(0)):
        if i == 0: a(mfma(c, 1, 1))
        if i == 5: a(mfma(c, 2, 1))
        if i == 8: a(mfma(c, 3, 1))
        a(x)
    for x in epi(1): a(x)
    stamp(a, "hst")
    a(f"""
    s_waitcnt vmcnt(0)
    buffer_store_dword v3, v15, {rs(R_WS)}, 0 offen
    """)
    stamp(a, "flg")
    if O.nb < 14: a("s_barrier")
    a(f"""
    L_hload:
    s_mov_b32 s80, 0
    s_cmp_lg_u32 s53, 0
    s_cbranch_scc1 L_poll1
    v_and_b32 v22, 7, v2
    v_lshl_add_u32 v22, v22, 7, s91
    L_pz0:
    buffer_load_dword v21, v22, {rs(R_WS)}, 0 offen sc1
    buffer_load_dword v20, v18, {rs(R_WS)}, 0 offen sc1
    s_add_u32 s80, s80, 1
    s_cmp_ge_u32 s80, {O.kfast}
    s_waitcnt vmcnt(0)
    v_cmp_ne_u32 vcc, v12, v21
    s_cbranch_vccz L_pz0_ok
    s_cbranch_scc1 L_poll1
    {"v_cmp_eq_u32 vcc, v3, v20" if O.stop else "v_cmp_ne_u32 vcc, v3, v20"}
    {"s_cbranch_vccnz L_poll1" if O.stop else "s_cbranch_vccz L_go"}
    s_sleep 2
    s_branch L_pz0
    L_pz0_ok:
    """)
    if O.pzdma:
        a.c("hand the news to the back waves: copy one of the flags into LDS, ahead of the first rows of h")
        a(f"""
        v_cmp_ne_u32 vcc, v3, v20
        s_mov_b32 m0, {SY_LDS + 36}
        s_mov_b64 exec, 1
        buffer_load_dword v22, {rs(R_WS)}, 0 offen sc1 lds
        s_mov_b64 exec, -1
        """)
    else:
        a(f"""
        v_mov_b32 v21, {SY_LDS + 36}
        v_cmp_ne_u32 vcc, v3, v20
        ds_write_b32 v21, v12
        s_waitcnt lgkmcnt(0)
        """)
    a(f"""
    s_cbranch_vccz L_go
    L_poll1:
    buffer_load_dword v20, v18, {rs(R_WS)}, 0 offen sc1
    s_add_u32 s80, s80, 1
    s_cmp_ge_u32 s80, {O.kfast}
    s_cbranch_scc1 L_slow
    s_waitcnt vmcnt(0)
    v_cmp_ne_u32 vcc, v3, v20
    s_cbranch_vccz L_go
    {f"s_sleep {O.sl1}" if O.sl1 else ""}
    s_branch L_poll1
    L_go:
    """)
    stamp(a, "go")
    def hload(s):
        a(f"s_add_u32 m0, s55, {s*4096}")
        a(f"s_add_u32 s57, s{82 if s < 7 else 83}, {s*8192}")
        a(f"buffer_load_dwordx4 v19, {rs(R_WS)}, s57 offen sc1 lds")
    def hloop(lead):
        hl = 0
        while hl < lead:
            hload(hl); hl += 1
        for gi, g in enumerate(groups):
            a(f"s_waitcnt vmcnt({hl - 1 - g[-1]})")
            a("s_barrier")
            for _ in range(len(groups[min(gi + 1, len(groups) - 1)])):
                if hl < 14 and hl < lead + g[-1] + len(groups[min(gi + 1, len(groups) - 1)]) + 1:
                    hload(hl); hl += 1
    hloop(O.hlead)
    stamp_flush(a)
    a.c("a producer publishes the write-through copy of h unless its whole group is seen on this die")
    a(f"""
    s_cmp_eq_u32 s90, 0
    s_cbranch_scc1 L_nob
    buffer_load_dword v20, v29, {rs(R_WS)}, 0 offen sc1
    s_waitcnt vmcnt(0)
    v_cmp_ne_u32 vcc, v3, v20
    s_cbranch_vccz L_nob
    """)
    sendb(a)
    a("L_nob:")
    if O.upd == 1: update(a, "L_front_end")
    a("s_endpgm")
    a.c("the producers are not all on this die (or are very late): fall back to the write-through copies")
    a("""
    L_slow:
    s_cmp_eq_u32 s90, 0
    s_cbranch_scc1 L_slow_sent
    """)
    sendb(a)
    a(f"""
    s_mov_b32 s90, 0
    L_slow_sent:
    s_movk_i32 s57, {FB_OFF - FA_OFF}
    s_mov_b32 s80, 0
    L_slow_poll:
    buffer_load_dword v20, v18, {rs(R_WS)}, 0 offen sc1
    buffer_load_dword v21, v18, {rs(R_WS)}, s57 offen sc1
    s_add_u32 s80, s80, 1
    s_waitcnt vmcnt(0)
    v_cmp_ne_u32 vcc, v3, v20
    s_cbranch_vccz L_go
    v_cmp_ne_u32 vcc, v12, v21
    s_cbranch_vccz L_slow_b
    s_sleep 8
    s_cmp_lt_u32 s80, {SPIN}
    s_cbranch_scc1 L_slow_poll
    L_slow_b:
    s_add_u32 s82, s82, {HB_OFF - HA_OFF}
    s_add_u32 s83, s83, {HB_OFF - HA_OFF}
    s_branch L_go
    """)
    a("L_code_end:")
    return a

if __name__ == "__main__":
    opts(sys.argv[2:])
    a = gen()
    hdr = HEADER + NOTES + f"; @launch grid=(256,1,1) block=(512,1,1) lds={LDS}\n.amdgcn_target \"amdgcn-amd-amdhsa--gfx950\"\n"
    open(sys.argv[1], "w").write(hdr + a.text() + kdesc(KN, NV + NA, NV))
```

```python
import os, sys
from asmlib import *

KN = "standalone__swiglu_ffn__sampling_kernel"
X_B, W_B, OUT_B, WS_B = 128*1024*2, 1024*3584*2, 128*1024*2, 268435456
FA_OFF = 0
FB_OFF = FA_OFF + 4096
EP_OFF = FA_OFF + 8192
RG_OFF = FA_OFF + 12288
PZ_OFF = FA_OFF + 16384
HA_OFF = 65536
P_OFF = 1 << 20
HB_OFF = (3 << 20) + HA_OFF
ST_OFF = 8 << 20
R_X, R_G, R_U, R_D, R_WS, R_OUT = 20, 24, 28, 32, 36, 40
WD_LDS = 98304
SY_LDS = WD_LDS + 57344
LDS = SY_LDS + 64
SPIN = int(os.environ.get("DIAG_SPIN", 1 << 18))
NV, NA = 96, 160

class O:
    stamp = 0; sync = 1; sw = 4; endwait = 1
    kfast = 32; sl1 = 0; sl2 = 0
    xg = 4; xlead = 4; r2 = 8; r3 = 13; hold = 5; wdk = 5; touch = 1; npf0 = 3
    wd13 = 3; wd14 = 5; hlead = 5; fine = 3
    NP = 11; N1 = 6; cap = 3; slk = 1
    fdef = 0; bdef = 0; cp0 = 1; cp1 = 0; roll = 0; upd = 0; own = 1; f2 = 6; f3 = 11; mark = 0; epi = 0; pzdma = 1; lag = 1; rfirst = 0; xafter = 0; x3 = 3; nb = 11; npz = 2; slz = 12; pzc = 99; pzf = 99; stop = 0; opf = 0; vt = 0; dfl = 0; dord = 0; pfl = 0; prio = 0; vtc = 7; n2 = 5; n3 = 9
PTS = {}
def opts(argv):
    for x in argv:
        k, v = x.split("=")
        if k == "pts":
            PTS.clear(); PTS["start"] = 0
            for i, nm in enumerate(v.split(",")): PTS[nm] = i + 1
            O.stamp = 1
        else:
            assert hasattr(O, k), k
            setattr(O, k, int(v))
def rs(r): return f"s[{r}:{r+3}]"
def stamp(a, name):
    if O.stamp and name in PTS:
        idx = PTS[name]
        a(f"s_memrealtime s[{64+2*idx}:{65+2*idx}]")
_fl = [0]
def stamp_flush(a):
    if not O.stamp: return
    _fl[0] += 1
    L = f"L_sf{_fl[0]}"
    a(f"""
    s_memrealtime s[78:79]
    s_cmp_lg_u32 s53, {O.sw}
    s_cbranch_scc1 {L}
    s_waitcnt lgkmcnt(0)
    """)
    for i in range(8):
        a(f"v_mov_b32 v{80+i}, s{64+2*i}")
    a(f"""
    s_lshl_b32 s63, s2, 5
    s_add_u32 s63, s63, {ST_OFF}
    v_mov_b32 v88, s63
    s_mov_b64 exec, 1
    buffer_store_dwordx4 v[80:83], v88, {rs(R_WS)}, 0 offen
    buffer_store_dwordx4 v[84:87], v88, {rs(R_WS)}, 0 offen offset:16
    s_mov_b64 exec, -1
    {L}:
    """)
def lines(txt):
    return [x.strip() for x in txt.split("\n") if x.strip()]

def pf_role(a, tag):
    a(f"""
    s_mov_b32 s50, 1
    s_cmp_ge_u32 s52, 3
    s_addc_u32 s51, s52, 0
    s_cmp_ge_u32 s52, 10
    s_addc_u32 s51, s51, 0
    s_mov_b32 s46, 0
    s_cmp_ge_u32 s52, 14
    s_cbranch_scc0 L_pf_role_{tag}
    s_and_b32 s50, s52, 1
    s_mul_i32 s46, s50, 7
    s_cmp_ge_u32 s52, 16
    s_cselect_b32 s51, 11, 3
    L_pf_role_{tag}:
    """)
P1_ROLE = """
    s_mov_b32 s50, 0
    s_cmp_ge_u32 s49, 3
    s_addc_u32 s51, s49, 0
    s_cmp_ge_u32 s49, 10
    s_addc_u32 s51, s51, 0
    s_mov_b32 s46, 0
"""
FRONT_SETUP = f"""
    s_getreg_b32 s86, hwreg(HW_REG_XCC_ID, 0, 4)
    s_lshl_b32 s86, s86, 24
    s_lshl_b32 s55, s53, 10
    s_lshl_b32 s82, s46, 13
    s_sub_u32 s83, 0, s82
    s_mul_i32 s54, s48, 112
    s_lshl_b32 s57, s50, 2
    s_add_u32 s54, s54, s57
    v_add_u32 v6, s54, v1
    v_lshlrev_b32 v6, 10, v6
    v_lshl_add_u32 v19, v2, 4, v6
    v_add_u32 v19, {HA_OFF}, v19
    s_lshl_b32 s54, s48, 1
    s_add_u32 s54, s54, s50
    s_lshl_b32 s54, s54, 7
    s_add_u32 s54, s54, {FA_OFF}
    v_min_u32 v6, 27, v2
    v_lshl_add_u32 v18, v6, 2, s54
    s_lshl_b32 s54, s48, 7
    s_add_u32 s54, s54, {RG_OFF}
    v_and_b32 v6, 31, v2
    v_lshl_add_u32 v29, v6, 2, s54
    v_and_b32 v7, 1, v6
    v_lshlrev_b32 v7, 7, v7
    v_lshrrev_b32 v8, 1, v6
    v_lshl_add_u32 v7, v8, 4, v7
    v_cmp_gt_u32 vcc, 14, v6
    s_lshl_b32 s54, s48, 8
    s_add_u32 s54, s54, {FA_OFF}
    v_add_u32 v7, s54, v7
    v_cndmask_b32 v29, v29, v7, vcc
    s_cmp_lt_u32 s49, 14
    s_cselect_b32 s54, 14, 0
    s_add_u32 s54, s54, s49
    s_lshl_b32 s54, s54, 10
    s_add_u32 s91, s54, {PZ_OFF}
    s_mov_b32 s38, {WS_B}
    s_mov_b32 s39, 0x20000
    s_mov_b64 s[36:37], s[16:17]
"""
def back_setup():
    p = [f"""
    s_mov_b64 s[32:33], s[10:11]
    s_mov_b32 s34, {W_B}
    s_mov_b32 s35, 0x20000
    s_mov_b64 s[36:37], s[16:17]
    s_mov_b32 s38, {WS_B}
    s_mov_b32 s39, 0x20000
    s_mov_b64 s[40:41], s[12:13]
    s_mov_b32 s42, {OUT_B}
    s_mov_b32 s43, 0x20000
    s_and_b32 s55, s53, 3
    s_lshl_b32 s55, s55, 10
    s_lshl_b32 s84, s46, 16
    s_sub_u32 s85, 0, s84
    {"s_getpc_b64 s[92:93]" if O.mark else ""}
    {"s_lshr_b32 s81, s55, 8" if O.mark else ""}
    {f"s_add_u32 s81, s81, {SY_LDS}" if O.mark else ""}
    """, f"""
    v_lshrrev_b32 v3, 3, v2
    v_and_b32 v4, 7, v2
    v_and_b32 v6, 6, v3
    v_xor_b32 v4, v4, v6
    v_lshl_add_u32 v3, v1, 3, v3
    s_mul_i32 s60, s48, 448
    v_add_u32 v3, s60, v3
    v_lshlrev_b32 v3, 11, v3
    s_lshl_b32 s60, s51, 7
    v_add_u32 v3, s60, v3
    v_lshl_add_u32 v17, v4, 4, v3
    v_lshlrev_b32 v3, 10, v1
    v_lshl_add_u32 v19, v2, 4, v3
    """, f"""
    v_lshrrev_b32 v3, 4, v2
    v_bfe_u32 v4, v2, 2, 2
    v_and_b32 v7, 1, v3
    v_lshrrev_b32 v6, 1, v3
    v_lshlrev_b32 v6, 4, v6
    v_lshl_add_u32 v6, v7, 2, v6
    v_add_u32 v6, v6, v4
    v_lshlrev_b32 v6, 7, v6
    v_and_b32 v8, 3, v2
    v_lshl_add_u32 v6, v8, 3, v6
    v_add_u32 v6, {WD_LDS}, v6
    v_lshrrev_b32 v4, 1, v4
    v_lshl_add_u32 v4, v7, 1, v4
    """, "\n".join(f"v_xor_b32 v7, {t}, v4\nv_lshl_add_u32 v{20+t}, v7, 5, v6" for t in range(4)), f"""
    v_bfe_u32 v4, v2, 3, 1
    v_lshl_add_u32 v6, v1, 1, v4
    s_lshl_b32 s60, s49, 3
    v_add_u32 v6, s60, v6
    v_lshlrev_b32 v6, 3, v6
    v_add_u32 v6, s48, v6
    v_lshlrev_b32 v6, 10, v6
    v_lshl_add_u32 v6, v3, 7, v6
    v_and_b32 v7, 7, v2
    v_lshl_add_u32 v6, v7, 4, v6
    v_add_u32 v8, {P_OFF}, v6
    """, f"""
    s_cmp_lt_u32 s49, 14
    s_cselect_b32 s61, 14*8, 0
    s_add_u32 s61, s61, s60
    s_lshl_b32 s61, s61, 7
    s_add_u32 s61, s61, {PZ_OFF}
    v_lshl_add_u32 v18, v7, 7, s61
    s_add_u32 s60, s60, s48
    s_lshl_b32 s60, s60, 13
    s_add_u32 s60, s60, {P_OFF}
    v_and_b32 v6, 15, v2
    v_lshl_add_u32 v6, v1, 4, v6
    v_lshlrev_b32 v6, 4, v6
    v_lshl_add_u32 v6, v3, 11, v6
    v_add_u32 v6, s60, v6
    """, f"""
    s_lshl_b32 s60, s50, 6
    s_lshl_b32 s61, s48, 3
    s_add_u32 s60, s60, s61
    v_add_u32 v7, s60, v7
    v_lshlrev_b32 v7, 11, v7
    v_lshl_add_u32 v7, v4, 3, v7
    v_and_b32 v4, 1, v1
    v_lshl_add_u32 v7, v4, 4, v7
    v_lshrrev_b32 v4, 1, v1
    v_lshl_add_u32 v7, v4, 6, v7
    v_and_b32 v4, 1, v3
    v_lshl_add_u32 v7, v4, 2, v7
    v_lshrrev_b32 v4, 1, v3
    v_lshl_add_u32 v7, v4, 5, v7
    s_lshl_b32 s60, s51, 7
    v_add_u32 v7, s60, v7
    """]
    return p
LDS_INIT = f"""
    v_mov_b32 v16, {SY_LDS}
    v_lshl_add_u32 v14, v1, 2, v16
    v_mov_b32 v9, 0
    ds_write_b32 v14, v9
    ds_write_b32 v14, v9 offset:16
    ds_write_b32 v16, v9 offset:36
    v_mov_b32 v15, -1
"""
def nonce1(a, line):
    a(f"""
    s_movk_i32 s88, {EP_OFF}
    s_load_dword s59, s[16:17], s88
    s_load_dword s87, s[14:15], 0
    """)
    if line:
        a(f"""
        s_lshl_b32 s88, s48, 7
        s_add_u32 s88, s88, {RG_OFF}
        s_load_dword s87, s[16:17], s88
        s_add_u32 s89, s88, 64
        s_load_dword s87, s[16:17], s89
        """)
def nonce2(a, vn):
    a(f"""
    v_mov_b32 v30, 0
    s_add_u32 s59, s59, 1
    s_bitset1_b32 s59, 31
    global_load_dword v{vn}, v30, s[14:15] sc1
    """)
def nonce3(a, vn, share=True):
    a(f"""
    v_cmp_eq_u32 vcc, 0, v{vn}
    v_mov_b32 v30, s59
    {f"v_mov_b32 v28, {SY_LDS + 32}" if share else "s_nop 0"}
    v_cndmask_b32 v{vn}, v{vn}, v30, vcc
    {f"ds_write_b32 v28, v{vn}" if share else ""}
    """)
def wd_list():
    L = [f"s_add_u32 m0, s55, {WD_LDS + s*4096}\ns_add_u32 s57, s{84 if s < 7 else 85}, {s*65536}\nbuffer_load_dwordx4 v17, {rs(R_D)}, s57 offen lds" for s in range(14)]
    if O.mark:
        for k, n in enumerate([O.N1] + ([O.NP] if O.NP > O.N1 else [])):
            L[n - 1] += f"\ns_add_u32 m0, s81, {16*k}\ns_mov_b64 exec, 1\nglobal_load_lds_dword v9, s[92:93]\ns_mov_b64 exec, -1"
    return L
def sendb(a):
    a(f"""
    s_mov_b32 s57, {HB_OFF - HA_OFF}
    s_movk_i32 s58, {FB_OFF - FA_OFF}
    buffer_store_dwordx4 v[4:7], v14, {rs(R_WS)}, s57 offen sc1
    buffer_store_dwordx4 v[8:11], v14, {rs(R_WS)}, s57 offen offset:2048 sc1
    s_waitcnt vmcnt(0)
    buffer_store_dword v12, v15, {rs(R_WS)}, s58 offen sc1
    """)

def update(a, done):
    a.c("one wave of the launch moves the epoch on: d_debug first, so that a late reader can tell")
    a(f"""
    s_lshl_b32 s54, s2, 3
    s_add_u32 s54, s54, s53
    s_cmp_eq_u32 s54, {255*8 + 3}
    s_cbranch_scc0 {done}
    v_mov_b32 v26, 0
    v_mov_b32 v27, {EP_OFF}
    s_mov_b64 exec, 1
    global_store_dword v26, v12, s[14:15] sc1
    s_waitcnt vmcnt(0)
    global_store_dword v27, v12, s[16:17] sc1
    s_mov_b64 exec, -1
    {done}:
    """)

NOTES = """;
"""

def gen():
    a = Asm()
    kstart(a, KN)
    if O.stamp and O.sync:
        a("""
        s_memrealtime s[44:45]
        s_waitcnt lgkmcnt(0)
        s_add_u32 s46, s44, 612
        s_and_b32 s46, s46, 0xfffffe00
        L_sync:
        s_memrealtime s[44:45]
        s_waitcnt lgkmcnt(0)
        s_sub_u32 s47, s44, s46
        s_cmp_lt_i32 s47, 0
        s_cbranch_scc1 L_sync
        """)
    stamp(a, "start")
    a(f"""
    s_load_dwordx8 s[4:11], s[0:1], 0
    s_load_dwordx4 s[12:15], s[0:1], 32
    s_load_dwordx2 s[16:17], s[0:1], 48
    v_lshrrev_b32 v1, 6, v0         ; wave
    s_cmp_ge_u32 s2, 256
    s_cbranch_scc1 L_end
    v_readfirstlane_b32 s53, v1
    s_and_b32 s48, s2, 7            ; j
    s_lshr_b32 s49, s2, 3           ; q
    v_and_b32 v2, 63, v0            ; lane
    s_mov_b32 s22, {X_B}
    s_mov_b32 s23, 0x20000
    s_mov_b32 s26, {W_B}
    s_mov_b32 s27, 0x20000
    """)
    if O.cp0:
        a.c("wave 1 of every workgroup brings four lines of the kernel's code into this die's L2")
        a(f"""
        s_cmp_eq_u32 s53, 1
        s_cbranch_scc0 L_nocp
        s_getpc_b64 s[44:45]
        L_pc:
        v_and_b32 v3, 3, v2
        v_lshl_add_u32 v3, s49, 2, v3
        v_min_u32 v3, (L_code_end-L_pc-4)/128, v3
        v_lshlrev_b32 v3, 7, v3
        global_load_dword v31, v3, s[44:45]
        L_nocp:
        """)
    a(f"""
    s_cmp_lt_u32 s49, 14
    s_cbranch_scc1 L_p1
    s_sub_u32 s52, s49, 14          ; p
    s_cmp_lg_u32 s53, 0
    s_cbranch_scc1 L_pf_other
    """)
    a.c("prefetch wave: per 64-row chunk 50 lines of Wg (odd p) or Wu (even p), and 8 rows of x")
    a(f"""
    s_lshr_b32 s54, s52, 1
    s_mul_i32 s54, s54, 50
    v_add_u32 v3, s54, v2
    v_mul_u32_u24 v5, 9363, v3
    v_lshrrev_b32 v5, 16, v5        ; row = i / 7
    v_mul_u32_u24 v6, 7, v5
    v_sub_u32 v6, v3, v6            ; column = i % 7
    v_mul_u32_u24 v5, 7168, v5
    v_lshl_add_u32 v5, v6, 7, v5
    s_mul_i32 s54, s48, 896
    v_add_u32 v5, s54, v5
    v_cmp_gt_u32 vcc, 50, v2
    s_movk_i32 s54, 448
    v_cmp_gt_u32 s[44:45], s54, v3
    v_bfrev_b32 v7, 2
    s_lshl_b32 s54, s52, 3
    s_and_b64 vcc, vcc, s[44:45]
    v_lshrrev_b32 v3, {O.xg.bit_length() - 1}, v2
    v_add_u32 v3, s54, v3
    v_lshlrev_b32 v6, 11, v3
    v_and_b32 v3, {O.xg - 1}, v2
    v_lshl_add_u32 v6, v3, 7, v6
    v_cndmask_b32 v10, v7, v5, vcc
    v_cmp_gt_u32 vcc, {8 * O.xg}, v2
    s_bitcmp1_b32 s52, 0
    s_nop 0
    v_cndmask_b32 v11, v7, v6, vcc  ; rows >= 128 fall out of range
    s_waitcnt lgkmcnt(0)
    s_cselect_b64 s[24:25], s[6:7], s[8:9]
    s_mov_b64 s[20:21], s[4:5]
    """)
    stamp(a, "karg")
    npf = [0]
    def pf(c):
        if O.xafter and c == 0:
            a(f"buffer_load_dword v20, v10, {rs(R_G)}, 0 offen"); npf[0] += 1
            a(f"buffer_load_dword v22, v11, {rs(R_X)}, 0 offen"); npf[0] += 1
            return
        for g_ in range(16 // O.xg):
            if max(0, g_ * O.xg - O.xlead) == c:
                so = "0"
                if g_:
                    a(f"s_movk_i32 s58, {g_ * O.xg * 128}"); so = "s58"
                a(f"buffer_load_dword v22, v11, {rs(R_X)}, {so} offen"); npf[0] += 1
        so = "0"
        if c:
            a(f"s_mov_b32 s57, {c*64*7168}"); so = "s57"
        a(f"buffer_load_dword v20, v10, {rs(R_G)}, {so} offen {['', 'sc1', 'sc0', 'sc0 sc1'][O.pfl]}"); npf[0] += 1
    for c in range(O.npf0): pf(c)
    a("s_branch L_pf_go_on")
    a(f"""
    L_p1:
    s_and_b32 s47, s49, 1
    s_lshr_b32 s52, s49, 1
    s_mul_i32 s54, s48, 7
    s_add_u32 s52, s52, s54
    s_cmp_lt_u32 s53, 4
    s_cbranch_scc1 L_front
    v_and_b32 v1, 3, v1
    s_lshl_b32 s54, s52, 7
    v_lshrrev_b32 v3, 3, v2
    v_and_b32 v4, 7, v2
    v_lshl_add_u32 v5, v1, 4, v3
    v_mul_u32_u24 v6, 7168, v5
    v_add_u32 v6, s54, v6
    v_and_b32 v7, 2, v3
    v_xor_b32 v7, v7, v4
    v_lshl_add_u32 v10, v7, 4, v6
    v_xor_b32 v11, 64, v10
    v_lshrrev_b32 v7, 1, v3
    v_xor_b32 v7, v7, v4
    s_lshl_b32 s54, s47, 6
    v_add_u32 v5, s54, v5
    v_lshlrev_b32 v5, 11, v5
    v_lshl_add_u32 v12, v7, 4, v5
    v_xor_b32 v13, 64, v12
    v_add_u32 v13, 0x4000, v13
    s_and_b32 s56, s53, 3
    s_lshl_b32 s56, s56, 11
    s_mov_b32 s30, {W_B}
    s_mov_b32 s31, 0x20000
    """)
    a(LDS_INIT)
    a("""
    s_waitcnt lgkmcnt(0)
    s_mov_b64 s[20:21], s[4:5]
    s_mov_b64 s[24:25], s[6:7]
    s_mov_b64 s[28:29], s[8:9]
    """)
    stamp(a, "karg")
    Q = []
    def dma(c, part="xw"):
        sl = (c % 4) * 24576
        L = list(enumerate([(12, R_X, c*128), (13, R_X, c*128), (10, R_G, c*458752), (10, R_G, c*458752+57344), (11, R_U, c*458752), (11, R_U, c*458752+57344)]))
        if O.dord == 1: L = [L[i] for i in (0, 2, 4, 1, 3, 5)]
        if O.dord == 2: L = [L[i] for i in (2, 3, 4, 5, 0, 1)]
        for k, (v, r, so) in L:
            if ("x" if k < 2 else "w") not in part: continue
            a(f"s_add_u32 m0, s56, {sl + (k//2)*8192 + (k%2)*1024}\ns_mov_b32 s57, {so}\nbuffer_load_dwordx4 v{v}, {rs(r)}, s57 offen {['', 'sc1', 'sc0', 'sc0 sc1'][O.dfl]} lds")
            Q.append(c)
    if O.x3:
        for c in range(O.x3): dma(c, "x")
    else: dma(0)
    stamp(a, "d0")
    a("s_branch L_back_go_on")
    a("L_front:")
    stamp(a, "fin")
    a(f"""
    v_bfe_u32 v4, v2, 4, 1
    v_lshrrev_b32 v5, 5, v2         ; k half
    v_bfe_u32 v6, v2, 2, 2
    v_lshrrev_b32 v7, 1, v6
    v_lshl_add_u32 v7, v4, 1, v7
    v_xor_b32 v7, v7, v1
    v_lshl_add_u32 v6, v5, 3, v6
    v_lshlrev_b32 v6, 7, v6
    v_lshl_add_u32 v6, v7, 5, v6
    v_lshl_add_u32 v6, v4, 13, v6
    v_and_b32 v7, 3, v2
    v_lshl_add_u32 v6, v7, 3, v6
    v_add_u32 v16, 0x2000, v6
    v_and_b32 v6, 31, v2
    v_bfe_u32 v7, v6, 1, 3
    v_xor_b32 v7, v7, v5
    v_lshlrev_b32 v6, 7, v6
    """)
    for s in range(4):
        a(f"v_xor_b32 v8, {2*s}, v7")
        a(f"v_lshl_add_u32 v{20+s}, v8, 4, v6")
    a("s_branch L_front_go_on")

    a("L_pf_go_on:")
    if not O.cp0:
        a(f"""
        s_cmp_lt_u32 s52, 16
        s_cbranch_scc1 L_nocp
        s_getpc_b64 s[44:45]
        L_pc:
        s_sub_u32 s44, s44, L_pc-{KN}
        s_subb_u32 s45, s45, 0
        s_and_b32 s54, s52, 1
        s_lshl_b32 s54, s54, 6
        v_add_u32 v3, s54, v2
        v_min_u32 v3, (L_code_end-{KN}-4)/128, v3
        v_lshlrev_b32 v3, 7, v3
        global_load_dword v23, v3, s[44:45]
        L_nocp:
        """)
    if O.touch:
        a.c("one first touch per workgroup, so that the address translations are there when they are needed")
        a("""
        s_cmp_lt_u32 s52, 14
        s_cselect_b64 s[44:45], s[16:17], s[12:13]
        s_cmp_lt_u32 s52, 12
        s_cselect_b64 s[44:45], s[10:11], s[44:45]
        s_cmp_lt_u32 s52, 8
        s_cselect_b64 s[44:45], s[8:9], s[44:45]
        s_cmp_lt_u32 s52, 4
        s_cselect_b64 s[44:45], s[6:7], s[44:45]
        s_and_b32 s54, s52, 3
        s_lshl_b32 s54, s54, 21
        s_cmp_lt_u32 s52, 14
        s_cselect_b32 s54, s54, 0
        s_load_dword s87, s[44:45], s54
        """)
    nonce1(a, True)
    def poison():
        a.c("fill this workgroup's inbox and that of the paired producer with the not-yet-written pattern")
        a(f"""
        s_lshl_b32 s54, s49, 3
        s_add_u32 s54, s54, s48
        s_lshl_b32 s57, s54, 13
        s_add_u32 s57, s57, {P_OFF}
        v_lshl_add_u32 v3, v2, 4, s57
        v_add_u32 v8, 0x1000, v3
        s_lshl_b32 s54, s54, 7
        s_add_u32 s54, s54, {PZ_OFF}
        v_mov_b32 v13, s54
        v_mov_b32 v4, -1
        v_mov_b32 v5, -1
        v_mov_b32 v6, -1
        v_mov_b32 v7, -1
        s_cmp_lt_u32 s52, 14
        """)
        for k in range(8):
            a(f"global_store_dwordx4 v{3 if k < 4 else 8}, v[4:7], s[16:17] offset:{(k % 4)*1024} sc1")
        a(f"""
        s_cbranch_scc0 L_pz_one
        v_subrev_u32 v3, {14*8*8192}, v3
        v_subrev_u32 v8, {14*8*8192}, v8
        """)
        for k in range(8):
            a(f"global_store_dwordx4 v{3 if k < 4 else 8}, v[4:7], s[16:17] offset:{(k % 4)*1024} sc1")
        a("L_pz_one:")
    for c in range(O.npf0, 16):
        if c == O.pzc:
            assert not (O.r2 < c <= O.r3 and False)
            poison(); npf[0] += 8; pmark = npf[0]
        if c == O.pzf:
            assert c > O.r3 and c > O.pzc
            a(f"s_waitcnt vmcnt({npf[0] - pmark})")
            a("global_store_dword v13, v12, s[16:17] sc1"); npf[0] += 1
        if c == O.r2:
            a("""
            s_getreg_b32 s86, hwreg(HW_REG_XCC_ID, 0, 4)
            s_lshl_b32 s86, s86, 24
            s_lshl_b32 s89, s49, 2
            s_add_u32 s88, s88, s89
            v_mov_b32 v31, s88
            s_waitcnt lgkmcnt(0)
            """)
            nonce2(a, 12); mark = npf[0]
        if c == O.r3:
            a(f"s_waitcnt vmcnt({npf[0] - mark})")
            nonce3(a, 12)
            a("v_xor_b32 v30, s86, v12")
            stamp(a, "non")
        pf(c)
    stamp(a, "hia")
    if O.hold >= 0: a(f"s_waitcnt vmcnt({O.hold})")
    stamp(a, "hib")
    a.c("announce this workgroup's die; bring the lines of the h buffer into L2 before they are written")
    a("global_store_dword v31, v30, s[16:17]")
    if O.pzc > 15: poison()
    a(f"""
    s_lshl_b32 s54, s52, 6
    v_add_u32 v3, s54, v2
    v_min_u32 v3, 895, v3
    s_mul_i32 s54, s48, 114688
    s_add_u32 s54, s54, {HA_OFF}
    v_lshl_add_u32 v3, v3, 7, s54
    global_load_dword v24, v3, s[16:17]
    """)
    if O.opf:
        a.c("likewise the sixteen output lines that this workgroup and its partner write at the end")
        pf_role(a, "o")
        a(f"""
        v_and_b32 v3, 7, v2
        v_bfe_u32 v4, v2, 3, 1
        v_lshl_add_u32 v3, v4, 6, v3
        s_lshl_b32 s54, s48, 3
        v_add_u32 v3, s54, v3
        s_lshl_b32 s54, s51, 7
        v_lshl_add_u32 v3, v3, 11, s54
        global_load_dword v25, v3, s[12:13]
        """)
    a(f"""
    s_waitcnt lgkmcnt(0)
    s_barrier
    {f"s_waitcnt vmcnt({1 + O.opf})" if O.pzf > 15 else ""}
    {"global_store_dword v13, v12, s[16:17] sc1" if O.pzf > 15 else ""}
    s_barrier
    """)
    stamp(a, "pfi")
    a("s_branch L_pf_front")
    a(f"""
    L_pf_other:
    s_cmp_ge_u32 s53, 4
    s_cbranch_scc1 L_back_pf
    s_waitcnt lgkmcnt(0)
    s_barrier
    s_barrier
    """)
    if O.vt & 2:
        a("""
        s_cmp_eq_u32 s53, 2
        s_cbranch_scc0 L_pf_front
        v_mov_b32 v6, 0
        global_load_dword v31, v6, s[12:13]
        """)
    if O.cp1:
        a.c("touch the code of the later phases again: it is the oldest resident of the L2 by now")
        a(f"""
        s_cmp_eq_u32 s53, 1
        s_cbranch_scc0 L_pf_front
        s_getpc_b64 s[44:45]
        L_pc1:
        v_min_u32 v3, 5, v2
        s_mul_i32 s54, s52, 6
        v_add_u32 v3, s54, v3
        v_min_u32 v3, (L_code_end-L_pc1-4)/128, v3
        v_lshlrev_b32 v3, 7, v3
        global_load_dword v31, v3, s[44:45]
        """)
    a(f"""
    L_pf_front:
    """)
    pf_role(a, "f")
    a(FRONT_SETUP)
    a(f"""
    v_mov_b32 v5, {SY_LDS + 32}
    ds_read_b32 v12, v5
    s_mov_b32 s90, 0
    v_bfrev_b32 v14, 2
    v_bfrev_b32 v15, 2
    s_waitcnt lgkmcnt(0)
    v_xor_b32 v3, s86, v12
    """)
    if O.upd == 0: update(a, "L_upd_done")
    if O.npz:
        a.c("look for the inbox flags while the Wd tile arrives (this also leaves them in L2 for the paired producer)")
        a(f"""
        s_cmp_lg_u32 s53, 0
        s_cbranch_scc1 L_pzp_done
        v_and_b32 v22, 7, v2
        v_lshl_add_u32 v22, v22, 7, s91
        s_mov_b32 s80, 0
        L_pzp:
        buffer_load_dword v21, v22, {rs(R_WS)}, 0 offen sc1
        s_add_u32 s80, s80, 1
        s_cmp_ge_u32 s80, {O.npz}
        s_waitcnt vmcnt(0)
        v_cmp_ne_u32 vcc, v12, v21
        s_cbranch_vccz L_pzp_done
        s_cbranch_scc1 L_pzp_done
        s_sleep {O.slz}
        s_branch L_pzp
        L_pzp_done:
        """)
    a(f"""
    s_barrier
    s_branch L_hload
    L_back_pf:
    v_and_b32 v1, 3, v1
    """)
    a(LDS_INIT)
    pf_role(a, "b")
    a("s_waitcnt lgkmcnt(0)")
    for p in back_setup(): a(p)
    a("s_barrier")
    wdl = wd_list()
    for i, d in enumerate(wdl):
        if i == O.wdk: a("s_barrier")
        a(d)
    a("ds_read_b32 v5, v16 offset:32")
    a("s_branch L_p2")

    a("L_back_go_on:")
    if O.prio & 1: a("s_setprio 1")
    if O.x3: dma(0, "w")
    dma(1, "w" if O.x3 > 1 else "xw")
    stamp(a, "d1")
    nonce1(a, False)
    a(P1_ROLE)
    pieces = back_setup()
    if not O.bdef:
        for p in pieces: a(p)
        pieces = []
    issued, wd, c0 = 3, 0, 0
    if O.roll:
        assert not pieces
        a("s_waitcnt lgkmcnt(0)")
        nonce2(a, 5)
        dma(2)
        a(f"""
        s_movk_i32 s62, {3*128}
        s_mov_b32 s63, {3*458752}
        s_mov_b32 s89, {3*458752 + 57344}
        s_mov_b32 s81, 0
        L_ld_loop:
        """)
        for c in range(4):
            sl = ((c + 3) % 4) * 24576
            a(f"""
            s_waitcnt vmcnt(12)
            s_barrier
            s_add_u32 m0, s56, {sl}
            s_nop 0
            buffer_load_dwordx4 v12, {rs(R_X)}, s62 offen lds
            s_add_u32 m0, s56, {sl + 1024}
            s_nop 0
            buffer_load_dwordx4 v13, {rs(R_X)}, s62 offen lds
            s_add_u32 m0, s56, {sl + 8192}
            s_addk_i32 s62, 128
            buffer_load_dwordx4 v10, {rs(R_G)}, s63 offen lds
            s_add_u32 m0, s56, {sl + 8192 + 1024}
            s_nop 0
            buffer_load_dwordx4 v10, {rs(R_G)}, s89 offen lds
            s_add_u32 m0, s56, {sl + 16384}
            s_nop 0
            buffer_load_dwordx4 v11, {rs(R_U)}, s63 offen lds
            s_add_u32 m0, s56, {sl + 16384 + 1024}
            s_add_u32 s63, s63, 458752
            buffer_load_dwordx4 v11, {rs(R_U)}, s89 offen lds
            s_add_u32 s89, s89, 458752
            """)
        a("""
        s_add_u32 s81, s81, 1
        s_cmp_lt_u32 s81, 3
        s_cbranch_scc1 L_ld_loop
        """)
        for c in range(3, 15): Q.extend([c] * 6)
        Q.insert(0, "n")
        issued, c0 = 15, 12
        O.n2, O.n3 = -1, 12
    else:
        dma(2, "w" if O.x3 > 2 else "xw")
    for c in range(c0, 16):
        stamp(a, f"w{c}")
        a(f"s_waitcnt vmcnt({len(Q) - 1 - max(i for i, t in enumerate(Q) if t == c)})" + (" lgkmcnt(0)" if (c == O.n3 + (1 if O.roll else 2) and not O.own) else ""))
        stamp(a, f"v{c}")
        a("s_barrier")
        stamp(a, f"c{c}")
        if c == O.n3:
            assert Q.index("n") < max(i for i, t in enumerate(Q) if t == c)
            nonce3(a, 5, not O.own)
        if issued < 16:
            dma(issued, "w" if issued < O.x3 else "xw"); issued += 1
        else:
            n = min({13: O.wd13, 14: O.wd14, 15: 14}[c], O.nb - wd)
            for d in wdl[wd:wd+n]:
                a(d); Q.extend(["d"] * d.count("_load_"))
            wd += n
        if c == O.n2:
            a("s_waitcnt lgkmcnt(0)")
            nonce2(a, 5); Q.append("n")
        elif pieces and c >= O.bdef: a(pieces.pop(0))
    assert not pieces
    if O.nb < 14: a(f"s_waitcnt vmcnt({O.nb - O.N1})")
    a("L_p2:")
    stamp(a, "p2in")
    def areg(slot, t, n, o=0):
        base = (slot*4 + t) * 4 + o
        return ar(base, n) if slot < 10 else vr(64 + base - 160, n)
    def areads(s, slot):
        out = []
        for t in range(4):
            out.append(f"ds_read_b64_tr_b16 {areg(slot, t, 2)}, v{20+t} offset:{s*4096}")
            out.append(f"ds_read_b64_tr_b16 {areg(slot, t, 2, 2)}, v{20+t} offset:{s*4096+1024}")
        return out
    def lsync(k):
        a(f"""
        {"" if O.mark else f"ds_write_b32 v14, v15 offset:{16*k}"}
        L_sy{k}:
        ds_read_b128 v[40:43], v16 offset:{16*k}
        s_waitcnt lgkmcnt(0)
        v_and_b32 v40, v40, v41
        v_and_b32 v42, v42, v43
        v_and_b32 v40, v40, v42
        v_cmp_eq_u32 vcc, 0, v40
        s_cbranch_vccnz L_sy{k}
        """)
    NP, N1 = O.NP, O.N1
    if not O.mark: a(f"s_waitcnt vmcnt({14 - N1})")
    stamp(a, "wv")
    lsync(0)
    stamp(a, "wd1")
    for s in range(N1):
        if s >= 1: a("s_waitcnt lgkmcnt(6)")
        for r in areads(s, s): a(r)
    if O.nb < 14:
        a.c("producers request the rest of their Wd tile once h is published")
        a("s_cmp_ge_u32 s49, 14")
        a("s_cbranch_scc1 L_nobf")
        a("s_barrier")
        for d in wdl[O.nb:]: a(d)
        a("L_nobf:")
    if NP > N1:
        if not O.mark: a(f"s_waitcnt vmcnt({14 - NP})")
        lsync(1)
        stamp(a, "wd2")
        for s in range(N1, NP):
            if s > N1: a("s_waitcnt lgkmcnt(6)")
            for r in areads(s, s): a(r)
    a(f"""
    s_cmp_lt_u32 s49, 14
    s_cbranch_scc1 L_nob2
    s_barrier
    L_nob2:
    s_waitcnt lgkmcnt(8)
    """)
    stamp(a, "rdy")
    if "all" in PTS:
        a("s_waitcnt vmcnt(0)"); stamp(a, "all")
    AC = 24
    groups = {2: [[0],[1,2],[3,4],[5,6],[7,8],[9,10],[11,12],[13]],
              3: [[0],[1],[2,3],[4,5],[6,7],[8,9],[10,11],[12],[13]],
              4: [[s_] for s_ in range(14)],
              8: [[0,1],[2,3],[4,5],[6,7],[8,9],[10,11],[12],[13]],
              5: [[0],[1],[2,3],[4,5,6],[7,8,9],[10,11,12],[13]],
              6: [[0],[1,2],[3,4,5],[6,7,8],[9,10,11],[12,13]],
              7: [[0],[1],[2,3],[4,5],[6,7,8],[9,10,11],[12,13]]}[O.fine]
    def breg(s): return 40 + 4*(s % 6)
    D = O.lag
    NI = len(groups) + D
    it_of = {s_: gi + D for gi, g in enumerate(groups) for s_ in g}
    plan = [[] for _ in range(NI)]
    room = [0] * D + [O.cap * len(groups[i - D]) for i in range(D, NI)]
    i = NI - 1
    for s_ in range(13, NP - 1, -1):
        for r in reversed(areads(s_, s_ % 12)):
            i = min(i, it_of[s_] - 1 - O.slk, len(groups) - 1)
            while room[i] == 0: i -= 1
            assert i >= 1 and (s_ < 12 or i > it_of[s_ - 12]), (s_, i)
            plan[i].insert(0, (r, f"A{s_}")); room[i] -= 1
    LQ = ["P"] * 8
    landed = NP - 1
    def emit(x):
        a(x[0])
        if x[1]: LQ.append(x[1])
    for it in range(NI):
        prev = groups[it - D] if it >= D else []
        need = [f"B{s_}" for s_ in prev] + [f"A{s_}" for s_ in prev if s_ >= NP]
        if it == D: need.append("P")
        if it == NI - 1: need.append("Z")
        w = ""
        top = max([int(x[1][1:]) for x in plan[it]], default=-1)
        if top > landed:
            w += f" vmcnt({13 - top})"; landed = top
        n = min(8 + it, 12)
        if need:
            for t_ in need: assert t_ in LQ and (t_[0] != "A" or LQ.count(t_) == 8), (it, t_)
            n = len(LQ) - 1 - max(len(LQ) - 1 - LQ[::-1].index(t_) for t_ in need)
            w += f" lgkmcnt({n})"
        if w: a("s_waitcnt" + w)
        items = []
        if it < len(groups):
            a("s_barrier")
            stamp(a, f"b{it}")
            if it == len(groups) - 1: stamp(a, "bl")
            items += [(f"ds_read_b128 {vr(breg(s_),4)}, v19 offset:{s_*4096}", f"B{s_}") for s_ in groups[it]]
            if it == len(groups) - 2: items.append(("ds_read_b32 v9, v16 offset:36", "Z"))
        if it == NI - 1:
            items += [("v_cmp_ne_u32 vcc, v5, v9", None), ("s_mov_b32 s80, 0\ns_mov_b32 s44, 0xffff0000", None), ("s_cbranch_vccnz L_pz_wait\nL_pz_ok:", None)]
        if n + sum(1 for x in items + plan[it] if x[1]) > 15:
            plan[it][0] = (f"s_waitcnt lgkmcnt({15 - len(plan[it])})\n" + plan[it][0][0], plan[it][0][1])
        items += plan[it]
        if not prev:
            for x in items: emit(x)
        elif O.rfirst:
            while items and items[0][1] and items[0][1][0] == "B": emit(items.pop(0))
        nm = 4 * len(prev); k = 0
        for s_ in prev:
            for t in range(4):
                cin = "0" if s_ == 0 else vr(AC+4*t, 4)
                a(f"v_mfma_f32_16x16x32_bf16 {vr(AC+4*t,4)}, {areg(s_ % 12, t, 4)}, {vr(breg(s_),4)}, {cin}")
                k += 1
                take = -(-len(items) // (nm - k + 1))
                for x in items[:take]: emit(x)
                items = items[take:]
    stamp(a, "mend")
    a("s_nop 0")
    for g in range(2):
        for i in range(4):
            if g == 0 and i == 2: a("s_nop 1")
            a(f"v_cvt_pk_bf16_f32 v{40+4*g+i}, v{AC+8*g+2*i}, v{AC+8*g+2*i+1}")
        for i in range(4):
            a(f"v_min_u32 v{40+4*g+i}, -2, v{40+4*g+i}")
        a(f"buffer_store_dwordx4 {vr(40+4*g,4)}, v8, {rs(R_WS)}, 0 offen offset:{g*512} sc1")
    stamp(a, "pst")
    a("s_waitcnt vmcnt(0)")
    stamp(a, "ack")
    a(f"""
    L_poll2:
    buffer_load_dwordx4 v[64:67], v6, {rs(R_WS)}, 0 offen sc1
    buffer_load_dwordx4 v[68:71], v6, {rs(R_WS)}, 0 offen offset:1024 sc1
    s_add_u32 s80, s80, 1
    s_cmp_ge_u32 s80, {SPIN}
    s_waitcnt vmcnt(1)
    v_max3_u32 v4, v64, v65, v66
    v_lshlrev_b32 v72, 16, v64
    v_and_b32 v73, s44, v64
    v_lshlrev_b32 v74, 16, v65
    v_and_b32 v75, s44, v65
    v_lshlrev_b32 v76, 16, v66
    v_and_b32 v77, s44, v66
    v_lshlrev_b32 v78, 16, v67
    v_and_b32 v79, s44, v67
    s_waitcnt vmcnt(0)
    v_max3_u32 v4, v4, v67, v68
    v_max3_u32 v5, v69, v70, v71
    v_max_u32 v4, v4, v5
    v_cmp_eq_u32 vcc, -1, v4
    s_cbranch_scc1 L_fin
    {"s_cbranch_vccnz L_poll2" if O.sl2 == 0 else f"s_cbranch_vccz L_fin"}
    {"" if O.sl2 == 0 else f"s_sleep {O.sl2}"}
    {"" if O.sl2 == 0 else "s_branch L_poll2"}
    L_fin:
    v_lshlrev_b32 v80, 16, v68
    v_and_b32 v81, s44, v68
    v_lshlrev_b32 v82, 16, v69
    v_and_b32 v83, s44, v69
    v_lshlrev_b32 v84, 16, v70
    v_and_b32 v85, s44, v70
    v_lshlrev_b32 v86, 16, v71
    v_and_b32 v87, s44, v71
    v_pk_add_f32 v[72:73], v[72:73], v[80:81]
    v_pk_add_f32 v[76:77], v[76:77], v[84:85]
    v_pk_add_f32 v[74:75], v[74:75], v[82:83]
    v_pk_add_f32 v[78:79], v[78:79], v[86:87]
    s_nop 0
    v_permlane32_swap_b32 v72, v76
    v_permlane32_swap_b32 v73, v77
    v_permlane32_swap_b32 v74, v78
    v_permlane32_swap_b32 v75, v79
    v_pk_add_f32 v[72:73], v[72:73], v[76:77]
    v_pk_add_f32 v[74:75], v[74:75], v[78:79]
    s_nop 1
    v_permlane16_swap_b32 v72, v74
    v_permlane16_swap_b32 v73, v75
    s_nop 0
    v_pk_add_f32 v[72:73], v[72:73], v[74:75]
    v_cvt_pk_bf16_f32 v64, v72, v73
    buffer_store_dword v64, v7, {rs(R_OUT)}, 0 offen
    {"s_waitcnt vmcnt(0)" if (O.stamp and O.endwait) else ""}
    """)
    if "npoll" in PTS:
        i = PTS["npoll"]
        a(f"s_waitcnt lgkmcnt(0)\ns_mul_i32 s{64+2*i}, s80, 100\ns_add_u32 s{64+2*i}, s{64+2*i}, s64")
    stamp_flush(a)
    a("L_end:")
    a("s_endpgm")
    a(f"""
    L_pz_wait:
    s_sleep 4
    buffer_load_dword v9, v18, {rs(R_WS)}, 0 offen sc1
    s_add_u32 s80, s80, 1
    s_cmp_ge_u32 s80, {SPIN}
    s_waitcnt vmcnt(0)
    v_cmp_ne_u32 vcc, v5, v9
    s_cbranch_scc1 L_pz_out
    s_cbranch_vccnz L_pz_wait
    L_pz_out:
    s_mov_b32 s80, {1000 if O.stamp else 0}
    s_branch L_pz_ok
    """)
    a("L_front_go_on:")
    if O.prio & 2: a("s_setprio 1")
    later = lines(f"""
    v_add_u32 v17, 49152, v16
    v_add_u32 v24, 49152, v20
    v_add_u32 v25, 49152, v21
    v_add_u32 v26, 49152, v22
    v_add_u32 v27, 49152, v23
    v_lshrrev_b32 v6, 1, v1
    s_lshl_b32 s54, s52, 1
    v_add_u32 v6, s54, v6
    v_lshlrev_b32 v6, 3, v6
    v_bfe_u32 v7, v2, 4, 1
    s_lshl_b32 s54, s47, 2
    v_add3_u32 v6, v6, v7, s54
    v_lshlrev_b32 v6, 10, v6
    v_and_b32 v7, 1, v1
    v_lshl_add_u32 v7, v7, 1, v5
    v_lshl_add_u32 v6, v7, 8, v6
    v_and_b32 v7, 15, v2
    v_lshl_add_u32 v14, v7, 4, v6
    v_add_u32 v14, {HA_OFF}, v14
    s_lshl_b32 s54, s48, 1
    s_add_u32 s54, s54, s47
    s_lshl_b32 s54, s54, 7
    s_lshr_b32 s57, s49, 1
    s_lshl_b32 s57, s57, 4
    s_add_u32 s54, s54, s57
    s_add_u32 s54, s54, {FA_OFF}
    v_lshl_add_u32 v15, v1, 2, s54
    s_mov_b32 s44, 0xbfb8aa3b
    s_mov_b32 s45, 0xbfb8aa3b
    {"" if O.own else f"v_mov_b32 v5, {SY_LDS + 32}"}
    s_mov_b32 s90, 1
    """ + P1_ROLE + FRONT_SETUP)
    if not O.fdef:
        a("s_waitcnt lgkmcnt(0)")
        if O.own: nonce1(a, False)
        for x in later: a(x)
        later = []
    ACC = [32, 48]
    def reads(c, s):
        slot = c % 4
        rng, so = slot // 2, (slot % 2) * 24576
        b = 12*s
        return [f"ds_read_b64_tr_b16 a[{b}:{b+1}], v{16+rng} offset:{so + 2048*s}",
                f"ds_read_b64_tr_b16 a[{b+2}:{b+3}], v{16+rng} offset:{so + 2048*s + 512}",
                f"ds_read_b128 a[{b+4}:{b+7}], v{20+4*rng+s} offset:{so}",
                f"ds_read_b128 a[{b+8}:{b+11}], v{20+4*rng+s} offset:{so + 4096}"]
    def mfma(c, s, mi):
        b = 12*s
        cin = "0" if (c == 0 and s == 0 and not O.roll) else vr(ACC[mi], 16)
        return f"v_mfma_f32_32x32x16_bf16 {vr(ACC[mi],16)}, {ar(b,4)}, {ar(b+4+4*mi,4)}, {cin}"
    if O.roll:
        assert not later
        for r in range(32): a(f"v_mov_b32 v{32+r}, 0")
        a("s_mov_b32 s81, 0")
    stamp(a, "fr")
    a("s_barrier")
    stamp(a, "c0")
    for s in range(3):
        for r in reads(0, s): a(r)
    for c in ([0, 1, 2, 3, 12, 13, 14] if O.roll else range(15)):
        if O.roll and c == 0: a("L_mm_loop:")
        if O.roll and c == 12:
            a("""
            s_add_u32 s81, s81, 1
            s_cmp_lt_u32 s81, 3
            s_cbranch_scc1 L_mm_loop
            """)
        now, later = later[:O.fdef], later[O.fdef:]
        for s in range(3):
            a(f"s_waitcnt lgkmcnt({[8,8,4][s]})")
            for mi in range(2):
                a(mfma(c, s, mi))
                if s == 0:
                    for r in reads(c, 3)[2*mi:2*mi+2]: a(r)
                else:
                    k = -(-len(now) // (4 - 2*(s-1) - mi))
                    for x in now[:k]: a(x)
                    now = now[k:]
        if c == O.vtc and O.vt:
            a(f"""
            s_cmp_lg_u32 s53, 2
            s_cbranch_scc1 L_novt
            v_mov_b32 v6, 0
            {f"buffer_load_dword v31, v29, {rs(R_WS)}, 0 offen" if O.vt & 1 else ""}
            {"global_load_dword v31, v6, s[12:13]" if O.vt & 2 else ""}
            L_novt:
            """)
        if O.own:
            if c == O.f2: nonce2(a, 12)
            if c == O.f3:
                a("s_waitcnt vmcnt(0)")
                nonce3(a, 12, False)
                a("v_xor_b32 v3, s86, v12")
        elif c == O.n3 + (1 if O.roll else 3): a("ds_read_b32 v12, v5")
        if c == O.n3 + (2 if O.roll else 4) and not O.own:
            assert not later
            a("v_xor_b32 v3, s86, v12")
        a("s_waitcnt lgkmcnt(0)")
        a("s_barrier")
        if not (O.roll and c < 12): stamp(a, f"c{c+1}")
        rr = [r for s in range(3) for r in reads(c + 1, s)]
        for r in rr[:4]: a(r)
        a(mfma(c, 3, 0))
        for r in rr[4:8]: a(r)
        a(mfma(c, 3, 1))
        for r in rr[8:]: a(r)
    a.c("last chunk: the first 32 rows finish first, their epilogue overlaps the MFMAs of the other 32")
    c = 15
    a("s_waitcnt lgkmcnt(8)")
    a(mfma(c, 0, 0))
    for r in reads(c, 3): a(r)
    a("s_waitcnt lgkmcnt(8)")
    a(mfma(c, 1, 0))
    a("s_waitcnt lgkmcnt(4)")
    a(mfma(c, 2, 0))
    a("s_waitcnt lgkmcnt(0)")
    a(mfma(c, 3, 0))
    a(mfma(c, 0, 1))
    a("s_nop 7\ns_nop 2")
    def epi(mi):
        A = ACC[mi]; t = 64 + 16*mi
        o = []
        if O.epi:
            pk = O.epi == 1
            def mul2(d, x, y): return [f"v_pk_mul_f32 v[{d}:{d+1}], v[{x}:{x+1}], v[{y}:{y+1}]"] if pk else [f"v_mul_f32 v{d}, v{x}, v{y}", f"v_mul_f32 v{d+1}, v{x+1}, v{y+1}"]
            def scl2(d, x): return [f"v_pk_mul_f32 v[{d}:{d+1}], v[{x}:{x+1}], s[44:45]"] if pk else [f"v_mul_f32 v{d}, s44, v{x}", f"v_mul_f32 v{d+1}, s44, v{x+1}"]
            def add2(d): return [f"v_pk_add_f32 v[{d}:{d+1}], v[{d}:{d+1}], 1.0 op_sel_hi:[1,0]"] if pk else [f"v_add_f32 v{d}, 1.0, v{d}", f"v_add_f32 v{d+1}, 1.0, v{d+1}"]
            ex = lambda r: f"v_exp_f32 v{t+r}, v{t+r}"
            rc = lambda r: f"v_rcp_f32 v{t+r}, v{t+r}"
            o += scl2(t, A) + scl2(t+2, A+2)
            o += [ex(0)] + scl2(t+4, A+4) + [ex(1)] + scl2(t+6, A+6)
            o += [ex(2)] + mul2(t+8, A, A+8) + [ex(3)] + add2(t)
            o += [ex(4)] + mul2(t+10, A+2, A+10) + [ex(5)] + add2(t+2)
            o += [ex(6)] + mul2(t+12, A+4, A+12) + [ex(7)] + add2(t+4)
            o += [rc(0)] + mul2(t+14, A+6, A+14) + [rc(1)] + add2(t+6)
            o += [rc(2)] + mul2(t, t, t+8) + [rc(3), rc(4), f"v_cvt_pk_bf16_f32 v{4+4*mi}, v{t}, v{t+1}", rc(5)] + mul2(t+2, t+2, t+10)
            o += [rc(6)] + mul2(t+4, t+4, t+12) + [rc(7), f"v_cvt_pk_bf16_f32 v{5+4*mi}, v{t+2}, v{t+3}"] + mul2(t+6, t+6, t+14)
            o += [f"v_cvt_pk_bf16_f32 v{6+4*mi}, v{t+4}, v{t+5}", f"v_cvt_pk_bf16_f32 v{7+4*mi}, v{t+6}, v{t+7}"]
            o.append(f"buffer_store_dwordx4 v[{4+4*mi}:{7+4*mi}], v14, {rs(R_WS)}, 0 offen offset:{2048*mi}")
            return o
        for r in range(0, 8, 2):
            o.append(f"v_pk_mul_f32 v[{t+r}:{t+r+1}], v[{A+r}:{A+r+1}], s[44:45]")
        for r in range(8):
            o.append(f"v_exp_f32 v{t+r}, v{t+r}")
        for r in range(0, 8, 2):
            o.append(f"v_pk_add_f32 v[{t+r}:{t+r+1}], v[{t+r}:{t+r+1}], 1.0 op_sel_hi:[1,0]")
        for r in range(8):
            o.append(f"v_rcp_f32 v{t+r}, v{t+r}")
        for r in range(0, 8, 2):
            o.append(f"v_pk_mul_f32 v[{t+r}:{t+r+1}], v[{t+r}:{t+r+1}], v[{A+r}:{A+r+1}]")
        for r in range(0, 8, 2):
            o.append(f"v_pk_mul_f32 v[{t+r}:{t+r+1}], v[{t+r}:{t+r+1}], v[{A+8+r}:{A+9+r}]")
        for d in range(4):
            o.append(f"v_cvt_pk_bf16_f32 v{4+4*mi+d}, v{t+2*d}, v{t+2*d+1}")
        o.append(f"buffer_store_dwordx4 v[{4+4*mi}:{7+4*mi}], v14, {rs(R_WS)}, 0 offen offset:{2048*mi}")
        return o
    for i, x in enumerate(epi(0)):
        if i == 0: a(mfma(c, 1, 1))
        if i == 5: a(mfma(c, 2, 1))
        if i == 8: a(mfma(c, 3, 1))
        a(x)
    for x in epi(1): a(x)
    stamp(a, "hst")
    a(f"""
    s_waitcnt vmcnt(0)
    buffer_store_dword v3, v15, {rs(R_WS)}, 0 offen
    """)
    stamp(a, "flg")
    if O.nb < 14: a("s_barrier")
    a(f"""
    L_hload:
    s_mov_b32 s80, 0
    s_cmp_lg_u32 s53, 0
    s_cbranch_scc1 L_poll1
    v_and_b32 v22, 7, v2
    v_lshl_add_u32 v22, v22, 7, s91
    L_pz0:
    buffer_load_dword v21, v22, {rs(R_WS)}, 0 offen sc1
    buffer_load_dword v20, v18, {rs(R_WS)}, 0 offen sc1
    s_add_u32 s80, s80, 1
    s_cmp_ge_u32 s80, {O.kfast}
    s_waitcnt vmcnt(0)
    v_cmp_ne_u32 vcc, v12, v21
    s_cbranch_vccz L_pz0_ok
    s_cbranch_scc1 L_poll1
    {"v_cmp_eq_u32 vcc, v3, v20" if O.stop else "v_cmp_ne_u32 vcc, v3, v20"}
    {"s_cbranch_vccnz L_poll1" if O.stop else "s_cbranch_vccz L_go"}
    s_sleep 2
    s_branch L_pz0
    L_pz0_ok:
    """)
    if O.pzdma:
        a.c("hand the news to the back waves: copy one of the flags into LDS, ahead of the first rows of h")
        a(f"""
        v_cmp_ne_u32 vcc, v3, v20
        s_mov_b32 m0, {SY_LDS + 36}
        s_mov_b64 exec, 1
        buffer_load_dword v22, {rs(R_WS)}, 0 offen sc1 lds
        s_mov_b64 exec, -1
        """)
    else:
        a(f"""
        v_mov_b32 v21, {SY_LDS + 36}
        v_cmp_ne_u32 vcc, v3, v20
        ds_write_b32 v21, v12
        s_waitcnt lgkmcnt(0)
        """)
    a(f"""
    s_cbranch_vccz L_go
    L_poll1:
    buffer_load_dword v20, v18, {rs(R_WS)}, 0 offen sc1
    s_add_u32 s80, s80, 1
    s_cmp_ge_u32 s80, {O.kfast}
    s_cbranch_scc1 L_slow
    s_waitcnt vmcnt(0)
    v_cmp_ne_u32 vcc, v3, v20
    s_cbranch_vccz L_go
    {f"s_sleep {O.sl1}" if O.sl1 else ""}
    s_branch L_poll1
    L_go:
    """)
    stamp(a, "go")
    def hload(s):
        a(f"s_add_u32 m0, s55, {s*4096}")
        a(f"s_add_u32 s57, s{82 if s < 7 else 83}, {s*8192}")
        a(f"buffer_load_dwordx4 v19, {rs(R_WS)}, s57 offen sc1 lds")
    def hloop(lead):
        hl = 0
        while hl < lead:
            hload(hl); hl += 1
        for gi, g in enumerate(groups):
            a(f"s_waitcnt vmcnt({hl - 1 - g[-1]})")
            a("s_barrier")
            for _ in range(len(groups[min(gi + 1, len(groups) - 1)])):
                if hl < 14 and hl < lead + g[-1] + len(groups[min(gi + 1, len(groups) - 1)]) + 1:
                    hload(hl); hl += 1
    hloop(O.hlead)
    stamp_flush(a)
    a.c("a producer publishes the write-through copy of h unless its whole group is seen on this die")
    a(f"""
    s_cmp_eq_u32 s90, 0
    s_cbranch_scc1 L_nob
    buffer_load_dword v20, v29, {rs(R_WS)}, 0 offen sc1
    s_waitcnt vmcnt(0)
    v_cmp_ne_u32 vcc, v3, v20
    s_cbranch_vccz L_nob
    """)
    sendb(a)
    a("L_nob:")
    if O.upd == 1: update(a, "L_front_end")
    a("s_endpgm")
    a.c("the producers are not all on this die (or are very late): fall back to the write-through copies")
    a("""
    L_slow:
    s_cmp_eq_u32 s90, 0
    s_cbranch_scc1 L_slow_sent
    """)
    sendb(a)
    a(f"""
    s_mov_b32 s90, 0
    L_slow_sent:
    s_movk_i32 s57, {FB_OFF - FA_OFF}
    s_mov_b32 s80, 0
    L_slow_poll:
    buffer_load_dword v20, v18, {rs(R_WS)}, 0 offen sc1
    buffer_load_dword v21, v18, {rs(R_WS)}, s57 offen sc1
    s_add_u32 s80, s80, 1
    s_waitcnt vmcnt(0)
    v_cmp_ne_u32 vcc, v3, v20
    s_cbranch_vccz L_go
    v_cmp_ne_u32 vcc, v12, v21
    s_cbranch_vccz L_slow_b
    s_sleep 8
    s_cmp_lt_u32 s80, {SPIN}
    s_cbranch_scc1 L_slow_poll
    L_slow_b:
    s_add_u32 s82, s82, {HB_OFF - HA_OFF}
    s_add_u32 s83, s83, {HB_OFF - HA_OFF}
    s_branch L_go
    """)
    a("L_code_end:")
    return a

if __name__ == "__main__":
    opts(sys.argv[2:])
    a = gen()
    hdr = HEADER + NOTES + f"; @launch grid=(256,1,1) block=(512,1,1) lds={LDS}\n.amdgcn_target \"amdgcn-amd-amdhsa--gfx950\"\n"
    open(sys.argv[1], "w").write(hdr + a.text() + kdesc(KN, NV + NA, NV))
```

```python
import os, sys
from asmlib import *

KN = "standalone__swiglu_ffn__sampling_kernel"
X_B, W_B, OUT_B, WS_B = 128*1024*2, 1024*3584*2, 128*1024*2, 268435456
FA_OFF = 0
FB_OFF = FA_OFF + 4096
EP_OFF = FA_OFF + 8192
RG_OFF = FA_OFF + 12288
PZ_OFF = FA_OFF + 16384
HA_OFF = 65536
P_OFF = 1 << 20
HB_OFF = (3 << 20) + HA_OFF
ST_OFF = 8 << 20
R_X, R_G, R_U, R_D, R_WS, R_OUT = 20, 24, 28, 32, 36, 40
WD_LDS = 98304
SY_LDS = WD_LDS + 57344
LDS = SY_LDS + 64
SPIN = int(os.environ.get("DIAG_SPIN", 1 << 18))
NV, NA = 96, 160

class O:
    stamp = 0; sync = 1; sw = 4; endwait = 1
    kfast = 32; sl1 = 0; sl2 = 0
    xg = 4; xlead = 4; r2 = 8; r3 = 13; hold = 5; wdk = 5; touch = 1; npf0 = 2
    wd13 = 3; wd14 = 5; hlead = 5; fine = 2
    NP = 11; N1 = 6; cap = 3; slk = 1
    fdef = 0; bdef = 0; cp0 = 1; cp1 = 0; roll = 0; upd = 0; own = 1; f2 = 6; f3 = 11; mark = 0; epi = 0; pzdma = 1; lag = 1; rfirst = 0; xafter = 0; x3 = 3; nb = 11; npz = 2; slz = 12; pzc = 99; pzf = 99; stop = 0; opf = 0; kick = 0; pad = 0; vt = 0; dfl = 0; dord = 0; pfl = 0; prio = 0; vtc = 7; n2 = 5; n3 = 9
PTS = {}
def opts(argv):
    for x in argv:
        k, v = x.split("=")
        if k == "pts":
            PTS.clear(); PTS["start"] = 0
            for i, nm in enumerate(v.split(",")): PTS[nm] = i + 1
            O.stamp = 1
        else:
            assert hasattr(O, k), k
            setattr(O, k, int(v))
def rs(r): return f"s[{r}:{r+3}]"
def stamp(a, name):
    if O.stamp and name in PTS:
        idx = PTS[name]
        a(f"s_memrealtime s[{64+2*idx}:{65+2*idx}]")
_fl = [0]
def stamp_flush(a):
    if not O.stamp: return
    _fl[0] += 1
    L = f"L_sf{_fl[0]}"
    a(f"""
    s_memrealtime s[78:79]
    s_cmp_lg_u32 s53, {O.sw}
    s_cbranch_scc1 {L}
    s_waitcnt lgkmcnt(0)
    """)
    for i in range(8):
        a(f"v_mov_b32 v{80+i}, s{64+2*i}")
    a(f"""
    s_lshl_b32 s63, s2, 5
    s_add_u32 s63, s63, {ST_OFF}
    v_mov_b32 v88, s63
    s_mov_b64 exec, 1
    buffer_store_dwordx4 v[80:83], v88, {rs(R_WS)}, 0 offen
    buffer_store_dwordx4 v[84:87], v88, {rs(R_WS)}, 0 offen offset:16
    s_mov_b64 exec, -1
    {L}:
    """)
def lines(txt):
    return [x.strip() for x in txt.split("\n") if x.strip()]

def pf_role(a, tag):
    a(f"""
    s_mov_b32 s50, 1
    s_cmp_ge_u32 s52, 3
    s_addc_u32 s51, s52, 0
    s_cmp_ge_u32 s52, 10
    s_addc_u32 s51, s51, 0
    s_mov_b32 s46, 0
    s_cmp_ge_u32 s52, 14
    s_cbranch_scc0 L_pf_role_{tag}
    s_and_b32 s50, s52, 1
    s_mul_i32 s46, s50, 7
    s_cmp_ge_u32 s52, 16
    s_cselect_b32 s51, 11, 3
    L_pf_role_{tag}:
    """)
P1_ROLE = """
    s_mov_b32 s50, 0
    s_cmp_ge_u32 s49, 3
    s_addc_u32 s51, s49, 0
    s_cmp_ge_u32 s49, 10
    s_addc_u32 s51, s51, 0
    s_mov_b32 s46, 0
"""
FRONT_SETUP = f"""
    s_getreg_b32 s86, hwreg(HW_REG_XCC_ID, 0, 4)
    s_lshl_b32 s86, s86, 24
    s_lshl_b32 s55, s53, 10
    s_lshl_b32 s82, s46, 13
    s_sub_u32 s83, 0, s82
    s_mul_i32 s54, s48, 112
    s_lshl_b32 s57, s50, 2
    s_add_u32 s54, s54, s57
    v_add_u32 v6, s54, v1
    v_lshlrev_b32 v6, 10, v6
    v_lshl_add_u32 v19, v2, 4, v6
    v_add_u32 v19, {HA_OFF}, v19
    s_lshl_b32 s54, s48, 1
    s_add_u32 s54, s54, s50
    s_lshl_b32 s54, s54, 7
    s_add_u32 s54, s54, {FA_OFF}
    v_min_u32 v6, 27, v2
    v_lshl_add_u32 v18, v6, 2, s54
    s_lshl_b32 s54, s48, 7
    s_add_u32 s54, s54, {RG_OFF}
    v_and_b32 v6, 31, v2
    v_lshl_add_u32 v29, v6, 2, s54
    v_and_b32 v7, 1, v6
    v_lshlrev_b32 v7, 7, v7
    v_lshrrev_b32 v8, 1, v6
    v_lshl_add_u32 v7, v8, 4, v7
    v_cmp_gt_u32 vcc, 14, v6
    s_lshl_b32 s54, s48, 8
    s_add_u32 s54, s54, {FA_OFF}
    v_add_u32 v7, s54, v7
    v_cndmask_b32 v29, v29, v7, vcc
    s_cmp_lt_u32 s49, 14
    s_cselect_b32 s54, 14, 0
    s_add_u32 s54, s54, s49
    s_lshl_b32 s54, s54, 10
    s_add_u32 s91, s54, {PZ_OFF}
    s_mov_b32 s38, {WS_B}
    s_mov_b32 s39, 0x20000
    s_mov_b64 s[36:37], s[16:17]
"""
def back_setup():
    p = [f"""
    s_mov_b64 s[32:33], s[10:11]
    s_mov_b32 s34, {W_B}
    s_mov_b32 s35, 0x20000
    s_mov_b64 s[36:37], s[16:17]
    s_mov_b32 s38, {WS_B}
    s_mov_b32 s39, 0x20000
    s_mov_b64 s[40:41], s[12:13]
    s_mov_b32 s42, {OUT_B}
    s_mov_b32 s43, 0x20000
    s_and_b32 s55, s53, 3
    s_lshl_b32 s55, s55, 10
    s_lshl_b32 s84, s46, 16
    s_sub_u32 s85, 0, s84
    {"s_getpc_b64 s[92:93]" if O.mark else ""}
    {"s_lshr_b32 s81, s55, 8" if O.mark else ""}
    {f"s_add_u32 s81, s81, {SY_LDS}" if O.mark else ""}
    """, f"""
    v_lshrrev_b32 v3, 3, v2
    v_and_b32 v4, 7, v2
    v_and_b32 v6, 6, v3
    v_xor_b32 v4, v4, v6
    v_lshl_add_u32 v3, v1, 3, v3
    s_mul_i32 s60, s48, 448
    v_add_u32 v3, s60, v3
    v_lshlrev_b32 v3, 11, v3
    s_lshl_b32 s60, s51, 7
    v_add_u32 v3, s60, v3
    v_lshl_add_u32 v17, v4, 4, v3
    v_lshlrev_b32 v3, 10, v1
    v_lshl_add_u32 v19, v2, 4, v3
    """, f"""
    v_lshrrev_b32 v3, 4, v2
    v_bfe_u32 v4, v2, 2, 2
    v_and_b32 v7, 1, v3
    v_lshrrev_b32 v6, 1, v3
    v_lshlrev_b32 v6, 4, v6
    v_lshl_add_u32 v6, v7, 2, v6
    v_add_u32 v6, v6, v4
    v_lshlrev_b32 v6, 7, v6
    v_and_b32 v8, 3, v2
    v_lshl_add_u32 v6, v8, 3, v6
    v_add_u32 v6, {WD_LDS}, v6
    v_lshrrev_b32 v4, 1, v4
    v_lshl_add_u32 v4, v7, 1, v4
    """, "\n".join(f"v_xor_b32 v7, {t}, v4\nv_lshl_add_u32 v{20+t}, v7, 5, v6" for t in range(4)), f"""
    v_bfe_u32 v4, v2, 3, 1
    v_lshl_add_u32 v6, v1, 1, v4
    s_lshl_b32 s60, s49, 3
    v_add_u32 v6, s60, v6
    v_lshlrev_b32 v6, 3, v6
    v_add_u32 v6, s48, v6
    v_lshlrev_b32 v6, 10, v6
    v_lshl_add_u32 v6, v3, 7, v6
    v_and_b32 v7, 7, v2
    v_lshl_add_u32 v6, v7, 4, v6
    v_add_u32 v8, {P_OFF}, v6
    """, f"""
    s_cmp_lt_u32 s49, 14
    s_cselect_b32 s61, 14*8, 0
    s_add_u32 s61, s61, s60
    s_lshl_b32 s61, s61, 7
    s_add_u32 s61, s61, {PZ_OFF}
    v_lshl_add_u32 v18, v7, 7, s61
    s_add_u32 s60, s60, s48
    s_lshl_b32 s60, s60, 13
    s_add_u32 s60, s60, {P_OFF}
    v_and_b32 v6, 15, v2
    v_lshl_add_u32 v6, v1, 4, v6
    v_lshlrev_b32 v6, 4, v6
    v_lshl_add_u32 v6, v3, 11, v6
    v_add_u32 v6, s60, v6
    """, f"""
    s_lshl_b32 s60, s50, 6
    s_lshl_b32 s61, s48, 3
    s_add_u32 s60, s60, s61
    v_add_u32 v7, s60, v7
    v_lshlrev_b32 v7, 11, v7
    v_lshl_add_u32 v7, v4, 3, v7
    v_and_b32 v4, 1, v1
    v_lshl_add_u32 v7, v4, 4, v7
    v_lshrrev_b32 v4, 1, v1
    v_lshl_add_u32 v7, v4, 6, v7
    v_and_b32 v4, 1, v3
    v_lshl_add_u32 v7, v4, 2, v7
    v_lshrrev_b32 v4, 1, v3
    v_lshl_add_u32 v7, v4, 5, v7
    s_lshl_b32 s60, s51, 7
    v_add_u32 v7, s60, v7
    """]
    return p
LDS_INIT = f"""
    v_mov_b32 v16, {SY_LDS}
    v_lshl_add_u32 v14, v1, 2, v16
    v_mov_b32 v9, 0
    ds_write_b32 v14, v9
    ds_write_b32 v14, v9 offset:16
    ds_write_b32 v16, v9 offset:36
    v_mov_b32 v15, -1
"""
def nonce1(a, line):
    a(f"""
    s_movk_i32 s88, {EP_OFF}
    s_load_dword s59, s[16:17], s88
    s_load_dword s87, s[14:15], 0
    """)
    if line:
        a(f"""
        s_lshl_b32 s88, s48, 7
        s_add_u32 s88, s88, {RG_OFF}
        s_load_dword s87, s[16:17], s88
        s_add_u32 s89, s88, 64
        s_load_dword s87, s[16:17], s89
        """)
def nonce2(a, vn):
    a(f"""
    v_mov_b32 v30, 0
    s_add_u32 s59, s59, 1
    s_bitset1_b32 s59, 31
    global_load_dword v{vn}, v30, s[14:15] sc1
    """)
def nonce3(a, vn, share=True):
    a(f"""
    v_cmp_eq_u32 vcc, 0, v{vn}
    v_mov_b32 v30, s59
    {f"v_mov_b32 v28, {SY_LDS + 32}" if share else "s_nop 0"}
    v_cndmask_b32 v{vn}, v{vn}, v30, vcc
    {f"ds_write_b32 v28, v{vn}" if share else ""}
    """)
def wd_list():
    L = [f"s_add_u32 m0, s55, {WD_LDS + s*4096}\ns_add_u32 s57, s{84 if s < 7 else 85}, {s*65536}\nbuffer_load_dwordx4 v17, {rs(R_D)}, s57 offen lds" for s in range(14)]
    if O.mark:
        for k, n in enumerate([O.N1] + ([O.NP] if O.NP > O.N1 else [])):
            L[n - 1] += f"\ns_add_u32 m0, s81, {16*k}\ns_mov_b64 exec, 1\nglobal_load_lds_dword v9, s[92:93]\ns_mov_b64 exec, -1"
    return L
def sendb(a):
    a(f"""
    s_mov_b32 s57, {HB_OFF - HA_OFF}
    s_movk_i32 s58, {FB_OFF - FA_OFF}
    buffer_store_dwordx4 v[4:7], v14, {rs(R_WS)}, s57 offen sc1
    buffer_store_dwordx4 v[8:11], v14, {rs(R_WS)}, s57 offen offset:2048 sc1
    s_waitcnt vmcnt(0)
    buffer_store_dword v12, v15, {rs(R_WS)}, s58 offen sc1
    """)

def update(a, done):
    a.c("one wave of the launch moves the epoch on: d_debug first, so that a late reader can tell")
    a(f"""
    s_lshl_b32 s54, s2, 3
    s_add_u32 s54, s54, s53
    s_cmp_eq_u32 s54, {255*8 + 3}
    s_cbranch_scc0 {done}
    v_mov_b32 v26, 0
    v_mov_b32 v27, {EP_OFF}
    s_mov_b64 exec, 1
    global_store_dword v26, v12, s[14:15] sc1
    s_waitcnt vmcnt(0)
    global_store_dword v27, v12, s[16:17] sc1
    s_mov_b64 exec, -1
    {done}:
    """)

NOTES = """;
"""

def gen():
    a = Asm()
    kstart(a, KN)
    if O.stamp and O.sync:
        a("""
        s_memrealtime s[44:45]
        s_waitcnt lgkmcnt(0)
        s_add_u32 s46, s44, 612
        s_and_b32 s46, s46, 0xfffffe00
        L_sync:
        s_memrealtime s[44:45]
        s_waitcnt lgkmcnt(0)
        s_sub_u32 s47, s44, s46
        s_cmp_lt_i32 s47, 0
        s_cbranch_scc1 L_sync
        """)
    stamp(a, "start")
    a(f"""
    s_load_dwordx8 s[4:11], s[0:1], 0
    s_load_dwordx4 s[12:15], s[0:1], 32
    s_load_dwordx2 s[16:17], s[0:1], 48
    v_lshrrev_b32 v1, 6, v0         ; wave
    s_cmp_ge_u32 s2, 256
    s_cbranch_scc1 L_end
    v_readfirstlane_b32 s53, v1
    s_and_b32 s48, s2, 7            ; j
    s_lshr_b32 s49, s2, 3           ; q
    v_and_b32 v2, 63, v0            ; lane
    s_mov_b32 s22, {X_B}
    s_mov_b32 s23, 0x20000
    s_mov_b32 s26, {W_B}
    s_mov_b32 s27, 0x20000
    """)
    if O.cp0:
        a.c("wave 1 of every workgroup brings four lines of the kernel's code into this die's L2")
        a(f"""
        s_cmp_eq_u32 s53, 1
        s_cbranch_scc0 L_nocp
        s_getpc_b64 s[44:45]
        L_pc:
        v_and_b32 v3, 3, v2
        v_lshl_add_u32 v3, s49, 2, v3
        v_min_u32 v3, (L_code_end-L_pc-4)/128, v3
        v_lshlrev_b32 v3, 7, v3
        global_load_dword v31, v3, s[44:45]
        L_nocp:
        """)
    a(f"""
    s_cmp_lt_u32 s49, 14
    s_cbranch_scc1 L_p1
    s_sub_u32 s52, s49, 14          ; p
    s_cmp_lg_u32 s53, 0
    s_cbranch_scc1 L_pf_other
    """)
    a.c("prefetch wave: per 64-row chunk 50 lines of Wg (odd p) or Wu (even p), and 8 rows of x")
    a(f"""
    s_lshr_b32 s54, s52, 1
    s_mul_i32 s54, s54, 50
    v_add_u32 v3, s54, v2
    v_mul_u32_u24 v5, 9363, v3
    v_lshrrev_b32 v5, 16, v5        ; row = i / 7
    v_mul_u32_u24 v6, 7, v5
    v_sub_u32 v6, v3, v6            ; column = i % 7
    v_mul_u32_u24 v5, 7168, v5
    v_lshl_add_u32 v5, v6, 7, v5
    s_mul_i32 s54, s48, 896
    v_add_u32 v5, s54, v5
    v_cmp_gt_u32 vcc, 50, v2
    s_movk_i32 s54, 448
    v_cmp_gt_u32 s[44:45], s54, v3
    v_bfrev_b32 v7, 2
    s_lshl_b32 s54, s52, 3
    s_and_b64 vcc, vcc, s[44:45]
    v_lshrrev_b32 v3, {O.xg.bit_length() - 1}, v2
    v_add_u32 v3, s54, v3
    v_lshlrev_b32 v6, 11, v3
    v_and_b32 v3, {O.xg - 1}, v2
    v_lshl_add_u32 v6, v3, 7, v6
    v_cndmask_b32 v10, v7, v5, vcc
    v_cmp_gt_u32 vcc, {8 * O.xg}, v2
    s_bitcmp1_b32 s52, 0
    s_nop 0
    v_cndmask_b32 v11, v7, v6, vcc  ; rows >= 128 fall out of range
    s_waitcnt lgkmcnt(0)
    s_cselect_b64 s[24:25], s[6:7], s[8:9]
    s_mov_b64 s[20:21], s[4:5]
    {"s_load_dword s87, s[24:25], 0" if O.kick else ""}
    """)
    stamp(a, "karg")
    npf = [0]
    def pf(c):
        if O.xafter and c == 0:
            a(f"buffer_load_dword v20, v10, {rs(R_G)}, 0 offen"); npf[0] += 1
            a(f"buffer_load_dword v22, v11, {rs(R_X)}, 0 offen"); npf[0] += 1
            return
        for g_ in range(16 // O.xg):
            if max(0, g_ * O.xg - O.xlead) == c:
                so = "0"
                if g_:
                    a(f"s_movk_i32 s58, {g_ * O.xg * 128}"); so = "s58"
                a(f"buffer_load_dword v22, v11, {rs(R_X)}, {so} offen"); npf[0] += 1
        so = "0"
        if c:
            a(f"s_mov_b32 s57, {c*64*7168}"); so = "s57"
        a(f"buffer_load_dword v20, v10, {rs(R_G)}, {so} offen {['', 'sc1', 'sc0', 'sc0 sc1'][O.pfl]}"); npf[0] += 1
    for c in range(O.npf0):
        pf(c)
        stamp(a, f"i{c}")
    if "l0" in PTS:
        a(f"s_waitcnt vmcnt({npf[0] - 1})"); stamp(a, "lx")
        a(f"s_waitcnt vmcnt({O.npf0 - 1})"); stamp(a, "l0")
        a(f"s_waitcnt vmcnt(0)"); stamp(a, "l2")
    a("s_branch L_pf_go_on")
    a(f"""
    L_p1:
    s_and_b32 s47, s49, 1
    s_lshr_b32 s52, s49, 1
    s_mul_i32 s54, s48, 7
    s_add_u32 s52, s52, s54
    s_cmp_lt_u32 s53, 4
    s_cbranch_scc1 L_front
    v_and_b32 v1, 3, v1
    s_lshl_b32 s54, s52, 7
    v_lshrrev_b32 v3, 3, v2
    v_and_b32 v4, 7, v2
    v_lshl_add_u32 v5, v1, 4, v3
    v_mul_u32_u24 v6, 7168, v5
    v_add_u32 v6, s54, v6
    v_and_b32 v7, 2, v3
    v_xor_b32 v7, v7, v4
    v_lshl_add_u32 v10, v7, 4, v6
    v_xor_b32 v11, 64, v10
    v_lshrrev_b32 v7, 1, v3
    v_xor_b32 v7, v7, v4
    s_lshl_b32 s54, s47, 6
    v_add_u32 v5, s54, v5
    v_lshlrev_b32 v5, 11, v5
    v_lshl_add_u32 v12, v7, 4, v5
    v_xor_b32 v13, 64, v12
    v_add_u32 v13, 0x4000, v13
    s_and_b32 s56, s53, 3
    s_lshl_b32 s56, s56, 11
    s_mov_b32 s30, {W_B}
    s_mov_b32 s31, 0x20000
    """)
    a(LDS_INIT)
    a("""
    s_waitcnt lgkmcnt(0)
    s_mov_b64 s[20:21], s[4:5]
    s_mov_b64 s[24:25], s[6:7]
    s_mov_b64 s[28:29], s[8:9]
    """)
    stamp(a, "karg")
    Q = []
    def dma(c, part="xw"):
        sl = (c % 4) * 24576
        L = list(enumerate([(12, R_X, c*128), (13, R_X, c*128), (10, R_G, c*458752), (10, R_G, c*458752+57344), (11, R_U, c*458752), (11, R_U, c*458752+57344)]))
        if O.dord == 1: L = [L[i] for i in (0, 2, 4, 1, 3, 5)]
        if O.dord == 2: L = [L[i] for i in (2, 3, 4, 5, 0, 1)]
        for k, (v, r, so) in L:
            if ("x" if k < 2 else "w") not in part: continue
            a(f"s_add_u32 m0, s56, {sl + (k//2)*8192 + (k%2)*1024}\ns_mov_b32 s57, {so}\nbuffer_load_dwordx4 v{v}, {rs(r)}, s57 offen {['', 'sc1', 'sc0', 'sc0 sc1'][O.dfl]} lds")
            Q.append(c)
    if O.x3:
        for c in range(O.x3): dma(c, "x")
    else: dma(0)
    stamp(a, "d0")
    a("s_branch L_back_go_on")
    a("L_front:")
    stamp(a, "fin")
    a(f"""
    v_bfe_u32 v4, v2, 4, 1
    v_lshrrev_b32 v5, 5, v2         ; k half
    v_bfe_u32 v6, v2, 2, 2
    v_lshrrev_b32 v7, 1, v6
    v_lshl_add_u32 v7, v4, 1, v7
    v_xor_b32 v7, v7, v1
    v_lshl_add_u32 v6, v5, 3, v6
    v_lshlrev_b32 v6, 7, v6
    v_lshl_add_u32 v6, v7, 5, v6
    v_lshl_add_u32 v6, v4, 13, v6
    v_and_b32 v7, 3, v2
    v_lshl_add_u32 v6, v7, 3, v6
    v_add_u32 v16, 0x2000, v6
    v_and_b32 v6, 31, v2
    v_bfe_u32 v7, v6, 1, 3
    v_xor_b32 v7, v7, v5
    v_lshlrev_b32 v6, 7, v6
    """)
    for s in range(4):
        a(f"v_xor_b32 v8, {2*s}, v7")
        a(f"v_lshl_add_u32 v{20+s}, v8, 4, v6")
    a("s_branch L_front_go_on")

    a("L_pf_go_on:")
    if not O.cp0:
        a(f"""
        s_cmp_lt_u32 s52, 16
        s_cbranch_scc1 L_nocp
        s_getpc_b64 s[44:45]
        L_pc:
        s_sub_u32 s44, s44, L_pc-{KN}
        s_subb_u32 s45, s45, 0
        s_and_b32 s54, s52, 1
        s_lshl_b32 s54, s54, 6
        v_add_u32 v3, s54, v2
        v_min_u32 v3, (L_code_end-{KN}-4)/128, v3
        v_lshlrev_b32 v3, 7, v3
        global_load_dword v23, v3, s[44:45]
        L_nocp:
        """)
    if O.touch:
        a.c("one first touch per workgroup, so that the address translations are there when they are needed")
        a("""
        s_cmp_lt_u32 s52, 14
        s_cselect_b64 s[44:45], s[16:17], s[12:13]
        s_cmp_lt_u32 s52, 12
        s_cselect_b64 s[44:45], s[10:11], s[44:45]
        s_cmp_lt_u32 s52, 8
        s_cselect_b64 s[44:45], s[8:9], s[44:45]
        s_cmp_lt_u32 s52, 4
        s_cselect_b64 s[44:45], s[6:7], s[44:45]
        s_and_b32 s54, s52, 3
        s_lshl_b32 s54, s54, 21
        s_cmp_lt_u32 s52, 14
        s_cselect_b32 s54, s54, 0
        s_load_dword s87, s[44:45], s54
        """)
    nonce1(a, True)
    def poison():
        a.c("fill this workgroup's inbox and that of the paired producer with the not-yet-written pattern")
        a(f"""
        s_lshl_b32 s54, s49, 3
        s_add_u32 s54, s54, s48
        s_lshl_b32 s57, s54, 13
        s_add_u32 s57, s57, {P_OFF}
        v_lshl_add_u32 v3, v2, 4, s57
        v_add_u32 v8, 0x1000, v3
        s_lshl_b32 s54, s54, 7
        s_add_u32 s54, s54, {PZ_OFF}
        v_mov_b32 v13, s54
        v_mov_b32 v4, -1
        v_mov_b32 v5, -1
        v_mov_b32 v6, -1
        v_mov_b32 v7, -1
        s_cmp_lt_u32 s52, 14
        """)
        for k in range(8):
            a(f"global_store_dwordx4 v{3 if k < 4 else 8}, v[4:7], s[16:17] offset:{(k % 4)*1024} sc1")
        a(f"""
        s_cbranch_scc0 L_pz_one
        v_subrev_u32 v3, {14*8*8192}, v3
        v_subrev_u32 v8, {14*8*8192}, v8
        """)
        for k in range(8):
            a(f"global_store_dwordx4 v{3 if k < 4 else 8}, v[4:7], s[16:17] offset:{(k % 4)*1024} sc1")
        a("L_pz_one:")
    for c in range(O.npf0, 16):
        if c == O.pzc:
            assert not (O.r2 < c <= O.r3 and False)
            poison(); npf[0] += 8; pmark = npf[0]
        if c == O.pzf:
            assert c > O.r3 and c > O.pzc
            a(f"s_waitcnt vmcnt({npf[0] - pmark})")
            a("global_store_dword v13, v12, s[16:17] sc1"); npf[0] += 1
        if c == O.r2:
            a("""
            s_getreg_b32 s86, hwreg(HW_REG_XCC_ID, 0, 4)
            s_lshl_b32 s86, s86, 24
            s_lshl_b32 s89, s49, 2
            s_add_u32 s88, s88, s89
            v_mov_b32 v31, s88
            s_waitcnt lgkmcnt(0)
            """)
            nonce2(a, 12); mark = npf[0]
        if c == O.r3:
            a(f"s_waitcnt vmcnt({npf[0] - mark})")
            nonce3(a, 12)
            a("v_xor_b32 v30, s86, v12")
            stamp(a, "non")
        pf(c)
    stamp(a, "hia")
    if O.hold >= 0: a(f"s_waitcnt vmcnt({O.hold})")
    stamp(a, "hib")
    a.c("announce this workgroup's die; bring the lines of the h buffer into L2 before they are written")
    a("global_store_dword v31, v30, s[16:17]")
    if O.pzc > 15: poison()
    a(f"""
    s_lshl_b32 s54, s52, 6
    v_add_u32 v3, s54, v2
    v_min_u32 v3, 895, v3
    s_mul_i32 s54, s48, 114688
    s_add_u32 s54, s54, {HA_OFF}
    v_lshl_add_u32 v3, v3, 7, s54
    global_load_dword v24, v3, s[16:17]
    """)
    if O.opf:
        a.c("likewise the sixteen output lines that this workgroup and its partner write at the end")
        pf_role(a, "o")
        a(f"""
        v_and_b32 v3, 7, v2
        v_bfe_u32 v4, v2, 3, 1
        v_lshl_add_u32 v3, v4, 6, v3
        s_lshl_b32 s54, s48, 3
        v_add_u32 v3, s54, v3
        s_lshl_b32 s54, s51, 7
        v_lshl_add_u32 v3, v3, 11, s54
        global_load_dword v25, v3, s[12:13]
        """)
    a(f"""
    s_waitcnt lgkmcnt(0)
    s_barrier
    {f"s_waitcnt vmcnt({1 + O.opf})" if O.pzf > 15 else ""}
    {"global_store_dword v13, v12, s[16:17] sc1" if O.pzf > 15 else ""}
    s_barrier
    """)
    stamp(a, "pfi")
    a("s_branch L_pf_front")
    a(f"""
    L_pf_other:
    s_cmp_ge_u32 s53, 4
    s_cbranch_scc1 L_back_pf
    s_waitcnt lgkmcnt(0)
    s_barrier
    s_barrier
    """)
    if O.vt & 2:
        a("""
        s_cmp_eq_u32 s53, 2
        s_cbranch_scc0 L_pf_front
        v_mov_b32 v6, 0
        global_load_dword v31, v6, s[12:13]
        """)
    if O.cp1:
        a.c("touch the code of the later phases again: it is the oldest resident of the L2 by now")
        a(f"""
        s_cmp_eq_u32 s53, 1
        s_cbranch_scc0 L_pf_front
        s_getpc_b64 s[44:45]
        L_pc1:
        v_min_u32 v3, 5, v2
        s_mul_i32 s54, s52, 6
        v_add_u32 v3, s54, v3
        v_min_u32 v3, (L_code_end-L_pc1-4)/128, v3
        v_lshlrev_b32 v3, 7, v3
        global_load_dword v31, v3, s[44:45]
        """)
    a(f"""
    L_pf_front:
    """)
    pf_role(a, "f")
    a(FRONT_SETUP)
    a(f"""
    v_mov_b32 v5, {SY_LDS + 32}
    ds_read_b32 v12, v5
    s_mov_b32 s90, 0
    v_bfrev_b32 v14, 2
    v_bfrev_b32 v15, 2
    s_waitcnt lgkmcnt(0)
    v_xor_b32 v3, s86, v12
    """)
    if O.upd == 0: update(a, "L_upd_done")
    if O.npz:
        a.c("look for the inbox flags while the Wd tile arrives (this also leaves them in L2 for the paired producer)")
        a(f"""
        s_cmp_lg_u32 s53, 0
        s_cbranch_scc1 L_pzp_done
        v_and_b32 v22, 7, v2
        v_lshl_add_u32 v22, v22, 7, s91
        s_mov_b32 s80, 0
        L_pzp:
        buffer_load_dword v21, v22, {rs(R_WS)}, 0 offen sc1
        s_add_u32 s80, s80, 1
        s_cmp_ge_u32 s80, {O.npz}
        s_waitcnt vmcnt(0)
        v_cmp_ne_u32 vcc, v12, v21
        s_cbranch_vccz L_pzp_done
        s_cbranch_scc1 L_pzp_done
        s_sleep {O.slz}
        s_branch L_pzp
        L_pzp_done:
        """)
    a(f"""
    s_barrier
    s_branch L_hload
    L_back_pf:
    v_and_b32 v1, 3, v1
    """)
    a(LDS_INIT)
    pf_role(a, "b")
    a("s_waitcnt lgkmcnt(0)")
    for p in back_setup(): a(p)
    a("s_barrier")
    wdl = wd_list()
    for i, d in enumerate(wdl):
        if i == O.wdk: a("s_barrier")
        a(d)
    a("ds_read_b32 v5, v16 offset:32")
    a("s_branch L_p2")

    a("L_back_go_on:")
    if O.pad & 4: a("s_nop 0")
    if O.prio & 1: a("s_setprio 1")
    if O.x3: dma(0, "w")
    dma(1, "w" if O.x3 > 1 else "xw")
    stamp(a, "d1")
    nonce1(a, False)
    a(P1_ROLE)
    pieces = back_setup()
    if not O.bdef:
        for p in pieces: a(p)
        pieces = []
    issued, wd, c0 = 3, 0, 0
    if O.roll:
        assert not pieces
        a("s_waitcnt lgkmcnt(0)")
        nonce2(a, 5)
        dma(2)
        a(f"""
        s_movk_i32 s62, {3*128}
        s_mov_b32 s63, {3*458752}
        s_mov_b32 s89, {3*458752 + 57344}
        s_mov_b32 s81, 0
        L_ld_loop:
        """)
        for c in range(4):
            sl = ((c + 3) % 4) * 24576
            a(f"""
            s_waitcnt vmcnt(12)
            s_barrier
            s_add_u32 m0, s56, {sl}
            s_nop 0
            buffer_load_dwordx4 v12, {rs(R_X)}, s62 offen lds
            s_add_u32 m0, s56, {sl + 1024}
            s_nop 0
            buffer_load_dwordx4 v13, {rs(R_X)}, s62 offen lds
            s_add_u32 m0, s56, {sl + 8192}
            s_addk_i32 s62, 128
            buffer_load_dwordx4 v10, {rs(R_G)}, s63 offen lds
            s_add_u32 m0, s56, {sl + 8192 + 1024}
            s_nop 0
            buffer_load_dwordx4 v10, {rs(R_G)}, s89 offen lds
            s_add_u32 m0, s56, {sl + 16384}
            s_nop 0
            buffer_load_dwordx4 v11, {rs(R_U)}, s63 offen lds
            s_add_u32 m0, s56, {sl + 16384 + 1024}
            s_add_u32 s63, s63, 458752
            buffer_load_dwordx4 v11, {rs(R_U)}, s89 offen lds
            s_add_u32 s89, s89, 458752
            """)
        a("""
        s_add_u32 s81, s81, 1
        s_cmp_lt_u32 s81, 3
        s_cbranch_scc1 L_ld_loop
        """)
        for c in range(3, 15): Q.extend([c] * 6)
        Q.insert(0, "n")
        issued, c0 = 15, 12
        O.n2, O.n3 = -1, 12
    else:
        dma(2, "w" if O.x3 > 2 else "xw")
    for c in range(c0, 16):
        stamp(a, f"w{c}")
        a(f"s_waitcnt vmcnt({len(Q) - 1 - max(i for i, t in enumerate(Q) if t == c)})" + (" lgkmcnt(0)" if (c == O.n3 + (1 if O.roll else 2) and not O.own) else ""))
        stamp(a, f"v{c}")
        a("s_barrier")
        stamp(a, f"c{c}")
        if c == O.n3:
            assert Q.index("n") < max(i for i, t in enumerate(Q) if t == c)
            nonce3(a, 5, not O.own)
        if issued < 16:
            dma(issued, "w" if issued < O.x3 else "xw"); issued += 1
        else:
            n = min({13: O.wd13, 14: O.wd14, 15: 14}[c], O.nb - wd)
            for d in wdl[wd:wd+n]:
                a(d); Q.extend(["d"] * d.count("_load_"))
            wd += n
        if c == O.n2:
            a("s_waitcnt lgkmcnt(0)")
            nonce2(a, 5); Q.append("n")
        elif pieces and c >= O.bdef: a(pieces.pop(0))
    assert not pieces
    if O.nb < 14: a(f"s_waitcnt vmcnt({O.nb - O.N1})")
    a("L_p2:")
    if O.pad & 1: a("s_nop 0")
    stamp(a, "p2in")
    def areg(slot, t, n, o=0):
        base = (slot*4 + t) * 4 + o
        return ar(base, n) if slot < 10 else vr(64 + base - 160, n)
    def areads(s, slot):
        out = []
        for t in range(4):
            out.append(f"ds_read_b64_tr_b16 {areg(slot, t, 2)}, v{20+t} offset:{s*4096}")
            out.append(f"ds_read_b64_tr_b16 {areg(slot, t, 2, 2)}, v{20+t} offset:{s*4096+1024}")
        return out
    def lsync(k):
        a(f"""
        {"" if O.mark else f"ds_write_b32 v14, v15 offset:{16*k}"}
        L_sy{k}:
        ds_read_b128 v[40:43], v16 offset:{16*k}
        s_waitcnt lgkmcnt(0)
        v_and_b32 v40, v40, v41
        v_and_b32 v42, v42, v43
        v_and_b32 v40, v40, v42
        v_cmp_eq_u32 vcc, 0, v40
        s_cbranch_vccnz L_sy{k}
        """)
    NP, N1 = O.NP, O.N1
    if not O.mark: a(f"s_waitcnt vmcnt({14 - N1})")
    stamp(a, "wv")
    lsync(0)
    stamp(a, "wd1")
    for s in range(N1):
        if s >= 1: a("s_waitcnt lgkmcnt(6)")
        for r in areads(s, s): a(r)
    if O.nb < 14:
        a.c("producers request the rest of their Wd tile once h is published")
        a("s_cmp_ge_u32 s49, 14")
        a("s_cbranch_scc1 L_nobf")
        a("s_barrier")
        for d in wdl[O.nb:]: a(d)
        a("L_nobf:")
    if NP > N1:
        if not O.mark: a(f"s_waitcnt vmcnt({14 - NP})")
        lsync(1)
        stamp(a, "wd2")
        for s in range(N1, NP):
            if s > N1: a("s_waitcnt lgkmcnt(6)")
            for r in areads(s, s): a(r)
    a(f"""
    s_cmp_lt_u32 s49, 14
    s_cbranch_scc1 L_nob2
    s_barrier
    L_nob2:
    s_waitcnt lgkmcnt(8)
    """)
    if O.pad & 8: a(".p2align 6, , 60\n".strip()) if False else a("s_nop 0")
    stamp(a, "rdy")
    if "all" in PTS:
        a("s_waitcnt vmcnt(0)"); stamp(a, "all")
    AC = 24
    groups = {2: [[0],[1,2],[3,4],[5,6],[7,8],[9,10],[11,12],[13]],
              3: [[0],[1],[2,3],[4,5],[6,7],[8,9],[10,11],[12],[13]],
              4: [[s_] for s_ in range(14)],
              8: [[0,1],[2,3],[4,5],[6,7],[8,9],[10,11],[12],[13]],
              5: [[0],[1],[2,3],[4,5,6],[7,8,9],[10,11,12],[13]],
              6: [[0],[1,2],[3,4,5],[6,7,8],[9,10,11],[12,13]],
              7: [[0],[1],[2,3],[4,5],[6,7,8],[9,10,11],[12,13]]}[O.fine]
    def breg(s): return 40 + 4*(s % 6)
    D = O.lag
    NI = len(groups) + D
    it_of = {s_: gi + D for gi, g in enumerate(groups) for s_ in g}
    plan = [[] for _ in range(NI)]
    room = [0] * D + [O.cap * len(groups[i - D]) for i in range(D, NI)]
    i = NI - 1
    for s_ in range(13, NP - 1, -1):
        for r in reversed(areads(s_, s_ % 12)):
            i = min(i, it_of[s_] - 1 - O.slk, len(groups) - 1)
            while room[i] == 0: i -= 1
            assert i >= 1 and (s_ < 12 or i > it_of[s_ - 12]), (s_, i)
            plan[i].insert(0, (r, f"A{s_}")); room[i] -= 1
    LQ = ["P"] * 8
    landed = NP - 1
    def emit(x):
        a(x[0])
        if x[1]: LQ.append(x[1])
    for it in range(NI):
        prev = groups[it - D] if it >= D else []
        need = [f"B{s_}" for s_ in prev] + [f"A{s_}" for s_ in prev if s_ >= NP]
        if it == D: need.append("P")
        if it == NI - 1: need.append("Z")
        w = ""
        top = max([int(x[1][1:]) for x in plan[it]], default=-1)
        if top > landed:
            w += f" vmcnt({13 - top})"; landed = top
        n = min(8 + it, 12)
        if need:
            for t_ in need: assert t_ in LQ and (t_[0] != "A" or LQ.count(t_) == 8), (it, t_)
            n = len(LQ) - 1 - max(len(LQ) - 1 - LQ[::-1].index(t_) for t_ in need)
            w += f" lgkmcnt({n})"
        if w: a("s_waitcnt" + w)
        items = []
        if it < len(groups):
            a("s_barrier")
            stamp(a, f"b{it}")
            if it == len(groups) - 1: stamp(a, "bl")
            items += [(f"ds_read_b128 {vr(breg(s_),4)}, v19 offset:{s_*4096}", f"B{s_}") for s_ in groups[it]]
            if it == len(groups) - 2: items.append(("ds_read_b32 v9, v16 offset:36", "Z"))
        if it == NI - 1:
            items += [("v_cmp_ne_u32 vcc, v5, v9", None), ("s_mov_b32 s80, 0\ns_mov_b32 s44, 0xffff0000", None), ("s_cbranch_vccnz L_pz_wait\nL_pz_ok:", None)]
        if n + sum(1 for x in items + plan[it] if x[1]) > 15:
            plan[it][0] = (f"s_waitcnt lgkmcnt({15 - len(plan[it])})\n" + plan[it][0][0], plan[it][0][1])
        items += plan[it]
        if not prev:
            for x in items: emit(x)
        elif O.rfirst:
            while items and items[0][1] and items[0][1][0] == "B": emit(items.pop(0))
        nm = 4 * len(prev); k = 0
        for s_ in prev:
            for t in range(4):
                cin = "0" if s_ == 0 else vr(AC+4*t, 4)
                a(f"v_mfma_f32_16x16x32_bf16 {vr(AC+4*t,4)}, {areg(s_ % 12, t, 4)}, {vr(breg(s_),4)}, {cin}")
                k += 1
                take = -(-len(items) // (nm - k + 1))
                for x in items[:take]: emit(x)
                items = items[take:]
    stamp(a, "mend")
    a("s_nop 0")
    for g in range(2):
        for i in range(4):
            if g == 0 and i == 2: a("s_nop 1")
            a(f"v_cvt_pk_bf16_f32 v{40+4*g+i}, v{AC+8*g+2*i}, v{AC+8*g+2*i+1}")
        for i in range(4):
            a(f"v_min_u32 v{40+4*g+i}, -2, v{40+4*g+i}")
        a(f"buffer_store_dwordx4 {vr(40+4*g,4)}, v8, {rs(R_WS)}, 0 offen offset:{g*512} sc1")
    stamp(a, "pst")
    a("s_waitcnt vmcnt(0)")
    stamp(a, "ack")
    a(f"""
    L_poll2:
    buffer_load_dwordx4 v[64:67], v6, {rs(R_WS)}, 0 offen sc1
    buffer_load_dwordx4 v[68:71], v6, {rs(R_WS)}, 0 offen offset:1024 sc1
    s_add_u32 s80, s80, 1
    s_cmp_ge_u32 s80, {SPIN}
    s_waitcnt vmcnt(1)
    v_max3_u32 v4, v64, v65, v66
    v_lshlrev_b32 v72, 16, v64
    v_and_b32 v73, s44, v64
    v_lshlrev_b32 v74, 16, v65
    v_and_b32 v75, s44, v65
    v_lshlrev_b32 v76, 16, v66
    v_and_b32 v77, s44, v66
    v_lshlrev_b32 v78, 16, v67
    v_and_b32 v79, s44, v67
    s_waitcnt vmcnt(0)
    v_max3_u32 v4, v4, v67, v68
    v_max3_u32 v5, v69, v70, v71
    v_max_u32 v4, v4, v5
    v_cmp_eq_u32 vcc, -1, v4
    s_cbranch_scc1 L_fin
    {"s_cbranch_vccnz L_poll2" if O.sl2 == 0 else f"s_cbranch_vccz L_fin"}
    {"" if O.sl2 == 0 else f"s_sleep {O.sl2}"}
    {"" if O.sl2 == 0 else "s_branch L_poll2"}
    L_fin:
    v_lshlrev_b32 v80, 16, v68
    v_and_b32 v81, s44, v68
    v_lshlrev_b32 v82, 16, v69
    v_and_b32 v83, s44, v69
    v_lshlrev_b32 v84, 16, v70
    v_and_b32 v85, s44, v70
    v_lshlrev_b32 v86, 16, v71
    v_and_b32 v87, s44, v71
    v_pk_add_f32 v[72:73], v[72:73], v[80:81]
    v_pk_add_f32 v[76:77], v[76:77], v[84:85]
    v_pk_add_f32 v[74:75], v[74:75], v[82:83]
    v_pk_add_f32 v[78:79], v[78:79], v[86:87]
    s_nop 0
    v_permlane32_swap_b32 v72, v76
    v_permlane32_swap_b32 v73, v77
    v_permlane32_swap_b32 v74, v78
    v_permlane32_swap_b32 v75, v79
    v_pk_add_f32 v[72:73], v[72:73], v[76:77]
    v_pk_add_f32 v[74:75], v[74:75], v[78:79]
    s_nop 1
    v_permlane16_swap_b32 v72, v74
    v_permlane16_swap_b32 v73, v75
    s_nop 0
    v_pk_add_f32 v[72:73], v[72:73], v[74:75]
    v_cvt_pk_bf16_f32 v64, v72, v73
    buffer_store_dword v64, v7, {rs(R_OUT)}, 0 offen
    {"s_waitcnt vmcnt(0)" if (O.stamp and O.endwait) else ""}
    """)
    if "npoll" in PTS:
        i = PTS["npoll"]
        a(f"s_waitcnt lgkmcnt(0)\ns_mul_i32 s{64+2*i}, s80, 100\ns_add_u32 s{64+2*i}, s{64+2*i}, s64")
    stamp_flush(a)
    a("L_end:")
    a("s_endpgm")
    a(f"""
    L_pz_wait:
    s_sleep 4
    buffer_load_dword v9, v18, {rs(R_WS)}, 0 offen sc1
    s_add_u32 s80, s80, 1
    s_cmp_ge_u32 s80, {SPIN}
    s_waitcnt vmcnt(0)
    v_cmp_ne_u32 vcc, v5, v9
    s_cbranch_scc1 L_pz_out
    s_cbranch_vccnz L_pz_wait
    L_pz_out:
    s_mov_b32 s80, {1000 if O.stamp else 0}
    s_branch L_pz_ok
    """)
    a("L_front_go_on:")
    if O.pad & 2: a("s_nop 0")
    if O.prio & 2: a("s_setprio 1")
    later = lines(f"""
    v_add_u32 v17, 49152, v16
    v_add_u32 v24, 49152, v20
    v_add_u32 v25, 49152, v21
    v_add_u32 v26, 49152, v22
    v_add_u32 v27, 49152, v23
    v_lshrrev_b32 v6, 1, v1
    s_lshl_b32 s54, s52, 1
    v_add_u32 v6, s54, v6
    v_lshlrev_b32 v6, 3, v6
    v_bfe_u32 v7, v2, 4, 1
    s_lshl_b32 s54, s47, 2
    v_add3_u32 v6, v6, v7, s54
    v_lshlrev_b32 v6, 10, v6
    v_and_b32 v7, 1, v1
    v_lshl_add_u32 v7, v7, 1, v5
    v_lshl_add_u32 v6, v7, 8, v6
    v_and_b32 v7, 15, v2
    v_lshl_add_u32 v14, v7, 4, v6
    v_add_u32 v14, {HA_OFF}, v14
    s_lshl_b32 s54, s48, 1
    s_add_u32 s54, s54, s47
    s_lshl_b32 s54, s54, 7
    s_lshr_b32 s57, s49, 1
    s_lshl_b32 s57, s57, 4
    s_add_u32 s54, s54, s57
    s_add_u32 s54, s54, {FA_OFF}
    v_lshl_add_u32 v15, v1, 2, s54
    s_mov_b32 s44, 0xbfb8aa3b
    s_mov_b32 s45, 0xbfb8aa3b
    {"" if O.own else f"v_mov_b32 v5, {SY_LDS + 32}"}
    s_mov_b32 s90, 1
    """ + P1_ROLE + FRONT_SETUP)
    if not O.fdef:
        a("s_waitcnt lgkmcnt(0)")
        if O.own: nonce1(a, False)
        for x in later: a(x)
        later = []
    ACC = [32, 48]
    def reads(c, s):
        slot = c % 4
        rng, so = slot // 2, (slot % 2) * 24576
        b = 12*s
        return [f"ds_read_b64_tr_b16 a[{b}:{b+1}], v{16+rng} offset:{so + 2048*s}",
                f"ds_read_b64_tr_b16 a[{b+2}:{b+3}], v{16+rng} offset:{so + 2048*s + 512}",
                f"ds_read_b128 a[{b+4}:{b+7}], v{20+4*rng+s} offset:{so}",
                f"ds_read_b128 a[{b+8}:{b+11}], v{20+4*rng+s} offset:{so + 4096}"]
    def mfma(c, s, mi):
        b = 12*s
        cin = "0" if (c == 0 and s == 0 and not O.roll) else vr(ACC[mi], 16)
        return f"v_mfma_f32_32x32x16_bf16 {vr(ACC[mi],16)}, {ar(b,4)}, {ar(b+4+4*mi,4)}, {cin}"
    if O.roll:
        assert not later
        for r in range(32): a(f"v_mov_b32 v{32+r}, 0")
        a("s_mov_b32 s81, 0")
    stamp(a, "fr")
    a("s_barrier")
    stamp(a, "c0")
    for s in range(3):
        for r in reads(0, s): a(r)
    for c in ([0, 1, 2, 3, 12, 13, 14] if O.roll else range(15)):
        if O.roll and c == 0: a("L_mm_loop:")
        if O.roll and c == 12:
            a("""
            s_add_u32 s81, s81, 1
            s_cmp_lt_u32 s81, 3
            s_cbranch_scc1 L_mm_loop
            """)
        now, later = later[:O.fdef], later[O.fdef:]
        for s in range(3):
            a(f"s_waitcnt lgkmcnt({[8,8,4][s]})")
            for mi in range(2):
                a(mfma(c, s, mi))
                if s == 0:
                    for r in reads(c, 3)[2*mi:2*mi+2]: a(r)
                else:
                    k = -(-len(now) // (4 - 2*(s-1) - mi))
                    for x in now[:k]: a(x)
                    now = now[k:]
        if c == O.vtc and O.vt:
            a(f"""
            s_cmp_lg_u32 s53, 2
            s_cbranch_scc1 L_novt
            v_mov_b32 v6, 0
            {f"buffer_load_dword v31, v29, {rs(R_WS)}, 0 offen" if O.vt & 1 else ""}
            {"global_load_dword v31, v6, s[12:13]" if O.vt & 2 else ""}
            L_novt:
            """)
        if O.own:
            if c == O.f2: nonce2(a, 12)
            if c == O.f3:
                a("s_waitcnt vmcnt(0)")
                nonce3(a, 12, False)
                a("v_xor_b32 v3, s86, v12")
        elif c == O.n3 + (1 if O.roll else 3): a("ds_read_b32 v12, v5")
        if c == O.n3 + (2 if O.roll else 4) and not O.own:
            assert not later
            a("v_xor_b32 v3, s86, v12")
        a("s_waitcnt lgkmcnt(0)")
        a("s_barrier")
        if not (O.roll and c < 12): stamp(a, f"c{c+1}")
        rr = [r for s in range(3) for r in reads(c + 1, s)]
        for r in rr[:4]: a(r)
        a(mfma(c, 3, 0))
        for r in rr[4:8]: a(r)
        a(mfma(c, 3, 1))
        for r in rr[8:]: a(r)
    a.c("last chunk: the first 32 rows finish first, their epilogue overlaps the MFMAs of the other 32")
    c = 15
    a("s_waitcnt lgkmcnt(8)")
    a(mfma(c, 0, 0))
    for r in reads(c, 3): a(r)
    a("s_waitcnt lgkmcnt(8)")
    a(mfma(c, 1, 0))
    a("s_waitcnt lgkmcnt(4)")
    a(mfma(c, 2, 0))
    a("s_waitcnt lgkmcnt(0)")
    a(mfma(c, 3, 0))
    a(mfma(c, 0, 1))
    a("s_nop 7\ns_nop 2")
    def epi(mi):
        A = ACC[mi]; t = 64 + 16*mi
        o = []
        if O.epi:
            pk = O.epi == 1
            def mul2(d, x, y): return [f"v_pk_mul_f32 v[{d}:{d+1}], v[{x}:{x+1}], v[{y}:{y+1}]"] if pk else [f"v_mul_f32 v{d}, v{x}, v{y}", f"v_mul_f32 v{d+1}, v{x+1}, v{y+1}"]
            def scl2(d, x): return [f"v_pk_mul_f32 v[{d}:{d+1}], v[{x}:{x+1}], s[44:45]"] if pk else [f"v_mul_f32 v{d}, s44, v{x}", f"v_mul_f32 v{d+1}, s44, v{x+1}"]
            def add2(d): return [f"v_pk_add_f32 v[{d}:{d+1}], v[{d}:{d+1}], 1.0 op_sel_hi:[1,0]"] if pk else [f"v_add_f32 v{d}, 1.0, v{d}", f"v_add_f32 v{d+1}, 1.0, v{d+1}"]
            ex = lambda r: f"v_exp_f32 v{t+r}, v{t+r}"
            rc = lambda r: f"v_rcp_f32 v{t+r}, v{t+r}"
            o += scl2(t, A) + scl2(t+2, A+2)
            o += [ex(0)] + scl2(t+4, A+4) + [ex(1)] + scl2(t+6, A+6)
            o += [ex(2)] + mul2(t+8, A, A+8) + [ex(3)] + add2(t)
            o += [ex(4)] + mul2(t+10, A+2, A+10) + [ex(5)] + add2(t+2)
            o += [ex(6)] + mul2(t+12, A+4, A+12) + [ex(7)] + add2(t+4)
            o += [rc(0)] + mul2(t+14, A+6, A+14) + [rc(1)] + add2(t+6)
            o += [rc(2)] + mul2(t, t, t+8) + [rc(3), rc(4), f"v_cvt_pk_bf16_f32 v{4+4*mi}, v{t}, v{t+1}", rc(5)] + mul2(t+2, t+2, t+10)
            o += [rc(6)] + mul2(t+4, t+4, t+12) + [rc(7), f"v_cvt_pk_bf16_f32 v{5+4*mi}, v{t+2}, v{t+3}"] + mul2(t+6, t+6, t+14)
            o += [f"v_cvt_pk_bf16_f32 v{6+4*mi}, v{t+4}, v{t+5}", f"v_cvt_pk_bf16_f32 v{7+4*mi}, v{t+6}, v{t+7}"]
            o.append(f"buffer_store_dwordx4 v[{4+4*mi}:{7+4*mi}], v14, {rs(R_WS)}, 0 offen offset:{2048*mi}")
            return o
        for r in range(0, 8, 2):
            o.append(f"v_pk_mul_f32 v[{t+r}:{t+r+1}], v[{A+r}:{A+r+1}], s[44:45]")
        for r in range(8):
            o.append(f"v_exp_f32 v{t+r}, v{t+r}")
        for r in range(0, 8, 2):
            o.append(f"v_pk_add_f32 v[{t+r}:{t+r+1}], v[{t+r}:{t+r+1}], 1.0 op_sel_hi:[1,0]")
        for r in range(8):
            o.append(f"v_rcp_f32 v{t+r}, v{t+r}")
        for r in range(0, 8, 2):
            o.append(f"v_pk_mul_f32 v[{t+r}:{t+r+1}], v[{t+r}:{t+r+1}], v[{A+r}:{A+r+1}]")
        for r in range(0, 8, 2):
            o.append(f"v_pk_mul_f32 v[{t+r}:{t+r+1}], v[{t+r}:{t+r+1}], v[{A+8+r}:{A+9+r}]")
        for d in range(4):
            o.append(f"v_cvt_pk_bf16_f32 v{4+4*mi+d}, v{t+2*d}, v{t+2*d+1}")
        o.append(f"buffer_store_dwordx4 v[{4+4*mi}:{7+4*mi}], v14, {rs(R_WS)}, 0 offen offset:{2048*mi}")
        return o
    for i, x in enumerate(epi(0)):
        if i == 0: a(mfma(c, 1, 1))
        if i == 5: a(mfma(c, 2, 1))
        if i == 8: a(mfma(c, 3, 1))
        a(x)
    for x in epi(1): a(x)
    stamp(a, "hst")
    a(f"""
    s_waitcnt vmcnt(0)
    buffer_store_dword v3, v15, {rs(R_WS)}, 0 offen
    """)
    stamp(a, "flg")
    if O.nb < 14: a("s_barrier")
    a(f"""
    L_hload:
    s_mov_b32 s80, 0
    s_cmp_lg_u32 s53, 0
    s_cbranch_scc1 L_poll1
    v_and_b32 v22, 7, v2
    v_lshl_add_u32 v22, v22, 7, s91
    L_pz0:
    buffer_load_dword v21, v22, {rs(R_WS)}, 0 offen sc1
    buffer_load_dword v20, v18, {rs(R_WS)}, 0 offen sc1
    s_add_u32 s80, s80, 1
    s_cmp_ge_u32 s80, {O.kfast}
    s_waitcnt vmcnt(0)
    v_cmp_ne_u32 vcc, v12, v21
    s_cbranch_vccz L_pz0_ok
    s_cbranch_scc1 L_poll1
    {"v_cmp_eq_u32 vcc, v3, v20" if O.stop else "v_cmp_ne_u32 vcc, v3, v20"}
    {"s_cbranch_vccnz L_poll1" if O.stop else "s_cbranch_vccz L_go"}
    s_sleep 2
    s_branch L_pz0
    L_pz0_ok:
    """)
    if O.pzdma:
        a.c("hand the news to the back waves: copy one of the flags into LDS, ahead of the first rows of h")
        a(f"""
        v_cmp_ne_u32 vcc, v3, v20
        s_mov_b32 m0, {SY_LDS + 36}
        s_mov_b64 exec, 1
        buffer_load_dword v22, {rs(R_WS)}, 0 offen sc1 lds
        s_mov_b64 exec, -1
        """)
    else:
        a(f"""
        v_mov_b32 v21, {SY_LDS + 36}
        v_cmp_ne_u32 vcc, v3, v20
        ds_write_b32 v21, v12
        s_waitcnt lgkmcnt(0)
        """)
    a(f"""
    s_cbranch_vccz L_go
    L_poll1:
    buffer_load_dword v20, v18, {rs(R_WS)}, 0 offen sc1
    s_add_u32 s80, s80, 1
    s_cmp_ge_u32 s80, {O.kfast}
    s_cbranch_scc1 L_slow
    s_waitcnt vmcnt(0)
    v_cmp_ne_u32 vcc, v3, v20
    s_cbranch_vccz L_go
    {f"s_sleep {O.sl1}" if O.sl1 else ""}
    s_branch L_poll1
    L_go:
    """)
    stamp(a, "go")
    def hload(s):
        a(f"s_add_u32 m0, s55, {s*4096}")
        a(f"s_add_u32 s57, s{82 if s < 7 else 83}, {s*8192}")
        a(f"buffer_load_dwordx4 v19, {rs(R_WS)}, s57 offen sc1 lds")
    def hloop(lead):
        hl = 0
        while hl < lead:
            hload(hl); hl += 1
        for gi, g in enumerate(groups):
            a(f"s_waitcnt vmcnt({hl - 1 - g[-1]})")
            a("s_barrier")
            for _ in range(len(groups[min(gi + 1, len(groups) - 1)])):
                if hl < 14 and hl < lead + g[-1] + len(groups[min(gi + 1, len(groups) - 1)]) + 1:
                    hload(hl); hl += 1
    hloop(O.hlead)
    stamp_flush(a)
    a.c("a producer publishes the write-through copy of h unless its whole group is seen on this die")
    a(f"""
    s_cmp_eq_u32 s90, 0
    s_cbranch_scc1 L_nob
    buffer_load_dword v20, v29, {rs(R_WS)}, 0 offen sc1
    s_waitcnt vmcnt(0)
    v_cmp_ne_u32 vcc, v3, v20
    s_cbranch_vccz L_nob
    """)
    sendb(a)
    a("L_nob:")
    if O.upd == 1: update(a, "L_front_end")
    a("s_endpgm")
    a.c("the producers are not all on this die (or are very late): fall back to the write-through copies")
    a("""
    L_slow:
    s_cmp_eq_u32 s90, 0
    s_cbranch_scc1 L_slow_sent
    """)
    sendb(a)
    a(f"""
    s_mov_b32 s90, 0
    L_slow_sent:
    s_movk_i32 s57, {FB_OFF - FA_OFF}
    s_mov_b32 s80, 0
    L_slow_poll:
    buffer_load_dword v20, v18, {rs(R_WS)}, 0 offen sc1
    buffer_load_dword v21, v18, {rs(R_WS)}, s57 offen sc1
    s_add_u32 s80, s80, 1
    s_waitcnt vmcnt(0)
    v_cmp_ne_u32 vcc, v3, v20
    s_cbranch_vccz L_go
    v_cmp_ne_u32 vcc, v12, v21
    s_cbranch_vccz L_slow_b
    s_sleep 8
    s_cmp_lt_u32 s80, {SPIN}
    s_cbranch_scc1 L_slow_poll
    L_slow_b:
    s_add_u32 s82, s82, {HB_OFF - HA_OFF}
    s_add_u32 s83, s83, {HB_OFF - HA_OFF}
    s_branch L_go
    """)
    a("L_code_end:")
    return a

if __name__ == "__main__":
    opts(sys.argv[2:])
    a = gen()
    hdr = HEADER + NOTES + f"; @launch grid=(256,1,1) block=(512,1,1) lds={LDS}\n.amdgcn_target \"amdgcn-amd-amdhsa--gfx950\"\n"
    open(sys.argv[1], "w").write(hdr + a.text() + kdesc(KN, NV + NA, NV))
```
